```python
import torch

def _softmax(x, axis=-1):
    return torch.softmax(x, dim=axis)
def _gelu(x):
    return torch.nn.functional.gelu(x, approximate="tanh")
def _silu(x):
    return torch.nn.functional.silu(x)
def _sigmoid(x):
    return torch.sigmoid(x)
def _layernorm(x, axis=-1, eps=1e-5):
    m = x.mean(dim=axis, keepdim=True)
    v = x.var(dim=axis, keepdim=True, unbiased=False)
    return (x - m) / torch.sqrt(v + eps)
def _scatter_add(tgt, idx, src, axis=0):
    return tgt.clone().index_add_(axis, idx, src)
def _segment_sum(src, seg, n):
    out = torch.zeros((n,) + src.shape[1:], dtype=src.dtype)
    return out.index_add_(0, seg, src)
def _pad(x, pw):
    flat = tuple(v for pair in reversed(pw) for v in pair)
    return torch.nn.functional.pad(x, flat)

kernel_name = 'sequential_preLN__sliding_block__moe_arch_mod__prompt'

def setup_inputs():

    _w = (lambda a: (lambda t: t.to(torch.bfloat16) if t.is_floating_point() else t)(torch.as_tensor(a)))
    def _A_setup():
        B, S, D = 1, 2048, 512
        return {
            "x": _w((lambda *s: torch.randn(*s, dtype=torch.bfloat16) * 0.05)(B, S, D)),
            "wqkv": _w((lambda *s: torch.randn(*s, dtype=torch.bfloat16) * 0.05)(D, 3 * D)),
            "wo": _w((lambda *s: torch.randn(*s, dtype=torch.bfloat16) * 0.05)(D, D)),
        }
    _A_in = _A_setup()

    def _B_setup():
        B, S, D, F, C = 1, 2048, 512, 1376, 2
        return {
            "x": _w((lambda *s: torch.randn(*s, dtype=torch.bfloat16) * 0.05)(B, S, D)),
            "w_r": _w((lambda *s: torch.randn(*s, dtype=torch.bfloat16) * 0.05)(D)),
            "w_gate": _w((lambda *s: torch.randn(*s, dtype=torch.bfloat16) * 0.05)(D, F)),
            "w_up": _w((lambda *s: torch.randn(*s, dtype=torch.bfloat16) * 0.05)(D, F)),
            "w_down": _w((lambda *s: torch.randn(*s, dtype=torch.bfloat16) * 0.05)(F, D)),
        }
    _B_in = _B_setup()

    return {
        "A_x": _A_in["x"],
        "A_wqkv": _A_in["wqkv"],
        "A_wo": _A_in["wo"],
        "B_x": _B_in["x"],
        "B_w_r": _B_in["w_r"],
        "B_w_gate": _B_in["w_gate"],
        "B_w_up": _B_in["w_up"],
        "B_w_down": _B_in["w_down"],
    }

def reference(A_x, A_wqkv, A_wo, B_x, B_w_r, B_w_gate, B_w_up, B_w_down):
    def _A_ref(x, wqkv, wo):
        B, S, D = x.shape
        H = 32; Dh = D // H; W = 256
        qkv = (lambda x, *d: x.permute(*d))((x @ wqkv).reshape(B, S, 3, H, Dh), 2, 0, 3, 1, 4)
        q, k, v = qkv[0], qkv[1], qkv[2]
        scores = torch.einsum("bhqd,bhkd->bhqk", q, k) * (Dh ** -0.5)
        idx = torch.arange(S)
        mask = (idx[:, None] - idx[None, :] >= 0) & (idx[:, None] - idx[None, :] < W)
        scores = torch.where(mask[None, None], scores, -1e9)
        p = _softmax(scores, axis=-1)
        o = torch.einsum("bhqk,bhkd->bhqd", p, v)
        return (lambda x, *d: x.permute(*d))(o, 0, 2, 1, 3).reshape(B, S, D) @ wo

    def _B_ref(x, w_r, w_gate, w_up, w_down):
        B, S, D = x.shape
        C = 2
        r = x @ w_r
        idx = torch.argsort(-r, axis=-1)[:, :C]
        idx_e = (lambda x, n, axis: torch.repeat_interleave(x, n, dim=axis))(idx.reshape(B, C, 1), D, axis=2)
        x_sel = (lambda x, i, axis: torch.take_along_dim(x, i, dim=axis))(x, idx_e, axis=1)
        g = _silu(x_sel @ w_gate)
        u = x_sel @ w_up
        y = (g * u) @ w_down
        r_sel = _sigmoid((lambda x, i, axis: torch.take_along_dim(x, i, dim=axis))(r, idx, axis=1))
        y = y * r_sel.reshape(B, C, 1)
        b_off = (torch.arange(B) * S).reshape(B, 1)
        flat_idx = (idx + b_off).reshape(B * C)
        zero = (x * 0.0).reshape(B * S, D)
        upd = _scatter_add(zero, flat_idx, y.reshape(B * C, D), axis=0)
        return x + upd.reshape(B, S, D)

    x = A_x
    h = x + _A_ref(_layernorm(x, axis=-1), A_wqkv, A_wo)
    h2 = h + _B_ref(_layernorm(h, axis=-1), B_w_r, B_w_gate, B_w_up, B_w_down)
    return h2
```

```python
import sys, struct, math

def f32(x):
    return "0x%08x" % struct.unpack("<I", struct.pack("<f", x))[0]

WS_KV = 0x000000
WS_O = 0x400000
WS_H = 0x600000
WS_ST = 0x800000
WS_A = 0x810000
WS_FKV = 0x820000
WS_FO = 0x828000
WS_SIZE = 0x10000000
WS_STAMP = 0x8000000
WS_DBG = 0x1000000

LOG2E = 1.4426950408889634
BIG = 1.0e30

class Asm:
    def __init__(self):
        self.L = []
    def __call__(self, s):
        for line in s.strip("\n").split("\n"):
            self.L.append("    " + line.strip())
    def label(self, s):
        self.L.append(s + ":")
    def nop(self, n):
        while n > 0:
            k = min(n, 16)
            self.L.append("    s_nop %d" % (k - 1))
            n -= k
    def text(self):
        return "\n".join(self.L) + "\n"

def vr(b, n):
    assert b % 2 == 0, "unaligned vgpr tuple %d" % b
    return "v[%d:%d]" % (b, b + n - 1)
def sr(b, n):
    return "s[%d:%d]" % (b, b + n - 1)

SPIN_LIMIT = 100000

def srd(A, d, base, size):
    A("s_mov_b32 s%d, s%d" % (d, base))
    A("s_mov_b32 s%d, s%d" % (d + 1, base + 1))
    A("s_mov_b32 s%d, 0x%x" % (d + 2, size))
    A("s_mov_b32 s%d, 0x20000" % (d + 3))

MFMA = "v_mfma_f32_32x32x16_bf16"

def gen_k1(opt):
    A = Asm()
    STAMPS = opt.get("stamps", False)
    nstamp = [0]
    def stamp():
        if STAMPS:
            A("s_memrealtime %s" % sr(70 + 2 * nstamp[0], 2))
            nstamp[0] += 1
    sX, sW, sWO, sWS, sDBG, sWR = 4, 8, 12, 16, 20, 24
    sWv, sT, sC, sB, sHP, sROT = 40, 41, 42, 43, 44, 45
    sS, sKC, sXo, sWo, sM0a, sSlotX, sSlotW = 46, 47, 48, 49, 50, 51, 52
    sTmp, sTmp2, sTmp3 = 53, 54, 55
    sWGL = 56
    sCnt = 57
    sN, sI = 58, 59
    sRdX, sRdW = 60, 61
    sMaskV = 62
    sXbase, sWbase = 64, 65
    sChunk = 66
    sOff = 67
    L_W = 65536
    L_WO = 0
    L_K = 65536
    L_V = 90112
    L_Q = 114688
    L_STR = 118784
    L_STM = 119296
    L_CS = 119808
    L_RED = 65536
    vL, vN, vG, vKap, vL16, vOnes = 1, 2, 3, 4, 5, 6
    vT0, vT1, vT2, vT3 = 8, 9, 10, 11
    vNon = 12
    vXr = 14
    vWr = 18
    vXg0, vXg1, vWg0, vWg1 = 22, 23, 24, 25
    vXa = 26
    vXc = 30
    vWa, vWc = 34, 35
    vSt = 36
    vXF = 44
    vWA = 60
    vWB = 76
    vAc0 = 92
    vAc1 = 108
    vE = 124
    vPk = 156
    vQ = 22
    vKad, vVad = 26, 27
    vKb, vVb = 28, 29
    vM, vMold = 30, 31
    vKa, vKbf = 32, 36
    vSa, vSb = 44, 60
    vCn = 76
    vCm = 92
    vO = 108
    vP = 124
    vVa, vVbf = 132, 140
    vMaskD = 148
    vWOa = 26
    vOF = 44
    vAW = 164
    vH0, vH1 = 76, 92
    vRa = 28

    A("s_cmp_ge_u32 s2, 256")
    A("s_cbranch_scc1 K1_END")
    stamp()
    A("s_load_dwordx4 s[28:31], s[0:1], 0")
    A("s_load_dwordx2 s[32:33], s[0:1], 16")
    A("s_load_dwordx2 s[34:35], s[0:1], 32")
    A("s_load_dwordx4 s[36:39], s[0:1], 72")
    A("v_and_b32 v%d, 63, v0" % vL)
    A("v_lshrrev_b32 v%d, 6, v0" % vT0)
    A("v_lshlrev_b32 v%d, 4, v%d" % (vL16, vL))
    A("v_readfirstlane_b32 s%d, v%d" % (sWv, vT0))
    A("s_and_b32 s%d, s2, 7" % sTmp)
    A("s_lshr_b32 s%d, s2, 3" % sTmp2)
    if opt.get("map", 2) == 1:
        A("s_lshr_b32 s%d, s%d, 4" % (sB, sTmp2))
        A("s_lshl_b32 s%d, s%d, 1" % (sTmp3, sTmp))
        A("s_add_u32 s%d, s%d, s%d" % (sB, sB, sTmp3))
        A("s_and_b32 s%d, s%d, 15" % (sHP, sTmp2))
        A("s_and_b32 s%d, s%d, 7" % (sROT, sHP))
    else:
        A("s_lshr_b32 s%d, s%d, 1" % (sB, sTmp))
        A("s_lshl_b32 s%d, s%d, 2" % (sB, sB))
        A("s_lshr_b32 s%d, s%d, 3" % (sTmp3, sTmp2))
        A("s_add_u32 s%d, s%d, s%d" % (sB, sB, sTmp3))
        A("s_and_b32 s%d, s%d, 1" % (sHP, sTmp))
        A("s_lshl_b32 s%d, s%d, 3" % (sHP, sHP))
        A("s_and_b32 s%d, s%d, 7" % (sROT, sTmp2))
        A("s_add_u32 s%d, s%d, s%d" % (sHP, sHP, sROT))
        A("s_lshl_b32 s%d, s%d, 1" % (sTmp3, sTmp3))
        A("s_add_u32 s%d, s%d, s%d" % (sROT, sROT, sTmp3))
    A("s_and_b32 s%d, s%d, 3" % (sT, sWv))
    A("s_lshr_b32 s%d, s%d, 2" % (sC, sWv))
    A("s_lshl_b32 s%d, s%d, 4" % (sWGL, sB))
    A("s_add_u32 s%d, s%d, s%d" % (sWGL, sWGL, sHP))
    A("v_lshrrev_b32 v%d, 3, v%d" % (vT0, vL))
    A("v_lshrrev_b32 v%d, 1, v%d" % (vT1, vT0))
    A("v_and_b32 v%d, 7, v%d" % (vT2, vL))
    A("v_xor_b32 v%d, v%d, v%d" % (vT2, vT2, vT1))
    A("v_lshlrev_b32 v%d, 4, v%d" % (vT2, vT2))
    A("v_lshl_add_u32 v%d, v%d, 10, v%d" % (vXg0, vT0, vT2))
    A("v_xor_b32 v%d, 64, v%d" % (vXg1, vXg0))
    A("v_add_u32 v%d, 0x2000, v%d" % (vXg1, vXg1))
    A("s_lshl_b32 s%d, s%d, 17" % (sXbase, sB))
    A("s_lshl_b32 s%d, s%d, 14" % (sTmp, sWv))
    A("s_add_u32 s%d, s%d, s%d" % (sXbase, sXbase, sTmp))
    A("s_lshl_b32 s%d, s%d, 1" % (sTmp, sWv))
    A("s_sub_u32 s%d, s%d, 4" % (sTmp, sTmp))
    A("s_cmp_eq_u32 s%d, 0" % sC)
    A("s_cselect_b32 s%d, s%d, s%d" % (sTmp, sWv, sTmp))
    A("s_lshl_b32 s%d, s%d, 10" % (sM0a, sTmp))
    A("s_lshl_b32 s%d, s%d, 6" % (sTmp, sTmp))
    A("s_movk_i32 s%d, 0x1556" % sTmp2)
    for (dst, add) in ((vWg0, 0), (vWg1, 64)):
        A("v_add_u32 v%d, s%d, v%d" % (vT0, sTmp, vL))
        if add:
            A("v_add_u32 v%d, 64, v%d" % (vT0, vT0))
        A("v_mul_u32_u24 v%d, s%d, v%d" % (vT1, sTmp2, vT0))
        A("v_lshrrev_b32 v%d, 16, v%d" % (vT1, vT1))
        A("v_mul_u32_u24 v%d, 12, v%d" % (vT2, vT1))
        A("v_sub_u32 v%d, v%d, v%d" % (vT2, vT0, vT2))
        A("v_lshrrev_b32 v%d, 2, v%d" % (vT3, vT2))
        A("v_and_b32 v%d, 3, v%d" % (vT2, vT2))
        A("v_lshlrev_b32 v%d, 4, v%d" % (vT2, vT2))
        A("v_lshl_add_u32 v%d, v%d, 10, v%d" % (vT2, vT3, vT2))
        A("v_mul_u32_u24 v%d, 0xc00, v%d" % (vT1, vT1))
        A("v_add_u32 v%d, v%d, v%d" % (dst, vT1, vT2))
    A("s_lshl_b32 s%d, s%d, 6" % (sWbase, sHP))
    A("s_waitcnt lgkmcnt(0)")
    srd(A, sX, 28, 0x200000)
    srd(A, sW, 30, 0x180000)
    stamp()

    def issue_stage(ndma_w):
        A("s_lshl_b32 s%d, s%d, 7" % (sXo, sKC))
        A("s_add_u32 s%d, s%d, s%d" % (sXo, sXo, sXbase))
        A("s_lshl_b32 s%d, s%d, 11" % (sTmp, sWv))
        A("s_add_u32 s%d, s%d, s%d" % (sTmp, sTmp, sSlotX))
        A("s_mov_b32 m0, s%d" % sTmp)
        A("s_mul_i32 s%d, s%d, 196608" % (sWo, sKC))
        A("buffer_load_dwordx4 v%d, %s, s%d offen lds" % (vXg0, sr(sX, 4), sXo))
        A("s_add_u32 s%d, s%d, 1024" % (sTmp, sTmp))
        A("s_mov_b32 m0, s%d" % sTmp)
        A("s_add_u32 s%d, s%d, s%d" % (sWo, sWo, sWbase))
        A("buffer_load_dwordx4 v%d, %s, s%d offen lds" % (vXg1, sr(sX, 4), sXo))
        A("s_add_u32 s%d, s%d, s%d" % (sTmp, sSlotW, sM0a))
        A("s_mov_b32 m0, s%d" % sTmp)
        A("s_add_u32 s%d, s%d, 1024" % (sTmp, sTmp))
        A("buffer_load_dwordx4 v%d, %s, s%d offen lds" % (vWg0, sr(sW, 4), sWo))
        if ndma_w == 2:
            A("s_mov_b32 m0, s%d" % sTmp)
            A("s_nop 0")
            A("buffer_load_dwordx4 v%d, %s, s%d offen lds" % (vWg1, sr(sW, 4), sWo))
    def advance_issue_state():
        A("s_add_u32 s%d, s%d, 1" % (sKC, sKC))
        A("s_and_b32 s%d, s%d, 7" % (sKC, sKC))
        A("s_add_u32 s%d, s%d, 16384" % (sSlotX, sSlotX))
        A("s_add_u32 s%d, s%d, 12288" % (sSlotW, sSlotW))

    A("s_and_b32 s%d, s%d, 7" % (sKC, sROT))
    A("s_mov_b32 s%d, 0" % sSlotX)
    A("s_mov_b32 s%d, %d" % (sSlotW, L_W))
    A.label("K1_PRO")
    issue_stage(1)
    A("s_cmp_eq_u32 s%d, 0" % sC)
    A("s_cbranch_scc1 K1_PRO1")
    A("s_mov_b32 m0, s%d" % sTmp)
    A("s_nop 0")
    A("buffer_load_dwordx4 v%d, %s, s%d offen lds" % (vWg1, sr(sW, 4), sWo))
    A.label("K1_PRO1")
    advance_issue_state()
    A("s_cmp_lt_u32 s%d, 49152" % sSlotX)
    A("s_cbranch_scc1 K1_PRO")
    stamp()
    srd(A, sWO, 32, 0x80000)
    srd(A, sWS, 38, WS_SIZE)
    srd(A, sDBG, 36, 256)
    srd(A, sWR, 34, 1024)
    A("s_cmp_lg_u32 s2, 0")
    A("s_cbranch_scc1 K1_NONONCE")
    A("s_cmp_lg_u32 s%d, 7" % sWv)
    A("s_cbranch_scc1 K1_NONONCE")
    A("s_memrealtime s[68:69]")
    A("s_waitcnt lgkmcnt(0)")
    A("s_or_b32 s69, s69, 0x80000000")
    A("v_mov_b32 v%d, s68" % vT0)
    A("v_mov_b32 v%d, s69" % vT1)
    A("v_mov_b32 v%d, 0" % vT2)
    A("s_mov_b64 exec, 1")
    A("buffer_store_dwordx2 %s, v%d, %s, 0 offen sc1" % (vr(vT0, 2), vT2, sr(sDBG, 4)))
    A("s_mov_b64 exec, -1")
    A.label("K1_NONONCE")
    A("s_cmp_lg_u32 s2, 1")
    A("s_cbranch_scc1 K1_NOSENT")
    A("v_mov_b32 v%d, -1" % vT0)
    A("v_mov_b32 v%d, -1" % vT1)
    A("v_mov_b32 v%d, -1" % vT2)
    A("v_mov_b32 v%d, -1" % vT3)
    A("v_lshlrev_b32 v%d, 4, v0" % vE)
    A("s_mov_b32 s%d, 0x%x" % (sTmp, WS_A))
    A("buffer_store_dwordx4 %s, v%d, %s, s%d offen" % (vr(vT0, 4), vE, sr(sWS, 4), sTmp))
    A.label("K1_NOSENT")
    A("v_and_b32 v%d, 31, v%d" % (vN, vL))
    A("v_lshrrev_b32 v%d, 5, v%d" % (vG, vL))
    A("s_cmp_lg_u32 s%d, 0" % sHP)
    A("s_cbranch_scc1 K1_NOZERO")
    A("s_cmp_lg_u32 s%d, 0" % sC)
    A("s_cbranch_scc1 K1_NOZERO")
    A("s_lshl_b32 s%d, s%d, 2" % (sTmp, sB))
    A("s_add_u32 s%d, s%d, s%d" % (sTmp, sTmp, sT))
    A("s_lshl_b32 s%d, s%d, 7" % (sTmp, sTmp))
    A("s_add_u32 s%d, s%d, 0x%x" % (sTmp, sTmp, WS_ST))
    A("v_lshlrev_b32 v%d, 2, v%d" % (vE, vN))
    A("v_lshl_add_u32 v%d, v%d, 13, v%d" % (vE + 1, vG, vE))
    A("v_add_u32 v%d, 0x4000, v%d" % (vE, vE))
    A("v_mov_b32 v%d, 0" % vE.__add__(2))
    A("buffer_store_dword v%d, v%d, %s, s%d offen sc1" % (vE + 2, vE + 1, sr(sWS, 4), sTmp))
    A("buffer_store_dword v%d, v%d, %s, s%d offen sc1" % (vE + 2, vE, sr(sWS, 4), sTmp))
    A.label("K1_NOZERO")
    A("v_and_b32 v%d, 0x13, v%d" % (vKap, vN))
    A("v_and_b32 v%d, 4, v%d" % (vT0, vN))
    A("v_lshl_or_b32 v%d, v%d, 1, v%d" % (vKap, vT0, vKap))
    A("v_and_b32 v%d, 8, v%d" % (vT0, vN))
    A("v_lshrrev_b32 v%d, 1, v%d" % (vT0, vT0))
    A("v_or_b32 v%d, v%d, v%d" % (vKap, vKap, vT0))
    A("v_bfe_u32 v%d, v%d, 1, 3" % (vT0, vKap))
    A("v_xor_b32 v%d, v%d, v%d" % (vT0, vT0, vG))
    A("v_lshlrev_b32 v%d, 4, v%d" % (vT0, vT0))
    A("s_lshl_b32 s%d, s%d, 12" % (sTmp, sT))
    A("v_lshl_add_u32 v%d, v%d, 7, s%d" % (vT1, vKap, sTmp))
    for s in range(4):
        A("v_xor_b32 v%d, %d, v%d" % (vT2, s << 5, vT0))
        A("v_add_u32 v%d, v%d, v%d" % (vXa + s, vT1, vT2))
    A("v_bfe_u32 v%d, v%d, 2, 2" % (vT0, vL))
    A("v_lshl_add_u32 v%d, v%d, 3, v%d" % (vT0, vG, vT0))
    A("v_mul_u32_u24 v%d, 192, v%d" % (vWa, vT0))
    A("v_bfe_u32 v%d, v%d, 4, 1" % (vT0, vL))
    A("v_lshl_add_u32 v%d, v%d, 5, v%d" % (vWa, vT0, vWa))
    A("v_and_b32 v%d, 1, v%d" % (vT0, vL))
    A("v_lshl_add_u32 v%d, v%d, 4, v%d" % (vWa, vT0, vWa))
    A("v_bfe_u32 v%d, v%d, 1, 1" % (vT0, vL))
    A("v_lshl_add_u32 v%d, v%d, 3, v%d" % (vWa, vT0, vWa))
    A("v_mov_b32 v%d, 0x3f803f80" % vOnes)
    for i in range(6):
        A("v_mov_b32 v%d, 0" % (vSt + i))
    for i in range(32):
        A("v_mov_b32 v%d, 0" % (vAc0 + i))
    A("s_mov_b32 s%d, 0" % sS)
    A("s_mov_b32 s%d, 0" % sRdX)
    A("s_mov_b32 s%d, %d" % (sRdW, L_W))
    A("s_cmp_eq_u32 s%d, 0" % sC)
    A("s_cbranch_scc0 K1_LOOP1")

    def main_loop(c):
        n = 3 if c == 0 else 4
        lab = "K1_LOOP%d" % c
        A.label(lab)
        A("s_cmp_lt_u32 s%d, 6" % sS)
        A("s_cbranch_scc1 %s_w2" % lab)
        A("s_cmp_eq_u32 s%d, 6" % sS)
        A("s_cbranch_scc1 %s_w1" % lab)
        A("s_waitcnt vmcnt(1)")
        A("s_branch %s_go" % lab)
        A.label("%s_w1" % lab)
        A("s_waitcnt vmcnt(%d)" % (n + 1))
        A("s_branch %s_go" % lab)
        A.label("%s_w2" % lab)
        A("s_waitcnt vmcnt(%d)" % (2 * n))
        A.label("%s_go" % lab)
        A("s_barrier")
        for s in range(4):
            A("v_add_u32 v%d, s%d, v%d" % (vXc + s, sRdX, vXa + s))
        A("v_add_u32 v%d, s%d, v%d" % (vWc, sRdW, vWa))
        nrd = 0
        for s in range(4):
            A("ds_read_b128 %s, v%d" % (vr(vXF + 4 * s, 4), vXc + s))
            seg = 0 if c == 0 else 2
            for half in range(2):
                A("ds_read_b64_tr_b16 %s, v%d offset:%d" % (vr(vWA + 4 * s + 2 * half, 2), vWc, (16 * s + 4 * half) * 192 + seg * 64))
            if c == 0:
                for half in range(2):
                    A("ds_read_b64_tr_b16 %s, v%d offset:%d" % (vr(vWB + 4 * s + 2 * half, 2), vWc, (16 * s + 4 * half) * 192 + 64))
            if s == 1:
                A("s_cmp_lt_u32 s%d, 5" % sS)
                A("s_cbranch_scc0 %s_noissue" % lab)
                issue_stage(1 if c == 0 else 2)
                advance_issue_state()
                A("s_and_b32 s%d, s%d, 0xffff" % (sSlotX, sSlotX))
                A("s_cmp_eq_u32 s%d, 0" % sSlotX)
                A("s_cselect_b32 s%d, %d, s%d" % (sSlotW, L_W, sSlotW))
                A("s_branch %s_issued" % lab)
                A.label("%s_noissue" % lab)
                A("s_cmp_eq_u32 s%d, 5" % sS)
                A("s_cbranch_scc0 %s_issued" % lab)
                A("v_mov_b32 v%d, 0" % vT0)
                A("buffer_load_dwordx2 %s, v%d, %s, 0 offen sc1" % (vr(vNon, 2), vT0, sr(sDBG, 4)))
                A.label("%s_issued" % lab)
        per = 5 if c == 0 else 3
        for s in range(4):
            A("s_waitcnt lgkmcnt(%d)" % (per * (3 - s)))
            X = vr(vXF + 4 * s, 4)
            if c == 0:
                A("%s %s, %s, %s, %s" % (MFMA, vr(vAc0, 16), vr(vWA + 4 * s, 4), X, vr(vAc0, 16)))
                for i in range(4):
                    A("v_dot2_f32_bf16 v%d, v%d, v%d, v%d" % (vSt + (i & 1), vWA + 4 * s + i, vOnes, vSt + (i & 1)))
                A("%s %s, %s, %s, %s" % (MFMA, vr(vAc1, 16), vr(vWB + 4 * s, 4), X, vr(vAc1, 16)))
                for i in range(4):
                    A("v_dot2_f32_bf16 v%d, v%d, v%d, v%d" % (vSt + 2 + (i & 1), vWB + 4 * s + i, vOnes, vSt + 2 + (i & 1)))
            else:
                A("%s %s, %s, %s, %s" % (MFMA, vr(vAc0, 16), X, vr(vWA + 4 * s, 4), vr(vAc0, 16)))
                for i in range(4):
                    A("v_dot2_f32_bf16 v%d, v%d, v%d, v%d" % (vSt + (i & 1), vXF + 4 * s + i, vOnes, vSt + (i & 1)))
                    A("v_dot2_f32_bf16 v%d, v%d, v%d, v%d" % (vSt + 2 + (i & 1), vXF + 4 * s + i, vXF + 4 * s + i, vSt + 2 + (i & 1)))
                    A("v_dot2_f32_bf16 v%d, v%d, v%d, v%d" % (vSt + 4 + (i & 1), vWA + 4 * s + i, vOnes, vSt + 4 + (i & 1)))
        A("s_add_u32 s%d, s%d, 16384" % (sRdX, sRdX))
        A("s_and_b32 s%d, s%d, 0xffff" % (sRdX, sRdX))
        A("s_add_u32 s%d, s%d, 12288" % (sRdW, sRdW))
        A("s_cmp_eq_u32 s%d, 0" % sRdX)
        A("s_cselect_b32 s%d, %d, s%d" % (sRdW, L_W, sRdW))
        A("s_add_u32 s%d, s%d, 1" % (sS, sS))
        A("s_cmp_lt_u32 s%d, 8" % sS)
        A("s_cbranch_scc1 %s" % lab)

    def xhalf_add(v, tmp):
        A("v_mov_b32 v%d, v%d" % (tmp, v))
        A.nop(2)
        A("v_permlane32_swap_b32 v%d, v%d" % (v, tmp))
        A.nop(1)
        A("v_add_f32 v%d, v%d, v%d" % (v, v, tmp))

    main_loop(0)
    stamp()
    A.nop(3)
    A("v_add_f32 v%d, v%d, v%d" % (vSt, vSt, vSt + 1))
    A("v_add_f32 v%d, v%d, v%d" % (vSt + 2, vSt + 2, vSt + 3))
    xhalf_add(vSt, vT0)
    xhalf_add(vSt + 2, vT1)
    A("s_lshl_b32 s%d, s%d, 8" % (sTmp, sT))
    A("s_add_u32 s%d, s%d, %d" % (sTmp, sTmp, L_CS))
    A("v_lshl_add_u32 v%d, v%d, 2, s%d" % (vT0, vN, sTmp))
    A("ds_write_b32 v%d, v%d" % (vT0, vSt))
    A("ds_write_b32 v%d, v%d offset:128" % (vT0, vSt + 2))
    A("v_lshl_add_u32 v%d, v%d, 4, s%d" % (vT1, vG, sTmp))
    A("s_waitcnt lgkmcnt(0)")
    for tile in range(2):
        for a in range(4):
            A("ds_read_b128 %s, v%d offset:%d" % (vr(vE + 16 * tile + 4 * a, 4), vT1, tile * 128 + a * 32))
    A("s_lshl_b32 s%d, s%d, 7" % (sTmp, sT))
    A("v_lshl_add_u32 v%d, v%d, 2, s%d" % (vT0, vKap, sTmp))
    A("s_waitcnt lgkmcnt(0)")
    A("s_barrier")
    A("ds_read_b32 v%d, v%d offset:%d" % (vT2, vT0, L_STR - 65536) if False else "v_add_u32 v%d, %d, v%d" % (vT0, L_STR, vT0))
    A("ds_read_b32 v%d, v%d" % (vT2, vT0))
    A("ds_read_b32 v%d, v%d offset:%d" % (vT3, vT0, L_STM - L_STR))
    A("s_lshl_b32 s%d, s%d, 11" % (sTmp, sT))
    A("s_add_u32 s%d, s%d, %d" % (sTmp2, sTmp, L_K + 8 * 2048))
    A("v_add_u32 v%d, s%d, v%d" % (vT0, sTmp2, vL16))
    A("s_lshl_b32 s%d, s%d, 14" % (sOff, sWGL))
    A("s_add_u32 s%d, s%d, s%d" % (sOff, sOff, sTmp))
    A("s_waitcnt lgkmcnt(0)")
    for r in range(16):
        A("v_mul_f32 v%d, v%d, v%d" % (vAc1 + r, vAc1 + r, vT2))
        A("v_fmac_f32 v%d, v%d, v%d" % (vAc1 + r, vE + 16 + r, vT3))
    for i in range(8):
        A("v_cvt_pk_bf16_f32 v%d, v%d, v%d" % (vPk + i, vAc1 + 2 * i, vAc1 + 2 * i + 1))
    A("buffer_store_dwordx4 %s, v%d, %s, s%d offen sc1" % (vr(vPk, 4), vL16, sr(sWS, 4), sOff))
    A("buffer_store_dwordx4 %s, v%d, %s, s%d offen offset:1024 sc1" % (vr(vPk + 4, 4), vL16, sr(sWS, 4), sOff))
    A("ds_write_b128 v%d, %s" % (vT0, vr(vPk, 4)))
    A("ds_write_b128 v%d, %s offset:1024" % (vT0, vr(vPk + 4, 4)))
    A("v_mul_f32 v%d, %s, v%d" % (vT2, f32(0.25 * LOG2E), vT2))
    A("v_mul_f32 v%d, %s, v%d" % (vT3, f32(0.25 * LOG2E), vT3))
    for r in range(16):
        A("v_mul_f32 v%d, v%d, v%d" % (vAc0 + r, vAc0 + r, vT2))
        A("v_fmac_f32 v%d, v%d, v%d" % (vAc0 + r, vE + r, vT3))
    for i in range(4):
        A("v_cvt_pk_bf16_f32 v%d, v%d, v%d" % (vQ + i, vAc0 + 2 * i, vAc0 + 2 * i + 1))
    for i in range(4):
        A("v_cvt_pk_bf16_f32 v%d, v%d, v%d" % (vPk + 8 + i, vAc0 + 8 + 2 * i, vAc0 + 8 + 2 * i + 1))
    A("s_lshl_b32 s%d, s%d, 10" % (sTmp, sT))
    A("s_add_u32 s%d, s%d, %d" % (sTmp, sTmp, L_Q))
    A("v_add_u32 v%d, s%d, v%d" % (vT0, sTmp, vL16))
    A("ds_write_b128 v%d, %s" % (vT0, vr(vPk + 8, 4)))
    A("s_branch K1_PUB")

    main_loop(1)
    if STAMPS:
        nstamp[0] -= 1
    stamp()
    A.nop(3)
    A("v_add_f32 v%d, v%d, v%d" % (vSt, vSt, vSt + 1))
    A("v_add_f32 v%d, v%d, v%d" % (vSt + 2, vSt + 2, vSt + 3))
    A("v_add_f32 v%d, v%d, v%d" % (vSt + 4, vSt + 4, vSt + 5))
    xhalf_add(vSt, vT0)
    xhalf_add(vSt + 2, vT1)
    xhalf_add(vSt + 4, vT2)
    A("v_mul_f32 v%d, %s, v%d" % (vSt, f32(1.0 / 512), vSt))
    A("v_mul_f32 v%d, %s, v%d" % (vSt + 2, f32(1.0 / 512), vSt + 2))
    A("v_fma_f32 v%d, -v%d, v%d, v%d" % (vSt + 2, vSt, vSt, vSt + 2))
    A("v_max_f32 v%d, 0, v%d" % (vSt + 2, vSt + 2))
    A("v_add_f32 v%d, %s, v%d" % (vSt + 2, f32(1e-5), vSt + 2))
    A("v_rsq_f32 v%d, v%d" % (vSt + 2, vSt + 2))
    A("s_lshl_b32 s%d, s%d, 7" % (sTmp, sT))
    A("s_add_u32 s%d, s%d, %d" % (sTmp, sTmp, L_STR))
    A("v_lshl_add_u32 v%d, v%d, 2, s%d" % (vT0, vKap, sTmp))
    A("v_mul_f32 v%d, -v%d, v%d" % (vSt + 1, vSt, vSt + 2) if False else "v_mul_f32_e64 v%d, -v%d, v%d" % (vSt + 1, vSt, vSt + 2))
    A("ds_write_b32 v%d, v%d" % (vT0, vSt + 2))
    A("ds_write_b32 v%d, v%d offset:%d" % (vT0, vSt + 1, L_STM - L_STR))
    A("v_lshl_add_u32 v%d, v%d, 5, s%d" % (vT1, vG, sTmp))
    A("s_waitcnt lgkmcnt(0)")
    A("s_barrier")
    for q in range(4):
        off = (q & 1) * 16 + (q >> 1) * 64
        A("ds_read_b128 %s, v%d offset:%d" % (vr(vE + 4 * q, 4), vT1, off))
        A("ds_read_b128 %s, v%d offset:%d" % (vr(vE + 16 + 4 * q, 4), vT1, off + L_STM - L_STR))
    A("s_lshl_b32 s%d, s%d, 11" % (sTmp, sT))
    A("s_add_u32 s%d, s%d, %d" % (sTmp2, sTmp, L_V + 8 * 2048))
    A("v_add_u32 v%d, s%d, v%d" % (vT0, sTmp2, vL16))
    A("s_lshl_b32 s%d, s%d, 14" % (sOff, sWGL))
    A("s_add_u32 s%d, s%d, s%d" % (sOff, sOff, sTmp))
    A("s_add_u32 s%d, s%d, 8192" % (sOff, sOff))
    A("s_waitcnt lgkmcnt(0)")
    for r in range(16):
        A("v_mul_f32 v%d, v%d, v%d" % (vAc0 + r, vAc0 + r, vE + r))
        A("v_fmac_f32 v%d, v%d, v%d" % (vAc0 + r, vE + 16 + r, vSt + 4))
    for i in range(8):
        A("v_cvt_pk_bf16_f32 v%d, v%d, v%d" % (vPk + i, vAc0 + 2 * i, vAc0 + 2 * i + 1))
    A("buffer_store_dwordx4 %s, v%d, %s, s%d offen sc1" % (vr(vPk, 4), vL16, sr(sWS, 4), sOff))
    A("buffer_store_dwordx4 %s, v%d, %s, s%d offen offset:1024 sc1" % (vr(vPk + 4, 4), vL16, sr(sWS, 4), sOff))
    A("ds_write_b128 v%d, %s" % (vT0, vr(vPk, 4)))
    A("ds_write_b128 v%d, %s offset:1024" % (vT0, vr(vPk + 4, 4)))

    A.label("K1_PUB")
    A("v_lshlrev_b32 v%d, 3, v%d" % (vT1, vG))
    A("v_sub_u32 v%d, v%d, v%d" % (vT1, vKap, vT1))
    A("v_mov_b32 v%d, %s" % (vT2, f32(-BIG)))
    for r in range(16):
        jr = (r >> 3) * 16 + (r & 7)
        A("v_cmp_le_i32 vcc, %d, v%d" % (jr, vT1))
        A.nop(2)
        A("v_cndmask_b32 v%d, v%d, 0, vcc" % (vMaskD + r, vT2) if False else "v_cndmask_b32_e64 v%d, v%d, 0, vcc" % (vMaskD + r, vT2))
    A("s_mov_b32 s%d, 0x0000ffff" % sMaskV)
    A("s_mov_b32 s%d, 0x0000ffff" % (sMaskV + 1))
    A("s_lshl_b32 s%d, s%d, 10" % (sTmp, sC))
    A("s_add_u32 s%d, s%d, %d" % (sTmp, sTmp, L_K))
    A("v_add_u32 v%d, s%d, v%d" % (vKb, sTmp, vL16))
    A("s_lshl_b32 s%d, s%d, 8" % (sTmp, sC))
    A("s_add_u32 s%d, s%d, %d" % (sTmp, sTmp, L_V))
    A("v_add_u32 v%d, s%d, v%d" % (vVb, sTmp, vL16))
    for i in range(16):
        A("v_mov_b32 v%d, v%d" % (vVa + i, vOnes))
    for i in range(16):
        A("v_mov_b32 v%d, 0" % (vO + i))
    A("v_mov_b32 v%d, %s" % (vMold, f32(-BIG)))
    A("s_waitcnt vmcnt(0) lgkmcnt(0)")
    A("s_mov_b32 s%d, 0" % sCnt)
    A.label("K1_NONCE_CHK")
    A("v_readfirstlane_b32 s%d, v%d" % (sTmp, vNon + 1))
    A("s_cmp_lg_u32 s%d, 0" % sTmp)
    A("s_cbranch_scc1 K1_NONCE_OK")
    A("v_mov_b32 v%d, 0" % vT0)
    A("buffer_load_dwordx2 %s, v%d, %s, 0 offen sc1" % (vr(vNon, 2), vT0, sr(sDBG, 4)))
    A("s_add_u32 s%d, s%d, 1" % (sCnt, sCnt))
    A("s_waitcnt vmcnt(0)")
    A("s_cmp_lt_u32 s%d, %d" % (sCnt, SPIN_LIMIT))
    A("s_cbranch_scc1 K1_NONCE_CHK")
    A.label("K1_NONCE_OK")
    A("s_lshl_b32 s%d, s%d, 3" % (sTmp, sWGL))
    A("s_add_u32 s%d, s%d, s%d" % (sTmp, sTmp, sWv))
    A("s_lshl_b32 s%d, s%d, 3" % (sTmp, sTmp))
    A("s_add_u32 s%d, s%d, 0x%x" % (sTmp, sTmp, WS_FKV))
    A("v_mov_b32 v%d, 0" % vT0)
    A("s_mov_b64 exec, 1")
    A("buffer_store_dwordx2 %s, v%d, %s, s%d offen sc1" % (vr(vNon, 2), vT0, sr(sWS, 4), sTmp))
    A("s_mov_b64 exec, -1")
    A("s_barrier")
    stamp()
    A("v_lshrrev_b32 v%d, 3, v%d" % (vT0, vL))
    A("v_bfe_u32 v%d, v%d, 4, 1" % (vT1, vL))
    A("v_lshlrev_b32 v%d, 2, v%d" % (vT1, vT1))
    A("v_and_b32 v%d, 7, v%d" % (vT2, vL))
    A("v_xor_b32 v%d, v%d, v%d" % (vT2, vT2, vT1))
    A("v_lshlrev_b32 v%d, 4, v%d" % (vT2, vT2))
    A("v_lshl_add_u32 v%d, v%d, 10, v%d" % (vT2, vT0, vT2))
    A("s_and_b32 s%d, s%d, 7" % (sTmp, sHP))
    A("s_lshl_b32 s%d, s%d, 7" % (sTmp, sTmp))
    A("s_lshl_b32 s%d, s%d, 16" % (sTmp2, sWv))
    A("s_add_u32 s%d, s%d, s%d" % (sTmp, sTmp, sTmp2))
    A("s_lshl_b32 s%d, s%d, 13" % (sTmp2, sWv))
    for q in range(8):
        A("s_mov_b32 m0, s%d" % sTmp2)
        A("s_add_u32 s%d, s%d, 1024" % (sTmp2, sTmp2))
        A("buffer_load_dwordx4 v%d, %s, s%d offen lds" % (vT2, sr(sWO, 4), sTmp))
        A("s_add_u32 s%d, s%d, 8192" % (sTmp, sTmp))
    A("v_lshrrev_b32 v%d, 3, v%d" % (vT0, vL))
    A("v_and_b32 v%d, 3, v%d" % (vT1, vT0))
    A("v_lshrrev_b32 v%d, 2, v%d" % (vT0, vT0))
    A("v_lshl_add_u32 v%d, v%d, 3, v%d" % (vT1, vT0, vT1))
    A("s_lshr_b32 s%d, s%d, 1" % (sTmp, sT))
    A("s_lshl_b32 s%d, s%d, 4" % (sTmp, sTmp))
    A("s_and_b32 s%d, s%d, 1" % (sTmp2, sT))
    A("s_lshl_b32 s%d, s%d, 2" % (sTmp2, sTmp2))
    A("s_add_u32 s%d, s%d, s%d" % (sTmp, sTmp, sTmp2))
    A("s_lshl_b32 s%d, s%d, 5" % (sTmp2, sC))
    A("s_add_u32 s%d, s%d, s%d" % (sTmp, sTmp, sTmp2))
    A("s_lshr_b32 s%d, s%d, 3" % (sTmp2, sHP))
    A("s_lshl_b32 s%d, s%d, 6" % (sTmp2, sTmp2))
    A("s_add_u32 s%d, s%d, s%d" % (sTmp, sTmp, sTmp2))
    A("s_lshl_b32 s%d, s%d, 7" % (sTmp2, sB))
    A("s_add_u32 s%d, s%d, s%d" % (sTmp, sTmp, sTmp2))
    A("v_add_u32 v7, s%d, v%d" % (sTmp, vT1))
    A("v_and_b32 v%d, 7, v%d" % (vT0, vL))
    A("v_lshlrev_b32 v%d, 4, v%d" % (vT0, vT0))
    A("s_and_b32 s%d, s%d, 7" % (sTmp, sHP))
    A("s_lshl_b32 s%d, s%d, 7" % (sTmp, sTmp))
    A("v_lshl_add_u32 v%d, v7, 10, v%d" % (vT1, vT0))
    A("buffer_load_dwordx4 %s, v%d, %s, s%d offen" % (vr(vXr, 4), vT1, sr(sX, 4), sTmp))
    A("buffer_load_dwordx4 %s, v%d, %s, s%d offen" % (vr(vWr, 4), vT0, sr(sWR, 4), sTmp))
    A("s_cmp_eq_u32 s%d, 0" % sC)
    A("s_cbranch_scc1 K1_HAVEQ")
    A("s_lshl_b32 s%d, s%d, 10" % (sTmp, sT))
    A("s_add_u32 s%d, s%d, %d" % (sTmp, sTmp, L_Q))
    A("v_add_u32 v%d, s%d, v%d" % (vT0, sTmp, vL16))
    A("ds_read_b128 %s, v%d" % (vr(vQ, 4), vT0))
    A.label("K1_HAVEQ")

    A("s_mov_b32 s%d, 0" % sChunk)
    for r in range(16):
        A("v_mov_b32 v%d, v%d" % (vCm + r, vMaskD + r))
    A("s_add_u32 s%d, s%d, 8" % (sTmp, sT))
    A("s_mov_b32 s%d, 8" % sTmp2)
    A("s_mov_b32 s%d, s%d" % (sN, sT))
    A.label("K1_CHUNK")
    sKm, sKu = 68, 69
    A("s_lshl_b32 s%d, s%d, 11" % (sKm, sTmp))
    A("s_lshl_b32 s%d, s%d, 11" % (sKu, sTmp2))
    A("v_add_u32 v%d, s%d, v%d" % (vKad, sKm, vKb))
    A("ds_read_b128 %s, v%d" % (vr(vKbf, 4), vKad))
    A("v_add_u32 v%d, s%d, v%d" % (vKad, sKu, vKb))
    A("ds_read_b128 %s, v%d" % (vr(vKa, 4), vKad))
    A("v_mov_b32 v%d, v%d" % (vM, vMold))
    A("s_waitcnt lgkmcnt(1)")
    A("%s %s, %s, %s, %s" % (MFMA, vr(vSb, 16), vr(vKbf, 4), vr(vQ, 4), vr(vCm, 16)))
    A("%s %s, %s, %s, %s" % (MFMA, vr(vSa, 16), vr(vKbf, 4), vr(vQ, 4), vr(vCm, 16)))
    A("s_mov_b32 s%d, 0" % sI)
    A("s_cmp_eq_u32 s%d, 0" % sN)
    A("s_cbranch_scc1 K1_P1_DONE")
    def max16(S):
        for i in range(8):
            A("v_max3_f32 v%d, v%d, v%d, v%d" % (vM, S + 2 * i, S + 2 * i + 1, vM))
    A.nop(8)
    A.label("K1_P1")
    A("s_waitcnt lgkmcnt(0)")
    A("%s %s, %s, %s, 0" % (MFMA, vr(vSa, 16), vr(vKa, 4), vr(vQ, 4)))
    A("ds_read_b128 %s, v%d offset:2048" % (vr(vKbf, 4), vKad))
    A.nop(2)
    max16(vSb)
    A("s_add_u32 s%d, s%d, 1" % (sI, sI))
    A("s_cmp_ge_u32 s%d, s%d" % (sI, sN))
    A("s_cbranch_scc1 K1_P1_DONE")
    A("s_waitcnt lgkmcnt(0)")
    A("%s %s, %s, %s, 0" % (MFMA, vr(vSb, 16), vr(vKbf, 4), vr(vQ, 4)))
    A("v_add_u32 v%d, 4096, v%d" % (vKad, vKad))
    A("ds_read_b128 %s, v%d" % (vr(vKa, 4), vKad))
    A.nop(1)
    max16(vSa)
    A("s_add_u32 s%d, s%d, 1" % (sI, sI))
    A("s_cmp_lt_u32 s%d, s%d" % (sI, sN))
    A("s_cbranch_scc1 K1_P1")
    A.label("K1_P1_DONE")
    A("s_waitcnt lgkmcnt(0)")
    A("v_add_u32 v%d, s%d, v%d" % (vKad, sKm, vKb))
    A("ds_read_b128 %s, v%d" % (vr(vKbf, 4), vKad))
    A("v_add_u32 v%d, s%d, v%d" % (vVad, sKm, vVb))
    A("s_mov_b64 exec, %s" % sr(sMaskV, 2))
    A("ds_read_b128 %s, v%d" % (vr(vVbf, 4), vVad))
    A("ds_read_b128 %s, v%d offset:1024" % (vr(vVbf + 4, 4), vVad))
    A("s_mov_b64 exec, -1")
    A("v_add_u32 v%d, s%d, v%d" % (vKad, sKu, vKb))
    A("ds_read_b128 %s, v%d" % (vr(vKa, 4), vKad))
    A("v_add_u32 v%d, s%d, v%d" % (vVad, sKu, vVb))
    A.nop(4)
    max16(vSa)
    max16(vSb)
    A("v_mov_b32 v%d, v%d" % (vT0, vM))
    A.nop(2)
    A("v_permlane32_swap_b32 v%d, v%d" % (vM, vT0))
    A.nop(1)
    A("v_max_f32 v%d, v%d, v%d" % (vM, vM, vT0))
    A("v_sub_f32 v%d, v%d, v%d" % (vT0, vMold, vM))
    A("v_exp_f32 v%d, v%d" % (vT0, vT0))
    A("v_mov_b32 v%d, v%d" % (vMold, vM))
    for r in range(16):
        A("v_sub_f32 v%d, 0, v%d" % (vCn + r, vM))
    for r in range(16):
        A("v_sub_f32 v%d, v%d, v%d" % (vCm + r, vCm + r, vM))
    for r in range(9):
        A("v_mul_f32 v%d, v%d, v%d" % (vO + r, vO + r, vT0))
    A("s_waitcnt lgkmcnt(3)")
    A("%s %s, %s, %s, %s" % (MFMA, vr(vSb, 16), vr(vKbf, 4), vr(vQ, 4), vr(vCm, 16)))
    A("s_mov_b32 s%d, 0" % sI)
    def softmax_pv(S, V):
        for r in range(16):
            A("v_exp_f32 v%d, v%d" % (S + r, S + r))
        for i in range(8):
            A("v_cvt_pk_bf16_f32 v%d, v%d, v%d" % (vP + i, S + 2 * i, S + 2 * i + 1))
        A.nop(1)
        A("%s %s, %s, %s, %s" % (MFMA, vr(vO, 16), vr(V, 4), vr(vP, 4), vr(vO, 16)))
        A("%s %s, %s, %s, %s" % (MFMA, vr(vO, 16), vr(V + 4, 4), vr(vP + 4, 4), vr(vO, 16)))
    A.nop(4)
    A.label("K1_P2")
    A("s_waitcnt lgkmcnt(0)")
    A("%s %s, %s, %s, %s" % (MFMA, vr(vSa, 16), vr(vKa, 4), vr(vQ, 4), vr(vCn, 16)))
    A("ds_read_b128 %s, v%d offset:2048" % (vr(vKbf, 4), vKad))
    A("s_mov_b64 exec, %s" % sr(sMaskV, 2))
    A("ds_read_b128 %s, v%d" % (vr(vVa, 4), vVad))
    A("ds_read_b128 %s, v%d offset:1024" % (vr(vVa + 4, 4), vVad))
    A("s_mov_b64 exec, -1")
    A.nop(2)
    softmax_pv(vSb, vVbf)
    A("s_cmp_ge_u32 s%d, s%d" % (sI, sN))
    A("s_cbranch_scc1 K1_P2_DONE")
    A("s_add_u32 s%d, s%d, 1" % (sI, sI))
    A("s_waitcnt lgkmcnt(0)")
    A("%s %s, %s, %s, %s" % (MFMA, vr(vSb, 16), vr(vKbf, 4), vr(vQ, 4), vr(vCn, 16)))
    A("v_add_u32 v%d, 4096, v%d" % (vKad, vKad))
    A("ds_read_b128 %s, v%d" % (vr(vKa, 4), vKad))
    A("s_mov_b64 exec, %s" % sr(sMaskV, 2))
    A("ds_read_b128 %s, v%d offset:2048" % (vr(vVbf, 4), vVad))
    A("ds_read_b128 %s, v%d offset:3072" % (vr(vVbf + 4, 4), vVad))
    A("s_mov_b64 exec, -1")
    A("v_add_u32 v%d, 4096, v%d" % (vVad, vVad))
    softmax_pv(vSa, vVa)
    A("s_cmp_ge_u32 s%d, s%d" % (sI, sN))
    A("s_cbranch_scc1 K1_P2_DONE")
    A("s_add_u32 s%d, s%d, 1" % (sI, sI))
    A("s_branch K1_P2")
    A.label("K1_P2_DONE")
    A("s_waitcnt lgkmcnt(0)")
    A("s_cmp_lg_u32 s%d, 0" % sChunk)
    A("s_cbranch_scc1 K1_ATT_DONE")
    stamp()
    A("s_cmp_eq_u32 s%d, 0" % sB)
    A("s_cbranch_scc1 K1_FETCHED")
    A("s_cmp_ge_u32 s%d, 2" % sT)
    A("s_cbranch_scc1 K1_FETCHED")
    A("s_lshl_b32 s%d, s%d, 1" % (sTmp, sC))
    A("s_add_u32 s%d, s%d, s%d" % (sTmp, sTmp, sT))
    A("s_lshl_b32 s%d, s%d, 6" % (sTmp2, sWGL))
    A("s_lshl_b32 s%d, s%d, 4" % (sTmp3, sTmp))
    A("s_add_u32 s%d, s%d, s%d" % (sTmp2, sTmp2, sTmp3))
    A("s_add_u32 s%d, s%d, 0x%x" % (sTmp2, sTmp2, WS_FKV - 2048))
    A("v_lshrrev_b32 v%d, 1, v%d" % (vT0, vL))
    A("v_xor_b32 v%d, 1, v%d" % (vT0, vT0))
    A("v_and_b32 v%d, 1, v%d" % (vT1, vL))
    A("v_lshlrev_b32 v%d, 3, v%d" % (vT1, vT1))
    A("v_lshl_add_u32 v%d, v%d, 10, v%d" % (vT0, vT0, vT1))
    A("s_cmp_eq_u32 s%d, 1" % sB)
    A("s_cselect_b32 s%d, 3, 15" % sTmp3)
    A("s_mov_b32 exec_lo, s%d" % sTmp3)
    A("s_mov_b32 exec_hi, 0")
    A("s_mov_b32 s%d, 0" % sCnt)
    A.label("K1_POLLKV")
    A("buffer_load_dwordx2 %s, v%d, %s, s%d offen sc1" % (vr(vT2, 2), vT0, sr(sWS, 4), sTmp2))
    A("s_add_u32 s%d, s%d, 1" % (sCnt, sCnt))
    A("s_waitcnt vmcnt(0)")
    A("v_cmp_eq_u64 vcc, %s, %s" % (vr(vT2, 2), vr(vNon, 2)))
    A("s_cmp_eq_u64 vcc, exec")
    A("s_cbranch_scc1 K1_POLLKV_OK")
    A("s_cmp_lt_u32 s%d, %d" % (sCnt, SPIN_LIMIT))
    A("s_cbranch_scc1 K1_POLLKV")
    A.label("K1_POLLKV_OK")
    A("s_mov_b64 exec, -1")
    A("s_lshl_b32 s%d, s%d, 14" % (sTmp2, sWGL))
    A("s_lshl_b32 s%d, s%d, 12" % (sTmp3, sTmp))
    A("s_add_u32 s%d, s%d, s%d" % (sTmp2, sTmp2, sTmp3))
    A("s_sub_u32 s%d, s%d, 0x40000" % (sTmp2, sTmp2))
    A("s_cmp_eq_u32 s%d, 0" % sC)
    A("s_cselect_b32 s%d, 0, %d" % (sTmp3, L_V - L_K))
    A("s_add_u32 s%d, s%d, %d" % (sTmp3, sTmp3, L_K + 8192))
    A("s_lshl_b32 s%d, s%d, 12" % (sTmp, sT))
    A("s_add_u32 s%d, s%d, s%d" % (sTmp3, sTmp3, sTmp))
    A("s_mov_b32 m0, s%d" % sTmp3)
    A("s_nop 0")
    for q in range(4):
        A("buffer_load_dwordx4 v%d, %s, s%d offen offset:%d sc1 lds" % (vL16, sr(sWS, 4), sTmp2, q * 1024))
    A("s_cmp_eq_u32 s%d, 1" % sB)
    A("s_cbranch_scc1 K1_FETCHED")
    A("s_sub_u32 s%d, s%d, 0x40000" % (sTmp2, sTmp2))
    A("s_sub_u32 s%d, s%d, 8192" % (sTmp3, sTmp3))
    A("s_mov_b32 m0, s%d" % sTmp3)
    A("s_nop 0")
    for q in range(4):
        A("buffer_load_dwordx4 v%d, %s, s%d offen offset:%d sc1 lds" % (vL16, sr(sWS, 4), sTmp2, q * 1024))
    A.label("K1_FETCHED")
    A("v_mov_b32 v%d, %s" % (vT0, f32(-BIG)))
    A("s_cmp_eq_u32 s%d, 1" % sB)
    A("s_cselect_b32 s%d, 0, %s" % (sTmp, f32(-1.0)))
    for r in range(16):
        A("v_fma_f32 v%d, v%d, s%d, v%d" % (vCm + r, vMaskD + r, sTmp, vT0))
    A("s_waitcnt vmcnt(0)")
    A("s_barrier")
    stamp()
    A("s_cmp_eq_u32 s%d, 0" % sB)
    A("s_cbranch_scc1 K1_ATT_DONE")
    A("s_mov_b32 s%d, 1" % sChunk)
    A("s_add_u32 s%d, s%d, 1" % (sTmp2, sT))
    A("s_mov_b32 s%d, s%d" % (sTmp, sT))
    A("s_cmp_eq_u32 s%d, 1" % sB)
    A("s_cselect_b32 s%d, 4, s%d" % (sTmp2, sTmp2))
    A("s_cselect_b32 s%d, 4, s%d" % (sTmp, sTmp))
    A("s_sub_u32 s%d, 8, s%d" % (sN, sTmp2))
    A("s_branch K1_CHUNK")
    A.label("K1_ATT_DONE")
    stamp()
    A.nop(12)
    A("v_rcp_f32 v%d, v%d" % (vT0, vO + 8))
    A("s_lshl_b32 s%d, s%d, 2" % (sTmp, sB))
    A("s_add_u32 s%d, s%d, s%d" % (sTmp, sTmp, sT))
    A("s_lshl_b32 s%d, s%d, 5" % (sTmp, sTmp))
    A("s_lshl_b32 s%d, s%d, 1" % (sTmp2, sHP))
    A("s_add_u32 s%d, s%d, s%d" % (sTmp, sTmp, sTmp2))
    A("s_add_u32 s%d, s%d, s%d" % (sTmp, sTmp, sC))
    A("s_lshl_b32 s%d, s%d, 10" % (sTmp2, sTmp))
    A("s_add_u32 s%d, s%d, 0x%x" % (sTmp2, sTmp2, WS_O))
    A("s_lshl_b32 s%d, s%d, 3" % (sTmp, sTmp))
    A("s_add_u32 s%d, s%d, 0x%x" % (sTmp, sTmp, WS_FO))
    for r in range(8):
        A("v_mul_f32 v%d, v%d, v%d" % (vO + r, vO + r, vT0))
    for i in range(4):
        A("v_cvt_pk_bf16_f32 v%d, v%d, v%d" % (vP + i, vO + 2 * i, vO + 2 * i + 1))
    A("buffer_store_dwordx4 %s, v%d, %s, s%d offen sc1" % (vr(vP, 4), vL16, sr(sWS, 4), sTmp2))
    A("v_bfe_u32 v%d, v%d, 2, 2" % (vT1, vL))
    A("v_lshl_add_u32 v%d, v%d, 3, v%d" % (vT2, vG, vT1))
    A("s_lshl_b32 s%d, s%d, 14" % (sTmp3, sT))
    A("v_lshl_add_u32 v%d, v%d, 7, s%d" % (vWOa, vT2, sTmp3))
    A("v_lshrrev_b32 v%d, 1, v%d" % (vT1, vT1))
    A("v_lshl_add_u32 v%d, v%d, 6, v%d" % (vWOa, vT1, vWOa))
    A("v_bfe_u32 v%d, v%d, 4, 1" % (vT1, vL))
    A("v_lshl_add_u32 v%d, v%d, 5, v%d" % (vWOa, vT1, vWOa))
    A("v_and_b32 v%d, 3, v%d" % (vT1, vL))
    A("v_lshl_add_u32 v%d, v%d, 3, v%d" % (vWOa, vT1, vWOa))
    A("v_xor_b32 v%d, 64, v%d" % (vWOa + 1, vWOa))
    for s in range(8):
        for C in range(2):
            for half in range(2):
                A("ds_read_b64_tr_b16 %s, v%d offset:%d" % (vr(vAW + (s * 2 + C) * 4 + 2 * half, 2), vWOa + C, (16 * s + 4 * half) * 128))
    for i in range(32):
        A("v_mov_b32 v%d, 0" % (vH0 + i))
    A("s_waitcnt vmcnt(0)")
    A("v_mov_b32 v%d, 0" % vT0)
    A("s_mov_b64 exec, 1")
    A("buffer_store_dwordx2 %s, v%d, %s, s%d offen sc1" % (vr(vNon, 2), vT0, sr(sWS, 4), sTmp))
    stamp()
    A("s_lshl_b32 s%d, s%d, 2" % (sTmp, sB))
    A("s_lshr_b32 s%d, s%d, 3" % (sTmp2, sHP))
    A("s_lshl_b32 s%d, s%d, 1" % (sTmp2, sTmp2))
    A("s_add_u32 s%d, s%d, s%d" % (sTmp, sTmp, sTmp2))
    A("s_add_u32 s%d, s%d, s%d" % (sTmp, sTmp, sC))
    A("s_lshl_b32 s%d, s%d, 5" % (sTmp, sTmp))
    A("s_lshl_b32 s%d, s%d, 3" % (sTmp2, sT))
    A("s_add_u32 s%d, s%d, s%d" % (sTmp, sTmp, sTmp2))
    A("s_lshl_b32 s%d, s%d, 10" % (sTmp2, sTmp))
    A("s_add_u32 s%d, s%d, 0x%x" % (sTmp2, sTmp2, WS_O))
    A("s_lshl_b32 s%d, s%d, 3" % (sTmp, sTmp))
    A("s_add_u32 s%d, s%d, 0x%x" % (sTmp, sTmp, WS_FO))
    A("s_mov_b64 exec, 0xff")
    A("v_lshlrev_b32 v%d, 3, v%d" % (vT0, vL))
    A("s_mov_b32 s%d, 0" % sCnt)
    A.label("K1_POLLO")
    A("buffer_load_dwordx2 %s, v%d, %s, s%d offen sc1" % (vr(vT2, 2), vT0, sr(sWS, 4), sTmp))
    A("s_add_u32 s%d, s%d, 1" % (sCnt, sCnt))
    A("s_waitcnt vmcnt(0)")
    A("v_cmp_eq_u64 vcc, %s, %s" % (vr(vT2, 2), vr(vNon, 2)))
    A("s_cmp_eq_u64 vcc, exec")
    A("s_cbranch_scc1 K1_POLLO_OK")
    A("s_cmp_lt_u32 s%d, %d" % (sCnt, SPIN_LIMIT))
    A("s_cbranch_scc1 K1_POLLO")
    A.label("K1_POLLO_OK")
    A("s_mov_b64 exec, -1")
    stamp()
    for s in range(8):
        if s == 4:
            A("s_add_u32 s%d, s%d, 4096" % (sTmp2, sTmp2))
        A("buffer_load_dwordx4 %s, v%d, %s, s%d offen offset:%d sc1" % (vr(vOF + 4 * s, 4), vL16, sr(sWS, 4), sTmp2, (s & 3) * 1024))
    A("v_and_b32 v%d, 15, v%d" % (vT0, vN))
    A("v_xor_b32 v%d, v%d, v%d" % (vT0, vT0, vG))
    A("v_lshlrev_b32 v%d, 4, v%d" % (vT0, vT0))
    A("s_lshl_b32 s%d, s%d, 13" % (sTmp, sWv))
    A("s_add_u32 s%d, s%d, %d" % (sTmp, sTmp, L_RED))
    A("v_lshl_add_u32 v%d, v%d, 8, s%d" % (vT1, vN, sTmp))
    A("s_waitcnt lgkmcnt(0)")
    for s in range(8):
        A("s_waitcnt vmcnt(%d)" % (7 - s))
        A("%s %s, %s, %s, %s" % (MFMA, vr(vH0, 16), vr(vAW + (s * 2) * 4, 4), vr(vOF + 4 * s, 4), vr(vH0, 16)))
        A("%s %s, %s, %s, %s" % (MFMA, vr(vH1, 16), vr(vAW + (s * 2 + 1) * 4, 4), vr(vOF + 4 * s, 4), vr(vH1, 16)))
    A("s_barrier")
    stamp()
    for u in range(8):
        A("v_xor_b32 v%d, %d, v%d" % (vRa + u, (2 * u) << 4, vT0))
        A("v_add_u32 v%d, v%d, v%d" % (vRa + u, vRa + u, vT1))
    for u in range(8):
        A("ds_write_b128 v%d, %s" % (vRa + u, vr(vH0 + 4 * u, 4)))
    A("v_lshrrev_b32 v%d, 3, v%d" % (vT0, vL))
    A("s_lshl_b32 s%d, s%d, 3" % (sTmp, sT))
    A("v_add_u32 v%d, s%d, v%d" % (vT0, sTmp, vT0))
    A("v_and_b32 v%d, 7, v%d" % (vT1, vL))
    A("v_lshlrev_b32 v%d, 1, v%d" % (vT1, vT1))
    A("v_and_b32 v%d, 15, v%d" % (vT2, vT0))
    A("v_xor_b32 v%d, v%d, v%d" % (vT1, vT1, vT2))
    A("v_lshlrev_b32 v%d, 4, v%d" % (vT1, vT1))
    A("s_lshl_b32 s%d, s%d, 15" % (sTmp, sC))
    A("s_add_u32 s%d, s%d, %d" % (sTmp, sTmp, L_RED))
    A("v_lshl_add_u32 v%d, v%d, 8, s%d" % (vT0, vT0, sTmp))
    A("v_add_u32 v%d, v%d, v%d" % (vT2, vT0, vT1))
    A("v_xor_b32 v%d, 16, v%d" % (vT1, vT1))
    A("v_add_u32 v%d, v%d, v%d" % (vT3, vT0, vT1))
    A("s_waitcnt lgkmcnt(0)")
    A("s_barrier")
    for q in range(4):
        A("ds_read_b128 %s, v%d offset:%d" % (vr(vOF + 8 * q, 4), vT2, q * 8192))
        A("ds_read_b128 %s, v%d offset:%d" % (vr(vOF + 8 * q + 4, 4), vT3, q * 8192))
    A("v_and_b32 v%d, 7, v%d" % (vT0, vL))
    A("v_lshlrev_b32 v%d, 4, v%d" % (vT1, vT0))
    A("v_lshl_add_u32 v%d, v7, 10, v%d" % (vT1, vT1))
    A("v_lshlrev_b32 v%d, 13, v%d" % (vT0, vT0))
    A("v_lshl_add_u32 v%d, v7, 2, v%d" % (vT0, vT0))
    A("s_and_b32 s%d, s%d, 7" % (sTmp, sHP))
    A("s_lshl_b32 s%d, s%d, 7" % (sTmp, sTmp))
    A("s_add_u32 s%d, s%d, 0x%x" % (sTmp, sTmp, WS_H))
    A("s_mov_b32 s%d, 0x%x" % (sTmp2, WS_ST))
    A("s_waitcnt lgkmcnt(0)")
    for i in range(8):
        A("v_add_f32 v%d, v%d, v%d" % (vOF + i, vOF + i, vOF + 8 + i))
        A("v_add_f32 v%d, v%d, v%d" % (vOF + 16 + i, vOF + 16 + i, vOF + 24 + i))
    for i in range(8):
        A("v_add_f32 v%d, v%d, v%d" % (vOF + i, vOF + i, vOF + 16 + i))
    for i in range(4):
        A("v_cvt_pk_bf16_f32 v%d, v%d, v%d" % (vOF + 8 + i, vOF + 2 * i, vOF + 2 * i + 1))
    for i in range(4):
        A("v_lshlrev_b32 v%d, 16, v%d" % (vOF + 2 * i, vOF + 8 + i))
        A("v_and_b32 v%d, 0xffff0000, v%d" % (vOF + 2 * i + 1, vOF + 8 + i))
        A("v_lshlrev_b32 v%d, 16, v%d" % (vOF + 16 + 2 * i, vXr + i))
        A("v_and_b32 v%d, 0xffff0000, v%d" % (vOF + 16 + 2 * i + 1, vXr + i))
    for i in range(8):
        A("v_add_f32 v%d, v%d, v%d" % (vOF + i, vOF + i, vOF + 16 + i))
    for i in range(4):
        A("v_cvt_pk_bf16_f32 v%d, v%d, v%d" % (vOF + 8 + i, vOF + 2 * i, vOF + 2 * i + 1))
    A("buffer_store_dwordx4 %s, v%d, %s, s%d offen" % (vr(vOF + 8, 4), vT1, sr(sWS, 4), sTmp))
    s1, s2, s3 = vOF + 16, vOF + 17, vOF + 18
    for (acc, other) in ((s1, None), (s2, "self"), (s3, "w")):
        for i in range(4):
            o = vOnes if other is None else (vOF + 8 + i if other == "self" else vWr + i)
            A("v_dot2_f32_bf16 v%d, v%d, v%d, %s" % (acc, vOF + 8 + i, o, "0" if i == 0 else "v%d" % acc))
    A.nop(3)
    for dpp in ("quad_perm:[1,0,3,2]", "quad_perm:[2,3,0,1]", "row_half_mirror"):
        for acc in (s1, s2, s3):
            A("v_add_f32_dpp v%d, v%d, v%d %s row_mask:0xf bank_mask:0xf" % (acc, acc, acc, dpp))
        A.nop(1)
    A("v_and_b32 v%d, 7, v%d" % (vT2, vL))
    A("v_cmp_eq_u32 vcc, 1, v%d" % vT2)
    A.nop(2)
    A("v_cndmask_b32 v%d, v%d, v%d, vcc" % (s1, s1, s2))
    A("v_cmp_eq_u32 vcc, 2, v%d" % vT2)
    A.nop(2)
    A("v_cndmask_b32 v%d, v%d, v%d, vcc" % (s1, s1, s3))
    A("s_mov_b32 exec_lo, 0x07070707")
    A("s_mov_b32 exec_hi, 0x07070707")
    A("buffer_atomic_add_f32 v%d, v%d, %s, s%d offen" % (s1, vT0, sr(sWS, 4), sTmp2))
    A("s_mov_b64 exec, -1")
    if STAMPS:
        A("s_waitcnt vmcnt(0)")
        stamp()
        ns = nstamp[0]
        A("s_waitcnt lgkmcnt(0)")
        A("s_lshl_b32 s%d, s2, 3" % sTmp)
        A("s_add_u32 s%d, s%d, s%d" % (sTmp, sTmp, sWv))
        A("s_mul_i32 s%d, s%d, %d" % (sTmp, sTmp, NSTAMP_SLOTS * 8))
        A("s_add_u32 s%d, s%d, 0x%x" % (sTmp, sTmp, WS_STAMP))
        A("v_mov_b32 v%d, 0" % vT0)
        A("s_mov_b64 exec, 1")
        for i in range(ns):
            A("v_mov_b32 v%d, s%d" % (vT2, 70 + 2 * i))
            A("v_mov_b32 v%d, s%d" % (vT3, 71 + 2 * i))
            A("buffer_store_dwordx2 %s, v%d, %s, s%d offen offset:%d" % (vr(vT2, 2), vT0, sr(sWS, 4), sTmp, i * 8))
            A.nop(2)
        opt["k1_nstamps"] = ns
    A.label("K1_END")
    A("s_endpgm")
    return A.text(), 228, 131072

NSTAMP_SLOTS = 24

def gen_k2(opt):
    A = Asm()
    STAMPS = opt.get("stamps", False)
    nstamp = [0]
    def stamp():
        if STAMPS:
            A("s_memrealtime %s" % sr(70 + 2 * nstamp[0], 2))
            nstamp[0] += 1
    sWR, sWG, sWU, sWD, sOUT, sWS = 4, 8, 12, 16, 20, 24
    sWv, sJ, sRole = 44, 45, 46
    sTmp, sTmp2, sTmp3 = 47, 48, 49
    sI1, sI2, sCnt, sRow = 50, 51, 52, 53
    sW1 = 54
    L_G = 0
    L_U = 16384 + 128
    L_D = 0
    L_TOP = 90112
    L_HN = 90368
    L_RED = 92416
    L_A = 93440
    LDS = 99584
    vL, vN, vG, vL16, vOnes = 1, 2, 3, 4, 5
    vT0, vT1, vT2, vT3 = 8, 9, 10, 11
    vS1, vS2, vS3 = 12, 20, 28
    vWRr = 36
    vHr = 40
    vOs = 48
    vK1, vK2, vP1, vP2 = 52, 53, 54, 55
    vW1 = 56
    vSel = 60
    vSs = 64
    vAF = 72
    vBF = 160
    vAcc = 192
    vX = 208

    A("s_cmp_ge_u32 s2, 256")
    A("s_cbranch_scc1 K2_END")
    stamp()
    A("s_load_dwordx8 s[28:35], s[0:1], 32")
    A("s_load_dwordx2 s[36:37], s[0:1], 64")
    A("s_load_dwordx2 s[38:39], s[0:1], 80")
    A("v_and_b32 v%d, 63, v0" % vL)
    A("v_lshrrev_b32 v%d, 6, v0" % vT0)
    A("v_lshlrev_b32 v%d, 4, v%d" % (vL16, vL))
    A("v_readfirstlane_b32 s%d, v%d" % (sWv, vT0))
    A("v_and_b32 v%d, 31, v%d" % (vN, vL))
    A("v_lshrrev_b32 v%d, 5, v%d" % (vG, vL))
    A("v_mov_b32 v%d, 0x3f803f80" % vOnes)
    A("v_mov_b32 v%d, 0" % (vSel + 2))
    A("v_lshlrev_b32 v%d, 5, v0" % vT0)
    A("s_and_b32 s%d, s2, 7" % sTmp)
    A("s_lshr_b32 s%d, s2, 3" % sTmp2)
    A("s_mov_b32 s%d, 0" % sRole)
    A("s_mul_i32 s%d, s%d, 11" % (sJ, sTmp))
    A("s_add_u32 s%d, s%d, s%d" % (sJ, sJ, sTmp2))
    A("s_cmp_lt_u32 s%d, 11" % sTmp2)
    A("s_cselect_b32 s%d, 1, 0" % sRole)
    A("s_cmp_lt_u32 s%d, 86" % sJ)
    A("s_cselect_b32 s%d, s%d, 0" % (sRole, sRole))
    A("s_sub_u32 s%d, s%d, 11" % (sTmp3, sTmp2))
    A("s_cmp_lt_u32 s%d, 2" % sTmp3)
    A("s_cbranch_scc0 K2_ROLE_DONE")
    A("s_mov_b32 s%d, 2" % sRole)
    A("s_lshl_b32 s%d, s%d, 1" % (sJ, sTmp))
    A("s_add_u32 s%d, s%d, s%d" % (sJ, sJ, sTmp3))
    A.label("K2_ROLE_DONE")
    A("s_lshl_b32 s%d, s2, 3" % sRow)
    A("s_lshl_b32 s%d, s%d, 1" % (sTmp, sWv))
    A("s_add_u32 s%d, s%d, s%d" % (sRow, sRow, sTmp))
    A("s_waitcnt lgkmcnt(0)")
    srd(A, sWS, 38, WS_SIZE)
    srd(A, sWR, 28, 1024)
    stamp()
    A("s_mov_b32 s%d, 0x%x" % (sTmp, WS_ST))
    for a, base in enumerate((vS1, vS2, vS3)):
        if a:
            A("s_add_u32 s%d, s%d, 8192" % (sTmp, sTmp))
        A("buffer_load_dwordx4 %s, v%d, %s, s%d offen" % (vr(base, 4), vT0, sr(sWS, 4), sTmp))
        A("buffer_load_dwordx4 %s, v%d, %s, s%d offen offset:16" % (vr(base + 4, 4), vT0, sr(sWS, 4), sTmp))
    A("buffer_load_dwordx4 %s, v%d, %s, 0 offen" % (vr(vWRr, 4), vL16, sr(sWR, 4)))
    A("s_lshl_b32 s%d, s%d, 10" % (sTmp, sRow))
    A("s_add_u32 s%d, s%d, 0x%x" % (sTmp, sTmp, WS_H))
    A("buffer_load_dwordx4 %s, v%d, %s, s%d offen" % (vr(vHr, 4), vL16, sr(sWS, 4), sTmp))
    A("buffer_load_dwordx4 %s, v%d, %s, s%d offen offset:1024" % (vr(vHr + 4, 4), vL16, sr(sWS, 4), sTmp))
    A("s_lshl_b32 s%d, s%d, 2" % (sTmp, sRow))
    A("s_add_u32 s%d, s%d, 0x%x" % (sTmp, sTmp, WS_ST))
    A("v_mov_b32 v%d, 0" % vT1)
    A("buffer_load_dwordx2 %s, v%d, %s, s%d offen" % (vr(vOs, 2), vT1, sr(sWS, 4), sTmp))
    A("s_add_u32 s%d, s%d, 8192" % (sTmp, sTmp))
    A("buffer_load_dwordx2 %s, v%d, %s, s%d offen" % (vr(vOs + 2, 2), vT1, sr(sWS, 4), sTmp))
    srd(A, sWG, 30, 512 * 2752)
    srd(A, sWU, 32, 512 * 2752)
    srd(A, sWD, 34, 1376 * 1024)
    srd(A, sOUT, 36, 0x200000)
    A("s_cmp_eq_u32 s%d, 1" % sRole)
    A("s_cbranch_scc0 K2_NO_GU_DMA")
    A("v_lshrrev_b32 v%d, 1, v%d" % (vT1, vL))
    A("v_mul_u32_u24 v%d, 2752, v%d" % (vT1, vT1))
    A("v_and_b32 v%d, 1, v%d" % (vT2, vL))
    A("v_lshl_add_u32 v%d, v%d, 4, v%d" % (vT1, vT2, vT1))
    A("s_mul_i32 s%d, s%d, %d" % (sTmp, sWv, 128 * 2752))
    A("s_lshl_b32 s%d, s%d, 5" % (sTmp2, sJ))
    A("s_add_u32 s%d, s%d, s%d" % (sTmp, sTmp, sTmp2))
    A("s_lshl_b32 s%d, s%d, 12" % (sTmp2, sWv))
    for q in range(4):
        A("s_add_u32 s%d, s%d, %d" % (sTmp3, sTmp2, L_G + q * 1024))
        A("s_mov_b32 m0, s%d" % sTmp3)
        A("s_add_u32 s%d, s%d, %d" % (sTmp3, sTmp2, L_U + q * 1024))
        A("buffer_load_dwordx4 v%d, %s, s%d offen lds" % (vT1, sr(sWG, 4), sTmp))
        A("s_mov_b32 m0, s%d" % sTmp3)
        A("s_nop 0")
        A("buffer_load_dwordx4 v%d, %s, s%d offen lds" % (vT1, sr(sWU, 4), sTmp))
        A("s_add_u32 s%d, s%d, %d" % (sTmp, sTmp, 32 * 2752))
    A("s_waitcnt vmcnt(12)")
    A("s_branch K2_DMA_DONE")
    A.label("K2_NO_GU_DMA")
    A("s_cmp_eq_u32 s%d, 2" % sRole)
    A("s_cbranch_scc0 K2_NO_D_DMA")
    A("v_lshrrev_b32 v%d, 2, v%d" % (vT1, vL))
    A("v_and_b32 v%d, 3, v%d" % (vT2, vL))
    A("v_lshlrev_b32 v%d, 4, v%d" % (vT2, vT2))
    A("v_lshl_add_u32 v%d, v%d, 10, v%d" % (vT1, vT1, vT2))
    A("s_mul_i32 s%d, s%d, %d" % (sTmp, sWv, 22 * 16 * 1024))
    A("s_lshl_b32 s%d, s%d, 6" % (sTmp2, sJ))
    A("s_add_u32 s%d, s%d, s%d" % (sTmp, sTmp, sTmp2))
    A("s_mul_i32 s%d, s%d, %d" % (sTmp2, sWv, 22 * 1024))
    for q in range(22):
        A("s_mov_b32 m0, s%d" % sTmp2)
        A("s_add_u32 s%d, s%d, 1024" % (sTmp2, sTmp2))
        A("buffer_load_dwordx4 v%d, %s, s%d offen lds" % (vT1, sr(sWD, 4), sTmp))
        A("s_add_u32 s%d, s%d, 16384" % (sTmp, sTmp))
    A("s_waitcnt vmcnt(26)")
    A("s_branch K2_DMA_DONE")
    A.label("K2_NO_D_DMA")
    A("s_waitcnt vmcnt(4)")
    A.label("K2_DMA_DONE")
    stamp()
    for i in range(4):
        A("v_dot2_f32_bf16 v%d, v%d, v%d, %s" % (vW1, vWRr + i, vOnes, "0" if i == 0 else "v%d" % vW1))
    A.nop(3)
    for dpp in ("quad_perm:[1,0,3,2]", "quad_perm:[2,3,0,1]", "row_half_mirror", "row_mirror"):
        A("v_add_f32_dpp v%d, v%d, v%d %s row_mask:0xf bank_mask:0xf" % (vW1, vW1, vW1, dpp))
        A.nop(2)
    for sw in ("v_permlane16_swap_b32", "v_permlane32_swap_b32"):
        A("v_mov_b32 v%d, v%d" % (vT1, vW1))
        A.nop(2)
        A("%s v%d, v%d" % (sw, vW1, vT1))
        A.nop(1)
        A("v_add_f32 v%d, v%d, v%d" % (vW1, vW1, vT1))
    A("v_lshlrev_b32 v%d, 3, v0" % vT0)
    A("v_sub_u32 v%d, 2047, v%d" % (vT0, vT0))
    A("v_mov_b32 v%d, 0" % vK1)
    A("v_mov_b32 v%d, 0" % vK2)
    A("s_mov_b32 s%d, %s" % (sTmp, f32(1.0 / 512)))
    A("s_mov_b32 s%d, 0xfffff800" % sTmp2)
    for i in range(8):
        A("v_mul_f32 v%d, s%d, v%d" % (vS1 + i, sTmp, vS1 + i))
        A("v_mul_f32 v%d, s%d, v%d" % (vS2 + i, sTmp, vS2 + i))
        A("v_fma_f32 v%d, -v%d, v%d, v%d" % (vS2 + i, vS1 + i, vS1 + i, vS2 + i))
        A("v_max_f32 v%d, 0, v%d" % (vS2 + i, vS2 + i))
        A("v_add_f32 v%d, %s, v%d" % (vS2 + i, f32(1e-5), vS2 + i))
        A("v_rsq_f32 v%d, v%d" % (vS2 + i, vS2 + i))
        A("v_fma_f32 v%d, -v%d, v%d, v%d" % (vS3 + i, vS1 + i, vW1, vS3 + i))
    for i in range(8):
        A("v_mul_f32 v%d, v%d, v%d" % (vS3 + i, vS3 + i, vS2 + i))
        A("v_ashrrev_i32 v%d, 31, v%d" % (vT1, vS3 + i))
        A("v_or_b32 v%d, 0x80000000, v%d" % (vT1, vT1))
        A("v_xor_b32 v%d, v%d, v%d" % (vT1, vT1, vS3 + i))
        A("v_subrev_u32 v%d, %d, v%d" % (vT2, i, vT0))
        A("v_and_or_b32 v%d, v%d, s%d, v%d" % (vT1, vT1, sTmp2, vT2))
        A("v_med3_u32 v%d, v%d, v%d, v%d" % (vK2, vK1, vK2, vT1))
        A("v_max_u32 v%d, v%d, v%d" % (vK1, vK1, vT1))
    def merge():
        A("v_max_u32 v%d, v%d, v%d" % (vK2, vK2, vP2))
        A("v_med3_u32 v%d, v%d, v%d, v%d" % (vK2, vK1, vP1, vK2))
        A("v_max_u32 v%d, v%d, v%d" % (vK1, vK1, vP1))
    for dpp in ("quad_perm:[1,0,3,2]", "quad_perm:[2,3,0,1]", "row_half_mirror", "row_mirror"):
        A.nop(2)
        A("v_mov_b32_dpp v%d, v%d %s row_mask:0xf bank_mask:0xf" % (vP1, vK1, dpp))
        A("v_mov_b32_dpp v%d, v%d %s row_mask:0xf bank_mask:0xf" % (vP2, vK2, dpp))
        merge()
    for sw in ("v_permlane16_swap_b32", "v_permlane32_swap_b32"):
        A("v_mov_b32 v%d, v%d" % (vP1, vK1))
        A("v_mov_b32 v%d, v%d" % (vP2, vK2))
        A.nop(2)
        A("%s v%d, v%d" % (sw, vK1, vP1))
        A("%s v%d, v%d" % (sw, vK2, vP2))
        A.nop(1)
        merge()
    A("s_lshl_b32 s%d, s%d, 3" % (sTmp, sWv))
    A("s_add_u32 s%d, s%d, %d" % (sTmp, sTmp, L_TOP))
    A("v_mov_b32 v%d, s%d" % (vT1, sTmp))
    A("ds_write_b64 v%d, %s" % (vT1, vr(vK1, 2)))
    A("v_mov_b32 v%d, %d" % (vT1, L_TOP))
    A("s_waitcnt lgkmcnt(0)")
    A("s_barrier")
    A("ds_read_b128 %s, v%d" % (vr(vX, 4), vT1))
    A("ds_read_b128 %s, v%d offset:16" % (vr(vX + 4, 4), vT1))
    A("s_waitcnt lgkmcnt(0)")
    A("v_mov_b32 v%d, v%d" % (vK1, vX))
    A("v_mov_b32 v%d, v%d" % (vK2, vX + 1))
    for q in range(1, 4):
        A("v_mov_b32 v%d, v%d" % (vP1, vX + 2 * q))
        A("v_mov_b32 v%d, v%d" % (vP2, vX + 2 * q + 1))
        merge()
    A.nop(1)
    A("v_readfirstlane_b32 s%d, v%d" % (sI1, vK1))
    A("v_readfirstlane_b32 s%d, v%d" % (sI2, vK2))
    A("s_and_b32 s%d, s%d, 0x7ff" % (sI1, sI1))
    A("s_sub_u32 s%d, 2047, s%d" % (sI1, sI1))
    A("s_and_b32 s%d, s%d, 0x7ff" % (sI2, sI2))
    A("s_sub_u32 s%d, 2047, s%d" % (sI2, sI2))
    stamp()
    A("s_cmp_eq_u32 s%d, 1" % sRole)
    A("s_cbranch_scc0 K2_NO_GU_LD")
    A("s_cmp_lt_u32 s%d, 2" % sWv)
    A("s_cbranch_scc0 K2_SEL_ISSUED")
    A("s_cmp_eq_u32 s%d, 0" % sWv)
    A("s_cselect_b32 s%d, s%d, s%d" % (sTmp, sI1, sI2))
    A("s_lshl_b32 s%d, s%d, 10" % (sTmp2, sTmp))
    A("s_add_u32 s%d, s%d, 0x%x" % (sTmp2, sTmp2, WS_H))
    A("buffer_load_dwordx4 %s, v%d, %s, s%d offen" % (vr(vSel, 4), vL16, sr(sWS, 4), sTmp2))
    A("s_lshl_b32 s%d, s%d, 2" % (sTmp2, sTmp))
    A("s_add_u32 s%d, s%d, 0x%x" % (sTmp2, sTmp2, WS_ST))
    A("v_mov_b32 v%d, 0" % vT1)
    A("buffer_load_dword v%d, v%d, %s, s%d offen" % (vSs, vT1, sr(sWS, 4), sTmp2))
    A("s_add_u32 s%d, s%d, 8192" % (sTmp2, sTmp2))
    A("buffer_load_dword v%d, v%d, %s, s%d offen" % (vSs + 1, vT1, sr(sWS, 4), sTmp2))
    A("s_branch K2_SEL_ISSUED")
    A.label("K2_NO_GU_LD")
    A("s_cmp_eq_u32 s%d, 2" % sRole)
    A("s_cbranch_scc0 K2_SEL_ISSUED")
    A("s_cmp_eq_u32 s%d, 0" % sWv)
    A("s_cbranch_scc0 K2_SEL_ISSUED")
    A("v_mov_b32 v%d, s%d" % (vT1, sI1))
    A("v_mov_b32 v%d, s%d" % (vT2, sI2))
    A("v_cmp_eq_u32 vcc, 1, v%d" % vG)
    A.nop(2)
    A("v_cndmask_b32 v%d, v%d, v%d, vcc" % (vT1, vT1, vT2))
    A("v_lshlrev_b32 v%d, 1, v%d" % (vT2, vN))
    A("v_lshl_add_u32 v%d, v%d, 10, v%d" % (vSel + 2, vT1, vT2))
    A("s_lshl_b32 s%d, s%d, 6" % (sTmp, sJ))
    A("s_add_u32 s%d, s%d, 0x%x" % (sTmp2, sTmp, WS_H))
    A("buffer_load_ushort v%d, v%d, %s, s%d offen" % (vSel, vSel + 2, sr(sWS, 4), sTmp2))
    A("v_lshlrev_b32 v%d, 2, v%d" % (vT1, vT1))
    A("s_mov_b32 s%d, 0x%x" % (sTmp2, WS_ST))
    A("buffer_load_dword v%d, v%d, %s, s%d offen" % (vSs, vT1, sr(sWS, 4), sTmp2))
    A("s_add_u32 s%d, s%d, 8192" % (sTmp2, sTmp2))
    A("buffer_load_dword v%d, v%d, %s, s%d offen" % (vSs + 1, vT1, sr(sWS, 4), sTmp2))
    A("s_add_u32 s%d, s%d, 8192" % (sTmp2, sTmp2))
    A("buffer_load_dword v%d, v%d, %s, s%d offen" % (vSs + 2, vT1, sr(sWS, 4), sTmp2))
    A.label("K2_SEL_ISSUED")
    A("s_waitcnt vmcnt(0)")
    stamp()
    def ln_stats(s1, s2):
        A("v_mul_f32 v%d, %s, v%d" % (s1, f32(1.0 / 512), s1))
        A("v_mul_f32 v%d, %s, v%d" % (s2, f32(1.0 / 512), s2))
        A("v_fma_f32 v%d, -v%d, v%d, v%d" % (s2, s1, s1, s2))
        A("v_max_f32 v%d, 0, v%d" % (s2, s2))
        A("v_add_f32 v%d, %s, v%d" % (s2, f32(1e-5), s2))
        A("v_rsq_f32 v%d, v%d" % (s2, s2))
        A.nop(1)
    def unpack4(dst, src):
        for i in range(4):
            A("v_lshlrev_b32 v%d, 16, v%d" % (dst + 2 * i, src + i))
            A("v_and_b32 v%d, 0xffff0000, v%d" % (dst + 2 * i + 1, src + i))
    A("s_cmp_eq_u32 s%d, 1" % sRole)
    A("s_cbranch_scc0 K2_OWN")
    A("s_cmp_lt_u32 s%d, 2" % sWv)
    A("s_cbranch_scc0 K2_GU_BAR")
    ln_stats(vSs, vSs + 1)
    unpack4(vX, vSel)
    for i in range(8):
        A("v_sub_f32 v%d, v%d, v%d" % (vX + i, vX + i, vSs))
        A("v_mul_f32 v%d, v%d, v%d" % (vX + i, vX + i, vSs + 1))
    for i in range(4):
        A("v_cvt_pk_bf16_f32 v%d, v%d, v%d" % (vX + 8 + i, vX + 2 * i, vX + 2 * i + 1))
    A("s_lshl_b32 s%d, s%d, 10" % (sTmp, sWv))
    A("s_add_u32 s%d, s%d, %d" % (sTmp, sTmp, L_HN))
    A("v_add_u32 v%d, s%d, v%d" % (vT1, sTmp, vL16))
    A("ds_write_b128 v%d, %s" % (vT1, vr(vX + 8, 4)))
    A("s_waitcnt lgkmcnt(0)")
    A.label("K2_GU_BAR")
    A("s_barrier")
    A("v_bfe_u32 v%d, v%d, 2, 2" % (vT1, vL))
    A("v_lshl_add_u32 v%d, v%d, 3, v%d" % (vT1, vG, vT1))
    A("s_lshl_b32 s%d, s%d, 12" % (sTmp, sWv))
    A("v_lshl_add_u32 v%d, v%d, 5, s%d" % (vT1, vT1, sTmp))
    A("v_and_b32 v%d, 3, v%d" % (vT2, vL))
    A("v_lshl_add_u32 v%d, v%d, 3, v%d" % (vT1, vT2, vT1))
    A("v_bfe_u32 v%d, v%d, 4, 1" % (vT2, vL))
    A("v_mul_u32_u24 v%d, %d, v%d" % (vT2, L_U - L_G, vT2))
    A("v_add_u32 v%d, v%d, v%d" % (vT1, vT1, vT2))
    A("v_and_b32 v%d, 1, v%d" % (vT2, vL))
    A("v_lshlrev_b32 v%d, 10, v%d" % (vT2, vT2))
    A("v_lshl_add_u32 v%d, v%d, 4, v%d" % (vT2, vG, vT2))
    A("s_lshl_b32 s%d, s%d, 8" % (sTmp, sWv))
    A("s_add_u32 s%d, s%d, %d" % (sTmp, sTmp, L_HN))
    A("v_add_u32 v%d, s%d, v%d" % (vT2, sTmp, vT2))
    for s in range(8):
        A("ds_read_b128 %s, v%d offset:%d" % (vr(vBF + 4 * s, 4), vT2, s * 32))
        for half in range(2):
            A("ds_read_b64_tr_b16 %s, v%d offset:%d" % (vr(vAF + 4 * s + 2 * half, 2), vT1, (16 * s + 4 * half) * 32))
    A("s_waitcnt lgkmcnt(0)")
    for s in range(8):
        A("%s %s, %s, %s, %s" % (MFMA, vr(vAcc, 16), vr(vAF + 4 * s, 4), vr(vBF + 4 * s, 4), "0" if s == 0 else vr(vAcc, 16)))
    def red_write():
        A("s_lshl_b32 s%d, s%d, 8" % (sTmp, sWv))
        A("s_add_u32 s%d, s%d, %d" % (sTmp, sTmp, L_RED))
        A("v_lshl_add_u32 v%d, v%d, 7, s%d" % (vT1, vN, sTmp))
        A("v_lshl_add_u32 v%d, v%d, 4, v%d" % (vT1, vG, vT1))
        A("s_mov_b32 exec_lo, 3")
        A("s_mov_b32 exec_hi, 3")
        A.nop(8)
        for a in range(4):
            A("ds_write_b128 v%d, %s offset:%d" % (vT1, vr(vAcc + 4 * a, 4), a * 32))
        A("s_mov_b64 exec, -1")
        A("s_waitcnt lgkmcnt(0)")
        A("s_barrier")
    red_write()
    A("s_cmp_eq_u32 s%d, 0" % sWv)
    A("s_cbranch_scc0 K2_OWN")
    stamp()
    A("v_bfe_u32 v%d, v%d, 4, 1" % (vT1, vL))
    A("v_and_b32 v%d, 15, v%d" % (vT2, vL))
    A("v_lshlrev_b32 v%d, 2, v%d" % (vT3, vT2))
    A("v_lshl_add_u32 v%d, v%d, 7, v%d" % (vT3, vT1, vT3))
    A("v_add_u32 v%d, %d, v%d" % (vT3, L_RED, vT3))
    for q in range(4):
        A("ds_read2_b32 %s, v%d offset0:%d offset1:%d" % (vr(vX + 2 * q, 2), vT3, q * 64, q * 64 + 16))
    A("v_mul_u32_u24 v%d, 2752, v%d" % (vT1, vT1))
    A("v_lshl_add_u32 v%d, v%d, 1, v%d" % (vT1, vT2, vT1))
    A("s_lshl_b32 s%d, s%d, 5" % (sTmp, sJ))
    A("s_add_u32 s%d, s%d, 0x%x" % (sTmp, sTmp, WS_A))
    A("s_waitcnt lgkmcnt(0)")
    A("v_add_f32 v%d, v%d, v%d" % (vX, vX, vX + 2))
    A("v_add_f32 v%d, v%d, v%d" % (vX + 4, vX + 4, vX + 6))
    A("v_add_f32 v%d, v%d, v%d" % (vX + 1, vX + 1, vX + 3))
    A("v_add_f32 v%d, v%d, v%d" % (vX + 5, vX + 5, vX + 7))
    A("v_add_f32 v%d, v%d, v%d" % (vX, vX, vX + 4))
    A("v_add_f32 v%d, v%d, v%d" % (vX + 1, vX + 1, vX + 5))
    A("v_mul_f32 v%d, %s, v%d" % (vX + 2, f32(-LOG2E), vX))
    A("v_exp_f32 v%d, v%d" % (vX + 2, vX + 2))
    A.nop(1)
    A("v_add_f32 v%d, 1.0, v%d" % (vX + 2, vX + 2))
    A("v_rcp_f32 v%d, v%d" % (vX + 2, vX + 2))
    A.nop(1)
    A("v_mul_f32 v%d, v%d, v%d" % (vX, vX, vX + 2))
    A("v_mul_f32 v%d, v%d, v%d" % (vX, vX, vX + 1))
    A.nop(2)
    A("v_mov_b32_dpp v%d, v%d quad_perm:[1,0,3,2] row_mask:0xf bank_mask:0xf" % (vX + 1, vX))
    A("v_cvt_pk_bf16_f32 v%d, v%d, v%d" % (vX + 2, vX, vX + 1))
    A("v_mov_b32 v%d, 0x7fc07fc0" % (vX + 3))
    A("v_cmp_eq_u32 vcc, -1, v%d" % (vX + 2))
    A.nop(2)
    A("v_cndmask_b32 v%d, v%d, v%d, vcc" % (vX + 2, vX + 2, vX + 3))
    A("s_mov_b32 exec_lo, 0x55555555")
    A("s_mov_b32 exec_hi, 0")
    A("buffer_store_dword v%d, v%d, %s, s%d offen sc1" % (vX + 2, vT1, sr(sWS, 4), sTmp))
    A("s_mov_b64 exec, -1")
    stamp()
    if STAMPS:
        nstamp[0] -= 2
    A.label("K2_OWN")
    for row in range(2):
        A("s_add_u32 s%d, s%d, %d" % (sTmp, sRow, row))
        A("s_cmp_eq_u32 s%d, s%d" % (sTmp, sI1))
        A("s_cbranch_scc1 K2_SKIP%d" % row)
        A("s_cmp_eq_u32 s%d, s%d" % (sTmp, sI2))
        A("s_cbranch_scc1 K2_SKIP%d" % row)
        ln_stats(vOs + row, vOs + 2 + row)
        unpack4(vX, vHr + 4 * row)
        for i in range(8):
            A("v_sub_f32 v%d, v%d, v%d" % (vX + 8 + i, vX + i, vOs + row))
            A("v_fmac_f32 v%d, v%d, v%d" % (vX + i, vX + 8 + i, vOs + 2 + row))
        for i in range(4):
            A("v_cvt_pk_bf16_f32 v%d, v%d, v%d" % (vHr + 4 * row + i, vX + 2 * i, vX + 2 * i + 1))
        A("s_lshl_b32 s%d, s%d, 10" % (sTmp, sTmp))
        A("buffer_store_dwordx4 %s, v%d, %s, s%d offen" % (vr(vHr + 4 * row, 4), vL16, sr(sOUT, 4), sTmp))
        A.label("K2_SKIP%d" % row)
    A("s_cmp_eq_u32 s%d, 2" % sRole)
    A("s_cbranch_scc0 K2_FIN")
    A("s_barrier")
    A("v_bfe_u32 v%d, v%d, 2, 2" % (vT1, vL))
    A("v_lshl_add_u32 v%d, v%d, 3, v%d" % (vT1, vG, vT1))
    A("s_mul_i32 s%d, s%d, %d" % (sTmp, sWv, 352 * 64))
    A("v_lshl_add_u32 v%d, v%d, 6, s%d" % (vT1, vT1, sTmp))
    A("v_and_b32 v%d, 3, v%d" % (vT2, vL))
    A("v_lshl_add_u32 v%d, v%d, 3, v%d" % (vT1, vT2, vT1))
    A("v_bfe_u32 v%d, v%d, 4, 1" % (vT2, vL))
    A("v_lshl_add_u32 v%d, v%d, 5, v%d" % (vT1, vT2, vT1))
    for s in range(22):
        for half in range(2):
            A("ds_read_b64_tr_b16 %s, v%d offset:%d" % (vr(vAF + 4 * s + 2 * half, 2), vT1, (16 * s + 4 * half) * 64))
    A("s_mul_i32 s%d, s%d, 704" % (sTmp, sWv))
    A("s_add_u32 s%d, s%d, 0x%x" % (sTmp, sTmp, WS_A))
    A("s_cmp_eq_u32 s%d, 3" % sWv)
    A("s_cselect_b32 s%d, 0, 0xf00" % sTmp2)
    A("s_or_b32 s%d, s%d, 0xff" % (sTmp2, sTmp2))
    for i in range(8):
        A("v_mov_b32 v%d, 0" % (vX + i))
    A("s_mov_b32 exec_hi, s%d" % sTmp2)
    A("s_mov_b32 s%d, 0" % sCnt)
    stamp()
    A.label("K2_POLL")
    A("buffer_load_dwordx4 %s, v%d, %s, s%d offen sc1" % (vr(vX, 4), vL16, sr(sWS, 4), sTmp))
    A("buffer_load_dwordx4 %s, v%d, %s, s%d offen offset:2752 sc1" % (vr(vX + 4, 4), vL16, sr(sWS, 4), sTmp))
    A("s_add_u32 s%d, s%d, 1" % (sCnt, sCnt))
    A("s_waitcnt vmcnt(0)")
    A("v_max_u32 v%d, v%d, v%d" % (vT2, vX, vX + 1))
    A("v_max3_u32 v%d, v%d, v%d, v%d" % (vT2, vX + 2, vX + 3, vT2))
    A("v_max3_u32 v%d, v%d, v%d, v%d" % (vT2, vX + 4, vX + 5, vT2))
    A("v_max3_u32 v%d, v%d, v%d, v%d" % (vT2, vX + 6, vX + 7, vT2))
    A("v_cmp_eq_u32 vcc, -1, v%d" % vT2)
    A("s_cmp_eq_u64 vcc, 0")
    A("s_cbranch_scc1 K2_POLL_OK")
    A("s_cmp_lt_u32 s%d, %d" % (sCnt, SPIN_LIMIT))
    A("s_cbranch_scc1 K2_POLL")
    A.label("K2_POLL_OK")
    stamp()
    A("s_mov_b32 exec_hi, 0xfff")
    A("s_mul_i32 s%d, s%d, 1536" % (sTmp, sWv))
    A("s_add_u32 s%d, s%d, %d" % (sTmp, sTmp, L_A))
    A("v_add_u32 v%d, s%d, v%d" % (vT2, sTmp, vL16))
    A("ds_write_b128 v%d, %s" % (vT2, vr(vX, 4)))
    A("ds_write_b128 v%d, %s offset:768" % (vT2, vr(vX + 4, 4)))
    A("s_mov_b64 exec, -1")
    A("v_and_b32 v%d, 1, v%d" % (vT2, vL))
    A("v_mul_u32_u24 v%d, 768, v%d" % (vT2, vT2))
    A("v_lshl_add_u32 v%d, v%d, 4, v%d" % (vT2, vG, vT2))
    A("v_add_u32 v%d, s%d, v%d" % (vT2, sTmp, vT2))
    A("s_waitcnt lgkmcnt(0)")
    for grp in range(3):
        ss = list(range(grp * 8, min(22, grp * 8 + 8)))
        for s in ss:
            A("ds_read_b128 %s, v%d offset:%d" % (vr(vBF + 4 * (s - grp * 8), 4), vT2, s * 32))
        A("s_waitcnt lgkmcnt(0)")
        for s in ss:
            A("%s %s, %s, %s, %s" % (MFMA, vr(vAcc, 16), vr(vAF + 4 * s, 4), vr(vBF + 4 * (s - grp * 8), 4), "0" if s == 0 else vr(vAcc, 16)))
    red_write()
    A("s_cmp_eq_u32 s%d, 0" % sWv)
    A("s_cbranch_scc0 K2_FIN")
    A("v_lshlrev_b32 v%d, 2, v%d" % (vT1, vL))
    A("v_add_u32 v%d, %d, v%d" % (vT1, L_RED, vT1))
    A("ds_read2_b32 %s, v%d offset0:0 offset1:64" % (vr(vX, 2), vT1))
    A("ds_read2_b32 %s, v%d offset0:128 offset1:192" % (vr(vX + 2, 2), vT1))
    ln_stats(vSs, vSs + 1)
    A("v_fma_f32 v%d, -v%d, v%d, v%d" % (vSs + 2, vSs, vW1, vSs + 2))
    A("v_mul_f32 v%d, v%d, v%d" % (vSs + 2, vSs + 2, vSs + 1))
    A("v_mul_f32 v%d, %s, v%d" % (vSs + 2, f32(-LOG2E), vSs + 2))
    A("v_exp_f32 v%d, v%d" % (vSs + 2, vSs + 2))
    A.nop(1)
    A("v_add_f32 v%d, 1.0, v%d" % (vSs + 2, vSs + 2))
    A("v_rcp_f32 v%d, v%d" % (vSs + 2, vSs + 2))
    A("v_lshlrev_b32 v%d, 16, v%d" % (vSel, vSel))
    A("v_sub_f32 v%d, v%d, v%d" % (vSel + 1, vSel, vSs))
    A("v_fmac_f32 v%d, v%d, v%d" % (vSel, vSel + 1, vSs + 1))
    A("s_waitcnt lgkmcnt(0)")
    A("v_add_f32 v%d, v%d, v%d" % (vX, vX, vX + 1))
    A("v_add_f32 v%d, v%d, v%d" % (vX + 2, vX + 2, vX + 3))
    A("v_add_f32 v%d, v%d, v%d" % (vX, vX, vX + 2))
    A("v_fmac_f32 v%d, v%d, v%d" % (vSel, vX, vSs + 2))
    A("v_cvt_pk_bf16_f32 v%d, v%d, v%d" % (vSel, vSel, vSel))
    A("s_lshl_b32 s%d, s%d, 6" % (sTmp, sJ))
    A("buffer_store_short v%d, v%d, %s, s%d offen" % (vSel, vSel + 2, sr(sOUT, 4), sTmp))
    A.label("K2_FIN")
    if STAMPS:
        A("s_waitcnt vmcnt(0)")
        stamp()
        ns = nstamp[0]
        A("s_waitcnt lgkmcnt(0)")
        A("s_lshl_b32 s%d, s2, 3" % sTmp)
        A("s_add_u32 s%d, s%d, s%d" % (sTmp, sTmp, sWv))
        A("s_mul_i32 s%d, s%d, %d" % (sTmp, sTmp, NSTAMP_SLOTS * 8))
        A("s_add_u32 s%d, s%d, 0x%x" % (sTmp, sTmp, WS_STAMP + 14 * 8))
        A("v_mov_b32 v%d, 0" % vT0)
        A("s_mov_b64 exec, 1")
        for i in range(ns):
            A("v_mov_b32 v%d, s%d" % (vT2, 70 + 2 * i))
            A("v_mov_b32 v%d, s%d" % (vT3, 71 + 2 * i))
            A("buffer_store_dwordx2 %s, v%d, %s, s%d offen offset:%d" % (vr(vT2, 2), vT0, sr(sWS, 4), sTmp, i * 8))
            A.nop(2)
        opt["k2_nstamps"] = ns
    A.label("K2_END")
    A("s_endpgm")
    return A.text(), 224, LDS

HEADER = open("sequential_preLN__sliding_block__moe_arch_mod__prompt.s.ref").read().split("; Override launch")[0] if True else ""

def build(opt):
    k1, v1, l1 = gen_k1(opt)
    k2, v2, l2 = gen_k2(opt)
    s = HEADER
    s += "; @launch kernel=attn_kernel grid=(256,1,1) block=(512,1,1) lds=%d\n" % l1
    s += "; @launch kernel=mod_kernel grid=(256,1,1) block=(256,1,1) lds=%d\n" % l2
    s += '.amdgcn_target "amdgcn-amd-amdhsa--gfx950"\n.text\n'
    for name, body in (("attn_kernel", k1), ("mod_kernel", k2)):
        s += ".globl %s\n.p2align 8\n.type %s,@function\n%s:\n%s" % (name, name, name, body)
    s += '.section .rodata,"a"\n'
    for name, nv in (("attn_kernel", v1), ("mod_kernel", v2)):
        s += """.p2align 6
.amdhsa_kernel %s
  .amdhsa_next_free_vgpr %d
  .amdhsa_next_free_sgpr 102
  .amdhsa_accum_offset %d
  .amdhsa_group_segment_fixed_size 0
  .amdhsa_kernarg_size 88
  .amdhsa_user_sgpr_count 2
  .amdhsa_user_sgpr_kernarg_segment_ptr 1
  .amdhsa_system_sgpr_workgroup_id_x 1
.end_amdhsa_kernel
""" % (name, nv, (nv + 3) // 4 * 4)
    return s

if __name__ == "__main__":
    out = sys.argv[1] if len(sys.argv) > 1 else "k.s"
    opt = {}
    for a in sys.argv[2:]:
        k, v = a.split("=")
        opt[k] = int(v)
    open(out, "w").write(build(opt))
    print(opt)
```

```python
import sys, struct

def f32(x):
    return "0x%08x" % struct.unpack("<I", struct.pack("<f", x))[0]

WS_KV = 0x000000
WS_O = 0x400000
WS_H = 0x600000
WS_ST = 0x800000
WS_A = 0x810000
WS_FKV = 0x840000
WS_FO = 0x860000
WS_FG = 0x880000
WS_LS = 0x890000
WS_SIZE = 0x10000000
WS_STAMP = 0x8000000
NSTAMP_SLOTS = 24

LOG2E = 1.4426950408889634
BIG = 1.0e30
SPIN_LIMIT = 100000
MFMA = "v_mfma_f32_32x32x16_bf16"
MFMA16 = "v_mfma_f32_16x16x32_bf16"
MFMA4 = "v_mfma_f32_4x4x4_16b_bf16"
KNAME = "sequential_preLN__sliding_block__moe_arch_mod__prompt_kernel"

class Asm:
    def __init__(self):
        self.L = []
        self.filt = None
    def __call__(self, s):
        s = s.strip()
        if self.filt and self.filt(s):
            return
        self.L.append("    " + s)
    def label(self, s):
        self.L.append(s + ":")
    def nop(self, n):
        while n > 0:
            k = min(n, 16)
            self.L.append("    s_nop %d" % (k - 1))
            n -= k
    def text(self):
        return "\n".join(self.L) + "\n"

def vr(b, n):
    assert b % 2 == 0, "unaligned vgpr tuple %d" % b
    return "v[%d:%d]" % (b, b + n - 1)
def sr(b, n):
    return "s[%d:%d]" % (b, b + n - 1)

def gen(opt):
    A = Asm()
    STAMPS = opt.get("stamps", 0)
    NST = 8 * opt.get("p1rep", 1)
    def stamp(i):
        if STAMPS:
            A("s_memrealtime %s" % sr(70 + 2 * i, 2))
    def srd(d, base, size):
        A("s_mov_b32 s%d, s%d" % (d, base))
        A("s_mov_b32 s%d, s%d" % (d + 1, base + 1))
        A("s_mov_b32 s%d, 0x%x" % (d + 2, size))
        A("s_mov_b32 s%d, 0x20000" % (d + 3))
    pX, pW, pWO, pBX, pWR, pWG, pWU, pWD, pOUT, pDBG, pWS = 8, 10, 12, 14, 16, 18, 20, 22, 24, 26, 28
    sX, sW, sWS, sGA, sGB = 32, 36, 40, 44, 48
    sWv, sT, sC, sB, sHP, sTq, sWGL, sRole, sJ = 52, 53, 54, 55, 56, 57, 58, 59, 60
    sa, sb, sc, sd = 61, 62, 63, 64
    sKC, sXo, sWo, sSlotX, sDW = 3, 4, 5, 6, 7
    sXbase, sWbase = 30, 31
    sRd, sS = 65, 67
    sN, sI, sChunk, sCnt = 3, 4, 5, 6
    sMaskV = 30
    sKu, sKm = 68, 69
    sI1, sI2 = 65, 66
    sCG, sG3 = 7, 67
    XS, WSL = 16384, 12288
    NSL = 5
    SLOT = XS + WSL
    L_K = 65536
    L_V = 90112
    L_Q = 114688
    L_STR = 143360
    L_STM = 143872
    L_CS = 144384
    L_PAY = 144896
    L_NON = 144960
    L_VX = 145408
    L_CSP = 161792
    SLOT0 = 2
    L_F = 118784
    L_FU = L_F + 16384 + 128
    L_RED = 65536
    L_TOP = 0
    L_R2 = 256
    LDS = 163840
    vL, vN, vG, vKap, vL16, vOnes, vTok = 1, 2, 3, 4, 5, 6, 7
    vT0, vT1, vT2, vT3 = 8, 9, 10, 11
    vNon = 12
    vXr = 14
    vWr = 18
    vFA = 200
    vWR4 = 248
    vW1 = 252
    vKb, vVb, vIG = 253, 254, 255
    vXg = 22
    vWg = 14
    vXa, vXc, vWa, vWc = 26, 30, 34, 38
    vU0, vU1 = 42, 43
    vOne2 = 44
    vB = 48
    vAcV = 128
    vAc0, vAc1 = 144, 160
    vRow = 176
    vLSa = 184
    vLSb = 185
    sPub = 66
    LA = opt.get("la", 2)
    vCq, vCk, vCv = 188, 192, 196
    vE = 48
    vPk = 80
    vQ = 22
    vKad, vVad, vM, vMold = 26, 27, 30, 31
    vKa, vKbf = 32, 36
    vSa, vSb = 44, 60
    vCn = 76
    vP = 96
    vCm = 200
    vVa, vVbf = 216, 224
    vO = 232
    vWOa = 26
    vRa = 28
    vOF = 44
    vH0, vH1 = 76, 92
    vAW = 108
    vHp = 36
    vS1, vS2, vS3 = 44, 48, 52
    vOs = 56
    vK1, vK2, vP1, vP2 = 58, 59, 60, 61
    vX = 64
    vBF = 80
    vAcc = 104
    vSs = 120
    vSel = 124

    A("s_cmp_ge_u32 s2, 256")
    A("s_cbranch_scc1 K_END")
    stamp(0)
    A("s_load_dwordx16 s[8:23], s[0:1], 0")
    A("s_load_dwordx4 s[24:27], s[0:1], 64")
    A("s_load_dwordx2 s[28:29], s[0:1], 80")
    A("v_and_b32 v%d, 63, v0" % vL)
    A("v_lshrrev_b32 v%d, 6, v0" % vT0)
    A("v_lshlrev_b32 v%d, 4, v%d" % (vL16, vL))
    A("v_readfirstlane_b32 s%d, v%d" % (sWv, vT0))
    A("s_and_b32 s%d, s2, 7" % sa)
    A("s_lshr_b32 s%d, s2, 3" % sb)
    A("s_lshr_b32 s%d, s%d, 1" % (sB, sa))
    A("s_lshr_b32 s%d, s%d, 3" % (sc, sb))
    A("s_lshl_b32 s%d, s%d, 2" % (sd, sc))
    A("s_add_u32 s%d, s%d, s%d" % (sB, sB, sd))
    A("s_and_b32 s%d, s%d, 1" % (sHP, sa))
    A("s_lshl_b32 s%d, s%d, 3" % (sHP, sHP))
    A("s_and_b32 s%d, s%d, 7" % (sKC, sb))
    A("s_add_u32 s%d, s%d, s%d" % (sHP, sHP, sKC))
    A("s_lshl_b32 s%d, s%d, 1" % (sc, sc))
    A("s_add_u32 s%d, s%d, s%d" % (sKC, sKC, sc))
    A("s_and_b32 s%d, s%d, 7" % (sKC, sKC))
    A("s_and_b32 s%d, s%d, 3" % (sT, sWv))
    A("s_lshr_b32 s%d, s%d, 2" % (sC, sWv))
    A("s_cmp_eq_u32 s%d, 0" % sC)
    A("s_cbranch_scc0 K_PRO_LD")
    A("s_lshl_b32 s%d, s%d, 4" % (sa, sB))
    A("s_add_u32 s%d, s%d, s%d" % (sa, sa, sHP))
    A("s_lshl_b32 s%d, s%d, 2" % (sa, sa))
    A("s_add_u32 s%d, s%d, s%d" % (sa, sa, sT))
    A("s_lshl_b32 s%d, s%d, 11" % (sb, sa))
    A("s_waitcnt lgkmcnt(0)")
    srd(sX, pX, 0x200000)
    A("buffer_load_dwordx4 %s, v%d, %s, s%d offen" % (vr(vRow, 4), vL16, sr(sX, 4), sb))
    A("buffer_load_dwordx4 %s, v%d, %s, s%d offen offset:1024" % (vr(vRow + 4, 4), vL16, sr(sX, 4), sb))
    srd(sGA, pDBG, 256)
    A("s_or_b32 s%d, s2, s%d" % (sa, sWv))
    A("s_cmp_lg_u32 s%d, 0" % sa)
    A("s_cbranch_scc1 K_PRO_DONE")
    A("s_memrealtime s[68:69]")
    A("s_waitcnt lgkmcnt(0)")
    A("s_or_b32 s69, s69, 0x80000000")
    A("v_mov_b32 v%d, s68" % vT0)
    A("v_mov_b32 v%d, s69" % vT1)
    A("v_mov_b32 v%d, 0" % vT2)
    A("s_mov_b64 exec, 1")
    A("buffer_store_dwordx2 %s, v%d, %s, 0 offen sc1" % (vr(vT0, 2), vT2, sr(sGA, 4)))
    A("s_mov_b64 exec, -1")
    A("s_branch K_PRO_DONE")
    A.label("K_PRO_LD")
    A("v_lshrrev_b32 v%d, 3, v%d" % (vT0, vL))
    A("v_lshrrev_b32 v%d, 1, v%d" % (vT1, vT0))
    A("v_and_b32 v%d, 7, v%d" % (vT2, vL))
    A("v_xor_b32 v%d, v%d, v%d" % (vT2, vT2, vT1))
    A("v_lshlrev_b32 v%d, 4, v%d" % (vT2, vT2))
    A("v_lshl_add_u32 v%d, v%d, 10, v%d" % (vXg, vT0, vT2))
    A("v_xor_b32 v%d, 64, v%d" % (vXg + 1, vXg))
    A("v_add_u32 v%d, %d, v%d" % (vXg + 1, 8192 - 1024, vXg + 1))
    A("v_add_u32 v%d, %d, v%d" % (vXg + 2, 2 * (8192 - 1024), vXg))
    A("v_add_u32 v%d, %d, v%d" % (vXg + 3, 2 * (8192 - 1024), vXg + 1))
    A("s_lshl_b32 s%d, s%d, 17" % (sXbase, sB))
    A("s_lshl_b32 s%d, s%d, 15" % (sa, sT))
    A("s_add_u32 s%d, s%d, s%d" % (sXbase, sXbase, sa))
    A("s_movk_i32 s%d, 0x1556" % sb)
    for q in range(3):
        src = vL
        if q:
            A("v_add_u32 v%d, %d, v%d" % (vT0, 64 * q, vL))
            src = vT0
        A("v_mul_u32_u24 v%d, s%d, v%d" % (vT1, sb, src))
        A("v_lshrrev_b32 v%d, 16, v%d" % (vT1, vT1))
        A("v_mul_u32_u24 v%d, 12, v%d" % (vT2, vT1))
        A("v_sub_u32 v%d, v%d, v%d" % (vT2, src, vT2))
        A("v_lshrrev_b32 v%d, 2, v%d" % (vT3, vT2))
        A("v_and_b32 v%d, 3, v%d" % (vT2, vT2))
        A("v_lshlrev_b32 v%d, 4, v%d" % (vT2, vT2))
        A("v_lshl_add_u32 v%d, v%d, 10, v%d" % (vT2, vT3, vT2))
        A("v_mul_u32_u24 v%d, 0xc00, v%d" % (vT1, vT1))
        A("v_add_u32 v%d, v%d, v%d" % (vWg + q, vT1, vT2))
        if q:
            A("v_subrev_u32 v%d, %d, v%d" % (vWg + q, 1024 * q, vWg + q))
    A("s_lshl_b32 s%d, s%d, 6" % (sWbase, sHP))
    A("s_mul_i32 s%d, s%d, 49152" % (sa, sT))
    A("s_add_u32 s%d, s%d, s%d" % (sWbase, sWbase, sa))
    A("s_lshl_b32 s%d, s%d, 12" % (sSlotX, sT))
    A("s_add_u32 s%d, s%d, %d" % (sSlotX, sSlotX, SLOT0 * SLOT))
    A("s_lshl_b32 s%d, s%d, 10" % (sDW, sT))
    A("s_sub_u32 s%d, %d, s%d" % (sDW, XS, sDW))
    A("s_waitcnt lgkmcnt(0)")
    srd(sX, pX, 0x200000)
    srd(sW, pW, 0x180000)
    stamp(1)

    def dma_stage(hook=None):
        nd = opt.get("nodma")
        A("s_lshl_b32 s%d, s%d, 7" % (sXo, sKC))
        A("s_mov_b32 m0, s%d" % sSlotX)
        A("s_add_u32 s%d, s%d, s%d" % (sXo, sXo, sXbase))
        for i in range(4):
            if not nd:
                A("buffer_load_dwordx4 v%d, %s, s%d offen offset:%d lds" % (vXg + i, sr(sX, 4), sXo, i * 1024))
            if i == 0:
                A("s_mul_i32 s%d, s%d, 196608" % (sWo, sKC))
                A("s_add_u32 s%d, s%d, s%d" % (sa, sSlotX, sDW))
            if i == 1:
                A("s_add_u32 s%d, s%d, s%d" % (sWo, sWo, sWbase))
                A("s_add_u32 s%d, s%d, 1" % (sKC, sKC))
                if hook: hook(0)
            if i == 2:
                A("s_and_b32 s%d, s%d, 7" % (sKC, sKC))
                A("s_add_u32 s%d, s%d, %d" % (sSlotX, sSlotX, SLOT))
        A("s_mov_b32 m0, s%d" % sa)
        if hook: hook(1)
        else: A("s_nop 0")
        for i in range(3):
            if not nd:
                A("buffer_load_dwordx4 v%d, %s, s%d offen offset:%d lds" % (vWg + i, sr(sW, 4), sWo, i * 1024))
            if i == 0:
                A("s_cmp_ge_u32 s%d, %d" % (sSlotX, NSL * SLOT))
                A("s_cselect_b32 s%d, %d, 0" % (sa, NSL * SLOT))
                A("s_sub_u32 s%d, s%d, s%d" % (sSlotX, sSlotX, sa))
            if i == 1 and hook: hook(2)
            if i == 2 and hook: hook(3)
    def dma_advance():
        pass
    def build_mask(first):
        for r in range(0, 16, 2):
            for k in range(2):
                jr = ((r + k) >> 3) * 16 + ((r + k) & 7)
                A("v_cmp_%s_i32 %s, %d, v%d" % ("gt" if first else "le", "vcc" if k == 0 else sr(sKu, 2), jr, vIG))
            A.nop(1)
            A("v_cndmask_b32 v%d, v%d, v%d, vcc" % (vCm + r, vT2, vT3))
            A("v_cndmask_b32 v%d, v%d, v%d, %s" % (vCm + r + 1, vT2, vT3, sr(sKu, 2)))
    def common_setup(loader):
        A("s_lshl_b32 s%d, s%d, 4" % (sWGL, sB))
        A("s_add_u32 s%d, s%d, s%d" % (sWGL, sWGL, sHP))
        A("v_and_b32 v%d, 31, v%d" % (vN, vL))
        A("v_lshrrev_b32 v%d, 5, v%d" % (vG, vL))
        A("v_and_b32 v%d, 0x13, v%d" % (vKap, vN))
        A("v_and_b32 v%d, 4, v%d" % (vT0, vN))
        A("v_lshl_or_b32 v%d, v%d, 1, v%d" % (vKap, vT0, vKap))
        A("v_and_b32 v%d, 8, v%d" % (vT0, vN))
        A("v_lshrrev_b32 v%d, 1, v%d" % (vT0, vT0))
        A("v_or_b32 v%d, v%d, v%d" % (vKap, vKap, vT0))
        A("v_mov_b32 v%d, 0x3f803f80" % vOnes)
        A("v_bfe_u32 v%d, v%d, 2, 2" % (vT2, vL))
        A("v_lshl_add_u32 v%d, v%d, 3, v%d" % (vT2, vG, vT2))
        A("v_mul_u32_u24 v%d, 192, v%d" % (vT3, vT2))
        A("v_bfe_u32 v%d, v%d, 4, 1" % (vT2, vL))
        A("v_lshl_add_u32 v%d, v%d, 5, v%d" % (vT3, vT2, vT3))
        A("v_and_b32 v%d, 1, v%d" % (vT2, vL))
        A("v_lshl_add_u32 v%d, v%d, 4, v%d" % (vT3, vT2, vT3))
        A("v_bfe_u32 v%d, v%d, 1, 1" % (vT2, vL))
        A("v_lshl_add_u32 v%d, v%d, 3, v%d" % (vT3, vT2, vT3))
        A("s_mov_b32 s%d, %d" % (sRd, SLOT0 * SLOT))
        if not loader:
            A("v_bfe_u32 v%d, v%d, 1, 3" % (vT0, vKap))
            A("v_xor_b32 v%d, v%d, v%d" % (vT0, vT0, vG))
            A("v_lshlrev_b32 v%d, 4, v%d" % (vT0, vT0))
            A("s_lshl_b32 s%d, s%d, 12" % (sa, sT))
            A("v_lshl_add_u32 v%d, v%d, 7, s%d" % (vT1, vKap, sa))
            for i in range(4):
                A("s_add_u32 s%d, s%d, %d" % (sa, sT, i))
                A("s_and_b32 s%d, s%d, 3" % (sa, sa))
                A("s_lshl_b32 s%d, s%d, 5" % (sb, sa))
                A("s_mul_i32 s%d, s%d, 3072" % (sa, sa))
                A("s_add_u32 s%d, s%d, %d" % (sa, sa, XS))
                A("v_xor_b32 v%d, s%d, v%d" % (vT2, sb, vT0))
                A("v_add_u32 v%d, v%d, v%d" % (vXa + i, vT1, vT2))
                A("v_add_u32 v%d, s%d, v%d" % (vWa + i, sa, vT3))
                A("v_add_u32 v%d, %d, v%d" % (vXc + i, SLOT0 * SLOT, vXa + i))
                A("v_add_u32 v%d, %d, v%d" % (vWc + i, SLOT0 * SLOT, vWa + i))
            A("v_mov_b32 v%d, 0x3f803f80" % vOne2)
            A("v_mov_b32 v%d, 0x3f803f80" % (vOne2 + 1))
            for i in range(12):
                A("v_mov_b32 v%d, 0" % (vCq + i))
            A("s_lshl_b32 s%d, s%d, 2" % (sa, sT))
            A("s_add_u32 s%d, s%d, %d" % (sa, sa, L_CSP))
            A("v_lshl_add_u32 v%d, v%d, 4, s%d" % (vLSa, vN, sa))
            for i in range(48):
                A("v_mov_b32 v%d, 0" % (vAcV + i))
            for i in range(32):
                A("v_mov_b32 v%d, 0" % (vB + 32 + i))
        else:
            A("s_lshl_b32 s%d, s%d, 2" % (sa, sWGL))
            A("s_add_u32 s%d, s%d, s%d" % (sa, sa, sT))
            A("s_lshl_b32 s%d, s%d, 5" % (sa, sa))
            A("v_lshl_add_u32 v%d, v%d, 4, s%d" % (vLSa, vG, sa))
            A("s_lshl_b32 s%d, s%d, 2" % (sa, sB))
            A("s_add_u32 s%d, s%d, s%d" % (sa, sa, sT))
            A("s_lshl_b32 s%d, s%d, 9" % (sa, sa))
            A("v_lshl_add_u32 v%d, v%d, 4, s%d" % (vLSb, vKap, sa))
            A("s_lshl_b32 s%d, s%d, 4" % (sa, sT))
            A("s_add_u32 s%d, s%d, %d" % (sa, sa, L_PAY))
            A("v_lshl_add_u32 v%d, v%d, 3, s%d" % (vU1, vG, sa))
            A("s_mov_b32 s%d, 0" % sPub)
        A("v_lshlrev_b32 v%d, 3, v%d" % (vIG, vG))
        A("v_sub_u32 v%d, v%d, v%d" % (vIG, vKap, vIG))
        A("v_mov_b32 v%d, %s" % (vT2, f32(-BIG)))
        A("v_mov_b32 v%d, 0" % vT3)
        build_mask(False)
        A("v_add_u32 v%d, %d, v%d" % (vKb, L_K + (1024 if loader else 0), vL16))
        A("v_add_u32 v%d, %d, v%d" % (vVb, L_V + (256 if loader else 0), vL16))
        for i in range(16):
            A("v_mov_b32 v%d, v%d" % (vVa + i, vOnes))
        for i in range(16):
            A("v_mov_b32 v%d, 0" % (vO + i))
        if loader:
            A("s_sub_u32 s%d, 3, s%d" % (sTq, sT))
        else:
            A("s_mov_b32 s%d, s%d" % (sTq, sT))
        A("s_mov_b32 s%d, 0" % sS)
        srd(sWS, pWS, WS_SIZE)
        if loader:
            srd(sGA, pDBG, 256)
    sa_save = sa
    mainL = A.L
    A.L = []
    sa = sd
    common_setup(True)
    sa = sa_save
    setupL = A.L
    A.L = []
    for st_ in range(LA):
        dma_stage()
        dma_advance()
    dmaL = A.L
    A.L = mainL
    nld = sum(1 for l in dmaL if "buffer_load" in l) or 1
    per = (len(setupL) + nld - 1) // nld
    pos = 0
    def take(n):
        nonlocal pos
        end = min(len(setupL), pos + n)
        while end < len(setupL) and any(k in setupL[end - 1] for k in ("s_cmp", "v_cmp", "s_nop")) or (end < len(setupL) and "v_cndmask" in setupL[end]):
            end += 1
        out = setupL[pos:end]
        pos = end
        return out
    for idx, l in enumerate(dmaL):
        A.L.append(l)
        if "buffer_load" in l:
            A.L.extend(take(per))
    A.L.extend(setupL[pos:])
    A("s_branch K_LOOP1")
    A.label("K_PRO_DONE")
    common_setup(False)

    def rd_advance():
        A("s_add_u32 s%d, s%d, %d" % (sRd, sRd, SLOT))
        A("s_cmp_eq_u32 s%d, %d" % (sRd, NSL * SLOT))
        A("s_cselect_b32 s%d, 0, s%d" % (sRd, sRd))
        A("s_add_u32 s%d, s%d, 1" % (sS, sS))
    def rd_addr():
        for i in range(4):
            A("v_add_u32 v%d, s%d, v%d" % (vXc + i, sRd, vXa + i))
        A("v_add_u32 v%d, s%d, v%d" % (vWc, sRd, vWa))
    def p1filt(l):
        if opt.get("nomfma") and l.startswith("v_mfma"): return True
        if opt.get("nords") and l.startswith("ds_read"): return True
        if opt.get("no4") and l.startswith(MFMA4): return True
        if opt.get("notr") and l.startswith("ds_read_b64_tr"): return True
        if opt.get("nob128") and l.startswith("ds_read_b128"): return True
        return False

    stamp(1)
    A("s_cmp_lg_u32 s2, 1")
    A("s_cbranch_scc1 K_NOSENT")
    for i in range(4):
        A("v_mov_b32 v%d, -1" % (vT0 + i))
    A("v_lshlrev_b32 v%d, 4, v0" % vU0)
    A("s_mov_b32 s%d, 0x%x" % (sa, WS_A))
    A("buffer_store_dwordx4 %s, v%d, %s, s%d offen sc1" % (vr(vT0, 4), vU0, sr(sWS, 4), sa))
    A("s_add_u32 s%d, s%d, 4096" % (sa, sa))
    A("buffer_store_dwordx4 %s, v%d, %s, s%d offen sc1" % (vr(vT0, 4), vU0, sr(sWS, 4), sa))
    A.nop(2)
    A.label("K_NOSENT")
    A("s_cmp_lg_u32 s%d, 0" % sHP)
    A("s_cbranch_scc1 K_NOZERO")
    A("s_lshl_b32 s%d, s%d, 2" % (sa, sB))
    A("s_add_u32 s%d, s%d, s%d" % (sa, sa, sT))
    A("s_lshl_b32 s%d, s%d, 7" % (sa, sa))
    A("s_add_u32 s%d, s%d, 0x%x" % (sa, sa, WS_ST))
    A("v_lshlrev_b32 v%d, 2, v%d" % (vU0, vN))
    A("v_lshl_add_u32 v%d, v%d, 13, v%d" % (vU1, vG, vU0))
    A("v_add_u32 v%d, 0x4000, v%d" % (vU0, vU0))
    A("buffer_store_dword v%d, v%d, %s, s%d offen sc1" % (vAcV, vU1, sr(sWS, 4), sa))
    A("buffer_store_dword v%d, v%d, %s, s%d offen sc1" % (vAcV, vU0, sr(sWS, 4), sa))
    A.label("K_NOZERO")
    A("s_lshl_b32 s%d, s%d, 4" % (sa, sT))
    A("s_add_u32 s%d, s%d, %d" % (sa, sa, L_PAY))
    A("v_lshl_add_u32 v%d, v%d, 3, s%d" % (vU1, vG, sa))
    A("s_waitcnt vmcnt(0)")
    a0, b0, a1, b1 = vT0, vT1, vT2, vT3
    for i in range(4):
        z = "0" if i == 0 else None
        A("v_dot2_f32_bf16 v%d, v%d, v%d, %s" % (a0, vRow + i, vOnes, z or "v%d" % a0))
        A("v_dot2_f32_bf16 v%d, v%d, v%d, %s" % (b0, vRow + i, vRow + i, z or "v%d" % b0))
        A("v_dot2_f32_bf16 v%d, v%d, v%d, %s" % (a1, vRow + 4 + i, vOnes, z or "v%d" % a1))
        A("v_dot2_f32_bf16 v%d, v%d, v%d, %s" % (b1, vRow + 4 + i, vRow + 4 + i, z or "v%d" % b1))
    A.nop(3)
    A("v_permlane32_swap_b32 v%d, v%d" % (a0, a1))
    A("v_permlane32_swap_b32 v%d, v%d" % (b0, b1))
    A.nop(1)
    A("v_add_f32 v%d, v%d, v%d" % (a0, a0, a1))
    A("v_add_f32 v%d, v%d, v%d" % (b0, b0, b1))
    A.nop(2)
    A("v_permlane16_swap_b32 v%d, v%d" % (a0, b0))
    A.nop(1)
    A("v_add_f32 v%d, v%d, v%d" % (a0, a0, b0))
    for dpp in ("quad_perm:[1,0,3,2]", "quad_perm:[2,3,0,1]", "row_half_mirror", "row_mirror"):
        A.nop(2)
        A("v_add_f32_dpp v%d, v%d, v%d %s row_mask:0xf bank_mask:0xf" % (a0, a0, a0, dpp))
    A("v_mov_b32 v%d, v%d" % (b0, a0))
    A.nop(2)
    A("v_permlane16_swap_b32 v%d, v%d" % (a0, b0))
    A.nop(1)
    A("v_mul_f32 v%d, %s, v%d" % (a0, f32(1.0 / 512), a0))
    A("v_mul_f32 v%d, %s, v%d" % (b0, f32(1.0 / 512), b0))
    A("v_fma_f32 v%d, -v%d, v%d, v%d" % (b0, a0, a0, b0))
    A("v_max_f32 v%d, 0, v%d" % (b0, b0))
    A("v_add_f32 v%d, %s, v%d" % (b0, f32(1e-5), b0))
    A("v_rsq_f32 v%d, v%d" % (vRow, b0))
    A.nop(1)
    A("v_mul_f32_e64 v%d, -v%d, v%d" % (vRow + 1, a0, vRow))
    A("ds_write_b64 v%d, %s" % (vU1, vr(vRow, 2)))
    stamp(2)
    A.filt = p1filt
    def rd0(k):
        B = vB + 16 * k
        A("ds_read_b128 %s, v%d" % (vr(B, 4), vXc + k))
        for seg in (1, 2, 0):
            for half in range(2):
                A("ds_read_b64_tr_b16 %s, v%d offset:%d" % (vr(B + 4 + 4 * seg + 2 * half, 2), vWc + k, 4 * half * 192 + seg * 64))
    def mm(k, which):
        B = vB + 16 * k
        X = vr(B, 4)
        if which == "K":
            A("%s %s, %s, %s, %s" % (MFMA, vr(vAc1, 16), vr(B + 8, 4), X, vr(vAc1, 16)))
        elif which == "V":
            A("%s %s, %s, %s, %s" % (MFMA, vr(vAcV, 16), X, vr(B + 12, 4), vr(vAcV, 16)))
        else:
            A("%s %s, %s, %s, %s" % (MFMA, vr(vAc0, 16), vr(B + 4, 4), X, vr(vAc0, 16)))
    def weave(fill, k):
        n = (len(fill) + 2) // 3
        for gi, w in enumerate("KVQ"):
            mm(k, w)
            for l in fill[gi * n:(gi + 1) * n]:
                A(l)
    def cap(fn):
        keep = A.L; A.L = []; fn(); out = [l.strip() for l in A.L]; A.L = keep; return out
    def adv(k):
        A("v_add_u32 v%d, s%d, v%d" % (vXc + k, sRd, vXa + k))
        A("v_add_u32 v%d, s%d, v%d" % (vWc + k, sRd, vWa + k))
    def cs4(h):
        for acc, off in ((vCq, 4), (vCk, 8), (vCv, 12)):
            A("%s %s, %s, %s, %s" % (MFMA4, vr(acc, 4), vr(vOne2, 2), vr(vB + off + 2 * h, 2), vr(acc, 4)))
    A.label("K_LOOP0")
    A("s_waitcnt lgkmcnt(0)")
    A("s_barrier")
    weave(cap(lambda: (rd0(0), rd_advance())), 2)
    weave(cap(lambda: (rd0(1), adv(0), adv(1))), 3)
    A("s_waitcnt lgkmcnt(7)")
    weave(cap(lambda: (rd0(2), rd0(3))), 0)
    cs4(0)
    cs4(1)
    A("s_waitcnt lgkmcnt(14)")
    mm(1, "K")
    adv(2)
    adv(3)
    mm(1, "V")
    A("s_cmp_lt_u32 s%d, %d" % (sS, NST))
    mm(1, "Q")
    A("s_cbranch_scc1 K_LOOP0")
    for acc in (vCq, vCk, vCv):
        A("v_mov_b32 v%d, v%d" % (acc + 1, acc))
    A("s_waitcnt lgkmcnt(0)")
    mm(2, "V")
    for acc in (vCq, vCk, vCv):
        A("v_permlane32_swap_b32 v%d, v%d" % (acc, acc + 1))
    for acc in (vCq, vCk, vCv):
        A("v_add_f32 v%d, v%d, v%d" % (acc, acc, acc + 1))
    for seg, acc in enumerate((vCq, vCk, vCv)):
        A("ds_write_b32 v%d, v%d offset:%d" % (vLSa, acc, seg * 512))
    mm(3, "V")
    A("s_waitcnt lgkmcnt(0)")
    A("s_barrier")
    mm(2, "K")
    mm(3, "K")
    mm(2, "Q")
    mm(3, "Q")
    A.filt = None
    stamp(3)
    if opt.get("p1only"):
        A("s_branch K_STAMPS")
    A("s_lshl_b32 s%d, s%d, 7" % (sa, sT))
    A("s_add_u32 s%d, s%d, %d" % (sa, sa, L_STR))
    A("v_lshl_add_u32 v%d, v%d, 2, s%d" % (vU0, vKap, sa))
    A("v_lshlrev_b32 v%d, 4, v%d" % (vT1, vG))
    A("v_add_u32 v%d, %d, v%d" % (vT1, L_CS, vT1))
    A("s_lshl_b32 s%d, s%d, 12" % (sa, sT))
    A("s_add_u32 s%d, s%d, %d" % (sa, sa, L_VX))
    A("v_add_u32 v%d, s%d, v%d" % (vT0, sa, vL16))
    A("v_mov_b32 v%d, %d" % (vU1, L_NON))
    for q in range(4):
        A("ds_write_b128 v%d, %s offset:%d" % (vT0, vr(vAcV + 4 * q, 4), q * 1024))
    A("s_waitcnt lgkmcnt(0)")
    A("s_barrier")
    if opt.get("dbg34"): stamp(1)
    A("ds_read_b32 v%d, v%d" % (vT2, vU0))
    A("ds_read_b32 v%d, v%d offset:%d" % (vT3, vU0, L_STM - L_STR))
    A("ds_read_b64 %s, v%d" % (vr(vNon, 2), vU1))
    for tile in (1, 0):
        for a in range(4):
            A("ds_read_b128 %s, v%d offset:%d" % (vr(vE + 16 * tile + 4 * a, 4), vT1, tile * 128 + a * 32))
    A("s_lshl_b32 s%d, s%d, 11" % (sa, sT))
    A("s_add_u32 s%d, s%d, %d" % (sb, sa, L_K + 8 * 2048))
    A("v_add_u32 v%d, s%d, v%d" % (vT0, sb, vL16))
    A("s_lshl_b32 s%d, s%d, 14" % (sd, sWGL))
    A("s_add_u32 s%d, s%d, s%d" % (sd, sd, sa))
    A("s_waitcnt lgkmcnt(8)")
    for r in range(16):
        A("v_mul_f32 v%d, v%d, v%d" % (vAc1 + r, vAc1 + r, vT2))
    A("s_waitcnt lgkmcnt(4)")
    for r in range(16):
        A("v_fmac_f32 v%d, v%d, v%d" % (vAc1 + r, vE + 16 + r, vT3))
    for i in range(8):
        A("v_cvt_pk_bf16_f32 v%d, v%d, v%d" % (vPk + i, vAc1 + 2 * i, vAc1 + 2 * i + 1))
    A("buffer_store_dwordx4 %s, v%d, %s, s%d offen sc1" % (vr(vPk, 4), vL16, sr(sWS, 4), sd))
    A("buffer_store_dwordx4 %s, v%d, %s, s%d offen offset:1024 sc1" % (vr(vPk + 4, 4), vL16, sr(sWS, 4), sd))
    if opt.get("dbg34"): stamp(2)
    A("ds_write_b128 v%d, %s" % (vT0, vr(vPk, 4)))
    A("ds_write_b128 v%d, %s offset:1024" % (vT0, vr(vPk + 4, 4)))
    A("v_mul_f32 v%d, %s, v%d" % (vT2, f32(0.25 * LOG2E), vT2))
    A("v_mul_f32 v%d, %s, v%d" % (vT3, f32(0.25 * LOG2E), vT3))
    A("s_waitcnt lgkmcnt(2)")
    for r in range(16):
        A("v_mul_f32 v%d, v%d, v%d" % (vAc0 + r, vAc0 + r, vT2))
        A("v_fmac_f32 v%d, v%d, v%d" % (vAc0 + r, vE + r, vT3))
    for i in range(4):
        A("v_cvt_pk_bf16_f32 v%d, v%d, v%d" % (vQ + i, vAc0 + 2 * i, vAc0 + 2 * i + 1))
    for i in range(4):
        A("v_cvt_pk_bf16_f32 v%d, v%d, v%d" % (vPk + 8 + i, vAc0 + 8 + 2 * i, vAc0 + 8 + 2 * i + 1))
    A("s_lshl_b32 s%d, s%d, 10" % (sa, sT))
    A("s_add_u32 s%d, s%d, %d" % (sa, sa, L_Q))
    A("v_add_u32 v%d, s%d, v%d" % (vT0, sa, vL16))
    A("ds_write_b128 v%d, %s" % (vT0, vr(vPk + 8, 4)))
    if opt.get("dbg34"): stamp(11)
    A("s_waitcnt vmcnt(0)")
    A("s_branch K_PUB")

    A.label("K_LOOP1")
    A("v_mov_b32 v%d, 0" % vT0)
    A("buffer_load_dwordx2 %s, v%d, %s, 0 offen sc1" % (vr(vNon, 2), vT0, sr(sGA, 4)))
    stamp(2)
    def try_publish(lab, blocking=False):
        A.label(lab + "_r")
        A("s_cmp_lg_u32 s%d, 0" % sPub)
        A("s_cbranch_scc1 %s" % lab)
        if blocking:
            A("s_waitcnt vmcnt(0)")
        A("v_readfirstlane_b32 s%d, v%d" % (sPub, vNon + 1))
        A("ds_read_b64 %s, v%d" % (vr(vRow, 2), vU1))
        A("s_cmp_lg_u32 s%d, 0" % sPub)
        A("s_cbranch_scc1 %s_ok" % lab)
        A("buffer_load_dwordx2 %s, v%d, %s, 0 offen sc1" % (vr(vNon, 2), vT0, sr(sGA, 4)))
        if blocking:
            A("s_add_u32 s%d, s%d, 1" % (sS, sS))
            A("s_cmp_lt_u32 s%d, %d" % (sS, SPIN_LIMIT))
            A("s_cbranch_scc1 %s_r" % lab)
        A("s_branch %s" % lab)
        A.label(lab + "_ok")
        A("v_mov_b32 v%d, v%d" % (vRow + 2, vNon))
        A("v_mov_b32 v%d, v%d" % (vRow + 3, vNon + 1))
        A("s_mov_b32 s%d, 0x%x" % (sb, WS_LS))
        A("s_mov_b32 exec_lo, 1")
        A("s_mov_b32 exec_hi, 1")
        A("s_waitcnt lgkmcnt(0)")
        A("buffer_store_dwordx4 %s, v%d, %s, s%d offen sc1" % (vr(vRow, 4), vLSa, sr(sWS, 4), sb))
        A("s_mov_b64 exec, -1")
        A.label(lab)
    A.label("K_LOOP1T")
    A("s_waitcnt vmcnt(%d)" % (7 * (LA - 1)))
    A("s_barrier")
    A("s_and_b32 s%d, s%d, %d" % (sb, sS, 1 if LA == 2 else 3))
    A("s_cmp_eq_u32 s%d, %d" % (sb, 0 if LA == 2 else 3))
    A("s_cselect_b32 s%d, s%d, 0" % (sb, sS))
    A("s_cmp_eq_u32 s%d, 0" % sb)
    A("s_cbranch_scc1 K_L1_PUB")
    try_publish("K_L1_PUB")
    dma_stage()
    A("s_add_u32 s%d, s%d, 1" % (sS, sS))
    A("s_cmp_lt_u32 s%d, %d" % (sS, NST - LA))
    A("s_cbranch_scc1 K_LOOP1T")
    assert LA == 2
    A("s_waitcnt vmcnt(7)")
    A("s_barrier")
    try_publish("K_L1_PUB2", blocking=True)
    A("s_mov_b32 s%d, 0x%x" % (sb, WS_LS))
    A("buffer_load_dwordx4 %s, v%d, %s, s%d offen sc1" % (vr(vRow + 4, 4), vLSb, sr(sWS, 4), sb))
    A("s_waitcnt vmcnt(1)")
    A("s_barrier")
    A("s_lshl_b32 s%d, s%d, 7" % (sc, sT))
    A("s_add_u32 s%d, s%d, %d" % (sc, sc, L_STR))
    A("v_lshl_add_u32 v%d, v%d, 5, s%d" % (vT1, vG, sc))
    A("v_lshl_add_u32 v%d, v%d, 2, s%d" % (vU0, vKap, sc))
    A("v_mov_b32 v%d, %d" % (vT3, L_NON))
    A("ds_write_b64 v%d, %s" % (vT3, vr(vNon, 2)))
    A("s_lshl_b32 s%d, s%d, 12" % (sc, sT))
    A("s_add_u32 s%d, s%d, %d" % (sc, sc, L_VX))
    A("v_add_u32 v%d, s%d, v%d" % (vT3, sc, vL16))
    A("s_mov_b32 s%d, 0" % sCnt)
    A.label("K_LS_CHK")
    A("s_waitcnt vmcnt(0)")
    A("v_cmp_eq_u64 vcc, %s, %s" % (vr(vRow + 6, 2), vr(vNon, 2)))
    A("s_cmp_eq_u64 vcc, exec")
    A("s_cbranch_scc1 K_LS_OK")
    A("buffer_load_dwordx4 %s, v%d, %s, s%d offen sc1" % (vr(vRow + 4, 4), vLSb, sr(sWS, 4), sb))
    A("s_add_u32 s%d, s%d, 1" % (sCnt, sCnt))
    A("s_cmp_lt_u32 s%d, %d" % (sCnt, SPIN_LIMIT))
    A("s_cbranch_scc1 K_LS_CHK")
    A.label("K_LS_OK")
    A("ds_write_b32 v%d, v%d" % (vU0, vRow + 4))
    A("ds_write_b32 v%d, v%d offset:%d" % (vU0, vRow + 5, L_STM - L_STR))
    A("s_waitcnt lgkmcnt(0)")
    for q in range(4):
        off = (q & 1) * 16 + (q >> 1) * 64
        A("ds_read_b128 %s, v%d offset:%d" % (vr(vE + 4 * q, 4), vT1, off))
        A("ds_read_b128 %s, v%d offset:%d" % (vr(vE + 16 + 4 * q, 4), vT1, off + L_STM - L_STR))
    A("v_lshlrev_b32 v%d, 4, v%d" % (vT0, vN))
    A("v_add_u32 v%d, %d, v%d" % (vT0, L_CSP, vT0))
    A("s_barrier")
    for seg, acc in enumerate((vCq, vCk, vCv)):
        A("ds_read_b128 %s, v%d offset:%d" % (vr(acc, 4), vT0, seg * 512))
    A("v_lshlrev_b32 v%d, 2, v%d" % (vT0, vN))
    A("v_add_u32 v%d, %d, v%d" % (vT0, L_CS, vT0))
    A("s_waitcnt lgkmcnt(0)")
    for acc in (vCq, vCk, vCv):
        A("v_add_f32 v%d, v%d, v%d" % (acc, acc, acc + 1))
        A("v_add_f32 v%d, v%d, v%d" % (acc + 2, acc + 2, acc + 3))
    for acc in (vCq, vCk, vCv):
        A("v_add_f32 v%d, v%d, v%d" % (acc, acc, acc + 2))
    A("ds_write_b32 v%d, v%d" % (vT0, vCq))
    A("ds_write_b32 v%d, v%d offset:128" % (vT0, vCk))
    stamp(3)
    if opt.get("p1only"):
        A("s_branch K_STAMPS")
    A("s_waitcnt lgkmcnt(0)")
    if opt.get("dbg34"): stamp(13)
    A("s_barrier")
    if opt.get("dbg34"): stamp(1)
    for q in range(4):
        A("ds_read_b128 %s, v%d offset:%d" % (vr(vAc0 + 4 * q, 4), vT3, q * 1024))
    A("s_lshl_b32 s%d, s%d, 11" % (sb, sT))
    A("s_add_u32 s%d, s%d, %d" % (sc, sb, L_V + 8 * 2048))
    A("v_add_u32 v%d, s%d, v%d" % (vT0, sc, vL16))
    A("s_lshl_b32 s%d, s%d, 14" % (sc, sWGL))
    A("s_add_u32 s%d, s%d, s%d" % (sc, sc, sb))
    A("s_add_u32 s%d, s%d, 8192" % (sc, sc))
    A("s_waitcnt lgkmcnt(0)")
    for r in range(16):
        A("v_mul_f32 v%d, v%d, v%d" % (vAc0 + r, vAc0 + r, vE + r))
        A("v_fmac_f32 v%d, v%d, v%d" % (vAc0 + r, vE + 16 + r, vCv))
    for i in range(8):
        A("v_cvt_pk_bf16_f32 v%d, v%d, v%d" % (vPk + i, vAc0 + 2 * i, vAc0 + 2 * i + 1))
    A("buffer_store_dwordx4 %s, v%d, %s, s%d offen sc1" % (vr(vPk, 4), vL16, sr(sWS, 4), sc))
    A("buffer_store_dwordx4 %s, v%d, %s, s%d offen offset:1024 sc1" % (vr(vPk + 4, 4), vL16, sr(sWS, 4), sc))
    if opt.get("dbg34"): stamp(2)
    A("ds_write_b128 v%d, %s" % (vT0, vr(vPk, 4)))
    A("ds_write_b128 v%d, %s offset:1024" % (vT0, vr(vPk + 4, 4)))
    if opt.get("dbg34"): stamp(11)
    A("s_waitcnt vmcnt(0)")

    A.label("K_PUB")
    A("s_mov_b32 s%d, 0x0000ffff" % sMaskV)
    A("s_mov_b32 s%d, 0x0000ffff" % (sMaskV + 1))
    A("v_mov_b32 v%d, %s" % (vMold, f32(-BIG)))
    A("s_lshl_b32 s%d, s%d, 3" % (sb, sWGL))
    A("s_add_u32 s%d, s%d, s%d" % (sb, sb, sWv))
    A("s_lshl_b32 s%d, s%d, 6" % (sb, sb))
    A("s_add_u32 s%d, s%d, 0x%x" % (sb, sb, WS_FKV))
    A("v_mov_b32 v%d, 0" % vT0)
    A("s_waitcnt lgkmcnt(0)")
    if opt.get("dbg34"): stamp(12)
    A("s_mov_b64 exec, 1")
    A("buffer_store_dwordx2 %s, v%d, %s, s%d offen sc1" % (vr(vNon, 2), vT0, sr(sWS, 4), sb))
    A("s_mov_b64 exec, -1")
    A("s_barrier")
    stamp(4)
    if opt.get("dbg34"):
        A("s_branch K_STAMPS")
    A("s_cmp_eq_u32 s%d, 0" % sC)
    A("s_cbranch_scc1 K_HAVEQ")
    A("s_lshl_b32 s%d, s%d, 10" % (sa, sTq))
    A("s_add_u32 s%d, s%d, %d" % (sa, sa, L_Q))
    A("v_add_u32 v%d, s%d, v%d" % (vT0, sa, vL16))
    A("ds_read_b128 %s, v%d" % (vr(vQ, 4), vT0))
    A.label("K_HAVEQ")
    A("s_mov_b32 s%d, 0" % sChunk)
    A("s_add_u32 s%d, s%d, 8" % (sa, sTq))
    A("s_mov_b32 s%d, 8" % sb)
    A("s_mov_b32 s%d, s%d" % (sN, sTq))
    A.label("K_CHUNK")
    A("s_lshl_b32 s%d, s%d, 11" % (sKm, sa))
    A("s_lshl_b32 s%d, s%d, 11" % (sKu, sb))
    A("v_add_u32 v%d, s%d, v%d" % (vKad, sKm, vKb))
    A("ds_read_b128 %s, v%d" % (vr(vKbf, 4), vKad))
    A("v_add_u32 v%d, s%d, v%d" % (vKad, sKu, vKb))
    A("ds_read_b128 %s, v%d" % (vr(vKa, 4), vKad))
    A("v_add_u32 v%d, s%d, v%d" % (vVad, sKm, vVb))
    A("s_mov_b64 exec, %s" % sr(sMaskV, 2))
    A("ds_read_b128 %s, v%d" % (vr(vVbf, 4), vVad))
    A("ds_read_b128 %s, v%d offset:1024" % (vr(vVbf + 4, 4), vVad))
    A("s_mov_b64 exec, -1")
    A("v_add_u32 v%d, s%d, v%d" % (vVad, sKu, vVb))
    A("v_mov_b32 v%d, v%d" % (vM, vMold))
    A("s_mov_b32 s%d, 0" % sI)
    A("s_waitcnt lgkmcnt(3)")
    A("%s %s, %s, %s, %s" % (MFMA, vr(vSb, 16), vr(vKbf, 4), vr(vQ, 4), vr(vCm, 16)))
    def max16(S):
        for i in range(8):
            A("v_max3_f32 v%d, v%d, v%d, v%d" % (vM, S + 2 * i, S + 2 * i + 1, vM))
    A.nop(6)
    A.label("K_P1")
    A("s_waitcnt lgkmcnt(0)")
    A("%s %s, %s, %s, 0" % (MFMA, vr(vSa, 16), vr(vKa, 4), vr(vQ, 4)))
    A("ds_read_b128 %s, v%d offset:2048" % (vr(vKbf, 4), vKad))
    A.nop(3)
    max16(vSb)
    A("s_cmp_ge_u32 s%d, s%d" % (sI, sN))
    A("s_cbranch_scc1 K_P1_DONE")
    A("s_add_u32 s%d, s%d, 1" % (sI, sI))
    A("s_waitcnt lgkmcnt(0)")
    A("%s %s, %s, %s, 0" % (MFMA, vr(vSb, 16), vr(vKbf, 4), vr(vQ, 4)))
    A("v_add_u32 v%d, 4096, v%d" % (vKad, vKad))
    A("ds_read_b128 %s, v%d" % (vr(vKa, 4), vKad))
    max16(vSa)
    A("s_cmp_ge_u32 s%d, s%d" % (sI, sN))
    A("s_cbranch_scc1 K_P1_DONE")
    A("s_add_u32 s%d, s%d, 1" % (sI, sI))
    A("s_branch K_P1")
    A.label("K_P1_DONE")
    A("v_mov_b32 v%d, v%d" % (vT0, vM))
    A("s_waitcnt lgkmcnt(0)")
    A("v_add_u32 v%d, s%d, v%d" % (vKad, sKm, vKb))
    A("ds_read_b128 %s, v%d" % (vr(vKbf, 4), vKad))
    A("v_permlane32_swap_b32 v%d, v%d" % (vM, vT0))
    A("v_add_u32 v%d, s%d, v%d" % (vKad, sKu, vKb))
    A("ds_read_b128 %s, v%d" % (vr(vKa, 4), vKad))
    A("v_max_f32 v%d, v%d, v%d" % (vM, vM, vT0))
    A("v_sub_f32 v%d, v%d, v%d" % (vT0, vMold, vM))
    A("v_exp_f32 v%d, v%d" % (vT0, vT0))
    A("v_mov_b32 v%d, v%d" % (vMold, vM))
    for r in range(16):
        A("v_sub_f32 v%d, v%d, v%d" % (vCm + r, vCm + r, vM))
    A("s_waitcnt lgkmcnt(1)")
    A("v_sub_f32 v%d, 0, v%d" % (vCn, vM))
    A("%s %s, %s, %s, %s" % (MFMA, vr(vSb, 16), vr(vKbf, 4), vr(vQ, 4), vr(vCm, 16)))
    for r in range(1, 16):
        A("v_mov_b32 v%d, v%d" % (vCn + r, vCn))
    for r in range(9):
        A("v_mul_f32 v%d, v%d, v%d" % (vO + r, vO + r, vT0))
    A("s_mov_b32 s%d, 0" % sI)
    def softmax_pv(S, V):
        for r in range(16):
            A("v_exp_f32 v%d, v%d" % (S + r, S + r))
        for i in range(8):
            A("v_cvt_pk_bf16_f32 v%d, v%d, v%d" % (vP + i, S + 2 * i, S + 2 * i + 1))
        A.nop(1)
        A("%s %s, %s, %s, %s" % (MFMA, vr(vO, 16), vr(V, 4), vr(vP, 4), vr(vO, 16)))
        A("%s %s, %s, %s, %s" % (MFMA, vr(vO, 16), vr(V + 4, 4), vr(vP + 4, 4), vr(vO, 16)))
    A.label("K_P2")
    A("s_waitcnt lgkmcnt(0)")
    A("%s %s, %s, %s, %s" % (MFMA, vr(vSa, 16), vr(vKa, 4), vr(vQ, 4), vr(vCn, 16)))
    A("ds_read_b128 %s, v%d offset:2048" % (vr(vKbf, 4), vKad))
    A("s_mov_b64 exec, %s" % sr(sMaskV, 2))
    A("ds_read_b128 %s, v%d" % (vr(vVa, 4), vVad))
    A("ds_read_b128 %s, v%d offset:1024" % (vr(vVa + 4, 4), vVad))
    A("s_mov_b64 exec, -1")
    softmax_pv(vSb, vVbf)
    A("s_cmp_ge_u32 s%d, s%d" % (sI, sN))
    A("s_cbranch_scc1 K_P2_DONE")
    A("s_add_u32 s%d, s%d, 1" % (sI, sI))
    A("s_waitcnt lgkmcnt(0)")
    A("%s %s, %s, %s, %s" % (MFMA, vr(vSb, 16), vr(vKbf, 4), vr(vQ, 4), vr(vCn, 16)))
    A("v_add_u32 v%d, 4096, v%d" % (vKad, vKad))
    A("ds_read_b128 %s, v%d" % (vr(vKa, 4), vKad))
    A("s_mov_b64 exec, %s" % sr(sMaskV, 2))
    A("ds_read_b128 %s, v%d offset:2048" % (vr(vVbf, 4), vVad))
    A("ds_read_b128 %s, v%d offset:3072" % (vr(vVbf + 4, 4), vVad))
    A("s_mov_b64 exec, -1")
    A("v_add_u32 v%d, 4096, v%d" % (vVad, vVad))
    softmax_pv(vSa, vVa)
    A("s_cmp_ge_u32 s%d, s%d" % (sI, sN))
    A("s_cbranch_scc1 K_P2_DONE")
    A("s_add_u32 s%d, s%d, 1" % (sI, sI))
    A("s_branch K_P2")
    A.label("K_P2_DONE")
    A("s_waitcnt lgkmcnt(0)")
    A("s_cmp_lg_u32 s%d, 0" % sChunk)
    A("s_cbranch_scc1 K_ATT_DONE")
    stamp(5)
    A("s_cmp_eq_u32 s%d, 0" % sB)
    A("s_cbranch_scc1 K_FETCHED")
    A("s_cmp_ge_u32 s%d, 2" % sTq)
    A("s_cbranch_scc1 K_FETCHED")
    A("s_lshl_b32 s%d, s%d, 1" % (sa, sC))
    A("s_add_u32 s%d, s%d, s%d" % (sa, sa, sTq))
    A("s_lshl_b32 s%d, s%d, 9" % (sb, sWGL))
    A("s_lshl_b32 s%d, s%d, 7" % (sc, sa))
    A("s_add_u32 s%d, s%d, s%d" % (sb, sb, sc))
    A("s_add_u32 s%d, s%d, 0x%x" % (sb, sb, WS_FKV - 16384))
    A("v_lshrrev_b32 v%d, 1, v%d" % (vT0, vL))
    A("v_xor_b32 v%d, 1, v%d" % (vT0, vT0))
    A("v_and_b32 v%d, 1, v%d" % (vT1, vL))
    A("v_lshlrev_b32 v%d, 6, v%d" % (vT1, vT1))
    A("v_lshl_add_u32 v%d, v%d, 13, v%d" % (vT0, vT0, vT1))
    A("s_cmp_eq_u32 s%d, 1" % sB)
    A("s_cselect_b32 s%d, 3, 15" % sc)
    A("s_mov_b32 exec_lo, s%d" % sc)
    A("s_mov_b32 exec_hi, 0")
    A("s_mov_b32 s%d, 0" % sCnt)
    A.label("K_POLLKV")
    A("buffer_load_dwordx2 %s, v%d, %s, s%d offen sc1" % (vr(vT2, 2), vT0, sr(sWS, 4), sb))
    A("s_add_u32 s%d, s%d, 1" % (sCnt, sCnt))
    A("s_waitcnt vmcnt(0)")
    A("v_cmp_eq_u64 vcc, %s, %s" % (vr(vT2, 2), vr(vNon, 2)))
    A("s_cmp_eq_u64 vcc, exec")
    A("s_cbranch_scc1 K_POLLKV_OK")
    A("s_cmp_lt_u32 s%d, %d" % (sCnt, SPIN_LIMIT))
    A("s_cbranch_scc1 K_POLLKV")
    A.label("K_POLLKV_OK")
    A("s_mov_b64 exec, -1")
    A("s_lshl_b32 s%d, s%d, 14" % (sb, sWGL))
    A("s_lshl_b32 s%d, s%d, 12" % (sc, sa))
    A("s_add_u32 s%d, s%d, s%d" % (sb, sb, sc))
    A("s_sub_u32 s%d, s%d, 0x40000" % (sb, sb))
    A("s_cmp_eq_u32 s%d, 0" % sC)
    A("s_cselect_b32 s%d, 0, %d" % (sc, L_V - L_K))
    A("s_add_u32 s%d, s%d, %d" % (sc, sc, L_K + 8192))
    A("s_lshl_b32 s%d, s%d, 12" % (sa, sTq))
    A("s_add_u32 s%d, s%d, s%d" % (sc, sc, sa))
    A("s_mov_b32 m0, s%d" % sc)
    A("s_nop 0")
    for q in range(4):
        A("buffer_load_dwordx4 v%d, %s, s%d offen offset:%d sc1 lds" % (vL16, sr(sWS, 4), sb, q * 1024))
    A("s_cmp_eq_u32 s%d, 1" % sB)
    A("s_cbranch_scc1 K_FETCHED")
    A("s_sub_u32 s%d, s%d, 0x40000" % (sb, sb))
    A("s_sub_u32 s%d, s%d, 8192" % (sc, sc))
    A("s_mov_b32 m0, s%d" % sc)
    A("s_nop 0")
    for q in range(4):
        A("buffer_load_dwordx4 v%d, %s, s%d offen offset:%d sc1 lds" % (vL16, sr(sWS, 4), sb, q * 1024))
    A.label("K_FETCHED")
    A("v_mov_b32 v%d, %s" % (vT2, f32(-BIG)))
    A("s_cmp_eq_u32 s%d, 1" % sB)
    A("s_cselect_b32 s%d, %s, 0" % (sa, f32(-BIG)))
    A("v_mov_b32 v%d, s%d" % (vT3, sa))
    build_mask(True)
    A("v_lshrrev_b32 v%d, 3, v%d" % (vT0, vL))
    A("v_and_b32 v%d, 3, v%d" % (vT1, vT0))
    A("v_lshrrev_b32 v%d, 2, v%d" % (vT0, vT0))
    A("v_lshl_add_u32 v%d, v%d, 3, v%d" % (vT1, vT0, vT1))
    A("s_lshr_b32 s%d, s%d, 1" % (sa, sT))
    A("s_lshl_b32 s%d, s%d, 4" % (sa, sa))
    A("s_and_b32 s%d, s%d, 1" % (sb, sT))
    A("s_lshl_b32 s%d, s%d, 2" % (sb, sb))
    A("s_add_u32 s%d, s%d, s%d" % (sa, sa, sb))
    A("s_lshl_b32 s%d, s%d, 5" % (sb, sC))
    A("s_add_u32 s%d, s%d, s%d" % (sa, sa, sb))
    A("s_lshr_b32 s%d, s2, 6" % sb)
    A("s_and_b32 s%d, s2, 7" % sCG)
    A("s_cmp_lt_u32 s%d, 3" % sb)
    A("s_cselect_b32 s%d, 0, 6" % sc)
    A("s_min_u32 s%d, s%d, 2" % (sb, sb))
    A("s_lshr_b32 s%d, s%d, 1" % (sd, sCG))
    A("s_add_u32 s%d, s%d, s%d" % (sb, sb, sd))
    A("s_add_u32 s%d, s%d, 1" % (sb, sb))
    A("s_and_b32 s%d, s%d, 3" % (sb, sb))
    A("s_add_u32 s%d, s%d, s%d" % (sCG, sCG, sc))
    A("s_and_b32 s%d, s%d, 7" % (sCG, sCG))
    A("s_bfe_u32 s%d, s2, 0x20004" % sc)
    A("s_lshl_b32 s%d, s%d, 2" % (sc, sc))
    A("s_add_u32 s%d, s%d, s%d" % (sb, sb, sc))
    A("s_lshl_b32 s%d, s%d, 1" % (sG3, sb))
    A("s_bfe_u32 s%d, s2, 0x10003" % sc)
    A("s_add_u32 s%d, s%d, s%d" % (sG3, sG3, sc))
    A("s_lshl_b32 s%d, s%d, 6" % (sb, sG3))
    A("s_add_u32 s%d, s%d, s%d" % (sa, sa, sb))
    A("v_add_u32 v%d, s%d, v%d" % (vTok, sa, vT1))
    A("s_and_b32 s%d, s2, 7" % sa)
    A("s_lshr_b32 s%d, s2, 3" % sb)
    A("s_mul_i32 s%d, s%d, 11" % (sJ, sa))
    A("s_add_u32 s%d, s%d, s%d" % (sJ, sJ, sb))
    A("s_cmp_lt_u32 s%d, 11" % sb)
    A("s_cselect_b32 s%d, 1, 0" % sRole)
    A("s_cmp_lt_u32 s%d, 86" % sJ)
    A("s_cselect_b32 s%d, s%d, 0" % (sRole, sRole))
    A("s_sub_u32 s%d, s%d, 11" % (sc, sb))
    A("s_cmp_lt_u32 s%d, 4" % sc)
    A("s_cbranch_scc0 K_ROLE_DONE")
    A("s_mov_b32 s%d, 2" % sRole)
    A("s_lshl_b32 s%d, s%d, 2" % (sJ, sa))
    A("s_add_u32 s%d, s%d, s%d" % (sJ, sJ, sc))
    A.label("K_ROLE_DONE")
    srd(sGB, pWR, 1024)
    A("s_cmp_ge_u32 s%d, 2" % sTq)
    A("s_cbranch_scc1 K_B3")
    A("s_waitcnt vmcnt(0)")
    if opt.get("prio", 1):
        A("s_setprio 2")
    A.label("K_B3")
    A("s_barrier")
    stamp(6)
    A("v_and_b32 v%d, 7, v%d" % (vT0, vL))
    A("v_lshlrev_b32 v%d, 4, v%d" % (vT0, vT0))
    A("s_lshl_b32 s%d, s%d, 7" % (sa, sCG))
    A("v_lshl_add_u32 v%d, v%d, 10, v%d" % (vT1, vTok, vT0))
    A("buffer_load_dwordx4 %s, v%d, %s, s%d offen" % (vr(vXr, 4), vT1, sr(sX, 4), sa))
    A("buffer_load_dwordx4 %s, v%d, %s, s%d offen" % (vr(vWr, 4), vT0, sr(sGB, 4), sa))
    A("buffer_load_dwordx4 %s, v%d, %s, 0 offen" % (vr(vWR4, 4), vL16, sr(sGB, 4)))
    A("s_cmp_lt_u32 s%d, 2" % sTq)
    A("s_cbranch_scc1 K_NOFFN")
    A("s_lshl_b32 s%d, s%d, 1" % (sc, sC))
    A("s_add_u32 s%d, s%d, s%d" % (sc, sc, sTq))
    A("s_sub_u32 s%d, s%d, 2" % (sc, sc))
    srd(sGA, pWO, 0x80000)
    A("v_lshrrev_b32 v%d, 3, v%d" % (vT0, vL))
    A("v_bfe_u32 v%d, v%d, 4, 1" % (vT1, vL))
    A("v_lshlrev_b32 v%d, 2, v%d" % (vT1, vT1))
    A("v_and_b32 v%d, 7, v%d" % (vT2, vL))
    A("v_xor_b32 v%d, v%d, v%d" % (vT2, vT2, vT1))
    A("v_lshlrev_b32 v%d, 4, v%d" % (vT2, vT2))
    A("v_lshl_add_u32 v%d, v%d, 10, v%d" % (vT2, vT0, vT2))
    A("s_lshl_b32 s%d, s%d, 17" % (sb, sc))
    A("s_add_u32 s%d, s%d, s%d" % (sa, sa, sb))
    A("s_lshl_b32 s%d, s%d, 14" % (sb, sc))
    A("s_bfe_u32 s%d, s2, 0x40003" % sd)
    A("s_lshl_b32 s%d, s%d, 10" % (sd, sd))
    A("s_mov_b32 s%d, 0" % sCnt)
    A.label("K_WOLOOP")
    A("s_add_u32 s68, s%d, s%d" % (sb, sd))
    A("s_mov_b32 m0, s68")
    A("s_lshl_b32 s68, s%d, 3" % sd)
    A("s_add_u32 s68, s68, s%d" % sa)
    A("buffer_load_dwordx4 v%d, %s, s68 offen lds" % (vT2, sr(sGA, 4)))
    A("s_add_u32 s%d, s%d, 1024" % (sd, sd))
    A("s_and_b32 s%d, s%d, 0x3fff" % (sd, sd))
    A("s_add_u32 s%d, s%d, 1" % (sCnt, sCnt))
    A("s_cmp_lt_u32 s%d, 16" % sCnt)
    A("s_cbranch_scc1 K_WOLOOP")
    A("s_and_b32 s%d, s2, 7" % sa)
    A("s_lshr_b32 s%d, s2, 3" % sb)
    A("s_cmp_eq_u32 s%d, 3" % sc)
    A("s_cbranch_scc1 K_TOUCHED")
    A("s_cmp_eq_u32 s%d, 2" % sc)
    A("s_cbranch_scc1 K_TOUCH_D")
    A("s_cmp_eq_u32 s%d, 0" % sc)
    A("s_cselect_b32 s%d, s%d, s%d" % (sGA, pWG, pWU))
    A("s_cselect_b32 s%d, s%d, s%d" % (sGA + 1, pWG + 1, pWU + 1))
    A("s_mov_b32 s%d, %d" % (sGA + 2, 512 * 2752))
    A("s_mov_b32 s%d, 0x20000" % (sGA + 3))
    A("v_lshrrev_b32 v%d, 2, v%d" % (vT0, vL))
    A("v_mul_u32_u24 v%d, 2752, v%d" % (vT0, vT0))
    A("v_and_b32 v%d, 3, v%d" % (vT1, vL))
    A("v_lshl_add_u32 v%d, v%d, 6, v%d" % (vT2, vT1, vT0))
    A("v_lshlrev_b32 v%d, 6, v%d" % (vT1, vT1))
    A("v_min_u32 v%d, 92, v%d" % (vT1, vT1))
    A("v_add_u32 v%d, v%d, v%d" % (vT3, vT1, vT0))
    A("s_mul_i32 s%d, s%d, 352" % (sa, sa))
    A("s_mul_i32 s%d, s%d, %d" % (sb, sb, 16 * 2752))
    A("s_add_u32 s%d, s%d, s%d" % (sa, sa, sb))
    A("buffer_load_dword v%d, v%d, %s, s%d offen" % (vU0, vT2, sr(sGA, 4), sa))
    A("buffer_load_dword v%d, v%d, %s, s%d offen offset:256" % (vU1, vT3, sr(sGA, 4), sa))
    A("s_branch K_TOUCHED")
    A.label("K_TOUCH_D")
    srd(sGA, pWD, 1376 * 1024)
    A("v_min_u32 v%d, 42, v%d" % (vT0, vL))
    A("v_lshlrev_b32 v%d, 10, v%d" % (vT0, vT0))
    A("s_lshl_b32 s%d, s%d, 7" % (sa, sa))
    A("s_mul_i32 s%d, s%d, %d" % (sb, sb, 43 * 1024))
    A("s_add_u32 s%d, s%d, s%d" % (sa, sa, sb))
    A("buffer_load_dword v%d, v%d, %s, s%d offen" % (vU0, vT0, sr(sGA, 4), sa))
    A("buffer_load_dword v%d, v%d, %s, s%d offen offset:64" % (vU1, vT0, sr(sGA, 4), sa))
    A.label("K_TOUCHED")
    A.label("K_NOFFN")
    A("s_cmp_eq_u32 s%d, 0" % sB)
    A("s_cbranch_scc1 K_ATT_DONE")
    A("s_mov_b32 s%d, 1" % sChunk)
    A("s_add_u32 s%d, s%d, 1" % (sb, sTq))
    A("s_mov_b32 s%d, s%d" % (sa, sTq))
    A("s_cmp_eq_u32 s%d, 1" % sB)
    A("s_cselect_b32 s%d, 4, s%d" % (sb, sb))
    A("s_cselect_b32 s%d, 4, s%d" % (sa, sa))
    A("s_sub_u32 s%d, 8, s%d" % (sN, sb))
    A("s_branch K_CHUNK")
    A.label("K_ATT_DONE")
    stamp(7)
    A("s_lshl_b32 s%d, s%d, 2" % (sa, sB))
    A("s_add_u32 s%d, s%d, s%d" % (sa, sa, sTq))
    A("s_lshl_b32 s%d, s%d, 5" % (sa, sa))
    A("s_lshl_b32 s%d, s%d, 1" % (sb, sHP))
    A("s_add_u32 s%d, s%d, s%d" % (sa, sa, sb))
    A("s_add_u32 s%d, s%d, s%d" % (sa, sa, sC))
    A("s_lshl_b32 s%d, s%d, 10" % (sb, sa))
    A("s_add_u32 s%d, s%d, 0x%x" % (sb, sb, WS_O))
    A("s_lshl_b32 s%d, s%d, 6" % (sa, sa))
    A("s_add_u32 s%d, s%d, 0x%x" % (sa, sa, WS_FO))
    A.nop(2)
    A("v_rcp_f32 v%d, v%d" % (vT0, vO + 8))
    A.nop(1)
    for r in range(8):
        A("v_mul_f32 v%d, v%d, v%d" % (vO + r, vO + r, vT0))
    for i in range(4):
        A("v_cvt_pk_bf16_f32 v%d, v%d, v%d" % (vP + i, vO + 2 * i, vO + 2 * i + 1))
    A("buffer_store_dwordx4 %s, v%d, %s, s%d offen sc1" % (vr(vP, 4), vL16, sr(sWS, 4), sb))
    A("v_bfe_u32 v%d, v%d, 2, 2" % (vT1, vL))
    A("v_lshl_add_u32 v%d, v%d, 3, v%d" % (vT2, vG, vT1))
    A("s_lshl_b32 s%d, s%d, 14" % (sc, sT))
    A("v_lshl_add_u32 v%d, v%d, 7, s%d" % (vWOa, vT2, sc))
    A("v_lshrrev_b32 v%d, 1, v%d" % (vT1, vT1))
    A("v_lshl_add_u32 v%d, v%d, 6, v%d" % (vWOa, vT1, vWOa))
    A("v_bfe_u32 v%d, v%d, 4, 1" % (vT1, vL))
    A("v_lshl_add_u32 v%d, v%d, 5, v%d" % (vWOa, vT1, vWOa))
    A("v_and_b32 v%d, 3, v%d" % (vT1, vL))
    A("v_lshl_add_u32 v%d, v%d, 3, v%d" % (vWOa, vT1, vWOa))
    A("v_xor_b32 v%d, 64, v%d" % (vWOa + 1, vWOa))
    for i in range(32):
        A("v_mov_b32 v%d, 0" % (vH0 + i))
    A("v_mov_b32 v%d, 0" % vT0)
    A("s_waitcnt vmcnt(0)")
    A("s_mov_b64 exec, 1")
    A("buffer_store_dwordx2 %s, v%d, %s, s%d offen sc1" % (vr(vNon, 2), vT0, sr(sWS, 4), sa))
    A("s_mov_b64 exec, -1")
    stamp(8)
    A("s_setprio 0")
    for i in range(4):
        A("v_dot2_f32_bf16 v%d, v%d, v%d, %s" % (vW1, vWR4 + i, vOnes, "0" if i == 0 else "v%d" % vW1))
    A.nop(3)
    for dpp in ("quad_perm:[1,0,3,2]", "quad_perm:[2,3,0,1]", "row_half_mirror", "row_mirror"):
        A("v_add_f32_dpp v%d, v%d, v%d %s row_mask:0xf bank_mask:0xf" % (vW1, vW1, vW1, dpp))
        A.nop(2)
    for sw in ("v_permlane16_swap_b32", "v_permlane32_swap_b32"):
        A("v_mov_b32 v%d, v%d" % (vT1, vW1))
        A.nop(2)
        A("%s v%d, v%d" % (sw, vW1, vT1))
        A.nop(1)
        A("v_add_f32 v%d, v%d, v%d" % (vW1, vW1, vT1))
    A("s_barrier")
    for s in range(8):
        for C in range(2):
            for half in range(2):
                A("ds_read_b64_tr_b16 %s, v%d offset:%d" % (vr(vAW + (s * 2 + C) * 4 + 2 * half, 2), vWOa + C, (16 * s + 4 * half) * 128))
    A("s_lshl_b32 s%d, s%d, 1" % (sa, sG3))
    A("s_add_u32 s%d, s%d, s%d" % (sa, sa, sC))
    A("s_lshl_b32 s%d, s%d, 5" % (sa, sa))
    A("s_lshl_b32 s%d, s%d, 3" % (sb, sT))
    A("s_add_u32 s%d, s%d, s%d" % (sa, sa, sb))
    A("s_lshl_b32 s%d, s%d, 10" % (sb, sa))
    A("s_add_u32 s%d, s%d, 0x%x" % (sb, sb, WS_O))
    A("s_lshl_b32 s%d, s%d, 6" % (sa, sa))
    A("s_add_u32 s%d, s%d, 0x%x" % (sa, sa, WS_FO))
    A("v_lshlrev_b32 v%d, 6, v%d" % (vT0, vL))
    A("s_mov_b64 exec, 0xff")
    A("s_mov_b32 s%d, 0" % sCnt)
    A.label("K_POLLO")
    A("buffer_load_dwordx2 %s, v%d, %s, s%d offen sc1" % (vr(vT2, 2), vT0, sr(sWS, 4), sa))
    A("s_add_u32 s%d, s%d, 1" % (sCnt, sCnt))
    A("s_waitcnt vmcnt(0)")
    A("v_cmp_eq_u64 vcc, %s, %s" % (vr(vT2, 2), vr(vNon, 2)))
    A("s_cmp_eq_u64 vcc, exec")
    A("s_cbranch_scc1 K_POLLO_OK")
    A("s_cmp_lt_u32 s%d, %d" % (sCnt, SPIN_LIMIT))
    A("s_cbranch_scc1 K_POLLO")
    A.label("K_POLLO_OK")
    A("s_mov_b64 exec, -1")
    stamp(9)
    for s in range(8):
        if s == 4:
            A("s_add_u32 s%d, s%d, 4096" % (sb, sb))
        A("buffer_load_dwordx4 %s, v%d, %s, s%d offen offset:%d sc1" % (vr(vOF + 4 * s, 4), vL16, sr(sWS, 4), sb, (s & 3) * 1024))
    A("v_and_b32 v%d, 15, v%d" % (vT0, vN))
    A("v_xor_b32 v%d, v%d, v%d" % (vT0, vT0, vG))
    A("v_lshlrev_b32 v%d, 4, v%d" % (vT0, vT0))
    A("s_lshl_b32 s%d, s%d, 13" % (sa, sWv))
    A("s_add_u32 s%d, s%d, %d" % (sa, sa, L_RED))
    A("v_lshl_add_u32 v%d, v%d, 8, s%d" % (vT1, vN, sa))
    for u in range(8):
        A("v_xor_b32 v%d, %d, v%d" % (vRa + u, (2 * u) << 4, vT0))
        A("v_add_u32 v%d, v%d, v%d" % (vRa + u, vRa + u, vT1))
    A("v_lshrrev_b32 v%d, 3, v%d" % (vT0, vL))
    A("s_lshl_b32 s%d, s%d, 3" % (sa, sT))
    A("v_add_u32 v%d, s%d, v%d" % (vT0, sa, vT0))
    A("v_and_b32 v%d, 7, v%d" % (vT1, vL))
    A("v_lshlrev_b32 v%d, 1, v%d" % (vT1, vT1))
    A("v_and_b32 v%d, 15, v%d" % (vT2, vT0))
    A("v_xor_b32 v%d, v%d, v%d" % (vT1, vT1, vT2))
    A("v_lshlrev_b32 v%d, 4, v%d" % (vT1, vT1))
    A("s_lshl_b32 s%d, s%d, 15" % (sa, sC))
    A("s_add_u32 s%d, s%d, %d" % (sa, sa, L_RED))
    A("v_lshl_add_u32 v%d, v%d, 8, s%d" % (vT0, vT0, sa))
    A("v_add_u32 v%d, v%d, v%d" % (vT2, vT0, vT1))
    A("v_xor_b32 v%d, 16, v%d" % (vT1, vT1))
    A("v_add_u32 v%d, v%d, v%d" % (vT3, vT0, vT1))
    A("s_waitcnt lgkmcnt(0)")
    A("s_barrier")
    for s in range(8):
        A("s_waitcnt vmcnt(%d)" % (7 - s))
        A("%s %s, %s, %s, %s" % (MFMA, vr(vH0, 16), vr(vAW + (s * 2) * 4, 4), vr(vOF + 4 * s, 4), vr(vH0, 16)))
        A("%s %s, %s, %s, %s" % (MFMA, vr(vH1, 16), vr(vAW + (s * 2 + 1) * 4, 4), vr(vOF + 4 * s, 4), vr(vH1, 16)))
    stamp(10)
    A.nop(4)
    A("v_and_b32 v%d, 7, v%d" % (vT0, vL))
    A("v_lshlrev_b32 v%d, 4, v%d" % (vT1, vT0))
    A("v_lshl_add_u32 v%d, v%d, 10, v%d" % (vT1, vTok, vT1))
    A("v_lshlrev_b32 v%d, 13, v%d" % (vT0, vT0))
    A("v_lshl_add_u32 v%d, v%d, 2, v%d" % (vT0, vTok, vT0))
    A("s_lshl_b32 s%d, s%d, 7" % (sd, sCG))
    A("s_add_u32 s%d, s%d, 0x%x" % (sa, sd, WS_H))
    A("s_mov_b32 s%d, 0x%x" % (sb, WS_ST))
    for u in range(8):
        A("ds_write_b128 v%d, %s" % (vRa + u, vr(vH0 + 4 * u, 4)))
    A("s_waitcnt lgkmcnt(0)")
    A("s_barrier")
    for q in range(4):
        A("ds_read_b128 %s, v%d offset:%d" % (vr(vOF + 8 * q, 4), vT2, q * 8192))
        A("ds_read_b128 %s, v%d offset:%d" % (vr(vOF + 8 * q + 4, 4), vT3, q * 8192))
    for i in range(4):
        A("v_lshlrev_b32 v%d, 16, v%d" % (vH0 + 2 * i, vXr + i))
        A("v_and_b32 v%d, 0xffff0000, v%d" % (vH0 + 2 * i + 1, vXr + i))
    A("s_waitcnt lgkmcnt(0)")
    for i in range(8):
        A("v_add_f32 v%d, v%d, v%d" % (vOF + i, vOF + i, vOF + 8 + i))
        A("v_add_f32 v%d, v%d, v%d" % (vOF + 16 + i, vOF + 16 + i, vOF + 24 + i))
    for i in range(8):
        A("v_add_f32 v%d, v%d, v%d" % (vOF + i, vOF + i, vOF + 16 + i))
    for i in range(4):
        A("v_cvt_pk_bf16_f32 v%d, v%d, v%d" % (vOF + 8 + i, vOF + 2 * i, vOF + 2 * i + 1))
    for i in range(4):
        A("v_lshlrev_b32 v%d, 16, v%d" % (vOF + 2 * i, vOF + 8 + i))
        A("v_and_b32 v%d, 0xffff0000, v%d" % (vOF + 2 * i + 1, vOF + 8 + i))
    for i in range(8):
        A("v_add_f32 v%d, v%d, v%d" % (vOF + i, vOF + i, vH0 + i))
    for i in range(4):
        A("v_cvt_pk_bf16_f32 v%d, v%d, v%d" % (vHp + i, vOF + 2 * i, vOF + 2 * i + 1))
    A("buffer_store_dwordx4 %s, v%d, %s, s%d offen sc1" % (vr(vHp, 4), vT1, sr(sWS, 4), sa))
    s1, s2, s3 = vOF + 16, vOF + 17, vOF + 18
    for i in range(4):
        for (acc, other) in ((s1, None), (s2, "self"), (s3, "w")):
            o = vOnes if other is None else (vHp + i if other == "self" else vWr + i)
            A("v_dot2_f32_bf16 v%d, v%d, v%d, %s" % (acc, vHp + i, o, "0" if i == 0 else "v%d" % acc))
    A("s_mov_b32 s68, 0x02020202")
    A("s_mov_b32 s69, 0x02020202")
    A("s_mov_b32 vcc_lo, 0x04040404")
    A("s_mov_b32 vcc_hi, 0x04040404")
    for dpp in ("quad_perm:[1,0,3,2]", "quad_perm:[2,3,0,1]", "row_half_mirror"):
        for acc in (s1, s2, s3):
            A("v_add_f32_dpp v%d, v%d, v%d %s row_mask:0xf bank_mask:0xf" % (acc, acc, acc, dpp))
    A("v_cndmask_b32 v%d, v%d, v%d, s[68:69]" % (s1, s1, s2))
    A("v_cndmask_b32 v%d, v%d, v%d, vcc" % (s1, s1, s3))
    A("s_mov_b32 exec_lo, 0x07070707")
    A("s_mov_b32 exec_hi, 0x07070707")
    A("buffer_atomic_add_f32 v%d, v%d, %s, s%d offen" % (s1, vT0, sr(sWS, 4), sb))
    A("s_mov_b64 exec, -1")
    srd(sW, pOUT, 0x200000)
    for i in range(24):
        A("v_mov_b32 v%d, v%d" % (vBF + i, vOnes))
    A("v_lshlrev_b32 v%d, 4, v0" % vT2)
    A("v_lshlrev_b32 v%d, 2, v%d" % (vT3, vTok))
    A("s_waitcnt vmcnt(0)")
    A("s_barrier")
    stamp(11)
    A("s_cmp_eq_u32 s%d, 0" % sWv)
    A("s_cbranch_scc1 K_GPOLL")
    A("s_cmp_eq_u32 s%d, 0" % sC)
    A("s_cbranch_scc1 K_GWAIT")
    A("s_mov_b32 s%d, s%d" % (sc, sT))
    A("s_cmp_eq_u32 s%d, 0" % sRole)
    A("s_cbranch_scc1 K_STG_DONE")
    A("v_lshrrev_b32 v%d, 1, v%d" % (vX, vL))
    A("v_and_b32 v%d, 1, v%d" % (vX + 1, vL))
    A("v_lshlrev_b32 v%d, 4, v%d" % (vX + 1, vX + 1))
    A("s_lshl_b32 s%d, s%d, 5" % (sa, sJ))
    A("s_cmp_eq_u32 s%d, 1" % sRole)
    A("s_cbranch_scc0 K_FFN_D")
    srd(sGA, pWG, 512 * 2752)
    srd(sGB, pWU, 512 * 2752)
    A("v_mul_u32_u24 v%d, 2752, v%d" % (vX, vX))
    A("v_add_u32 v%d, v%d, v%d" % (vX, vX, vX + 1))
    A("s_mul_i32 s%d, s%d, %d" % (sb, sc, 128 * 2752))
    A("s_add_u32 s%d, s%d, s%d" % (sa, sa, sb))
    A("s_lshl_b32 s%d, s%d, 12" % (sb, sc))
    for q in range(4):
        A("s_add_u32 s%d, s%d, %d" % (sc, sb, L_F + q * 1024))
        A("s_mov_b32 m0, s%d" % sc)
        A("s_add_u32 s%d, s%d, %d" % (sc, sb, L_FU + q * 1024))
        A("buffer_load_dwordx4 v%d, %s, s%d offen lds" % (vX, sr(sGA, 4), sa))
        A("s_mov_b32 m0, s%d" % sc)
        A("s_nop 0")
        A("buffer_load_dwordx4 v%d, %s, s%d offen lds" % (vX, sr(sGB, 4), sa))
        A("s_add_u32 s%d, s%d, %d" % (sa, sa, 32 * 2752))
    A("s_branch K_STG_DONE")
    A.label("K_FFN_D")
    srd(sGA, pWD, 1376 * 1024)
    A("v_lshl_add_u32 v%d, v%d, 10, v%d" % (vX, vX, vX + 1))
    A("s_lshl_b32 s%d, s%d, 15" % (sb, sc))
    A("s_add_u32 s%d, s%d, s%d" % (sa, sa, sb))
    A("s_lshl_b32 s%d, s%d, 10" % (sb, sc))
    A("s_add_u32 s%d, s%d, %d" % (sb, sb, L_F))
    A.label("K_FFN_DL")
    A("s_mov_b32 m0, s%d" % sb)
    A("s_add_u32 s%d, s%d, 4096" % (sb, sb))
    A("buffer_load_dwordx4 v%d, %s, s%d offen lds" % (vX, sr(sGA, 4), sa))
    A("s_add_u32 s%d, s%d, 0x20000" % (sa, sa))
    A("s_cmp_lt_u32 s%d, %d" % (sb, L_F + 43 * 1024))
    A("s_cbranch_scc1 K_FFN_DL")
    A.label("K_STG_DONE")
    A("s_waitcnt vmcnt(0)")
    A("s_branch K_GWAIT")
    A.label("K_GPOLL")
    A("s_lshl_b32 s%d, s2, 6" % sa)
    A("s_add_u32 s%d, s%d, 0x%x" % (sa, sa, WS_FG))
    A("v_mov_b32 v%d, 0" % vT0)
    A("s_mov_b64 exec, 1")
    A("buffer_store_dwordx2 %s, v%d, %s, s%d offen sc1" % (vr(vNon, 2), vT0, sr(sWS, 4), sa))
    A("s_mov_b64 exec, -1")
    A("s_mov_b32 s%d, 0x%x" % (sa, WS_FG))
    A("s_mov_b32 s%d, 0" % sCnt)
    A("v_lshlrev_b32 v%d, 8, v%d" % (vT0, vL))
    A.label("K_POLLG")
    for q in range(4):
        A("buffer_load_dwordx2 %s, v%d, %s, s%d offen offset:%d sc1" % (vr(vX + 2 * q, 2), vT0, sr(sWS, 4), sa, q * 64))
    A("s_add_u32 s%d, s%d, 1" % (sCnt, sCnt))
    A("s_waitcnt vmcnt(0)")
    A("v_cmp_eq_u64 vcc, %s, %s" % (vr(vX, 2), vr(vNon, 2)))
    A("v_cmp_eq_u64 s[68:69], %s, %s" % (vr(vX + 2, 2), vr(vNon, 2)))
    A("s_and_b64 vcc, vcc, s[68:69]")
    A("v_cmp_eq_u64 s[68:69], %s, %s" % (vr(vX + 4, 2), vr(vNon, 2)))
    A("s_and_b64 vcc, vcc, s[68:69]")
    A("v_cmp_eq_u64 s[68:69], %s, %s" % (vr(vX + 6, 2), vr(vNon, 2)))
    A("s_and_b64 vcc, vcc, s[68:69]")
    A("s_cmp_eq_u64 vcc, exec")
    A("s_cbranch_scc1 K_GWAIT")
    A("s_cmp_lt_u32 s%d, %d" % (sCnt, SPIN_LIMIT))
    A("s_cbranch_scc1 K_POLLG")
    A.label("K_GWAIT")
    A("s_barrier")
    stamp(12)
    A("s_mov_b32 s%d, 0x%x" % (sa, WS_ST))
    A("s_mov_b32 s%d, 0x%x" % (sb, WS_ST + 8192))
    A("s_mov_b32 s%d, 0x%x" % (sc, WS_ST + 16384))
    A("buffer_load_dwordx4 %s, v%d, %s, s%d offen sc1" % (vr(vS1, 4), vT2, sr(sWS, 4), sa))
    A("buffer_load_dwordx4 %s, v%d, %s, s%d offen sc1" % (vr(vS2, 4), vT2, sr(sWS, 4), sb))
    A("buffer_load_dwordx4 %s, v%d, %s, s%d offen sc1" % (vr(vS3, 4), vT2, sr(sWS, 4), sc))
    A("buffer_load_dword v%d, v%d, %s, s%d offen sc1" % (vOs, vT3, sr(sWS, 4), sa))
    A("buffer_load_dword v%d, v%d, %s, s%d offen sc1" % (vOs + 1, vT3, sr(sWS, 4), sb))
    A("s_cmp_eq_u32 s%d, 0" % sRole)
    A("s_cbranch_scc1 K_NOFA")
    A("v_bfe_u32 v%d, v%d, 2, 2" % (vX, vL))
    A("v_and_b32 v%d, 3, v%d" % (vX + 1, vL))
    A("s_cmp_eq_u32 s%d, 1" % sRole)
    A("s_cbranch_scc0 K_FA_D")
    A("v_lshl_add_u32 v%d, v%d, 3, v%d" % (vX, vG, vX))
    A("s_lshl_b32 s%d, s%d, 11" % (68, sWv))
    A("s_add_u32 s%d, s%d, %d" % (68, 68, L_F))
    A("v_lshl_add_u32 v%d, v%d, 5, s%d" % (vX, vX, 68))
    A("v_lshl_add_u32 v%d, v%d, 3, v%d" % (vX, vX + 1, vX))
    A("v_bfe_u32 v%d, v%d, 4, 1" % (vX + 1, vL))
    A("v_mul_u32_u24 v%d, %d, v%d" % (vX + 1, L_FU - L_F, vX + 1))
    A("v_add_u32 v%d, v%d, v%d" % (vX, vX, vX + 1))
    for s in range(4):
        for half in range(2):
            A("ds_read_b64_tr_b16 %s, v%d offset:%d" % (vr(vFA + 4 * s + 2 * half, 2), vX, (16 * s + 4 * half) * 32))
    A("s_branch K_NOFA")
    A.label("K_FA_D")
    A("v_lshrrev_b32 v%d, 4, v%d" % (vX + 2, vL))
    A("v_lshl_add_u32 v%d, v%d, 3, v%d" % (vX, vX + 2, vX))
    A("s_lshl_b32 s%d, s%d, 10" % (68, sWv))
    A("s_add_u32 s%d, s%d, %d" % (68, 68, L_F))
    A("v_lshl_add_u32 v%d, v%d, 5, s%d" % (vX, vX, 68))
    A("v_lshl_add_u32 v%d, v%d, 3, v%d" % (vX, vX + 1, vX))
    for i in range(6):
        if i == 5:
            A("s_cmp_lt_u32 s%d, 3" % sWv)
            A("s_cbranch_scc0 K_NOFA")
        for half in range(2):
            A("ds_read_b64_tr_b16 %s, v%d offset:%d" % (vr(vFA + 4 * i + 2 * half, 2), vX, i * 8192 + 4 * half * 32))
    A.label("K_NOFA")
    A("v_lshlrev_b32 v%d, 2, v0" % vT0)
    A("v_sub_u32 v%d, 2047, v%d" % (vT0, vT0))
    A("v_mov_b32 v%d, 0" % vK1)
    A("v_mov_b32 v%d, 0" % vK2)
    A("s_mov_b32 s%d, %s" % (sI1, f32(1.0 / 512)))
    A("s_mov_b32 s%d, 0xfffff800" % sI2)
    A("s_lshl_b32 s68, s%d, 3" % sWv)
    A("v_mov_b32 v%d, s68" % vT3)
    A("s_waitcnt vmcnt(2)")
    for i in range(4):
        A("v_mul_f32 v%d, s%d, v%d" % (vS1 + i, sI1, vS1 + i))
        A("v_mul_f32 v%d, s%d, v%d" % (vS2 + i, sI1, vS2 + i))
        A("v_fma_f32 v%d, -v%d, v%d, v%d" % (vS2 + i, vS1 + i, vS1 + i, vS2 + i))
        A("v_max_f32 v%d, 0, v%d" % (vS2 + i, vS2 + i))
        A("v_add_f32 v%d, %s, v%d" % (vS2 + i, f32(1e-5), vS2 + i))
        A("v_rsq_f32 v%d, v%d" % (vS2 + i, vS2 + i))
        A("v_fma_f32 v%d, -v%d, v%d, v%d" % (vS3 + i, vS1 + i, vW1, vS3 + i))
    for i in range(4):
        A("v_mul_f32 v%d, v%d, v%d" % (vS3 + i, vS3 + i, vS2 + i))
        A("v_ashrrev_i32 v%d, 31, v%d" % (vP1, vS3 + i))
        A("v_or_b32 v%d, 0x80000000, v%d" % (vP1, vP1))
        A("v_xor_b32 v%d, v%d, v%d" % (vP1, vP1, vS3 + i))
        A("v_subrev_u32 v%d, %d, v%d" % (vP2, i, vT0))
        A("v_and_or_b32 v%d, v%d, s%d, v%d" % (vP1, vP1, sI2, vP2))
        A("v_med3_u32 v%d, v%d, v%d, v%d" % (vK2, vK1, vK2, vP1))
        A("v_max_u32 v%d, v%d, v%d" % (vK1, vK1, vP1))
    def merge(p1=vP1, p2=vP2):
        A("v_max_u32 v%d, v%d, v%d" % (vK2, vK2, p2))
        A("v_med3_u32 v%d, v%d, v%d, v%d" % (vK2, vK1, p1, vK2))
        A("v_max_u32 v%d, v%d, v%d" % (vK1, vK1, p1))
    for dpp in ("quad_perm:[1,0,3,2]", "quad_perm:[2,3,0,1]", "row_half_mirror", "row_mirror"):
        A.nop(2)
        A("v_mov_b32_dpp v%d, v%d %s row_mask:0xf bank_mask:0xf" % (vP1, vK1, dpp))
        A("v_mov_b32_dpp v%d, v%d %s row_mask:0xf bank_mask:0xf" % (vP2, vK2, dpp))
        merge()
    for sw in ("v_permlane16_swap_b32", "v_permlane32_swap_b32"):
        A("v_mov_b32 v%d, v%d" % (vP1, vK1))
        A("v_mov_b32 v%d, v%d" % (vP2, vK2))
        A.nop(2)
        A("%s v%d, v%d" % (sw, vK1, vP1))
        A("%s v%d, v%d" % (sw, vK2, vP2))
        A.nop(1)
        merge()
    A("ds_write_b64 v%d, %s offset:%d" % (vT3, vr(vK1, 2), L_TOP))
    A("v_mov_b32 v%d, 0" % vT3)
    A("s_waitcnt vmcnt(0) lgkmcnt(0)")
    A("s_barrier")
    for q in range(4):
        A("ds_read_b128 %s, v%d offset:%d" % (vr(vX + 4 * q, 4), vT3, L_TOP + 16 * q))
    A("s_waitcnt lgkmcnt(0)")
    A("v_mov_b32 v%d, v%d" % (vK1, vX))
    A("v_mov_b32 v%d, v%d" % (vK2, vX + 1))
    for q in range(1, 8):
        merge(vX + 2 * q, vX + 2 * q + 1)
    A.nop(1)
    A("v_readfirstlane_b32 s%d, v%d" % (sI1, vK1))
    A("v_readfirstlane_b32 s%d, v%d" % (sI2, vK2))
    A("s_and_b32 s%d, s%d, 0x7ff" % (sI1, sI1))
    A("s_sub_u32 s%d, 2047, s%d" % (sI1, sI1))
    A("s_and_b32 s%d, s%d, 0x7ff" % (sI2, sI2))
    A("s_sub_u32 s%d, 2047, s%d" % (sI2, sI2))
    stamp(13)
    A("v_mov_b32 v%d, 0" % (vSel + 1))
    A("s_cmp_eq_u32 s%d, 0" % sRole)
    A("s_cbranch_scc1 K_OWN")
    A("v_mov_b32 v%d, s%d" % (vT0, sI1))
    A("v_mov_b32 v%d, s%d" % (vT2, sI2))
    A("s_cmp_eq_u32 s%d, 1" % sRole)
    A("s_cbranch_scc0 K_SEL_D")
    A("s_mov_b32 vcc_lo, 0xaaaaaaaa")
    A("s_mov_b32 vcc_hi, 0xaaaaaaaa")
    A("v_cndmask_b32 v%d, v%d, v%d, vcc" % (vT3, vT0, vT2))
    A("v_lshlrev_b32 v%d, 10, v%d" % (vT3, vT3))
    A("v_lshl_add_u32 v%d, v%d, 4, v%d" % (vT3, vG, vT3))
    A("s_lshl_b32 s68, s%d, 7" % sWv)
    A("s_add_u32 s68, s68, 0x%x" % WS_H)
    A("s_mov_b32 exec_lo, 3")
    A("s_mov_b32 exec_hi, 3")
    for s in range(4):
        A("buffer_load_dwordx4 %s, v%d, %s, s68 offen offset:%d sc1" % (vr(vBF + 4 * s, 4), vT3, sr(sWS, 4), s * 32))
    A("s_mov_b64 exec, -1")
    A.label("K_SEL_D")
    A("s_cmp_eq_u32 s%d, 0" % sWv)
    A("s_cbranch_scc0 K_OWN")
    A("s_mov_b32 vcc_lo, 0xffff0000")
    A("s_mov_b32 vcc_hi, 0xffff0000")
    A("v_cndmask_b32 v%d, v%d, v%d, vcc" % (vT0, vT0, vT2))
    A("v_lshlrev_b32 v%d, 2, v%d" % (vT2, vT0))
    A("buffer_load_dword v%d, v%d, %s, s%d offen sc1" % (vSs, vT2, sr(sWS, 4), sa))
    A("buffer_load_dword v%d, v%d, %s, s%d offen sc1" % (vSs + 1, vT2, sr(sWS, 4), sb))
    A("buffer_load_dword v%d, v%d, %s, s%d offen sc1" % (vSs + 2, vT2, sr(sWS, 4), sc))
    A("v_and_b32 v%d, 15, v%d" % (vT2, vL))
    A("v_lshlrev_b32 v%d, 1, v%d" % (vT2, vT2))
    A("v_lshl_add_u32 v%d, v%d, 10, v%d" % (vSel + 1, vT0, vT2))
    A("s_and_b32 s68, s%d, 31" % sJ)
    A("s_lshl_b32 s68, s68, 5")
    A("s_add_u32 s68, s68, 0x%x" % WS_H)
    A("buffer_load_ushort v%d, v%d, %s, s68 offen sc1" % (vSel, vSel + 1, sr(sWS, 4)))
    A.label("K_OWN")
    def ln_stats(s1, s2):
        A("v_mul_f32 v%d, %s, v%d" % (s1, f32(1.0 / 512), s1))
        A("v_mul_f32 v%d, %s, v%d" % (s2, f32(1.0 / 512), s2))
        A("v_fma_f32 v%d, -v%d, v%d, v%d" % (s2, s1, s1, s2))
        A("v_max_f32 v%d, 0, v%d" % (s2, s2))
        A("v_add_f32 v%d, %s, v%d" % (s2, f32(1e-5), s2))
        A("v_rsq_f32 v%d, v%d" % (s2, s2))
    ln_stats(vOs, vOs + 1)
    for i in range(4):
        A("v_lshlrev_b32 v%d, 16, v%d" % (vX + 2 * i, vHp + i))
        A("v_and_b32 v%d, 0xffff0000, v%d" % (vX + 2 * i + 1, vHp + i))
    A("v_cmp_ne_u32 vcc, s%d, v%d" % (sI1, vTok))
    A("v_cmp_ne_u32 s[68:69], s%d, v%d" % (sI2, vTok))
    for i in range(8):
        A("v_sub_f32 v%d, v%d, v%d" % (vX + 8 + i, vX + i, vOs))
        A("v_fmac_f32 v%d, v%d, v%d" % (vX + i, vX + 8 + i, vOs + 1))
    for i in range(4):
        A("v_cvt_pk_bf16_f32 v%d, v%d, v%d" % (vHp + i, vX + 2 * i, vX + 2 * i + 1))
    A("s_and_b64 exec, vcc, s[68:69]")
    A("buffer_store_dwordx4 %s, v%d, %s, s%d offen" % (vr(vHp, 4), vT1, sr(sW, 4), sd))
    A("s_mov_b64 exec, -1")
    A("s_cmp_eq_u32 s%d, 0" % sRole)
    A("s_cbranch_scc1 K_FIN")
    A("s_cmp_eq_u32 s%d, 1" % sRole)
    A("s_cbranch_scc0 K_DOWN")
    A("v_lshlrev_b32 v%d, 7, v%d" % (vT0, vN))
    A("v_lshl_add_u32 v%d, v%d, 4, v%d" % (vT0, vG, vT0))
    A("s_mul_i32 s%d, s%d, 384" % (sa, sWv))
    A("v_add_u32 v%d, s%d, v%d" % (vT0, sa, vT0))
    A("s_waitcnt vmcnt(1)")
    for s in range(4):
        A("%s %s, %s, %s, %s" % (MFMA, vr(vAcc, 16), vr(vFA + 4 * s, 4), vr(vBF + 4 * s, 4), "0" if s == 0 else vr(vAcc, 16)))
    A("s_mov_b32 exec_lo, 7")
    A("s_mov_b32 exec_hi, 7")
    A.nop(10)
    for a_ in range(4):
        A("ds_write_b128 v%d, %s offset:%d" % (vT0, vr(vAcc + 4 * a_, 4), L_R2 + a_ * 32))
    A("s_mov_b64 exec, -1")
    A("s_waitcnt lgkmcnt(0)")
    A("s_barrier")
    A("s_cmp_eq_u32 s%d, 0" % sWv)
    A("s_cbranch_scc0 K_FIN")
    stamp(14)
    A("v_bfe_u32 v%d, v%d, 4, 1" % (vT0, vL))
    A("v_and_b32 v%d, 15, v%d" % (vT2, vL))
    A("v_lshlrev_b32 v%d, 2, v%d" % (vT3, vT2))
    A("v_mul_u32_u24 v%d, 1536, v%d" % (vX, vG))
    A("v_add3_u32 v%d, v%d, v%d, %d" % (vT3, vT3, vX, 0) if False else "v_add_u32 v%d, v%d, v%d" % (vT3, vT3, vX))
    A("v_add_u32 v%d, %d, v%d" % (vT3, L_R2, vT3))
    A("v_lshl_add_u32 v%d, v%d, 7, v%d" % (vAcc, vT0, vT3))
    for w_ in range(2):
        A("ds_read2_b32 %s, v%d offset0:%d offset1:%d" % (vr(vX + 4 * w_, 2), vAcc, w_ * 96, w_ * 96 + 16))
        A("ds_read2_b32 %s, v%d offset0:%d offset1:%d" % (vr(vX + 4 * w_ + 2, 2), vT3, w_ * 96 + 64, w_ * 96 + 80))
    A("v_add_u32 v%d, 768, v%d" % (vAcc, vAcc))
    A("v_add_u32 v%d, 768, v%d" % (vT3, vT3))
    for w_ in range(2):
        A("ds_read2_b32 %s, v%d offset0:%d offset1:%d" % (vr(vX + 8 + 4 * w_, 2), vAcc, w_ * 96, w_ * 96 + 16))
        A("ds_read2_b32 %s, v%d offset0:%d offset1:%d" % (vr(vX + 8 + 4 * w_ + 2, 2), vT3, w_ * 96 + 64, w_ * 96 + 80))
    ln_stats(vSs, vSs + 1)
    A("v_lshlrev_b32 v%d, 1, v%d" % (vT0, vL))
    A("s_lshl_b32 s%d, s%d, 6" % (sa, sJ))
    A("s_add_u32 s%d, s%d, 0x%x" % (sa, sa, WS_A))
    A("s_waitcnt lgkmcnt(0)")
    for i in range(4):
        A("v_add_f32 v%d, v%d, v%d" % (vX + i, vX + i, vX + 4 + i))
        A("v_add_f32 v%d, v%d, v%d" % (vX + 8 + i, vX + 8 + i, vX + 12 + i))
    for i in range(4):
        A("v_add_f32 v%d, v%d, v%d" % (vX + i, vX + i, vX + 8 + i))
    for i in range(4):
        A("v_mov_b32 v%d, v%d" % (vX + 4 + i, vX + i))
    A.nop(1)
    for i in range(4):
        A("v_permlane32_swap_b32 v%d, v%d" % (vX + i, vX + 4 + i))
    for i in range(4):
        A("v_add_f32 v%d, v%d, v%d" % (vX + i, vX + i, vX + 4 + i))
    A("v_fma_f32 v%d, -v%d, v%d, v%d" % (vX, vSs, vX + 2, vX))
    A("v_fma_f32 v%d, -v%d, v%d, v%d" % (vX + 1, vSs, vX + 3, vX + 1))
    A("v_mul_f32 v%d, v%d, v%d" % (vX, vX, vSs + 1))
    A("v_mul_f32 v%d, v%d, v%d" % (vX + 1, vX + 1, vSs + 1))
    A("v_mul_f32 v%d, %s, v%d" % (vX + 2, f32(-LOG2E), vX))
    A("v_exp_f32 v%d, v%d" % (vX + 2, vX + 2))
    A("v_mul_f32 v%d, v%d, v%d" % (vX, vX, vX + 1))
    A("v_add_f32 v%d, 1.0, v%d" % (vX + 2, vX + 2))
    A("v_rcp_f32 v%d, v%d" % (vX + 2, vX + 2))
    A.nop(1)
    A("v_mul_f32 v%d, v%d, v%d" % (vX, vX, vX + 2))
    A.nop(2)
    A("v_mov_b32_dpp v%d, v%d quad_perm:[1,0,3,2] row_mask:0xf bank_mask:0xf" % (vX + 1, vX))
    A("v_cvt_pk_bf16_f32 v%d, v%d, v%d" % (vX + 2, vX, vX + 1))
    A("v_min_u32 v%d, -2, v%d" % (vX + 2, vX + 2))
    A("s_mov_b32 exec_lo, 0x55555555")
    A("s_mov_b32 exec_hi, 0")
    A("buffer_store_dword v%d, v%d, %s, s%d offen sc1" % (vX + 2, vT0, sr(sWS, 4), sa))
    A("s_mov_b64 exec, -1")
    A("s_branch K_FIN")
    A.label("K_DOWN")
    A("v_and_b32 v%d, 1, v%d" % (vT0, vL))
    A("v_lshlrev_b32 v%d, 5, v%d" % (vT0, vT0))
    A("v_lshl_add_u32 v%d, v%d, 6, v%d" % (vT0, vG, vT0))
    A("v_bfe_u32 v%d, v%d, 4, 1" % (vT2, vL))
    A("v_lshl_add_u32 v%d, v%d, 4, v%d" % (vT0, vT2, vT0))
    A("v_lshrrev_b32 v%d, 4, v%d" % (vT2, vL))
    A("s_lshl_b32 s%d, s%d, 7" % (sa, sWv))
    A("s_add_u32 s%d, s%d, 0x%x" % (sa, sa, WS_A))
    A("s_add_u32 s%d, s%d, 4096" % (sc, sa))
    A("v_and_b32 v%d, 15, v%d" % (vT3, vL))
    A("v_lshlrev_b32 v%d, 6, v%d" % (vT3, vT3))
    A("v_lshl_add_u32 v%d, v%d, 4, v%d" % (vT3, vT2, vT3))
    A("s_lshl_b32 s%d, s%d, 7" % (sb, sWv))
    A("v_add_u32 v%d, s%d, v%d" % (vT3, sb, vT3))
    A("s_mov_b32 exec_lo, 0x00030003")
    A("s_mov_b32 exec_hi, 0x00030003")
    A("s_mov_b32 s%d, 0" % sCnt)
    A.label("K_POLLA")
    for i in range(5):
        if i < 4:
            A("buffer_load_dwordx4 %s, v%d, %s, s%d offen offset:%d sc1" % (vr(vBF + 4 * i, 4), vT0, sr(sWS, 4), sa, i * 1024))
        else:
            A("buffer_load_dwordx4 %s, v%d, %s, s%d offen sc1" % (vr(vBF + 4 * i, 4), vT0, sr(sWS, 4), sc))
    A("s_cmp_lt_u32 s%d, 3" % sWv)
    A("s_cbranch_scc0 K_POLLA5")
    A("buffer_load_dwordx4 %s, v%d, %s, s%d offen offset:%d sc1" % (vr(vBF + 20, 4), vT0, sr(sWS, 4), sc, 1024))
    A.label("K_POLLA5")
    A("s_add_u32 s%d, s%d, 1" % (sCnt, sCnt))
    A("s_waitcnt vmcnt(0)")
    A("v_max_u32 v%d, v%d, v%d" % (vT2, vBF, vBF + 1))
    for i in range(1, 12):
        A("v_max3_u32 v%d, v%d, v%d, v%d" % (vT2, vBF + 2 * i, vBF + 2 * i + 1, vT2))
    A("v_cmp_eq_u32 vcc, -1, v%d" % vT2)
    A("s_cmp_eq_u64 vcc, 0")
    A("s_cbranch_scc1 K_POLLA_OK")
    A("s_cmp_lt_u32 s%d, %d" % (sCnt, SPIN_LIMIT))
    A("s_cbranch_scc1 K_POLLA")
    A.label("K_POLLA_OK")
    A("s_mov_b64 exec, -1")
    stamp(14)
    for i in range(5):
        A("%s %s, %s, %s, %s" % (MFMA16, vr(vAcc, 4), vr(vFA + 4 * i, 4), vr(vBF + 4 * i, 4), "0" if i == 0 else vr(vAcc, 4)))
    A("s_cmp_lt_u32 s%d, 3" % sWv)
    A("s_cbranch_scc0 K_D5")
    A("%s %s, %s, %s, %s" % (MFMA16, vr(vAcc, 4), vr(vFA + 20, 4), vr(vBF + 20, 4), vr(vAcc, 4)))
    A.label("K_D5")
    A("s_mov_b32 exec_lo, 0x00030003")
    A("s_mov_b32 exec_hi, 0x00030003")
    A.nop(6)
    A("ds_write_b128 v%d, %s offset:%d" % (vT3, vr(vAcc, 4), L_R2))
    A("s_mov_b64 exec, -1")
    A("s_waitcnt lgkmcnt(0)")
    A("s_barrier")
    A("s_cmp_eq_u32 s%d, 0" % sWv)
    A("s_cbranch_scc0 K_FIN")
    A("v_and_b32 v%d, 31, v%d" % (vT0, vL))
    A("v_lshlrev_b32 v%d, 2, v%d" % (vT0, vT0))
    A("v_lshl_add_u32 v%d, v%d, 9, v%d" % (vT0, vG, vT0))
    A("ds_read2_b32 %s, v%d offset0:%d offset1:%d" % (vr(vX + 2, 2), vT0, L_R2 // 4, L_R2 // 4 + 32))
    A("ds_read2_b32 %s, v%d offset0:%d offset1:%d" % (vr(vX + 4, 2), vT0, L_R2 // 4 + 64, L_R2 // 4 + 96))
    ln_stats(vSs, vSs + 1)
    A("v_fma_f32 v%d, -v%d, v%d, v%d" % (vSs + 2, vSs, vW1, vSs + 2))
    A("v_mul_f32 v%d, v%d, v%d" % (vSs + 2, vSs + 2, vSs + 1))
    A("v_mul_f32 v%d, %s, v%d" % (vSs + 2, f32(-LOG2E), vSs + 2))
    A("v_exp_f32 v%d, v%d" % (vSs + 2, vSs + 2))
    A("v_lshlrev_b32 v%d, 16, v%d" % (vSel, vSel))
    A("v_add_f32 v%d, 1.0, v%d" % (vSs + 2, vSs + 2))
    A("v_rcp_f32 v%d, v%d" % (vSs + 2, vSs + 2))
    A("v_sub_f32 v%d, v%d, v%d" % (vX + 1, vSel, vSs))
    A("v_fmac_f32 v%d, v%d, v%d" % (vSel, vX + 1, vSs + 1))
    A("s_waitcnt lgkmcnt(0)")
    A("v_add_f32 v%d, v%d, v%d" % (vX + 2, vX + 2, vX + 3))
    A("v_add_f32 v%d, v%d, v%d" % (vX + 4, vX + 4, vX + 5))
    A("v_add_f32 v%d, v%d, v%d" % (vX, vX + 2, vX + 4))
    A("v_mov_b32 v%d, v%d" % (vX + 2, vX))
    A.nop(2)
    A("v_permlane32_swap_b32 v%d, v%d" % (vX, vX + 2))
    A.nop(1)
    A("v_add_f32 v%d, v%d, v%d" % (vX, vX, vX + 2))
    A("v_fmac_f32 v%d, v%d, v%d" % (vSel, vX, vSs + 2))
    A("v_cvt_pk_bf16_f32 v%d, v%d, v%d" % (vSel, vSel, vSel))
    A("s_lshl_b32 s%d, s%d, 5" % (sa, sJ))
    A("s_mov_b32 exec_hi, 0")
    A("buffer_store_short v%d, v%d, %s, s%d offen" % (vSel, vSel + 1, sr(sW, 4), sa))
    A("s_mov_b64 exec, -1")
    A.label("K_FIN")
    if STAMPS:
        A.label("K_STAMPS")
        A("s_waitcnt vmcnt(0)")
        stamp(15)
        A("s_waitcnt lgkmcnt(0)")
        A("s_lshl_b32 s%d, s2, 3" % sa)
        A("s_add_u32 s%d, s%d, s%d" % (sa, sa, sWv))
        A("s_mul_i32 s%d, s%d, %d" % (sa, sa, NSTAMP_SLOTS * 8))
        A("s_add_u32 s%d, s%d, 0x%x" % (sa, sa, WS_STAMP))
        A("v_mov_b32 v%d, 0" % vT0)
        A("s_mov_b64 exec, 1")
        for i in range(16):
            A("v_mov_b32 v%d, s%d" % (vT2, 70 + 2 * i))
            A("v_mov_b32 v%d, s%d" % (vT3, 71 + 2 * i))
            A("buffer_store_dwordx2 %s, v%d, %s, s%d offen offset:%d" % (vr(vT2, 2), vT0, sr(sWS, 4), sa, i * 8))
            A.nop(2)
    A.label("K_END")
    A("s_endpgm")
    return A.text(), 256, LDS

HEADER = open("sequential_preLN__sliding_block__moe_arch_mod__prompt.s.ref").read().split("; Override launch")[0]

def build(opt):
    k, nv, lds = gen(opt)
    s = HEADER
    s += "; @launch grid=(256,1,1) block=(512,1,1) lds=%d\n" % lds
    s += '.amdgcn_target "amdgcn-amd-amdhsa--gfx950"\n.text\n'
    s += ".globl %s\n.p2align 8\n.type %s,@function\n%s:\n%s" % (KNAME, KNAME, KNAME, k)
    s += '.section .rodata,"a"\n'
    s += """.p2align 6
.amdhsa_kernel %s
  .amdhsa_next_free_vgpr %d
  .amdhsa_next_free_sgpr 102
  .amdhsa_accum_offset %d
  .amdhsa_group_segment_fixed_size 0
  .amdhsa_kernarg_size 88
  .amdhsa_user_sgpr_count 2
  .amdhsa_user_sgpr_kernarg_segment_ptr 1
  .amdhsa_system_sgpr_workgroup_id_x 1
.end_amdhsa_kernel
""" % (KNAME, nv, (nv + 3) // 4 * 4)
    return s

if __name__ == "__main__":
    out = sys.argv[1] if len(sys.argv) > 1 else "k.s"
    opt = {}
    for a in sys.argv[2:]:
        k, v = a.split("=")
        opt[k] = int(v)
    open(out, "w").write(build(opt))
```

```python
import sys, struct

def f32(x):
    return "0x%08x" % struct.unpack("<I", struct.pack("<f", x))[0]

WS_KV = 0x000000
WS_O = 0x400000
WS_H = 0x600000
WS_P = 0x800000
WS_A = 0x840000
WS_LS = 0x850000
WS_E = 0x860000
WS_FKV = 0x880000
WS_FO = 0x8a0000
WS_SIZE = 0x10000000
WS_STAMP = 0x8000000
NSTAMP_SLOTS = 24

LOG2E = 1.4426950408889634
BIG = 1.0e30
SPIN_LIMIT = 100000
MFMA = "v_mfma_f32_32x32x16_bf16"
MFMA16 = "v_mfma_f32_16x16x32_bf16"
MFMA4 = "v_mfma_f32_4x4x4_16b_bf16"
KNAME = "sequential_preLN__sliding_block__moe_arch_mod__prompt_kernel"

class Asm:
    def __init__(self):
        self.L = []
    def __call__(self, s):
        self.L.append("    " + s.strip())
    def label(self, s):
        self.L.append(s + ":")
    def nop(self, n):
        while n > 0:
            k = min(n, 16)
            self.L.append("    s_nop %d" % (k - 1))
            n -= k
    def text(self):
        return "\n".join(self.L) + "\n"

def vr(b, n):
    assert b % 2 == 0, "unaligned vgpr tuple %d" % b
    return "v[%d:%d]" % (b, b + n - 1)
def sr(b, n):
    return "s[%d:%d]" % (b, b + n - 1)

def gen(opt):
    A = Asm()
    STAMPS = opt.get("stamps", 0)
    def stamp(i):
        if STAMPS:
            A("s_memrealtime %s" % sr(70 + 2 * i, 2))
    def srd(d, base, size):
        A("s_mov_b32 s%d, s%d" % (d, base))
        A("s_mov_b32 s%d, s%d" % (d + 1, base + 1))
        A("s_mov_b32 s%d, 0x%x" % (d + 2, size))
        A("s_mov_b32 s%d, 0x20000" % (d + 3))
    def cap(fn):
        keep = A.L; A.L = []; fn(); out = A.L; A.L = keep; return out
    pX, pW, pWO, pBX, pWR, pWG, pWU, pWD, pOUT, pDBG, pWS = 8, 10, 12, 14, 16, 18, 20, 22, 24, 26, 28
    sCG, sG3 = 14, 15
    sX, sW, sWS, sGA, sGB = 32, 36, 40, 44, 48
    sWv, sT, sC, sB, sHP, sTq, sWGL, sRole, sJ = 52, 53, 54, 55, 56, 57, 58, 59, 60
    sa, sb, sc, sd = 61, 62, 63, 64
    sKC, sXo, sWo, sSlotX, sDW = 3, 4, 5, 6, 7
    sXbase, sWbase = 30, 31
    sRd, sPub, sS = 65, 66, 67
    sN, sI, sChunk, sCnt = 3, 4, 5, 6
    sMaskV = 30
    sKu, sKm = 68, 69
    sI1, sI2 = 65, 66
    sWoG, sWoL, sWoR, sWoN = 65, 66, 67, 7
    vWoA = 41
    XS, WSL = 16384, 12288
    NSL = 3
    SLOT = XS + WSL
    L_WO = 86016
    L_K = 0
    L_V = 24576
    L_Q = 49152
    L_VX = 57344
    L_STR = 151552
    L_STM = 152064
    L_CS = 152576
    L_PAY = 153088
    L_NON = 153152
    L_CSP = 153600
    L_TOP = 155648
    L_R2 = 155904
    L_RED = L_WO
    L_F = 0
    L_FU = L_F + 16384 + 128
    LDS = 163840
    vL, vN, vG, vKap, vL16, vOnes, vTok = 1, 2, 3, 4, 5, 6, 7
    vT0, vT1, vT2, vT3 = 8, 9, 10, 11
    vNon = 12
    vXr = 14
    vWr = 18
    vFA = 200
    vWR4 = 248
    vW1 = 252
    vKb, vVb, vIG = 253, 254, 255
    vXg = 22
    vWg = 14
    vXa, vXc, vWa, vWc = 26, 30, 34, 38
    vU0, vU1 = 42, 43
    vOne2 = 44
    vB = 48
    vAcV, vAc0, vAc1 = 128, 144, 160
    vRow = 176
    vLSa, vLSb, vLSc = 184, 185, 186
    vCq, vCk, vCv = 188, 192, 196
    vGc = 112
    vE = 48
    vPk = 80
    vQ = 22
    vKad, vVad, vM, vMold = 26, 27, 30, 31
    vKa, vKbf = 32, 36
    vSa, vSb = 44, 60
    vCn = 76
    vP = 96
    vKV = 104
    vCm = 200
    vVa, vVbf = 216, 224
    vO = 232
    vWOa = 26
    vRa = 28
    vOF = 44
    vH0, vH1 = 76, 92
    vAW = 108
    vChk = 40
    vOG = 172
    vHp = 36
    vPa = 41
    vS = 44
    vK1, vK2, vP1, vP2 = 58, 59, 60, 61
    vX = 64
    vBF = 80
    vAcc = 104
    vSs = 120
    vSel = 124

    def spin_tail(lab, cnt):
        A("s_add_u32 s%d, s%d, 1" % (cnt, cnt))
        A("s_cmp_lt_u32 s%d, %d" % (cnt, SPIN_LIMIT))
        A("s_cbranch_scc1 %s" % lab)
    def maxu(dst, base, n):
        A("v_max_u32 v%d, v%d, v%d" % (dst, base, base + 1))
        for i in range(2, n, 2):
            A("v_max3_u32 v%d, v%d, v%d, v%d" % (dst, base + i, base + i + 1, dst))
    def sumu(dst, base, n, init=None):
        regs = [base + i for i in range(n)]
        if init is None:
            A("v_add_u32 v%d, v%d, v%d" % (dst, regs[0], regs[1])); regs = regs[2:]
        else:
            A("v_add3_u32 v%d, v%d, v%d, v%d" % (dst, regs[0], regs[1], init)); regs = regs[2:]
        for i in range(0, len(regs), 2):
            A("v_add3_u32 v%d, v%d, v%d, v%d" % (dst, regs[i], regs[i + 1], dst))
    def wave_sumu(v, tmp):
        for dpp in ("quad_perm:[1,0,3,2]", "quad_perm:[2,3,0,1]", "row_half_mirror", "row_mirror"):
            A.nop(2)
            A("v_add_u32_dpp v%d, v%d, v%d %s row_mask:0xf bank_mask:0xf" % (v, v, v, dpp))
        for sw in ("v_permlane16_swap_b32", "v_permlane32_swap_b32"):
            A("v_mov_b32 v%d, v%d" % (tmp, v))
            A.nop(2)
            A("%s v%d, v%d" % (sw, v, tmp))
            A.nop(1)
            A("v_add_u32 v%d, v%d, v%d" % (v, v, tmp))
    def ln_stats(s1, s2):
        A("v_mul_f32 v%d, %s, v%d" % (s1, f32(1.0 / 512), s1))
        A("v_mul_f32 v%d, %s, v%d" % (s2, f32(1.0 / 512), s2))
        A("v_fma_f32 v%d, -v%d, v%d, v%d" % (s2, s1, s1, s2))
        A("v_max_f32 v%d, 0, v%d" % (s2, s2))
        A("v_add_f32 v%d, %s, v%d" % (s2, f32(1e-5), s2))
        A("v_rsq_f32 v%d, v%d" % (s2, s2))

    A("s_cmp_ge_u32 s2, 256")
    A("s_cbranch_scc1 K_END")
    stamp(0)
    A("s_load_dwordx16 s[8:23], s[0:1], 0")
    A("s_load_dwordx4 s[24:27], s[0:1], 64")
    A("s_load_dwordx2 s[28:29], s[0:1], 80")
    A("v_and_b32 v%d, 63, v0" % vL)
    A("v_lshrrev_b32 v%d, 6, v0" % vT0)
    A("v_lshlrev_b32 v%d, 4, v%d" % (vL16, vL))
    A("v_readfirstlane_b32 s%d, v%d" % (sWv, vT0))
    A("s_and_b32 s%d, s2, 7" % sa)
    A("s_lshr_b32 s%d, s2, 3" % sb)
    A("s_lshr_b32 s%d, s%d, 1" % (sB, sa))
    A("s_lshr_b32 s%d, s%d, 3" % (sc, sb))
    A("s_lshl_b32 s%d, s%d, 2" % (sd, sc))
    A("s_add_u32 s%d, s%d, s%d" % (sB, sB, sd))
    A("s_and_b32 s%d, s%d, 1" % (sHP, sa))
    A("s_lshl_b32 s%d, s%d, 3" % (sHP, sHP))
    A("s_and_b32 s%d, s%d, 7" % (sKC, sb))
    A("s_add_u32 s%d, s%d, s%d" % (sHP, sHP, sKC))
    A("s_lshl_b32 s%d, s%d, 1" % (sc, sc))
    A("s_add_u32 s%d, s%d, s%d" % (sKC, sKC, sc))
    A("s_and_b32 s%d, s%d, 7" % (sKC, sKC))
    A("s_and_b32 s%d, s%d, 3" % (sT, sWv))
    A("s_lshr_b32 s%d, s%d, 2" % (sC, sWv))
    A("s_lshl_b32 s%d, s%d, 4" % (sWGL, sB))
    A("s_add_u32 s%d, s%d, s%d" % (sWGL, sWGL, sHP))
    A("s_cmp_eq_u32 s%d, 0" % sC)
    A("s_cbranch_scc0 K_PRO_LD")
    A("s_lshl_b32 s%d, s%d, 2" % (sa, sWGL))
    A("s_add_u32 s%d, s%d, s%d" % (sa, sa, sT))
    A("s_lshl_b32 s%d, s%d, 11" % (sb, sa))
    for i in range(4):
        A("v_mov_b32 v%d, -1" % (vT0 + i))
    A("s_waitcnt lgkmcnt(0)")
    srd(sX, pX, 0x200000)
    A("buffer_load_dwordx4 %s, v%d, %s, s%d offen" % (vr(vRow, 4), vL16, sr(sX, 4), sb))
    A("buffer_load_dwordx4 %s, v%d, %s, s%d offen offset:1024" % (vr(vRow + 4, 4), vL16, sr(sX, 4), sb))
    srd(sWS, pWS, WS_SIZE)
    A("s_or_b32 s%d, s2, s%d" % (sa, sWv))
    A("s_cmp_lg_u32 s%d, 0" % sa)
    A("s_cbranch_scc1 K_NONONCE")
    srd(sGA, pDBG, 256)
    A("s_memrealtime s[68:69]")
    A("s_waitcnt lgkmcnt(0)")
    A("s_or_b32 s69, s69, 0x80000000")
    A("v_mov_b32 v%d, s68" % vNon)
    A("v_mov_b32 v%d, s69" % (vNon + 1))
    A("s_mov_b64 exec, 1")
    A("buffer_store_dwordx2 %s, v%d, %s, 0 offen sc1" % (vr(vNon, 2), vL16, sr(sGA, 4)))
    A("s_mov_b64 exec, -1")
    A.label("K_NONONCE")
    def clr(soff, off=0):
        A("buffer_store_dwordx4 %s, v%d, %s, s%d offen offset:%d sc1" % (vr(vT0, 4), vL16, sr(sWS, 4), soff, off))
    A("s_cmp_lg_u32 s%d, 0" % sT)
    A("s_cbranch_scc1 K_NOCLRP")
    A("s_lshl_b32 s%d, s%d, 10" % (sa, sWGL))
    A("s_add_u32 s%d, s%d, 0x%x" % (sa, sa, WS_P))
    clr(sa)
    A.label("K_NOCLRP")
    A("s_cmp_lg_u32 s2, 1")
    A("s_cbranch_scc1 K_PRO_DONE")
    A("s_lshl_b32 s%d, s%d, 11" % (sa, sT))
    A("s_add_u32 s%d, s%d, 0x%x" % (sa, sa, WS_A))
    clr(sa); clr(sa, 1024)
    A("s_branch K_PRO_DONE")
    A.label("K_PRO_LD")
    A("v_lshrrev_b32 v%d, 3, v%d" % (vT0, vL))
    A("v_lshrrev_b32 v%d, 1, v%d" % (vT1, vT0))
    A("v_and_b32 v%d, 7, v%d" % (vT2, vL))
    A("v_xor_b32 v%d, v%d, v%d" % (vT2, vT2, vT1))
    A("v_lshlrev_b32 v%d, 4, v%d" % (vT2, vT2))
    A("v_lshl_add_u32 v%d, v%d, 10, v%d" % (vXg, vT0, vT2))
    A("v_xor_b32 v%d, 64, v%d" % (vXg + 1, vXg))
    A("v_add_u32 v%d, %d, v%d" % (vXg + 1, 8192 - 1024, vXg + 1))
    A("v_add_u32 v%d, %d, v%d" % (vXg + 2, 2 * (8192 - 1024), vXg))
    A("v_add_u32 v%d, %d, v%d" % (vXg + 3, 2 * (8192 - 1024), vXg + 1))
    A("s_lshl_b32 s%d, s%d, 17" % (sXbase, sB))
    A("s_lshl_b32 s%d, s%d, 15" % (sa, sT))
    A("s_add_u32 s%d, s%d, s%d" % (sXbase, sXbase, sa))
    A("s_movk_i32 s%d, 0x1556" % sb)
    for q in range(3):
        src = vL
        if q:
            A("v_add_u32 v%d, %d, v%d" % (vT0, 64 * q, vL))
            src = vT0
        A("v_mul_u32_u24 v%d, s%d, v%d" % (vT1, sb, src))
        A("v_lshrrev_b32 v%d, 16, v%d" % (vT1, vT1))
        A("v_mul_u32_u24 v%d, 12, v%d" % (vT2, vT1))
        A("v_sub_u32 v%d, v%d, v%d" % (vT2, src, vT2))
        A("v_lshrrev_b32 v%d, 2, v%d" % (vT3, vT2))
        A("v_and_b32 v%d, 3, v%d" % (vT2, vT2))
        A("v_lshlrev_b32 v%d, 4, v%d" % (vT2, vT2))
        A("v_lshl_add_u32 v%d, v%d, 10, v%d" % (vT2, vT3, vT2))
        A("v_mul_u32_u24 v%d, 0xc00, v%d" % (vT1, vT1))
        A("v_add_u32 v%d, v%d, v%d" % (vWg + q, vT1, vT2))
        if q:
            A("v_subrev_u32 v%d, %d, v%d" % (vWg + q, 1024 * q, vWg + q))
    A("s_lshl_b32 s%d, s%d, 6" % (sWbase, sHP))
    A("s_mul_i32 s%d, s%d, 49152" % (sa, sT))
    A("s_add_u32 s%d, s%d, s%d" % (sWbase, sWbase, sa))
    A("s_lshl_b32 s%d, s%d, 12" % (sSlotX, sT))
    A("s_lshl_b32 s%d, s%d, 10" % (sDW, sT))
    A("s_sub_u32 s%d, %d, s%d" % (sDW, XS, sDW))
    A("s_waitcnt lgkmcnt(0)")
    srd(sX, pX, 0x200000)
    srd(sW, pW, 0x180000)
    stamp(1)

    def dma_stage():
        A("s_lshl_b32 s%d, s%d, 7" % (sXo, sKC))
        A("s_mov_b32 m0, s%d" % sSlotX)
        A("s_add_u32 s%d, s%d, s%d" % (sXo, sXo, sXbase))
        for i in range(4):
            A("buffer_load_dwordx4 v%d, %s, s%d offen offset:%d lds" % (vXg + i, sr(sX, 4), sXo, i * 1024))
            if i == 0:
                A("s_mul_i32 s%d, s%d, 196608" % (sWo, sKC))
                A("s_add_u32 s%d, s%d, s%d" % (sa, sSlotX, sDW))
            if i == 1:
                A("s_add_u32 s%d, s%d, s%d" % (sWo, sWo, sWbase))
                A("s_add_u32 s%d, s%d, 1" % (sKC, sKC))
            if i == 2:
                A("s_and_b32 s%d, s%d, 7" % (sKC, sKC))
                A("s_add_u32 s%d, s%d, %d" % (sSlotX, sSlotX, SLOT))
        A("s_mov_b32 m0, s%d" % sa)
        A("s_nop 0")
        for i in range(3):
            A("buffer_load_dwordx4 v%d, %s, s%d offen offset:%d lds" % (vWg + i, sr(sW, 4), sWo, i * 1024))
            if i == 0:
                A("s_cmp_ge_u32 s%d, %d" % (sSlotX, NSL * SLOT))
                A("s_cselect_b32 s%d, %d, 0" % (sa, NSL * SLOT))
                A("s_sub_u32 s%d, s%d, s%d" % (sSlotX, sSlotX, sa))
    def build_mask(first):
        for r in range(0, 16, 2):
            for k in range(2):
                jr = ((r + k) >> 3) * 16 + ((r + k) & 7)
                A("v_cmp_%s_i32 %s, %d, v%d" % ("gt" if first else "le", "vcc" if k == 0 else sr(sKu, 2), jr, vIG))
            A.nop(1)
            A("v_cndmask_b32 v%d, v%d, v%d, vcc" % (vCm + r, vU0, vU1))
            A("v_cndmask_b32 v%d, v%d, v%d, %s" % (vCm + r + 1, vU0, vU1, sr(sKu, 2)))
    def common_setup(loader, ta, tb, tc):
        t0, t1, t2, t3 = vE, vE + 1, vE + 2, vE + 3
        A("v_and_b32 v%d, 31, v%d" % (vN, vL))
        A("v_lshrrev_b32 v%d, 5, v%d" % (vG, vL))
        A("v_and_b32 v%d, 0x13, v%d" % (vKap, vN))
        A("v_and_b32 v%d, 4, v%d" % (t0, vN))
        A("v_lshl_or_b32 v%d, v%d, 1, v%d" % (vKap, t0, vKap))
        A("v_and_b32 v%d, 8, v%d" % (t0, vN))
        A("v_lshrrev_b32 v%d, 1, v%d" % (t0, t0))
        A("v_or_b32 v%d, v%d, v%d" % (vKap, vKap, t0))
        A("v_mov_b32 v%d, 0x3f803f80" % vOnes)
        A("s_lshr_b32 s%d, s2, 6" % ta)
        A("s_and_b32 s%d, s2, 7" % sCG)
        A("s_cmp_lt_u32 s%d, 3" % ta)
        A("s_cselect_b32 s%d, 0, 6" % tb)
        A("s_min_u32 s%d, s%d, 2" % (ta, ta))
        A("s_lshr_b32 s%d, s%d, 1" % (tc, sCG))
        A("s_add_u32 s%d, s%d, s%d" % (ta, ta, tc))
        A("s_add_u32 s%d, s%d, 1" % (ta, ta))
        A("s_and_b32 s%d, s%d, 3" % (ta, ta))
        A("s_add_u32 s%d, s%d, s%d" % (sCG, sCG, tb))
        A("s_and_b32 s%d, s%d, 7" % (sCG, sCG))
        A("s_bfe_u32 s%d, s2, 0x20004" % tb)
        A("s_lshl_b32 s%d, s%d, 2" % (tb, tb))
        A("s_add_u32 s%d, s%d, s%d" % (ta, ta, tb))
        A("s_lshl_b32 s%d, s%d, 1" % (sG3, ta))
        A("s_bfe_u32 s%d, s2, 0x10003" % tb)
        A("s_add_u32 s%d, s%d, s%d" % (sG3, sG3, tb))
        A("v_lshrrev_b32 v%d, 3, v%d" % (t0, vL))
        A("v_and_b32 v%d, 3, v%d" % (t1, t0))
        A("v_lshrrev_b32 v%d, 2, v%d" % (t0, t0))
        A("v_lshl_add_u32 v%d, v%d, 3, v%d" % (t1, t0, t1))
        A("s_lshr_b32 s%d, s%d, 1" % (ta, sT))
        A("s_lshl_b32 s%d, s%d, 4" % (ta, ta))
        A("s_and_b32 s%d, s%d, 1" % (tb, sT))
        A("s_lshl_b32 s%d, s%d, 2" % (tb, tb))
        A("s_add_u32 s%d, s%d, s%d" % (ta, ta, tb))
        A("s_lshl_b32 s%d, s%d, 6" % (tb, sG3))
        A("s_add_u32 s%d, s%d, s%d" % (ta, ta, tb))
        if loader:
            A("s_add_u32 s%d, s%d, 32" % (ta, ta))
        A("v_add_u32 v%d, s%d, v%d" % (vTok, ta, t1))
        A("s_and_b32 s%d, s2, 7" % ta)
        A("s_lshr_b32 s%d, s2, 3" % tb)
        A("s_mul_i32 s%d, s%d, 11" % (sJ, ta))
        A("s_add_u32 s%d, s%d, s%d" % (sJ, sJ, tb))
        A("s_cmp_lt_u32 s%d, 11" % tb)
        A("s_cselect_b32 s%d, 1, 0" % sRole)
        A("s_cmp_lt_u32 s%d, 86" % sJ)
        A("s_cselect_b32 s%d, s%d, 0" % (sRole, sRole))
        A("s_sub_u32 s%d, s%d, 11" % (tb, tb))
        A("s_lshl_b32 s%d, s%d, 2" % (ta, ta))
        A("s_add_u32 s%d, s%d, s%d" % (ta, ta, tb))
        A("s_cmp_lt_u32 s%d, 4" % tb)
        A("s_cselect_b32 s%d, 2, s%d" % (sRole, sRole))
        A("s_cmp_lt_u32 s%d, 4" % tb)
        A("s_cselect_b32 s%d, s%d, s%d" % (sJ, ta, sJ))
        if not loader:
            A("v_bfe_u32 v%d, v%d, 2, 2" % (t2, vL))
            A("v_lshl_add_u32 v%d, v%d, 3, v%d" % (t2, vG, t2))
            A("v_mul_u32_u24 v%d, 192, v%d" % (t3, t2))
            A("v_bfe_u32 v%d, v%d, 4, 1" % (t2, vL))
            A("v_lshl_add_u32 v%d, v%d, 5, v%d" % (t3, t2, t3))
            A("v_and_b32 v%d, 1, v%d" % (t2, vL))
            A("v_lshl_add_u32 v%d, v%d, 4, v%d" % (t3, t2, t3))
            A("v_bfe_u32 v%d, v%d, 1, 1" % (t2, vL))
            A("v_lshl_add_u32 v%d, v%d, 3, v%d" % (t3, t2, t3))
            A("v_bfe_u32 v%d, v%d, 1, 3" % (t0, vKap))
            A("v_xor_b32 v%d, v%d, v%d" % (t0, t0, vG))
            A("v_lshlrev_b32 v%d, 4, v%d" % (t0, t0))
            A("s_lshl_b32 s%d, s%d, 12" % (ta, sT))
            A("v_lshl_add_u32 v%d, v%d, 7, s%d" % (t1, vKap, ta))
            for i in range(4):
                A("s_add_u32 s%d, s%d, %d" % (ta, sT, i))
                A("s_and_b32 s%d, s%d, 3" % (ta, ta))
                A("s_lshl_b32 s%d, s%d, 5" % (tb, ta))
                A("s_mul_i32 s%d, s%d, 3072" % (ta, ta))
                A("s_add_u32 s%d, s%d, %d" % (ta, ta, XS))
                A("v_xor_b32 v%d, s%d, v%d" % (t2, tb, t0))
                A("v_add_u32 v%d, v%d, v%d" % (vXa + i, t1, t2))
                A("v_add_u32 v%d, s%d, v%d" % (vWa + i, ta, t3))
                A("v_mov_b32 v%d, v%d" % (vXc + i, vXa + i))
                A("v_mov_b32 v%d, v%d" % (vWc + i, vWa + i))
            A("v_mov_b32 v%d, 0x3f803f80" % vOne2)
            A("v_mov_b32 v%d, 0x3f803f80" % (vOne2 + 1))
            for i in range(12):
                A("v_mov_b32 v%d, 0" % (vCq + i))
            A("s_lshl_b32 s%d, s%d, 2" % (ta, sT))
            A("s_add_u32 s%d, s%d, %d" % (ta, ta, L_CSP))
            A("v_lshl_add_u32 v%d, v%d, 4, s%d" % (vLSa, vN, ta))
            for i in range(48):
                A("v_mov_b32 v%d, 0" % (vAcV + i))
            for i in range(32):
                A("v_mov_b32 v%d, 0" % (vB + 32 + i))
            A("s_mov_b32 s%d, 0" % sRd)
            A("s_mov_b32 s%d, s%d" % (sTq, sT))
        else:
            A("s_lshl_b32 s%d, s%d, 2" % (ta, sWGL))
            A("s_add_u32 s%d, s%d, s%d" % (ta, ta, sT))
            A("s_lshl_b32 s%d, s%d, 5" % (ta, ta))
            A("v_lshl_add_u32 v%d, v%d, 4, s%d" % (vLSa, vG, ta))
            A("s_lshl_b32 s%d, s%d, 2" % (ta, sB))
            A("s_add_u32 s%d, s%d, s%d" % (ta, ta, sT))
            A("s_lshl_b32 s%d, s%d, 9" % (ta, ta))
            A("v_lshl_add_u32 v%d, v%d, 4, s%d" % (vLSb, vKap, ta))
            A("s_lshr_b32 s%d, s%d, 1" % (ta, sG3))
            A("s_lshl_b32 s%d, s%d, 11" % (ta, ta))
            A("v_and_b32 v%d, 15, v%d" % (t0, vL))
            A("v_lshl_add_u32 v%d, v%d, 7, s%d" % (vLSc, t0, ta))
            A("s_mov_b32 s%d, 0" % sPub)
            A("s_sub_u32 s%d, 3, s%d" % (sTq, sT))
            srd(sWS, pWS, WS_SIZE)
            srd(sGA, pDBG, 256)
        A("v_lshlrev_b32 v%d, 3, v%d" % (vIG, vG))
        A("v_sub_u32 v%d, v%d, v%d" % (vIG, vKap, vIG))
        A("v_mov_b32 v%d, %s" % (vU0, f32(-BIG)))
        A("v_mov_b32 v%d, 0" % vU1)
        build_mask(False)
        A("v_add_u32 v%d, %d, v%d" % (vKb, L_K + (1024 if loader else 0), vL16))
        A("v_add_u32 v%d, %d, v%d" % (vVb, L_V + (256 if loader else 0), vL16))
        for i in range(16):
            A("v_mov_b32 v%d, v%d" % (vVa + i, vOnes))
        for i in range(16):
            A("v_mov_b32 v%d, 0" % (vO + i))
        A("s_lshl_b32 s%d, s%d, 4" % (ta, sT))
        A("s_add_u32 s%d, s%d, %d" % (ta, ta, L_PAY))
        A("v_lshl_add_u32 v%d, v%d, 3, s%d" % (vU1, vG, ta))
        A("s_mov_b32 s%d, 0" % sS)

    setupL = cap(lambda: common_setup(True, sd, sb, sc))
    dmaL = cap(lambda: (dma_stage(), dma_stage()))
    nld = sum(1 for l in dmaL if "buffer_load" in l)
    per = (len(setupL) + nld - 1) // nld
    pos = 0
    for l in dmaL:
        A.L.append(l)
        if "buffer_load" in l:
            end = min(len(setupL), pos + per)
            while end < len(setupL) and (any(k in setupL[end - 1] for k in ("s_cmp", "v_cmp", "s_nop", "vcc_")) or "v_cndmask" in setupL[end]):
                end += 1
            A.L.extend(setupL[pos:end])
            pos = end
    A.L.extend(setupL[pos:])
    A("s_branch K_LOOP1")
    A.label("K_PRO_DONE")
    common_setup(False, sa, sb, sc)

    stamp(1)
    A("s_waitcnt vmcnt(0)")
    a0, b0, a1, b1 = vE, vE + 1, vE + 2, vE + 3
    for i in range(4):
        z = "0" if i == 0 else None
        A("v_dot2_f32_bf16 v%d, v%d, v%d, %s" % (a0, vRow + i, vOnes, z or "v%d" % a0))
        A("v_dot2_f32_bf16 v%d, v%d, v%d, %s" % (b0, vRow + i, vRow + i, z or "v%d" % b0))
        A("v_dot2_f32_bf16 v%d, v%d, v%d, %s" % (a1, vRow + 4 + i, vOnes, z or "v%d" % a1))
        A("v_dot2_f32_bf16 v%d, v%d, v%d, %s" % (b1, vRow + 4 + i, vRow + 4 + i, z or "v%d" % b1))
    A.nop(3)
    A("v_permlane32_swap_b32 v%d, v%d" % (a0, a1))
    A("v_permlane32_swap_b32 v%d, v%d" % (b0, b1))
    A.nop(1)
    A("v_add_f32 v%d, v%d, v%d" % (a0, a0, a1))
    A("v_add_f32 v%d, v%d, v%d" % (b0, b0, b1))
    A.nop(2)
    A("v_permlane16_swap_b32 v%d, v%d" % (a0, b0))
    A.nop(1)
    A("v_add_f32 v%d, v%d, v%d" % (a0, a0, b0))
    for dpp in ("quad_perm:[1,0,3,2]", "quad_perm:[2,3,0,1]", "row_half_mirror", "row_mirror"):
        A.nop(2)
        A("v_add_f32_dpp v%d, v%d, v%d %s row_mask:0xf bank_mask:0xf" % (a0, a0, a0, dpp))
    A("v_mov_b32 v%d, v%d" % (b0, a0))
    A.nop(2)
    A("v_permlane16_swap_b32 v%d, v%d" % (a0, b0))
    A.nop(1)
    ln_stats(a0, b0)
    A.nop(1)
    A("v_mov_b32 v%d, v%d" % (vRow, b0))
    A("v_mul_f32_e64 v%d, -v%d, v%d" % (vRow + 1, a0, b0))
    A("ds_write_b64 v%d, %s" % (vU1, vr(vRow, 2)))
    stamp(2)
    def rd_advance():
        A("s_add_u32 s%d, s%d, %d" % (sRd, sRd, SLOT))
        A("s_cmp_eq_u32 s%d, %d" % (sRd, NSL * SLOT))
        A("s_cselect_b32 s%d, 0, s%d" % (sRd, sRd))
        A("s_add_u32 s%d, s%d, 1" % (sS, sS))
    def rd0(k):
        B = vB + 16 * k
        A("ds_read_b128 %s, v%d" % (vr(B, 4), vXc + k))
        for seg in (1, 2, 0):
            for half in range(2):
                A("ds_read_b64_tr_b16 %s, v%d offset:%d" % (vr(B + 4 + 4 * seg + 2 * half, 2), vWc + k, 4 * half * 192 + seg * 64))
    def mm(k, which):
        B = vB + 16 * k
        X = vr(B, 4)
        if which == "K":
            A("%s %s, %s, %s, %s" % (MFMA, vr(vAc1, 16), vr(B + 8, 4), X, vr(vAc1, 16)))
        elif which == "V":
            A("%s %s, %s, %s, %s" % (MFMA, vr(vAcV, 16), X, vr(B + 12, 4), vr(vAcV, 16)))
        else:
            A("%s %s, %s, %s, %s" % (MFMA, vr(vAc0, 16), vr(B + 4, 4), X, vr(vAc0, 16)))
    def weave(fill, k):
        n = (len(fill) + 2) // 3
        for gi, w in enumerate("KVQ"):
            mm(k, w)
            A.L.extend(fill[gi * n:(gi + 1) * n])
    def adv(k):
        A("v_add_u32 v%d, s%d, v%d" % (vXc + k, sRd, vXa + k))
        A("v_add_u32 v%d, s%d, v%d" % (vWc + k, sRd, vWa + k))
    def cs4(h):
        for acc, off in ((vCq, 4), (vCk, 8), (vCv, 12)):
            A("%s %s, %s, %s, %s" % (MFMA4, vr(acc, 4), vr(vOne2, 2), vr(vB + off + 2 * h, 2), vr(acc, 4)))
    A.label("K_LOOP0")
    A("s_waitcnt lgkmcnt(0)")
    A("s_barrier")
    weave(cap(lambda: (rd0(0), rd_advance())), 2)
    weave(cap(lambda: (rd0(1), adv(0), adv(1))), 3)
    A("s_waitcnt lgkmcnt(7)")
    weave(cap(lambda: (rd0(2), rd0(3))), 0)
    cs4(0)
    cs4(1)
    A("s_waitcnt lgkmcnt(14)")
    mm(1, "K")
    adv(2)
    adv(3)
    mm(1, "V")
    A("s_cmp_lt_u32 s%d, 8" % sS)
    mm(1, "Q")
    A("s_cbranch_scc1 K_LOOP0")
    for acc in (vCq, vCk, vCv):
        A("v_mov_b32 v%d, v%d" % (acc + 1, acc))
    A("s_waitcnt lgkmcnt(0)")
    mm(2, "V")
    for acc in (vCq, vCk, vCv):
        A("v_permlane32_swap_b32 v%d, v%d" % (acc, acc + 1))
    for acc in (vCq, vCk, vCv):
        A("v_add_f32 v%d, v%d, v%d" % (acc, acc, acc + 1))
    for seg, acc in enumerate((vCq, vCk, vCv)):
        A("ds_write_b32 v%d, v%d offset:%d" % (vLSa, acc, seg * 512))
    mm(3, "V")
    A("s_waitcnt lgkmcnt(0)")
    A("s_barrier")
    mm(2, "K")
    A("s_lshl_b32 s%d, s%d, 7" % (sa, sT))
    A("s_add_u32 s%d, s%d, %d" % (sa, sa, L_STR))
    A("v_lshl_add_u32 v%d, v%d, 2, s%d" % (vU0, vKap, sa))
    A("v_lshlrev_b32 v%d, 4, v%d" % (vT1, vG))
    mm(3, "K")
    A("v_add_u32 v%d, %d, v%d" % (vT1, L_CS, vT1))
    A("s_lshl_b32 s%d, s%d, 12" % (sa, sT))
    A("s_add_u32 s%d, s%d, %d" % (sa, sa, L_VX))
    A("v_add_u32 v%d, s%d, v%d" % (vT0, sa, vL16))
    mm(2, "Q")
    A("v_mov_b32 v%d, %d" % (vU1, L_NON))
    for q in range(4):
        A("ds_write_b128 v%d, %s offset:%d" % (vT0, vr(vAcV + 4 * q, 4), q * 1024))
    mm(3, "Q")
    stamp(3)
    A("s_lshl_b32 s%d, s%d, 11" % (sa, sT))
    A("s_add_u32 s%d, s%d, %d" % (sb, sa, L_K + 8 * 2048))
    A("v_add_u32 v%d, s%d, v%d" % (vT0, sb, vL16))
    A("s_lshl_b32 s%d, s%d, 14" % (sd, sWGL))
    A("s_add_u32 s%d, s%d, s%d" % (sd, sd, sa))
    A("s_waitcnt lgkmcnt(0)")
    A("s_barrier")
    A("ds_read_b32 v%d, v%d" % (vT2, vU0))
    A("ds_read_b32 v%d, v%d offset:%d" % (vT3, vU0, L_STM - L_STR))
    for tile in (1, 0):
        for a in range(4):
            A("ds_read_b128 %s, v%d offset:%d" % (vr(vE + 16 * tile + 4 * a, 4), vT1, tile * 128 + a * 32))
    A("ds_read_b64 %s, v%d" % (vr(vNon, 2), vU1))
    A("s_waitcnt lgkmcnt(9)")
    for r in range(16):
        A("v_mul_f32 v%d, v%d, v%d" % (vAc1 + r, vAc1 + r, vT2))
    A("s_waitcnt lgkmcnt(5)")
    for r in range(16):
        A("v_fmac_f32 v%d, v%d, v%d" % (vAc1 + r, vE + 16 + r, vT3))
    def pack_store(acc, soff):
        for i in range(8):
            A("v_cvt_pk_bf16_f32 v%d, v%d, v%d" % (vPk + i, acc + 2 * i, acc + 2 * i + 1))
        A("buffer_store_dwordx4 %s, v%d, %s, s%d offen sc1" % (vr(vPk, 4), vL16, sr(sWS, 4), soff))
        A("buffer_store_dwordx4 %s, v%d, %s, s%d offen offset:1024 sc1" % (vr(vPk + 4, 4), vL16, sr(sWS, 4), soff))
        sumu(vGc, vPk, 8)
        A("ds_write_b128 v%d, %s" % (vT0, vr(vPk, 4)))
        A("ds_write_b128 v%d, %s offset:1024" % (vT0, vr(vPk + 4, 4)))
        wave_sumu(vGc, vGc + 1)
        A("s_lshl_b32 s%d, s%d, 3" % (sb, sWGL))
        A("s_add_u32 s%d, s%d, s%d" % (sb, sb, sWv))
        A("s_lshl_b32 s%d, s%d, 6" % (sb, sb))
        A("s_add_u32 s%d, s%d, 0x%x" % (sb, sb, WS_FKV))
        A("s_waitcnt lgkmcnt(2)")
        A("v_mov_b32 v%d, v%d" % (vGc + 2, vNon))
        A("v_mov_b32 v%d, v%d" % (vGc + 3, vNon + 1))
        A("s_mov_b64 exec, 1")
        A("buffer_store_dwordx4 %s, v%d, %s, s%d offen sc1" % (vr(vGc, 4), vL16, sr(sWS, 4), sb))
        A("s_mov_b64 exec, -1")
    pack_store(vAc1, sd)
    A("v_mul_f32 v%d, %s, v%d" % (vT2, f32(0.25 * LOG2E), vT2))
    A("v_mul_f32 v%d, %s, v%d" % (vT3, f32(0.25 * LOG2E), vT3))
    A("s_waitcnt lgkmcnt(2)")
    for r in range(8, 16):
        A("v_mul_f32 v%d, v%d, v%d" % (vAc0 + r, vAc0 + r, vT2))
        A("v_fmac_f32 v%d, v%d, v%d" % (vAc0 + r, vE + r, vT3))
    for i in range(4):
        A("v_cvt_pk_bf16_f32 v%d, v%d, v%d" % (vPk + 8 + i, vAc0 + 8 + 2 * i, vAc0 + 8 + 2 * i + 1))
    A("s_lshl_b32 s%d, s%d, 10" % (sa, sT))
    A("s_add_u32 s%d, s%d, %d" % (sa, sa, L_Q))
    A("v_add_u32 v%d, s%d, v%d" % (vT0, sa, vL16))
    A("ds_write_b128 v%d, %s" % (vT0, vr(vPk + 8, 4)))
    for r in range(8):
        A("v_mul_f32 v%d, v%d, v%d" % (vAc0 + r, vAc0 + r, vT2))
        A("v_fmac_f32 v%d, v%d, v%d" % (vAc0 + r, vE + r, vT3))
    for i in range(4):
        A("v_cvt_pk_bf16_f32 v%d, v%d, v%d" % (vQ + i, vAc0 + 2 * i, vAc0 + 2 * i + 1))
    A("s_branch K_PUB")

    A.label("K_LOOP1")
    A("v_mov_b32 v%d, 0" % vT0)
    A("buffer_load_dwordx2 %s, v%d, %s, 0 offen sc1" % (vr(vNon, 2), vT0, sr(sGA, 4)))
    stamp(2)
    def try_publish(lab, blocking=False):
        A.label(lab + "_r")
        A("s_cmp_lg_u32 s%d, 0" % sPub)
        A("s_cbranch_scc1 %s" % lab)
        if blocking:
            A("s_waitcnt vmcnt(0)")
        A("v_readfirstlane_b32 s%d, v%d" % (sPub, vNon + 1))
        A("ds_read_b64 %s, v%d" % (vr(vRow, 2), vU1))
        A("s_cmp_lg_u32 s%d, 0" % sPub)
        A("s_cbranch_scc1 %s_ok" % lab)
        A("buffer_load_dwordx2 %s, v%d, %s, 0 offen sc1" % (vr(vNon, 2), vT0, sr(sGA, 4)))
        if blocking:
            spin_tail(lab + "_r", sS)
        A("s_branch %s" % lab)
        A.label(lab + "_ok")
        A("v_mov_b32 v%d, v%d" % (vRow + 2, vNon))
        A("v_mov_b32 v%d, v%d" % (vRow + 3, vNon + 1))
        A("s_mov_b32 s%d, 0x%x" % (sb, WS_LS))
        A("s_mov_b32 exec_lo, 1")
        A("s_mov_b32 exec_hi, 1")
        A("s_waitcnt lgkmcnt(0)")
        A("buffer_store_dwordx4 %s, v%d, %s, s%d offen sc1" % (vr(vRow, 4), vLSa, sr(sWS, 4), sb))
        A("s_mov_b64 exec, -1")
        A.label(lab)
    A.label("K_LOOP1T")
    A("s_waitcnt vmcnt(7)")
    A("s_barrier")
    A("s_and_b32 s%d, s%d, 1" % (sb, sS))
    A("s_cmp_eq_u32 s%d, 0" % sb)
    A("s_cselect_b32 s%d, s%d, 0" % (sb, sS))
    A("s_cmp_eq_u32 s%d, 0" % sb)
    A("s_cbranch_scc1 K_L1_PUB")
    try_publish("K_L1_PUB")
    dma_stage()
    A("s_add_u32 s%d, s%d, 1" % (sS, sS))
    A("s_cmp_lt_u32 s%d, 6" % sS)
    A("s_cbranch_scc1 K_LOOP1T")
    A("s_waitcnt vmcnt(7)")
    A("s_barrier")
    try_publish("K_L1_PUB2", blocking=True)
    A("s_mov_b32 s%d, 0x%x" % (sb, WS_LS))
    A("buffer_load_dwordx4 %s, v%d, %s, s%d offen sc1" % (vr(vRow + 4, 4), vLSb, sr(sWS, 4), sb))
    A("buffer_load_dwordx4 %s, v%d, %s, s%d offen sc1" % (vr(vGc, 4), vLSc, sr(sWS, 4), sb))
    A("s_lshl_b32 s%d, s%d, 7" % (sc, sT))
    A("s_add_u32 s%d, s%d, %d" % (sc, sc, L_STR))
    A("v_lshl_add_u32 v%d, v%d, 5, s%d" % (vT1, vG, sc))
    A("v_lshl_add_u32 v%d, v%d, 2, s%d" % (vU0, vKap, sc))
    A("v_mov_b32 v%d, %d" % (vT3, L_NON))
    A("ds_write_b64 v%d, %s" % (vT3, vr(vNon, 2)))
    A("s_lshl_b32 s%d, s%d, 12" % (sc, sT))
    A("s_add_u32 s%d, s%d, %d" % (sc, sc, L_VX))
    A("v_add_u32 v%d, s%d, v%d" % (vT3, sc, vL16))
    A("v_lshlrev_b32 v%d, 4, v%d" % (vT2, vN))
    A("v_add_u32 v%d, %d, v%d" % (vT2, L_CSP, vT2))
    A("s_mov_b32 s%d, 0" % sCnt)
    A("s_waitcnt vmcnt(2)")
    A("s_barrier")
    A.label("K_LS_CHK")
    A("s_waitcnt vmcnt(0)")
    A("v_cmp_eq_u64 vcc, %s, %s" % (vr(vRow + 6, 2), vr(vNon, 2)))
    A("v_cmp_eq_u64 s[68:69], %s, %s" % (vr(vGc + 2, 2), vr(vNon, 2)))
    A("s_and_b64 vcc, vcc, s[68:69]")
    A("s_cmp_eq_u64 vcc, exec")
    A("s_cbranch_scc1 K_LS_OK")
    A("buffer_load_dwordx4 %s, v%d, %s, s%d offen sc1" % (vr(vRow + 4, 4), vLSb, sr(sWS, 4), sb))
    A("buffer_load_dwordx4 %s, v%d, %s, s%d offen sc1" % (vr(vGc, 4), vLSc, sr(sWS, 4), sb))
    spin_tail("K_LS_CHK", sCnt)
    A.label("K_LS_OK")
    A("ds_write_b32 v%d, v%d" % (vU0, vRow + 4))
    A("ds_write_b32 v%d, v%d offset:%d" % (vU0, vRow + 5, L_STM - L_STR))
    A("s_waitcnt lgkmcnt(0)")
    for q in range(4):
        off = (q & 1) * 16 + (q >> 1) * 64
        A("ds_read_b128 %s, v%d offset:%d" % (vr(vE + 4 * q, 4), vT1, off))
        A("ds_read_b128 %s, v%d offset:%d" % (vr(vE + 16 + 4 * q, 4), vT1, off + L_STM - L_STR))
    A("s_barrier")
    for seg, acc in enumerate((vCq, vCk, vCv)):
        A("ds_read_b128 %s, v%d offset:%d" % (vr(acc, 4), vT2, seg * 512))
    A("v_lshlrev_b32 v%d, 2, v%d" % (vT2, vN))
    A("v_add_u32 v%d, %d, v%d" % (vT2, L_CS, vT2))
    A("s_lshl_b32 s%d, s%d, 11" % (sb, sT))
    A("s_add_u32 s%d, s%d, %d" % (sc, sb, L_V + 8 * 2048))
    A("v_add_u32 v%d, s%d, v%d" % (vT0, sc, vL16))
    A("s_lshl_b32 s%d, s%d, 14" % (sc, sWGL))
    A("s_add_u32 s%d, s%d, s%d" % (sc, sc, sb))
    A("s_add_u32 s%d, s%d, 8192" % (sc, sc))
    A("s_waitcnt lgkmcnt(0)")
    for acc in (vCq, vCk, vCv):
        A("v_add_f32 v%d, v%d, v%d" % (acc, acc, acc + 1))
        A("v_add_f32 v%d, v%d, v%d" % (acc + 2, acc + 2, acc + 3))
    for acc in (vCq, vCk, vCv):
        A("v_add_f32 v%d, v%d, v%d" % (acc, acc, acc + 2))
    A("ds_write_b32 v%d, v%d" % (vT2, vCq))
    A("ds_write_b32 v%d, v%d offset:128" % (vT2, vCk))
    stamp(3)
    for r in range(16):
        A("v_mul_f32 v%d, v%d, v%d" % (vE + 16 + r, vE + 16 + r, vCv))
    A("s_waitcnt lgkmcnt(0)")
    A("s_barrier")
    for q in range(4):
        A("ds_read_b128 %s, v%d offset:%d" % (vr(vAc0 + 4 * q, 4), vT3, q * 1024))
    for q in range(4):
        A("s_waitcnt lgkmcnt(%d)" % (3 - q))
        for r in range(4 * q, 4 * q + 4):
            A("v_fma_f32 v%d, v%d, v%d, v%d" % (vAc0 + r, vAc0 + r, vE + r, vE + 16 + r))
    pack_store(vAc0, sc)

    A.label("K_PUB")
    A("s_mov_b32 s%d, 0" % sWoN)
    A("s_mov_b32 s%d, 0x0000ffff" % sMaskV)
    A("s_mov_b32 s%d, 0x0000ffff" % (sMaskV + 1))
    A("v_mov_b32 v%d, %s" % (vMold, f32(-BIG)))
    A("s_lshl_b32 s%d, s%d, 10" % (sa, sTq))
    A("s_add_u32 s%d, s%d, %d" % (sa, sa, L_Q))
    A("v_add_u32 v%d, s%d, v%d" % (vT0, sa, vL16))
    A("s_waitcnt lgkmcnt(0)")
    A("s_barrier")
    stamp(4)
    A("s_cmp_eq_u32 s%d, 0" % sC)
    A("s_cbranch_scc1 K_HAVEQ")
    A("ds_read_b128 %s, v%d" % (vr(vQ, 4), vT0))
    A.label("K_HAVEQ")
    A("s_cmp_lg_u32 s%d, 0" % sTq)
    A("s_cbranch_scc1 K_NOP0")
    A("s_setprio 2")
    A.label("K_NOP0")
    A("s_mov_b32 s%d, 0" % sChunk)
    A("s_add_u32 s%d, s%d, 8" % (sa, sTq))
    A("s_mov_b32 s%d, 8" % sb)
    A("s_mov_b32 s%d, s%d" % (sN, sTq))
    A.label("K_CHUNK")
    A("s_lshl_b32 s%d, s%d, 11" % (sKm, sa))
    A("s_lshl_b32 s%d, s%d, 11" % (sKu, sb))
    A("v_add_u32 v%d, s%d, v%d" % (vKad, sKm, vKb))
    A("ds_read_b128 %s, v%d" % (vr(vKbf, 4), vKad))
    A("v_add_u32 v%d, s%d, v%d" % (vKad, sKu, vKb))
    A("ds_read_b128 %s, v%d" % (vr(vKa, 4), vKad))
    A("v_add_u32 v%d, s%d, v%d" % (vVad, sKm, vVb))
    A("s_mov_b64 exec, %s" % sr(sMaskV, 2))
    A("ds_read_b128 %s, v%d" % (vr(vVbf, 4), vVad))
    A("ds_read_b128 %s, v%d offset:1024" % (vr(vVbf + 4, 4), vVad))
    A("s_mov_b64 exec, -1")
    A("v_add_u32 v%d, s%d, v%d" % (vVad, sKu, vVb))
    A("v_mov_b32 v%d, v%d" % (vM, vMold))
    A("s_mov_b32 s%d, 0" % sI)
    A("s_waitcnt lgkmcnt(3)")
    A("%s %s, %s, %s, %s" % (MFMA, vr(vSb, 16), vr(vKbf, 4), vr(vQ, 4), vr(vCm, 16)))
    def max16(S):
        for i in range(8):
            A("v_max3_f32 v%d, v%d, v%d, v%d" % (vM, S + 2 * i, S + 2 * i + 1, vM))
    A.nop(6)
    A.label("K_P1")
    A("s_waitcnt lgkmcnt(0)")
    A("%s %s, %s, %s, 0" % (MFMA, vr(vSa, 16), vr(vKa, 4), vr(vQ, 4)))
    A("ds_read_b128 %s, v%d offset:2048" % (vr(vKbf, 4), vKad))
    A.nop(3)
    max16(vSb)
    A("s_cmp_ge_u32 s%d, s%d" % (sI, sN))
    A("s_cbranch_scc1 K_P1_DONE")
    A("s_add_u32 s%d, s%d, 1" % (sI, sI))
    A("s_waitcnt lgkmcnt(0)")
    A("%s %s, %s, %s, 0" % (MFMA, vr(vSb, 16), vr(vKbf, 4), vr(vQ, 4)))
    A("v_add_u32 v%d, 4096, v%d" % (vKad, vKad))
    A("ds_read_b128 %s, v%d" % (vr(vKa, 4), vKad))
    max16(vSa)
    A("s_cmp_ge_u32 s%d, s%d" % (sI, sN))
    A("s_cbranch_scc1 K_P1_DONE")
    A("s_add_u32 s%d, s%d, 1" % (sI, sI))
    A("s_branch K_P1")
    A.label("K_P1_DONE")
    A("v_mov_b32 v%d, v%d" % (vT0, vM))
    A("s_waitcnt lgkmcnt(0)")
    A("v_add_u32 v%d, s%d, v%d" % (vKad, sKm, vKb))
    A("ds_read_b128 %s, v%d" % (vr(vKbf, 4), vKad))
    A("v_permlane32_swap_b32 v%d, v%d" % (vM, vT0))
    A("v_add_u32 v%d, s%d, v%d" % (vKad, sKu, vKb))
    A("ds_read_b128 %s, v%d" % (vr(vKa, 4), vKad))
    A("v_max_f32 v%d, v%d, v%d" % (vM, vM, vT0))
    A("v_sub_f32 v%d, v%d, v%d" % (vT0, vMold, vM))
    A("v_exp_f32 v%d, v%d" % (vT0, vT0))
    A("v_mov_b32 v%d, v%d" % (vMold, vM))
    for r in range(16):
        A("v_sub_f32 v%d, v%d, v%d" % (vCm + r, vCm + r, vM))
    A("s_waitcnt lgkmcnt(1)")
    A("v_sub_f32 v%d, 0, v%d" % (vCn, vM))
    A("%s %s, %s, %s, %s" % (MFMA, vr(vSb, 16), vr(vKbf, 4), vr(vQ, 4), vr(vCm, 16)))
    for r in range(1, 16):
        A("v_mov_b32 v%d, v%d" % (vCn + r, vCn))
    for r in range(9):
        A("v_mul_f32 v%d, v%d, v%d" % (vO + r, vO + r, vT0))
    A("s_mov_b32 s%d, 0" % sI)
    def wo_piece(lab):
        A("s_cmp_eq_u32 s%d, 0" % sWoN)
        A("s_cbranch_scc1 %s" % lab)
        A("s_add_u32 s%d, s%d, s%d" % (sa, sWoL, sWoR))
        A("s_mov_b32 m0, s%d" % sa)
        A("s_lshl_b32 s%d, s%d, 3" % (sa, sWoR))
        A("s_add_u32 s%d, s%d, s%d" % (sa, sa, sWoG))
        A("buffer_load_dwordx4 v%d, %s, s%d offen lds" % (vWoA, sr(sW, 4), sa))
        A("s_add_u32 s%d, s%d, 1024" % (sWoR, sWoR))
        A("s_and_b32 s%d, s%d, 0x1fff" % (sWoR, sWoR))
        A("s_sub_u32 s%d, s%d, 1" % (sWoN, sWoN))
        A.label(lab)
    def softmax_pv(S, V):
        for r in range(16):
            A("v_exp_f32 v%d, v%d" % (S + r, S + r))
            if r == 3:
                wo_piece("K_WOP%d" % S)
            if r == 11:
                wo_piece("K_WOQ%d" % S)
        for i in range(8):
            A("v_cvt_pk_bf16_f32 v%d, v%d, v%d" % (vP + i, S + 2 * i, S + 2 * i + 1))
        A.nop(1)
        A("%s %s, %s, %s, %s" % (MFMA, vr(vO, 16), vr(V, 4), vr(vP, 4), vr(vO, 16)))
        A("%s %s, %s, %s, %s" % (MFMA, vr(vO, 16), vr(V + 4, 4), vr(vP + 4, 4), vr(vO, 16)))
    A.label("K_P2")
    A("s_waitcnt lgkmcnt(0)")
    A("%s %s, %s, %s, %s" % (MFMA, vr(vSa, 16), vr(vKa, 4), vr(vQ, 4), vr(vCn, 16)))
    A("ds_read_b128 %s, v%d offset:2048" % (vr(vKbf, 4), vKad))
    A("s_mov_b64 exec, %s" % sr(sMaskV, 2))
    A("ds_read_b128 %s, v%d" % (vr(vVa, 4), vVad))
    A("ds_read_b128 %s, v%d offset:1024" % (vr(vVa + 4, 4), vVad))
    A("s_mov_b64 exec, -1")
    softmax_pv(vSb, vVbf)
    A("s_cmp_ge_u32 s%d, s%d" % (sI, sN))
    A("s_cbranch_scc1 K_P2_DONE")
    A("s_add_u32 s%d, s%d, 1" % (sI, sI))
    A("s_waitcnt lgkmcnt(0)")
    A("%s %s, %s, %s, %s" % (MFMA, vr(vSb, 16), vr(vKbf, 4), vr(vQ, 4), vr(vCn, 16)))
    A("v_add_u32 v%d, 4096, v%d" % (vKad, vKad))
    A("ds_read_b128 %s, v%d" % (vr(vKa, 4), vKad))
    A("s_mov_b64 exec, %s" % sr(sMaskV, 2))
    A("ds_read_b128 %s, v%d offset:2048" % (vr(vVbf, 4), vVad))
    A("ds_read_b128 %s, v%d offset:3072" % (vr(vVbf + 4, 4), vVad))
    A("s_mov_b64 exec, -1")
    A("v_add_u32 v%d, 4096, v%d" % (vVad, vVad))
    softmax_pv(vSa, vVa)
    A("s_cmp_ge_u32 s%d, s%d" % (sI, sN))
    A("s_cbranch_scc1 K_P2_DONE")
    A("s_add_u32 s%d, s%d, 1" % (sI, sI))
    A("s_branch K_P2")
    A.label("K_P2_DONE")
    A("s_waitcnt lgkmcnt(0)")
    A("s_cmp_lg_u32 s%d, 0" % sChunk)
    A("s_cbranch_scc1 K_ATT_DONE")
    stamp(5)
    A("s_cmp_lg_u32 s%d, 0" % sTq)
    A("s_cbranch_scc1 K_FETCH_ISSUED")
    A("s_cmp_eq_u32 s%d, 0" % sB)
    A("s_cbranch_scc1 K_FETCH_ISSUED")
    A("s_lshl_b32 s%d, s%d, 14" % (sa, sWGL))
    A("s_lshl_b32 s%d, s%d, 13" % (sb, sC))
    A("s_add_u32 s%d, s%d, s%d" % (sa, sa, sb))
    A("s_sub_u32 s%d, s%d, 0x40000" % (sa, sa))
    A("s_add_u32 s%d, s%d, 4096" % (sb, sa))
    A("s_cmp_eq_u32 s%d, 1" % sB)
    A("s_cselect_b32 s%d, 0, 0x40000" % sc)
    A("s_sub_u32 s%d, s%d, s%d" % (sd, sb, sc))
    A("s_sub_u32 s%d, s%d, s%d" % (sc, sa, sc))
    A("s_lshl_b32 s%d, s%d, 9" % (sI, sWGL))
    A("s_lshl_b32 s68, s%d, 8" % sC)
    A("s_add_u32 s%d, s%d, s68" % (sI, sI))
    A("s_add_u32 s%d, s%d, 0x%x" % (sI, sI, WS_FKV - 16384))
    A("s_cmp_eq_u32 s%d, 1" % sB)
    A("s_cselect_b32 s68, 0xff, 0xf")
    A("s_mov_b32 vcc_lo, s68")
    A("s_mov_b32 vcc_hi, 0")
    A("v_and_b32 v%d, 3, v%d" % (vT2, vL))
    A("v_lshlrev_b32 v%d, 6, v%d" % (vT2, vT2))
    A("v_add_u32 v%d, 8192, v%d" % (vT3, vT2))
    A("v_cndmask_b32 v%d, v%d, v%d, vcc" % (vT2, vT2, vT3))
    A("v_mov_b32 v%d, 0" % (vKV + 64))
    def kv_loads():
        A("s_mov_b64 exec, 0xff")
        A("buffer_load_dwordx4 %s, v%d, %s, s%d offen sc1" % (vr(vKV + 64, 4), vT2, sr(sWS, 4), sI))
        A("s_mov_b64 exec, -1")
        for hgrp, so in enumerate((sa, sb, sc, sd)):
            for q in range(4):
                A("buffer_load_dwordx4 %s, v%d, %s, s%d offen offset:%d sc1" % (vr(vKV + 16 * hgrp + 4 * q, 4), vL16, sr(sWS, 4), so, q * 1024))
    kv_loads()
    A.label("K_FETCH_ISSUED")
    A("v_mov_b32 v%d, %s" % (vU0, f32(-BIG)))
    A("s_cmp_eq_u32 s%d, 1" % sB)
    A("s_cselect_b32 s%d, %s, 0" % (sCnt, f32(-BIG)))
    A("v_mov_b32 v%d, s%d" % (vU1, sCnt))
    build_mask(True)
    srd(sGB, pWR, 1024)
    A("s_cmp_ge_u32 s%d, 2" % sTq)
    A("s_cbranch_scc1 K_B3")
    A("s_setprio 2")
    A("s_cmp_eq_u32 s%d, 1" % sTq)
    A("s_cbranch_scc1 K_B3")
    A("s_cmp_eq_u32 s%d, 0" % sB)
    A("s_cbranch_scc1 K_B3")
    A("s_mul_i32 s68, s%d, %d" % (sC, L_V - L_K))
    A("s_add_u32 s68, s68, %d" % L_K)
    A("v_add_u32 v%d, s68, v%d" % (vT1, vL16))
    A("s_mov_b32 s%d, 0" % sCnt)
    A.label("K_KVCHK")
    A("s_waitcnt vmcnt(0)")
    A("v_cmp_eq_u64 vcc, %s, %s" % (vr(vKV + 66, 2), vr(vNon, 2)))
    A("s_and_b32 s68, vcc_lo, 0xff")
    A("s_cmp_eq_u32 s68, 0xff")
    A("s_cbranch_scc0 K_KVRETRY")
    for i in range(16):
        off = (8192 if i < 8 else 0) + (i & 7) * 1024
        A("ds_write_b128 v%d, %s offset:%d" % (vT1, vr(vKV + 4 * i, 4), off))
    A("v_sub_u32 v%d, 0, v%d" % (vT0, vKV + 64))
    sumu(vT0, vKV, 64, init=vT0)
    wave_sumu(vT0, vT3)
    A.nop(1)
    A("v_readfirstlane_b32 s68, v%d" % vT0)
    A("s_cmp_eq_u32 s68, 0")
    A("s_cbranch_scc1 K_B3W")
    A("s_waitcnt lgkmcnt(0)")
    A.label("K_KVRETRY")
    kv_loads()
    spin_tail("K_KVCHK", sCnt)
    A.label("K_B3W")
    A("s_waitcnt lgkmcnt(0)")
    A.label("K_B3")
    A("s_barrier")
    stamp(6)
    A("v_and_b32 v%d, 7, v%d" % (vT0, vL))
    A("v_lshlrev_b32 v%d, 4, v%d" % (vT0, vT0))
    A("s_lshl_b32 s%d, s%d, 7" % (sa, sCG))
    A("v_lshl_add_u32 v%d, v%d, 10, v%d" % (vT1, vTok, vT0))
    A("buffer_load_dwordx4 %s, v%d, %s, s%d offen" % (vr(vXr, 4), vT1, sr(sX, 4), sa))
    A("buffer_load_dwordx4 %s, v%d, %s, s%d offen" % (vr(vWr, 4), vT0, sr(sGB, 4), sa))
    A("buffer_load_dwordx4 %s, v%d, %s, 0 offen" % (vr(vWR4, 4), vL16, sr(sGB, 4)))
    srd(sW, pWO, 0x80000)
    A("v_lshrrev_b32 v%d, 3, v%d" % (vT0, vL))
    A("v_bfe_u32 v%d, v%d, 4, 1" % (vT1, vL))
    A("v_lshlrev_b32 v%d, 2, v%d" % (vT1, vT1))
    A("v_and_b32 v%d, 7, v%d" % (vT2, vL))
    A("v_xor_b32 v%d, v%d, v%d" % (vT2, vT2, vT1))
    A("v_lshlrev_b32 v%d, 4, v%d" % (vT2, vT2))
    A("v_lshl_add_u32 v%d, v%d, 10, v%d" % (vWoA, vT0, vT2))
    A("s_lshl_b32 s%d, s%d, 16" % (sWoG, sWv))
    A("s_add_u32 s%d, s%d, s%d" % (sWoG, sWoG, sa))
    A("s_lshl_b32 s%d, s%d, 13" % (sWoL, sWv))
    A("s_add_u32 s%d, s%d, %d" % (sWoL, sWoL, L_WO))
    A("s_bfe_u32 s%d, s2, 0x30003" % sWoR)
    A("s_lshl_b32 s%d, s%d, 10" % (sWoR, sWoR))
    A("s_mov_b32 s%d, 8" % sWoN)
    A("s_cmp_lt_u32 s%d, 2" % sTq)
    A("s_cbranch_scc1 K_TOUCHED")
    A("s_lshl_b32 s%d, s%d, 1" % (sc, sC))
    A("s_add_u32 s%d, s%d, s%d" % (sc, sc, sTq))
    A("s_and_b32 s%d, s2, 7" % sa)
    A("s_lshr_b32 s%d, s2, 3" % sb)
    A("s_mul_i32 s%d, s%d, 44032" % (sb, sb))
    A("s_cmp_eq_u32 s%d, 5" % sc)
    A("s_cbranch_scc1 K_TOUCHED")
    A("s_cmp_eq_u32 s%d, 4" % sc)
    A("s_cbranch_scc1 K_TOUCH_D")
    A("s_cmp_eq_u32 s%d, 2" % sc)
    A("s_cselect_b32 s%d, s%d, s%d" % (sGA, pWG, pWU))
    A("s_cselect_b32 s%d, s%d, s%d" % (sGA + 1, pWG + 1, pWU + 1))
    A("s_mov_b32 s%d, %d" % (sGA + 2, 512 * 2752))
    A("s_mov_b32 s%d, 0x20000" % (sGA + 3))
    A("v_lshrrev_b32 v%d, 2, v%d" % (vT0, vL))
    A("v_mul_u32_u24 v%d, 2752, v%d" % (vT0, vT0))
    A("v_and_b32 v%d, 3, v%d" % (vT1, vL))
    A("v_lshl_add_u32 v%d, v%d, 6, v%d" % (vT2, vT1, vT0))
    A("v_lshlrev_b32 v%d, 6, v%d" % (vT1, vT1))
    A("v_min_u32 v%d, 92, v%d" % (vT1, vT1))
    A("v_add_u32 v%d, v%d, v%d" % (vT3, vT1, vT0))
    A("s_mul_i32 s%d, s%d, 352" % (sa, sa))
    A("s_add_u32 s%d, s%d, s%d" % (sa, sa, sb))
    A("buffer_load_dword v%d, v%d, %s, s%d offen" % (vU0, vT2, sr(sGA, 4), sa))
    A("buffer_load_dword v%d, v%d, %s, s%d offen offset:256" % (vU1, vT3, sr(sGA, 4), sa))
    A("s_branch K_TOUCHED")
    A.label("K_TOUCH_D")
    srd(sGA, pWD, 1376 * 1024)
    A("v_min_u32 v%d, 42, v%d" % (vT0, vL))
    A("v_lshlrev_b32 v%d, 10, v%d" % (vT0, vT0))
    A("s_lshl_b32 s%d, s%d, 7" % (sa, sa))
    A("s_add_u32 s%d, s%d, s%d" % (sa, sa, sb))
    A("buffer_load_dword v%d, v%d, %s, s%d offen" % (vU0, vT0, sr(sGA, 4), sa))
    A("buffer_load_dword v%d, v%d, %s, s%d offen offset:64" % (vU1, vT0, sr(sGA, 4), sa))
    A.label("K_TOUCHED")
    A("s_cmp_eq_u32 s%d, 0" % sB)
    A("s_cbranch_scc1 K_ATT_DONE")
    A("s_mov_b32 s%d, 1" % sChunk)
    A("s_add_u32 s%d, s%d, 1" % (sb, sTq))
    A("s_mov_b32 s%d, s%d" % (sa, sTq))
    A("s_cmp_eq_u32 s%d, 1" % sB)
    A("s_cselect_b32 s%d, 4, s%d" % (sb, sb))
    A("s_cselect_b32 s%d, 4, s%d" % (sa, sa))
    A("s_sub_u32 s%d, 8, s%d" % (sN, sb))
    A("s_branch K_CHUNK")
    A.label("K_ATT_DONE")
    stamp(7)
    A("s_lshl_b32 s%d, s%d, 2" % (sa, sB))
    A("s_add_u32 s%d, s%d, s%d" % (sa, sa, sTq))
    A("s_lshl_b32 s%d, s%d, 5" % (sa, sa))
    A("s_lshl_b32 s%d, s%d, 1" % (sb, sHP))
    A("s_add_u32 s%d, s%d, s%d" % (sa, sa, sb))
    A("s_add_u32 s%d, s%d, s%d" % (sa, sa, sC))
    A("s_lshl_b32 s%d, s%d, 10" % (sb, sa))
    A("s_add_u32 s%d, s%d, 0x%x" % (sb, sb, WS_O))
    A("s_lshl_b32 s%d, s%d, 6" % (sa, sa))
    A("s_add_u32 s%d, s%d, 0x%x" % (sa, sa, WS_FO))
    A.nop(2)
    A("v_rcp_f32 v%d, v%d" % (vT0, vO + 8))
    A.nop(1)
    for r in range(8):
        A("v_mul_f32 v%d, v%d, v%d" % (vO + r, vO + r, vT0))
    for i in range(4):
        A("v_cvt_pk_bf16_f32 v%d, v%d, v%d" % (vP + i, vO + 2 * i, vO + 2 * i + 1))
    A("buffer_store_dwordx4 %s, v%d, %s, s%d offen sc1" % (vr(vP, 4), vL16, sr(sWS, 4), sb))
    sumu(vP + 4, vP, 4)
    wave_sumu(vP + 4, vP + 5)
    A("v_mov_b32 v%d, v%d" % (vP + 6, vNon))
    A("v_mov_b32 v%d, v%d" % (vP + 7, vNon + 1))
    A("s_mov_b64 exec, 1")
    A("buffer_store_dwordx4 %s, v%d, %s, s%d offen sc1" % (vr(vP + 4, 4), vL16, sr(sWS, 4), sa))
    A("s_mov_b64 exec, -1")
    A("s_setprio 0")
    stamp(8)
    A.label("K_WOREST")
    wo_piece("K_WODONE")
    A("s_cmp_lg_u32 s%d, 0" % sWoN)
    A("s_cbranch_scc1 K_WOREST")
    A("s_cmp_eq_u32 s%d, 0" % sB)
    A("s_cbranch_scc1 K_WOW0")
    A("s_waitcnt vmcnt(2)")
    A("s_branch K_WOW1")
    A.label("K_WOW0")
    A("s_waitcnt vmcnt(0)")
    A.label("K_WOW1")
    A("s_barrier")
    A("s_lshl_b32 s%d, s%d, 1" % (sa, sG3))
    A("s_add_u32 s%d, s%d, s%d" % (sa, sa, sC))
    A("s_lshl_b32 s%d, s%d, 2" % (sa, sa))
    A("s_add_u32 s%d, s%d, s%d" % (sa, sa, sT))
    A("s_lshl_b32 s%d, s%d, 9" % (sd, sa))
    A("s_add_u32 s%d, s%d, 0x%x" % (sd, sd, WS_FO))
    A("s_lshl_b32 s%d, s%d, 13" % (sa, sa))
    A("s_add_u32 s%d, s%d, 0x%x" % (sa, sa, WS_O))
    A("s_add_u32 s%d, s%d, 4096" % (sb, sa))
    A("v_lshlrev_b32 v%d, 6, v%d" % (vT0, vL))
    A("v_mov_b32 v%d, 0" % vOG)
    A("s_mov_b64 exec, 0xff")
    A("buffer_load_dwordx4 %s, v%d, %s, s%d offen sc1" % (vr(vOG, 4), vT0, sr(sWS, 4), sd))
    A("s_mov_b64 exec, -1")
    A("v_bfe_u32 v%d, v%d, 2, 2" % (vT1, vL))
    A("v_lshl_add_u32 v%d, v%d, 3, v%d" % (vT2, vG, vT1))
    A("s_lshl_b32 s%d, s%d, 14" % (sc, sT))
    A("s_add_u32 s%d, s%d, %d" % (sc, sc, L_WO))
    A("v_lshl_add_u32 v%d, v%d, 7, s%d" % (vWOa, vT2, sc))
    A("v_lshrrev_b32 v%d, 1, v%d" % (vT1, vT1))
    A("v_lshl_add_u32 v%d, v%d, 6, v%d" % (vWOa, vT1, vWOa))
    A("v_bfe_u32 v%d, v%d, 4, 1" % (vT1, vL))
    A("v_lshl_add_u32 v%d, v%d, 5, v%d" % (vWOa, vT1, vWOa))
    A("v_and_b32 v%d, 3, v%d" % (vT1, vL))
    A("v_lshl_add_u32 v%d, v%d, 3, v%d" % (vWOa, vT1, vWOa))
    A("v_xor_b32 v%d, 64, v%d" % (vWOa + 1, vWOa))
    for s in range(8):
        for C in range(2):
            for half in range(2):
                A("ds_read_b64_tr_b16 %s, v%d offset:%d" % (vr(vAW + (s * 2 + C) * 4 + 2 * half, 2), vWOa + C, (16 * s + 4 * half) * 128))
    A("v_and_b32 v%d, 15, v%d" % (vT2, vN))
    A("v_xor_b32 v%d, v%d, v%d" % (vT2, vT2, vG))
    A("v_lshlrev_b32 v%d, 4, v%d" % (vT2, vT2))
    A("s_lshl_b32 s%d, s%d, 13" % (sc, sWv))
    A("s_add_u32 s%d, s%d, %d" % (sc, sc, L_RED))
    A("v_lshl_add_u32 v%d, v%d, 8, s%d" % (vT1, vN, sc))
    for u in range(8):
        A("v_xor_b32 v%d, %d, v%d" % (vRa + u, (2 * u) << 4, vT2))
        A("v_add_u32 v%d, v%d, v%d" % (vRa + u, vRa + u, vT1))
    A("v_lshrrev_b32 v%d, 3, v%d" % (vT3, vL))
    A("s_lshl_b32 s%d, s%d, 3" % (sc, sT))
    A("v_add_u32 v%d, s%d, v%d" % (vT3, sc, vT3))
    A("v_and_b32 v%d, 7, v%d" % (vT1, vL))
    A("v_lshlrev_b32 v%d, 1, v%d" % (vT1, vT1))
    A("v_and_b32 v%d, 15, v%d" % (vT2, vT3))
    A("v_xor_b32 v%d, v%d, v%d" % (vT1, vT1, vT2))
    A("v_lshlrev_b32 v%d, 4, v%d" % (vT1, vT1))
    A("s_lshl_b32 s%d, s%d, 15" % (sc, sC))
    A("s_add_u32 s%d, s%d, %d" % (sc, sc, L_RED))
    A("v_lshl_add_u32 v%d, v%d, 8, s%d" % (vT3, vT3, sc))
    A("v_add_u32 v%d, v%d, v%d" % (vT2, vT3, vT1))
    A("v_xor_b32 v%d, 16, v%d" % (vT1, vT1))
    A("v_add_u32 v%d, v%d, v%d" % (vT3, vT3, vT1))
    A("s_mov_b32 s%d, 0" % sCnt)
    A("s_mov_b64 exec, 0xff")
    A.label("K_POLLO")
    A("s_waitcnt vmcnt(0)")
    A("v_cmp_eq_u64 vcc, %s, %s" % (vr(vOG + 2, 2), vr(vNon, 2)))
    A("s_cmp_eq_u64 vcc, exec")
    A("s_cbranch_scc1 K_POLLO_OK")
    A("buffer_load_dwordx4 %s, v%d, %s, s%d offen sc1" % (vr(vOG, 4), vT0, sr(sWS, 4), sd))
    spin_tail("K_POLLO", sCnt)
    A.label("K_POLLO_OK")
    A("s_mov_b64 exec, -1")
    stamp(9)
    A.label("K_OLOAD")
    for s in range(8):
        A("buffer_load_dwordx4 %s, v%d, %s, s%d offen offset:%d sc1" % (vr(vOF + 4 * s, 4), vL16, sr(sWS, 4), sa if s < 4 else sb, (s & 3) * 1024))
    A("v_sub_u32 v%d, 0, v%d" % (vChk, vOG))
    A("s_waitcnt lgkmcnt(0)")
    for s in range(8):
        A("s_waitcnt vmcnt(%d)" % (7 - s))
        A("%s %s, %s, %s, %s" % (MFMA, vr(vH0, 16), vr(vAW + (s * 2) * 4, 4), vr(vOF + 4 * s, 4), "0" if s == 0 else vr(vH0, 16)))
        A("v_add3_u32 v%d, v%d, v%d, v%d" % (vChk, vOF + 4 * s, vOF + 4 * s + 1, vChk))
        A("%s %s, %s, %s, %s" % (MFMA, vr(vH1, 16), vr(vAW + (s * 2 + 1) * 4, 4), vr(vOF + 4 * s, 4), "0" if s == 0 else vr(vH1, 16)))
        A("v_add3_u32 v%d, v%d, v%d, v%d" % (vChk, vOF + 4 * s + 2, vOF + 4 * s + 3, vChk))
    wave_sumu(vChk, vT1)
    A.nop(1)
    A("v_readfirstlane_b32 s68, v%d" % vChk)
    A("s_cmp_eq_u32 s68, 0")
    A("s_cbranch_scc1 K_OOK")
    spin_tail("K_OLOAD", sCnt)
    A.label("K_OOK")
    A("s_barrier")
    stamp(10)
    A("v_and_b32 v%d, 7, v%d" % (vT0, vL))
    A("v_lshlrev_b32 v%d, 4, v%d" % (vT1, vT0))
    A("v_lshl_add_u32 v%d, v%d, 10, v%d" % (vT1, vTok, vT1))
    A("s_lshl_b32 s%d, s%d, 7" % (sd, sCG))
    A("s_add_u32 s%d, s%d, 0x%x" % (sa, sd, WS_H))
    A.nop(2)
    for u in range(8):
        A("ds_write_b128 v%d, %s" % (vRa + u, vr(vH0 + 4 * u, 4)))
    A("v_lshrrev_b32 v%d, 3, v%d" % (vPa, vL))
    A("v_lshlrev_b32 v%d, 4, v%d" % (vChk, vPa))
    A("v_lshl_add_u32 v%d, v%d, 10, v%d" % (vPa, vT0, vChk))
    A("s_lshl_b32 s%d, s%d, 13" % (sb, sG3))
    A("s_lshl_b32 s%d, s%d, 7" % (sc, sWv))
    A("s_add_u32 s%d, s%d, s%d" % (sb, sb, sc))
    A("s_add_u32 s%d, s%d, 0x%x" % (sb, sb, WS_P))
    A("s_lshl_b32 s%d, s%d, 10" % (sc, sCG))
    A("s_add_u32 s%d, s%d, s%d" % (sc, sc, sb))
    A("s_waitcnt lgkmcnt(0)")
    A("s_barrier")
    for q in range(4):
        A("ds_read_b128 %s, v%d offset:%d" % (vr(vOF + 8 * q, 4), vT2, q * 8192))
        A("ds_read_b128 %s, v%d offset:%d" % (vr(vOF + 8 * q + 4, 4), vT3, q * 8192))
    for i in range(4):
        A("v_lshlrev_b32 v%d, 16, v%d" % (vH0 + 2 * i, vXr + i))
        A("v_and_b32 v%d, 0xffff0000, v%d" % (vH0 + 2 * i + 1, vXr + i))
    A("s_waitcnt lgkmcnt(0)")
    for i in range(8):
        A("v_add_f32 v%d, v%d, v%d" % (vOF + i, vOF + i, vOF + 8 + i))
        A("v_add_f32 v%d, v%d, v%d" % (vOF + 16 + i, vOF + 16 + i, vOF + 24 + i))
    for i in range(8):
        A("v_add_f32 v%d, v%d, v%d" % (vOF + i, vOF + i, vOF + 16 + i))
    for i in range(4):
        A("v_cvt_pk_bf16_f32 v%d, v%d, v%d" % (vOF + 8 + i, vOF + 2 * i, vOF + 2 * i + 1))
    for i in range(4):
        A("v_lshlrev_b32 v%d, 16, v%d" % (vOF + 2 * i, vOF + 8 + i))
        A("v_and_b32 v%d, 0xffff0000, v%d" % (vOF + 2 * i + 1, vOF + 8 + i))
    for i in range(8):
        A("v_add_f32 v%d, v%d, v%d" % (vOF + i, vOF + i, vH0 + i))
    for i in range(4):
        A("v_cvt_pk_bf16_f32 v%d, v%d, v%d" % (vHp + i, vOF + 2 * i, vOF + 2 * i + 1))
    s1, s2, s3 = vOF + 16, vOF + 17, vOF + 18
    for i in range(4):
        for (acc, other) in ((s1, None), (s2, "self"), (s3, "w")):
            o = vOnes if other is None else (vHp + i if other == "self" else vWr + i)
            A("v_dot2_f32_bf16 v%d, v%d, v%d, %s" % (acc, vHp + i, o, "0" if i == 0 else "v%d" % acc))
    sumu(s3 + 1, vHp, 4)
    A("buffer_store_dwordx4 %s, v%d, %s, s%d offen sc1" % (vr(vHp, 4), vT1, sr(sWS, 4), sa))
    def red8(regs):
        for dpp in ("quad_perm:[1,0,3,2]", "quad_perm:[2,3,0,1]", "row_half_mirror"):
            for acc in regs:
                A("v_add_f32_dpp v%d, v%d, v%d %s row_mask:0xf bank_mask:0xf" % (acc, acc, acc, dpp))
    for dpp in ("quad_perm:[1,0,3,2]", "quad_perm:[2,3,0,1]", "row_half_mirror"):
        for acc in (s1, s2, s3):
            A("v_add_f32_dpp v%d, v%d, v%d %s row_mask:0xf bank_mask:0xf" % (acc, acc, acc, dpp))
        A("v_add_u32_dpp v%d, v%d, v%d %s row_mask:0xf bank_mask:0xf" % (s3 + 1, s3 + 1, s3 + 1, dpp))
    for acc in (s1, s2, s3, s3 + 1):
        A("v_min_u32 v%d, -2, v%d" % (acc, acc))
    A("s_mov_b32 exec_lo, 0x01010101")
    A("s_mov_b32 exec_hi, 0x01010101")
    A("buffer_store_dwordx4 %s, v%d, %s, s%d offen sc1" % (vr(s1, 4), vChk, sr(sWS, 4), sc))
    A("s_mov_b64 exec, -1")
    for i in range(3):
        A("v_mov_b32 v%d, v%d" % (vS + i, s1 + i))
    A("s_lshl_b32 s%d, 0x01010101, s%d" % (sMaskV, sCG))
    A("s_not_b32 s%d, s%d" % (sMaskV, sMaskV))
    A("s_mov_b32 s%d, s%d" % (sMaskV + 1, sMaskV))
    stamp(11)
    srd(sW, pOUT, 0x200000)
    for i in range(4):
        A("v_dot2_f32_bf16 v%d, v%d, v%d, %s" % (vW1, vWR4 + i, vOnes, "0" if i == 0 else "v%d" % vW1))
    A.nop(3)
    for dpp in ("quad_perm:[1,0,3,2]", "quad_perm:[2,3,0,1]", "row_half_mirror", "row_mirror"):
        A("v_add_f32_dpp v%d, v%d, v%d %s row_mask:0xf bank_mask:0xf" % (vW1, vW1, vW1, dpp))
        A.nop(2)
    for sw in ("v_permlane16_swap_b32", "v_permlane32_swap_b32"):
        A("v_mov_b32 v%d, v%d" % (vT0, vW1))
        A.nop(2)
        A("%s v%d, v%d" % (sw, vW1, vT0))
        A.nop(1)
        A("v_add_f32 v%d, v%d, v%d" % (vW1, vW1, vT0))
    A("s_cmp_eq_u32 s%d, 0" % sRole)
    A("s_cbranch_scc1 K_NOFA")
    for i in range(24):
        A("v_mov_b32 v%d, v%d" % (vBF + i, vOnes))
    A.label("K_NOFA")
    for i in range(4):
        A("v_lshlrev_b32 v%d, 16, v%d" % (vX + 2 * i, vHp + i))
        A("v_and_b32 v%d, 0xffff0000, v%d" % (vX + 2 * i + 1, vHp + i))
    A("v_sub_u32 v%d, 2047, v%d" % (vT0, vTok))
    A("s_lshl_b32 s68, s%d, 3" % sWv)
    A("s_add_u32 s68, s68, %d" % L_TOP)
    A("v_mov_b32 v%d, s68" % vT3)
    A("s_mov_b32 s%d, 0xfffff800" % sI2)
    A("v_mov_b32 v%d, 0" % vK2)
    A("s_mov_b32 s%d, 0" % sCnt)
    A("s_mov_b64 exec, %s" % sr(sMaskV, 2))
    A.label("K_POLL1")
    A("buffer_load_dwordx4 %s, v%d, %s, s%d offen sc1" % (vr(vS, 4), vPa, sr(sWS, 4), sb))
    A("s_waitcnt vmcnt(0)")
    maxu(vT2, vS, 4)
    A("v_cmp_eq_u32 vcc, -1, v%d" % vT2)
    A("s_cmp_eq_u64 vcc, 0")
    A("s_cbranch_scc1 K_POLL1_OK")
    spin_tail("K_POLL1", sCnt)
    A.label("K_POLL1_OK")
    A("s_mov_b64 exec, -1")
    stamp(12)
    red8((vS, vS + 1, vS + 2))
    ln_stats(vS, vS + 1)
    A("v_fma_f32 v%d, -v%d, v%d, v%d" % (vS + 2, vS, vW1, vS + 2))
    A("v_mul_f32 v%d, v%d, v%d" % (vS + 2, vS + 2, vS + 1))
    A("v_ashrrev_i32 v%d, 31, v%d" % (vK1, vS + 2))
    A("v_or_b32 v%d, 0x80000000, v%d" % (vK1, vK1))
    A("v_xor_b32 v%d, v%d, v%d" % (vK1, vK1, vS + 2))
    A("v_and_or_b32 v%d, v%d, s%d, v%d" % (vK1, vK1, sI2, vT0))
    def merge(p1=vP1, p2=vP2):
        A("v_max_u32 v%d, v%d, v%d" % (vK2, vK2, p2))
        A("v_med3_u32 v%d, v%d, v%d, v%d" % (vK2, vK1, p1, vK2))
        A("v_max_u32 v%d, v%d, v%d" % (vK1, vK1, p1))
    def merge_dpp(dpp):
        A.nop(2)
        A("v_mov_b32_dpp v%d, v%d %s row_mask:0xf bank_mask:0xf" % (vP1, vK1, dpp))
        A("v_mov_b32_dpp v%d, v%d %s row_mask:0xf bank_mask:0xf" % (vP2, vK2, dpp))
        merge()
    def merge_swap(sw):
        A("v_mov_b32 v%d, v%d" % (vP1, vK1))
        A("v_mov_b32 v%d, v%d" % (vP2, vK2))
        A.nop(2)
        A("%s v%d, v%d" % (sw, vK1, vP1))
        A("%s v%d, v%d" % (sw, vK2, vP2))
        A.nop(1)
        merge()
    merge_dpp("row_ror:8")
    merge_swap("v_permlane16_swap_b32")
    merge_swap("v_permlane32_swap_b32")
    A("ds_write_b64 v%d, %s" % (vT3, vr(vK1, 2)))
    A("s_waitcnt lgkmcnt(0)")
    A("s_barrier")
    A("s_cmp_eq_u32 s%d, 0" % sWv)
    A("s_cbranch_scc1 K_W0")
    A("s_cmp_eq_u32 s%d, 0" % sC)
    A("s_cbranch_scc1 K_STG_DONE")
    A("s_cmp_eq_u32 s%d, 0" % sRole)
    A("s_cbranch_scc1 K_STG_DONE")
    A("s_mov_b32 s%d, s%d" % (sc, sT))
    A("v_lshrrev_b32 v%d, 1, v%d" % (vT0, vL))
    A("v_and_b32 v%d, 1, v%d" % (vT2, vL))
    A("v_lshlrev_b32 v%d, 4, v%d" % (vT2, vT2))
    A("s_lshl_b32 s%d, s%d, 5" % (sa, sJ))
    A("s_cmp_eq_u32 s%d, 1" % sRole)
    A("s_cbranch_scc0 K_FFN_D")
    srd(sGA, pWG, 512 * 2752)
    srd(sGB, pWU, 512 * 2752)
    A("v_mul_u32_u24 v%d, 2752, v%d" % (vT0, vT0))
    A("v_add_u32 v%d, v%d, v%d" % (vT0, vT0, vT2))
    A("s_mul_i32 s%d, s%d, %d" % (sb, sc, 128 * 2752))
    A("s_add_u32 s%d, s%d, s%d" % (sa, sa, sb))
    A("s_lshl_b32 s%d, s%d, 12" % (sb, sc))
    for q in range(4):
        A("s_add_u32 s%d, s%d, %d" % (sc, sb, L_F + q * 1024))
        A("s_mov_b32 m0, s%d" % sc)
        A("s_add_u32 s%d, s%d, %d" % (sc, sb, L_FU + q * 1024))
        A("buffer_load_dwordx4 v%d, %s, s%d offen lds" % (vT0, sr(sGA, 4), sa))
        A("s_mov_b32 m0, s%d" % sc)
        A("s_nop 0")
        A("buffer_load_dwordx4 v%d, %s, s%d offen lds" % (vT0, sr(sGB, 4), sa))
        A("s_add_u32 s%d, s%d, %d" % (sa, sa, 32 * 2752))
    A("s_branch K_STG_DONE")
    A.label("K_FFN_D")
    srd(sGA, pWD, 1376 * 1024)
    A("v_lshl_add_u32 v%d, v%d, 10, v%d" % (vT0, vT0, vT2))
    A("s_lshl_b32 s%d, s%d, 15" % (sb, sc))
    A("s_add_u32 s%d, s%d, s%d" % (sa, sa, sb))
    A("s_lshl_b32 s%d, s%d, 10" % (sb, sc))
    A("s_add_u32 s%d, s%d, %d" % (sb, sb, L_F))
    A.label("K_FFN_DL")
    A("s_mov_b32 m0, s%d" % sb)
    A("s_add_u32 s%d, s%d, 4096" % (sb, sb))
    A("buffer_load_dwordx4 v%d, %s, s%d offen lds" % (vT0, sr(sGA, 4), sa))
    A("s_add_u32 s%d, s%d, 0x20000" % (sa, sa))
    A("s_cmp_lt_u32 s%d, %d" % (sb, L_F + 43 * 1024))
    A("s_cbranch_scc1 K_FFN_DL")
    A.label("K_STG_DONE")
    A("s_waitcnt vmcnt(0)")
    A("s_branch K_L2WAIT")
    A.label("K_W0")
    A("v_and_b32 v%d, 7, v%d" % (vT2, vL))
    A("v_lshlrev_b32 v%d, 3, v%d" % (vT2, vT2))
    A("v_add_u32 v%d, %d, v%d" % (vT2, L_TOP, vT2))
    A("ds_read_b64 %s, v%d" % (vr(vK1, 2), vT2))
    A("v_lshlrev_b32 v%d, 6, v%d" % (vT2, vN))
    A("s_mov_b32 s%d, 0x%x" % (sa, WS_E))
    A("s_lshl_b32 s%d, s%d, 6" % (sc, sG3))
    A("s_add_u32 s%d, s%d, s%d" % (sc, sc, sa))
    A("s_and_b32 s68, s%d, 7" % sG3)
    A("s_cmp_eq_u32 s68, s%d" % sCG)
    A("s_cbranch_scc0 K_NOPUB2")
    A("s_waitcnt lgkmcnt(0)")
    for dpp in ("quad_perm:[1,0,3,2]", "quad_perm:[2,3,0,1]", "row_half_mirror"):
        merge_dpp(dpp)
    A("v_mov_b32 v%d, v%d" % (vAcc, vK1))
    A("v_mov_b32 v%d, v%d" % (vAcc + 1, vK2))
    A("v_mov_b32 v%d, v%d" % (vAcc + 2, vNon))
    A("v_mov_b32 v%d, v%d" % (vAcc + 3, vNon + 1))
    A("s_mov_b64 exec, 1")
    A("buffer_store_dwordx4 %s, v%d, %s, s%d offen sc1" % (vr(vAcc, 4), vT2, sr(sWS, 4), sc))
    A("s_mov_b64 exec, -1")
    A.label("K_NOPUB2")
    A("s_mov_b32 s%d, 0" % sCnt)
    A("s_mov_b32 exec_hi, 0")
    A.label("K_POLL2")
    A("buffer_load_dwordx4 %s, v%d, %s, s%d offen sc1" % (vr(vAcc + 4, 4), vT2, sr(sWS, 4), sa))
    A("s_waitcnt vmcnt(0)")
    A("v_cmp_eq_u64 vcc, %s, %s" % (vr(vAcc + 6, 2), vr(vNon, 2)))
    A("s_cmp_eq_u64 vcc, exec")
    A("s_cbranch_scc1 K_POLL2_OK")
    spin_tail("K_POLL2", sCnt)
    A.label("K_POLL2_OK")
    A("s_mov_b64 exec, -1")
    A("s_waitcnt lgkmcnt(0)")
    A("v_mov_b32 v%d, v%d" % (vK1, vAcc + 4))
    A("v_mov_b32 v%d, v%d" % (vK2, vAcc + 5))
    for dpp in ("quad_perm:[1,0,3,2]", "quad_perm:[2,3,0,1]", "row_half_mirror", "row_mirror"):
        merge_dpp(dpp)
    merge_swap("v_permlane16_swap_b32")
    A("s_mov_b64 exec, 1")
    A("ds_write_b64 v%d, %s offset:64" % (vT3, vr(vK1, 2)))
    A("s_mov_b64 exec, -1")
    A("s_waitcnt lgkmcnt(0)")
    A.label("K_L2WAIT")
    for i in range(8):
        A("v_sub_f32 v%d, v%d, v%d" % (vX + 8 + i, vX + i, vS))
        A("v_fmac_f32 v%d, v%d, v%d" % (vX + i, vX + 8 + i, vS + 1))
    for i in range(4):
        A("v_cvt_pk_bf16_f32 v%d, v%d, v%d" % (vHp + i, vX + 2 * i, vX + 2 * i + 1))
    A("v_mov_b32 v%d, %d" % (vT3, L_TOP + 64))
    A("v_mov_b32 v%d, 0" % (vSel + 1))
    A("s_barrier")
    A("ds_read_b64 %s, v%d" % (vr(vK1, 2), vT3))
    A("s_waitcnt lgkmcnt(0)")
    A("v_readfirstlane_b32 s%d, v%d" % (sI1, vK1))
    A("v_readfirstlane_b32 s%d, v%d" % (sI2, vK2))
    A("s_and_b32 s%d, s%d, 0x7ff" % (sI1, sI1))
    A("s_sub_u32 s%d, 2047, s%d" % (sI1, sI1))
    A("s_and_b32 s%d, s%d, 0x7ff" % (sI2, sI2))
    A("s_sub_u32 s%d, 2047, s%d" % (sI2, sI2))
    stamp(13)
    A("s_cmp_eq_u32 s%d, 0" % sRole)
    A("s_cbranch_scc1 K_OWN")
    A("s_lshr_b32 s%d, s%d, 2" % (sI, sJ))
    A("s_and_b32 s%d, s%d, 3" % (sN, sJ))
    A("s_cmp_eq_u32 s%d, 1" % sRole)
    A("s_cselect_b32 s%d, s%d, s%d" % (sI, sWv, sI))
    A("s_cselect_b32 s%d, 0, s%d" % (sN, sN))
    A("s_cbranch_scc1 K_SEL")
    A("s_cmp_eq_u32 s%d, 0" % sWv)
    A("s_cbranch_scc0 K_OWN")
    A.label("K_SEL")
    A("v_mov_b32 v%d, s%d" % (vT0, sI1))
    A("v_mov_b32 v%d, s%d" % (vT2, sI2))
    A("s_mov_b32 vcc_lo, 0xaaaaaaaa")
    A("s_mov_b32 vcc_hi, 0xaaaaaaaa")
    A("v_cndmask_b32 v%d, v%d, v%d, vcc" % (vPa, vT0, vT2))
    A("v_lshlrev_b32 v%d, 10, v%d" % (vPa, vPa))
    A("v_lshl_add_u32 v%d, v%d, 4, v%d" % (vPa, vG, vPa))
    A("s_lshl_b32 s%d, s%d, 7" % (sc, sI))
    A("s_add_u32 s%d, s%d, 0x%x" % (sc, sc, WS_H))
    def h_loads():
        A("s_mov_b32 exec_lo, 3")
        A("s_mov_b32 exec_hi, 3")
        for s in range(4):
            A("s_add_u32 s68, s%d, %d" % (sN, s))
            A("s_and_b32 s68, s68, 3")
            A("s_lshl_b32 s68, s68, 5")
            A("s_add_u32 s68, s68, s%d" % sc)
            A("buffer_load_dwordx4 %s, v%d, %s, s68 offen sc1" % (vr(vBF + 4 * s, 4), vPa, sr(sWS, 4)))
        A("s_mov_b64 exec, -1")
    h_loads()
    A("s_mov_b32 vcc_lo, 0xffff0000")
    A("s_mov_b32 vcc_hi, 0xffff0000")
    A("v_cndmask_b32 v%d, v%d, v%d, vcc" % (vT0, vT0, vT2))
    A("v_lshrrev_b32 v%d, 6, v%d" % (vT2, vT0))
    A("v_lshlrev_b32 v%d, 13, v%d" % (vT2, vT2))
    A("v_bfe_u32 v%d, v%d, 4, 2" % (vT3, vT0))
    A("v_lshl_add_u32 v%d, v%d, 8, v%d" % (vT2, vT3, vT2))
    A("v_bfe_u32 v%d, v%d, 2, 1" % (vT3, vT0))
    A("v_lshl_add_u32 v%d, v%d, 7, v%d" % (vT2, vT3, vT2))
    A("v_bfe_u32 v%d, v%d, 3, 1" % (vT3, vT0))
    A("v_lshl_add_u32 v%d, v%d, 6, v%d" % (vT2, vT3, vT2))
    A("v_and_b32 v%d, 3, v%d" % (vT3, vT0))
    A("v_lshl_add_u32 v%d, v%d, 4, v%d" % (vT2, vT3, vT2))
    A("v_and_b32 v%d, 7, v%d" % (vT3, vL))
    A("v_lshl_add_u32 v%d, v%d, 10, v%d" % (vT2, vT3, vT2))
    A("s_mov_b32 s68, 0x%x" % WS_P)
    A("buffer_load_dwordx4 %s, v%d, %s, s68 offen sc1" % (vr(vSs, 4), vT2, sr(sWS, 4)))
    A("v_and_b32 v%d, 14, v%d" % (vT2, vL))
    A("v_lshlrev_b32 v%d, 1, v%d" % (vT2, vT2))
    A("v_lshl_add_u32 v%d, v%d, 10, v%d" % (vSel + 1, vT0, vT2))
    def h_check(retry, ok):
        sumu(vT2, vBF, 16)
        A("s_add_u32 s%d, s%d, 16" % (sb, sI))
        A("v_readlane_b32 s68, v%d, s%d" % (vSs + 3, sI))
        A("v_readlane_b32 s69, v%d, s%d" % (vSs + 3, sb))
        A("v_readlane_b32 s%d, v%d, 0" % (sa, vT2))
        A("v_readlane_b32 s%d, v%d, 32" % (sb, vT2))
        A("s_add_u32 s%d, s%d, s%d" % (sa, sa, sb))
        A("s_min_u32 s%d, s%d, -2" % (sa, sa))
        A("s_xor_b32 s68, s68, s%d" % sa)
        A("v_readlane_b32 s%d, v%d, 1" % (sa, vT2))
        A("v_readlane_b32 s%d, v%d, 33" % (sb, vT2))
        A("s_add_u32 s%d, s%d, s%d" % (sa, sa, sb))
        A("s_min_u32 s%d, s%d, -2" % (sa, sa))
        A("s_xor_b32 s69, s69, s%d" % sa)
        A("s_or_b32 s68, s68, s69")
        A("s_cbranch_scc0 %s" % ok)
        h_loads()
        A("s_waitcnt vmcnt(0)")
        spin_tail(retry, sCnt)
    A.label("K_OWN")
    A("v_cmp_ne_u32 vcc, s%d, v%d" % (sI1, vTok))
    A("v_cmp_ne_u32 s[68:69], s%d, v%d" % (sI2, vTok))
    A("s_and_b64 exec, vcc, s[68:69]")
    A("buffer_store_dwordx4 %s, v%d, %s, s%d offen" % (vr(vHp, 4), vT1, sr(sW, 4), sd))
    A("s_mov_b64 exec, -1")
    A("s_cmp_eq_u32 s%d, 0" % sRole)
    A("s_cbranch_scc1 K_FIN")
    A("v_bfe_u32 v%d, v%d, 2, 2" % (vT0, vL))
    A("v_and_b32 v%d, 3, v%d" % (vT2, vL))
    A("s_cmp_eq_u32 s%d, 1" % sRole)
    A("s_cbranch_scc0 K_FA_D")
    A("v_lshl_add_u32 v%d, v%d, 3, v%d" % (vT0, vG, vT0))
    A("s_lshl_b32 s68, s%d, 11" % sWv)
    A("s_add_u32 s68, s68, %d" % L_F)
    A("v_lshl_add_u32 v%d, v%d, 5, s68" % (vT0, vT0))
    A("v_lshl_add_u32 v%d, v%d, 3, v%d" % (vT0, vT2, vT0))
    A("v_bfe_u32 v%d, v%d, 4, 1" % (vT2, vL))
    A("v_mul_u32_u24 v%d, %d, v%d" % (vT2, L_FU - L_F, vT2))
    A("v_add_u32 v%d, v%d, v%d" % (vT0, vT0, vT2))
    for s in range(4):
        for half in range(2):
            A("ds_read_b64_tr_b16 %s, v%d offset:%d" % (vr(vFA + 4 * s + 2 * half, 2), vT0, (16 * s + 4 * half) * 32))
    A("s_branch K_FA_DONE")
    A.label("K_FA_D")
    A("v_lshrrev_b32 v%d, 4, v%d" % (vT3, vL))
    A("v_lshl_add_u32 v%d, v%d, 3, v%d" % (vT0, vT3, vT0))
    A("s_lshl_b32 s68, s%d, 10" % sWv)
    A("s_add_u32 s68, s68, %d" % L_F)
    A("v_lshl_add_u32 v%d, v%d, 5, s68" % (vT0, vT0))
    A("v_lshl_add_u32 v%d, v%d, 3, v%d" % (vT0, vT2, vT0))
    for i in range(6):
        if i == 5:
            A("s_cmp_lt_u32 s%d, 3" % sWv)
            A("s_cbranch_scc0 K_FA_DONE")
        for half in range(2):
            A("ds_read_b64_tr_b16 %s, v%d offset:%d" % (vr(vFA + 4 * i + 2 * half, 2), vT0, i * 8192 + 4 * half * 32))
    A.label("K_FA_DONE")
    A("s_cmp_eq_u32 s%d, 1" % sRole)
    A("s_cbranch_scc0 K_DOWN")
    A("v_lshlrev_b32 v%d, 7, v%d" % (vT0, vN))
    A("v_lshl_add_u32 v%d, v%d, 4, v%d" % (vT0, vG, vT0))
    A("s_mul_i32 s%d, s%d, 384" % (sa, sWv))
    A("s_add_u32 s%d, s%d, %d" % (sa, sa, L_R2))
    A("v_add_u32 v%d, s%d, v%d" % (vT0, sa, vT0))
    A("s_mov_b32 s%d, 0" % sCnt)
    A("s_waitcnt vmcnt(1) lgkmcnt(0)")
    A.label("K_HCHK")
    for s in range(4):
        A("%s %s, %s, %s, %s" % (MFMA, vr(vAcc, 16), vr(vFA + 4 * s, 4), vr(vBF + 4 * s, 4), "0" if s == 0 else vr(vAcc, 16)))
    h_check("K_HCHK", "K_HOK")
    A.label("K_HOK")
    A("s_mov_b32 exec_lo, 7")
    A("s_mov_b32 exec_hi, 7")
    for a_ in range(4):
        A("ds_write_b128 v%d, %s offset:%d" % (vT0, vr(vAcc + 4 * a_, 4), a_ * 32))
    A("s_mov_b64 exec, -1")
    A("s_cmp_eq_u32 s%d, 0" % sWv)
    A("s_cbranch_scc1 K_GU_W0")
    A("s_waitcnt lgkmcnt(0)")
    A("s_barrier")
    A("s_branch K_FIN")
    A.label("K_GU_W0")
    red8((vSs, vSs + 1, vSs + 2))
    ln_stats(vSs, vSs + 1)
    A("v_bfe_u32 v%d, v%d, 4, 1" % (vT0, vL))
    A("v_and_b32 v%d, 15, v%d" % (vT2, vL))
    A("v_lshlrev_b32 v%d, 2, v%d" % (vT3, vT2))
    A("v_mul_u32_u24 v%d, 1536, v%d" % (vT2, vG))
    A("v_add_u32 v%d, v%d, v%d" % (vT3, vT3, vT2))
    A("v_add_u32 v%d, %d, v%d" % (vT3, L_R2, vT3))
    A("v_lshl_add_u32 v%d, v%d, 7, v%d" % (vT2, vT0, vT3))
    A("v_add_u32 v%d, 768, v%d" % (vP1, vT2))
    A("v_add_u32 v%d, 768, v%d" % (vP2, vT3))
    A("v_lshlrev_b32 v%d, 1, v%d" % (vT0, vL))
    A("s_lshl_b32 s%d, s%d, 6" % (sa, sJ))
    A("s_add_u32 s%d, s%d, 0x%x" % (sa, sa, WS_A))
    A("s_waitcnt lgkmcnt(0)")
    A("s_barrier")
    stamp(14)
    for hh, (ra, rb) in enumerate(((vT2, vT3), (vP1, vP2))):
        for w_ in range(2):
            A("ds_read2_b32 %s, v%d offset0:%d offset1:%d" % (vr(vX + 8 * hh + 4 * w_, 2), ra, w_ * 96, w_ * 96 + 16))
            A("ds_read2_b32 %s, v%d offset0:%d offset1:%d" % (vr(vX + 8 * hh + 4 * w_ + 2, 2), rb, w_ * 96 + 64, w_ * 96 + 80))
    A("s_waitcnt lgkmcnt(0)")
    for i in range(4):
        A("v_add_f32 v%d, v%d, v%d" % (vX + i, vX + i, vX + 4 + i))
        A("v_add_f32 v%d, v%d, v%d" % (vX + 8 + i, vX + 8 + i, vX + 12 + i))
    for i in range(4):
        A("v_add_f32 v%d, v%d, v%d" % (vX + i, vX + i, vX + 8 + i))
    for i in range(4):
        A("v_mov_b32 v%d, v%d" % (vX + 4 + i, vX + i))
    A.nop(1)
    for i in range(4):
        A("v_permlane32_swap_b32 v%d, v%d" % (vX + i, vX + 4 + i))
    for i in range(4):
        A("v_add_f32 v%d, v%d, v%d" % (vX + i, vX + i, vX + 4 + i))
    A("v_fma_f32 v%d, -v%d, v%d, v%d" % (vX, vSs, vX + 2, vX))
    A("v_fma_f32 v%d, -v%d, v%d, v%d" % (vX + 1, vSs, vX + 3, vX + 1))
    A("v_mul_f32 v%d, v%d, v%d" % (vX, vX, vSs + 1))
    A("v_mul_f32 v%d, v%d, v%d" % (vX + 1, vX + 1, vSs + 1))
    A("v_mul_f32 v%d, %s, v%d" % (vX + 2, f32(-LOG2E), vX))
    A("v_exp_f32 v%d, v%d" % (vX + 2, vX + 2))
    A("v_mul_f32 v%d, v%d, v%d" % (vX, vX, vX + 1))
    A("v_add_f32 v%d, 1.0, v%d" % (vX + 2, vX + 2))
    A("v_rcp_f32 v%d, v%d" % (vX + 2, vX + 2))
    A.nop(1)
    A("v_mul_f32 v%d, v%d, v%d" % (vX, vX, vX + 2))
    A.nop(2)
    A("v_mov_b32_dpp v%d, v%d quad_perm:[1,0,3,2] row_mask:0xf bank_mask:0xf" % (vX + 1, vX))
    A("v_cvt_pk_bf16_f32 v%d, v%d, v%d" % (vX + 2, vX, vX + 1))
    A("v_min_u32 v%d, -2, v%d" % (vX + 2, vX + 2))
    A("s_mov_b32 exec_lo, 0x55555555")
    A("s_mov_b32 exec_hi, 0")
    A("buffer_store_dword v%d, v%d, %s, s%d offen sc1" % (vX + 2, vT0, sr(sWS, 4), sa))
    A("s_mov_b64 exec, -1")
    A("s_branch K_FIN")
    A.label("K_DOWN")
    A("s_cmp_eq_u32 s%d, 0" % sWv)
    A("s_cbranch_scc0 K_D_POLL")
    A("s_mov_b32 s%d, 0" % sCnt)
    A("s_waitcnt vmcnt(0)")
    A.label("K_DH")
    h_check("K_DH", "K_DH_OK")
    A.label("K_DH_OK")
    A("v_lshlrev_b32 v%d, 5, v%d" % (vT0, vN))
    A("v_lshl_add_u32 v%d, v%d, 4, v%d" % (vT0, vG, vT0))
    A("v_add_u32 v%d, %d, v%d" % (vT0, L_TOP + 128, vT0))
    A("s_mov_b32 exec_lo, 3")
    A("s_mov_b32 exec_hi, 3")
    A("ds_write_b128 v%d, %s" % (vT0, vr(vBF, 4)))
    A("s_mov_b64 exec, -1")
    A("v_and_b32 v%d, 30, v%d" % (vT0, vL))
    A("v_lshlrev_b32 v%d, 1, v%d" % (vT0, vT0))
    A("v_add_u32 v%d, %d, v%d" % (vT0, L_TOP + 128, vT0))
    A("s_waitcnt lgkmcnt(0)")
    A("ds_read_b32 v%d, v%d" % (vSel, vT0))
    A("s_waitcnt lgkmcnt(0)")
    red8((vSs, vSs + 1, vSs + 2))
    ln_stats(vSs, vSs + 1)
    A("v_lshlrev_b32 v%d, 16, v%d" % (vX, vSel))
    A("v_and_b32 v%d, 0xffff0000, v%d" % (vSel, vSel))
    A("v_fma_f32 v%d, -v%d, v%d, v%d" % (vSs + 2, vSs, vW1, vSs + 2))
    A("v_mul_f32 v%d, v%d, v%d" % (vSs + 2, vSs + 2, vSs + 1))
    A("v_mul_f32 v%d, %s, v%d" % (vSs + 2, f32(-LOG2E), vSs + 2))
    A("v_exp_f32 v%d, v%d" % (vSs + 2, vSs + 2))
    A("s_mov_b32 vcc_lo, 0x55555555")
    A("s_mov_b32 vcc_hi, 0x55555555")
    A("v_cndmask_b32 v%d, v%d, v%d, vcc" % (vSel, vSel, vX))
    A("v_add_f32 v%d, 1.0, v%d" % (vSs + 2, vSs + 2))
    A("v_rcp_f32 v%d, v%d" % (vSs + 2, vSs + 2))
    A("v_sub_f32 v%d, v%d, v%d" % (vX + 1, vSel, vSs))
    A("v_fmac_f32 v%d, v%d, v%d" % (vSel, vX + 1, vSs + 1))
    A.label("K_D_POLL")
    A("v_and_b32 v%d, 1, v%d" % (vT0, vL))
    A("v_lshlrev_b32 v%d, 5, v%d" % (vT0, vT0))
    A("v_lshl_add_u32 v%d, v%d, 6, v%d" % (vT0, vG, vT0))
    A("v_bfe_u32 v%d, v%d, 4, 1" % (vT2, vL))
    A("v_lshl_add_u32 v%d, v%d, 4, v%d" % (vT0, vT2, vT0))
    A("v_lshrrev_b32 v%d, 4, v%d" % (vT2, vL))
    A("s_lshl_b32 s68, s%d, 7" % sWv)
    A("s_add_u32 s%d, s68, 0x%x" % (sa, WS_A))
    A("s_add_u32 s%d, s%d, 4096" % (sc, sa))
    A("v_and_b32 v%d, 15, v%d" % (vT3, vL))
    A("v_lshlrev_b32 v%d, 6, v%d" % (vT3, vT3))
    A("v_lshl_add_u32 v%d, v%d, 4, v%d" % (vT3, vT2, vT3))
    A("s_add_u32 s68, s68, %d" % L_R2)
    A("v_add_u32 v%d, s68, v%d" % (vT3, vT3))
    A("s_mov_b32 exec_lo, 0x00030003")
    A("s_mov_b32 exec_hi, 0x00030003")
    A("s_mov_b32 s%d, 0" % sCnt)
    A.label("K_POLLA")
    for i in range(5):
        if i < 4:
            A("buffer_load_dwordx4 %s, v%d, %s, s%d offen offset:%d sc1" % (vr(vBF + 4 * i, 4), vT0, sr(sWS, 4), sa, i * 1024))
        else:
            A("buffer_load_dwordx4 %s, v%d, %s, s%d offen sc1" % (vr(vBF + 4 * i, 4), vT0, sr(sWS, 4), sc))
    A("s_cmp_lt_u32 s%d, 3" % sWv)
    A("s_cbranch_scc0 K_POLLA5")
    A("buffer_load_dwordx4 %s, v%d, %s, s%d offen offset:1024 sc1" % (vr(vBF + 20, 4), vT0, sr(sWS, 4), sc))
    A.label("K_POLLA5")
    A("s_waitcnt vmcnt(0) lgkmcnt(0)")
    maxu(vT2, vBF, 24)
    A("v_cmp_eq_u32 vcc, -1, v%d" % vT2)
    A("s_cmp_eq_u64 vcc, 0")
    A("s_cbranch_scc1 K_POLLA_OK")
    spin_tail("K_POLLA", sCnt)
    A.label("K_POLLA_OK")
    A("s_mov_b64 exec, -1")
    stamp(14)
    for i in range(5):
        A("%s %s, %s, %s, %s" % (MFMA16, vr(vAcc, 4), vr(vFA + 4 * i, 4), vr(vBF + 4 * i, 4), "0" if i == 0 else vr(vAcc, 4)))
    A("s_cmp_lt_u32 s%d, 3" % sWv)
    A("s_cbranch_scc0 K_D5")
    A("%s %s, %s, %s, %s" % (MFMA16, vr(vAcc, 4), vr(vFA + 20, 4), vr(vBF + 20, 4), vr(vAcc, 4)))
    A.label("K_D5")
    A("v_lshlrev_b32 v%d, 2, v%d" % (vT0, vN))
    A("v_lshl_add_u32 v%d, v%d, 9, v%d" % (vT0, vG, vT0))
    A("v_add_u32 v%d, %d, v%d" % (vT0, L_R2, vT0))
    A("s_mov_b32 exec_lo, 0x00030003")
    A("s_mov_b32 exec_hi, 0x00030003")
    A.nop(3)
    A("ds_write_b128 v%d, %s" % (vT3, vr(vAcc, 4)))
    A("s_mov_b64 exec, -1")
    A("s_waitcnt lgkmcnt(0)")
    A("s_barrier")
    A("s_cmp_eq_u32 s%d, 0" % sWv)
    A("s_cbranch_scc0 K_FIN")
    A("ds_read2_b32 %s, v%d offset0:0 offset1:32" % (vr(vX + 2, 2), vT0))
    A("ds_read2_b32 %s, v%d offset0:64 offset1:96" % (vr(vX + 4, 2), vT0))
    A("s_lshl_b32 s%d, s%d, 5" % (sa, sJ))
    A("s_waitcnt lgkmcnt(0)")
    A("v_add_f32 v%d, v%d, v%d" % (vX + 2, vX + 2, vX + 3))
    A("v_add_f32 v%d, v%d, v%d" % (vX + 4, vX + 4, vX + 5))
    A("v_add_f32 v%d, v%d, v%d" % (vX, vX + 2, vX + 4))
    A("v_mov_b32 v%d, v%d" % (vX + 2, vX))
    A.nop(2)
    A("v_permlane32_swap_b32 v%d, v%d" % (vX, vX + 2))
    A.nop(1)
    A("v_add_f32 v%d, v%d, v%d" % (vX, vX, vX + 2))
    A("v_fmac_f32 v%d, v%d, v%d" % (vSel, vX, vSs + 2))
    A.nop(2)
    A("v_mov_b32_dpp v%d, v%d quad_perm:[1,0,3,2] row_mask:0xf bank_mask:0xf" % (vX, vSel))
    A("v_cvt_pk_bf16_f32 v%d, v%d, v%d" % (vSel, vSel, vX))
    A("s_mov_b32 exec_lo, 0x55555555")
    A("s_mov_b32 exec_hi, 0")
    A("buffer_store_dword v%d, v%d, %s, s%d offen" % (vSel, vSel + 1, sr(sW, 4), sa))
    A("s_mov_b64 exec, -1")
    A.label("K_FIN")
    if STAMPS:
        A("s_waitcnt vmcnt(0)")
        stamp(15)
        A("s_waitcnt lgkmcnt(0)")
        A("s_lshl_b32 s%d, s2, 3" % sa)
        A("s_add_u32 s%d, s%d, s%d" % (sa, sa, sWv))
        A("s_mul_i32 s%d, s%d, %d" % (sa, sa, NSTAMP_SLOTS * 8))
        A("s_add_u32 s%d, s%d, 0x%x" % (sa, sa, WS_STAMP))
        A("v_mov_b32 v%d, 0" % vT0)
        A("s_mov_b64 exec, 1")
        for i in range(16):
            A("v_mov_b32 v%d, s%d" % (vT2, 70 + 2 * i))
            A("v_mov_b32 v%d, s%d" % (vT3, 71 + 2 * i))
            A("buffer_store_dwordx2 %s, v%d, %s, s%d offen offset:%d" % (vr(vT2, 2), vT0, sr(sWS, 4), sa, i * 8))
            A.nop(2)
    A.label("K_END")
    A("s_endpgm")
    return A.text(), 256, LDS

HEADER = open("sequential_preLN__sliding_block__moe_arch_mod__prompt.s.ref").read().split("; Override launch")[0]

def build(opt):
    k, nv, lds = gen(opt)
    s = HEADER
    s += "; @launch grid=(256,1,1) block=(512,1,1) lds=%d\n" % lds
    s += '.amdgcn_target "amdgcn-amd-amdhsa--gfx950"\n.text\n'
    s += ".globl %s\n.p2align 8\n.type %s,@function\n%s:\n%s" % (KNAME, KNAME, KNAME, k)
    s += '.section .rodata,"a"\n'
    s += """.p2align 6
.amdhsa_kernel %s
  .amdhsa_next_free_vgpr %d
  .amdhsa_next_free_sgpr 102
  .amdhsa_accum_offset %d
  .amdhsa_group_segment_fixed_size 0
  .amdhsa_kernarg_size 88
  .amdhsa_user_sgpr_count 2
  .amdhsa_user_sgpr_kernarg_segment_ptr 1
  .amdhsa_system_sgpr_workgroup_id_x 1
.end_amdhsa_kernel
""" % (KNAME, nv, (nv + 3) // 4 * 4)
    return s

if __name__ == "__main__":
    out = sys.argv[1] if len(sys.argv) > 1 else "k.s"
    opt = {}
    for a in sys.argv[2:]:
        k, v = a.split("=")
        opt[k] = int(v)
    open(out, "w").write(build(opt))
```

```python
import sys, struct

def f32(x):
    return "0x%08x" % struct.unpack("<I", struct.pack("<f", x))[0]

WS_KV = 0x000000
WS_O = 0x400000
WS_H = 0x600000
WS_P = 0x800000
WS_A = 0x840000
WS_LS = 0x850000
WS_E = 0x860000
WS_FKV = 0x880000
WS_FO = 0x8a0000
WS_SIZE = 0x10000000
WS_STAMP = 0x8000000
NSTAMP_SLOTS = 24

LOG2E = 1.4426950408889634
BIG = 1.0e30
SPIN_LIMIT = 100000
MFMA = "v_mfma_f32_32x32x16_bf16"
MFMA16 = "v_mfma_f32_16x16x32_bf16"
MFMA4 = "v_mfma_f32_4x4x4_16b_bf16"
KNAME = "sequential_preLN__sliding_block__moe_arch_mod__prompt_kernel"

class Asm:
    def __init__(self):
        self.L = []
    def __call__(self, s):
        self.L.append("    " + s.strip())
    def label(self, s):
        self.L.append(s + ":")
    def nop(self, n):
        while n > 0:
            k = min(n, 16)
            self.L.append("    s_nop %d" % (k - 1))
            n -= k
    def text(self):
        return "\n".join(self.L) + "\n"

def vr(b, n):
    assert b % 2 == 0, "unaligned vgpr tuple %d" % b
    return "v[%d:%d]" % (b, b + n - 1)
def sr(b, n):
    return "s[%d:%d]" % (b, b + n - 1)

def gen(opt):
    A = Asm()
    STAMPS = opt.get("stamps", 0)
    def stamp(i):
        if STAMPS:
            A("s_memrealtime %s" % sr(70 + 2 * i, 2))
    def srd(d, base, size):
        A("s_mov_b32 s%d, s%d" % (d, base))
        A("s_mov_b32 s%d, s%d" % (d + 1, base + 1))
        A("s_mov_b32 s%d, 0x%x" % (d + 2, size))
        A("s_mov_b32 s%d, 0x20000" % (d + 3))
    def cap(fn):
        keep = A.L; A.L = []; fn(); out = A.L; A.L = keep; return out
    pX, pW, pWO, pBX, pWR, pWG, pWU, pWD, pOUT, pDBG, pWS = 8, 10, 12, 14, 16, 18, 20, 22, 24, 26, 28
    sCG, sG3 = 14, 15
    sX, sW, sWS, sGA, sGB = 32, 36, 40, 44, 48
    sWv, sT, sC, sB, sHP, sTq, sWGL, sRole, sJ = 52, 53, 54, 55, 56, 57, 58, 59, 60
    sa, sb, sc, sd = 61, 62, 63, 64
    sKC, sXo, sWo, sSlotX, sDW = 3, 4, 5, 6, 7
    sXbase, sWbase = 30, 31
    sRd, sPub, sS = 65, 66, 67
    sN, sI, sChunk, sCnt = 3, 4, 5, 6
    sMaskV = 30
    sKu, sKm = 68, 69
    sI1, sI2 = 65, 66
    sWoG, sWoL, sWoR, sWoN = 65, 66, 67, 7
    vWoA = 41
    XS, WSL = 16384, 12288
    NSL = 3
    SLOT = XS + WSL
    L_WO = 86016
    L_K = 0
    L_V = 24576
    L_Q = 49152
    L_VX = 57344
    L_STR = 151552
    L_STM = 152064
    L_CS = 152576
    L_PAY = 153088
    L_NON = 153152
    L_CSP = 153600
    L_TOP = 155648
    L_R2 = 155904
    L_RED = L_WO
    L_F = 0
    L_FU = L_F + 16384 + 128
    LDS = 163840
    vL, vN, vG, vKap, vL16, vOnes, vTok = 1, 2, 3, 4, 5, 6, 7
    vT0, vT1, vT2, vT3 = 8, 9, 10, 11
    vNon = 12
    vXr = 14
    vWr = 18
    vFA = 200
    vWR4 = 248
    vW1 = 252
    vKb, vVb, vIG = 253, 254, 255
    vXg = 22
    vWg = 14
    vXa, vXc, vWa, vWc = 26, 30, 34, 38
    vU0, vU1 = 42, 43
    vOne2 = 44
    vB = 48
    vAcV, vAc0, vAc1 = 128, 144, 160
    vRow = 176
    vLSa, vLSb, vLSc = 184, 185, 186
    vCq, vCk, vCv = 188, 192, 196
    vGc = 112
    vE = 48
    vPk = 80
    vQ = 22
    vKad, vVad, vM, vMold = 26, 27, 30, 31
    vKa, vKbf = 32, 36
    vSa, vSb = 44, 60
    vCn = 76
    vP = 96
    vKV = 104
    vCm = 200
    vVa, vVbf = 216, 224
    vO = 232
    vWOa = 26
    vRa = 28
    vOF = 44
    vH0, vH1 = 76, 92
    vAW = 108
    vChk = 40
    vOG = 172
    vHp = 36
    vPa = 41
    vS = 44
    vK1, vK2, vP1, vP2 = 58, 59, 60, 61
    vX = 64
    vBF = 80
    vAcc = 104
    vSs = 120
    vSel = 124

    def spin_tail(lab, cnt):
        A("s_add_u32 s%d, s%d, 1" % (cnt, cnt))
        A("s_cmp_lt_u32 s%d, %d" % (cnt, SPIN_LIMIT))
        A("s_cbranch_scc1 %s" % lab)
    def maxu(dst, base, n):
        A("v_max_u32 v%d, v%d, v%d" % (dst, base, base + 1))
        for i in range(2, n, 2):
            A("v_max3_u32 v%d, v%d, v%d, v%d" % (dst, base + i, base + i + 1, dst))
    def sumu(dst, base, n, init=None):
        regs = [base + i for i in range(n)]
        if init is None:
            A("v_add_u32 v%d, v%d, v%d" % (dst, regs[0], regs[1])); regs = regs[2:]
        else:
            A("v_add3_u32 v%d, v%d, v%d, v%d" % (dst, regs[0], regs[1], init)); regs = regs[2:]
        for i in range(0, len(regs), 2):
            A("v_add3_u32 v%d, v%d, v%d, v%d" % (dst, regs[i], regs[i + 1], dst))
    def wave_sumu(v, tmp):
        for dpp in ("quad_perm:[1,0,3,2]", "quad_perm:[2,3,0,1]", "row_half_mirror", "row_mirror"):
            A.nop(2)
            A("v_add_u32_dpp v%d, v%d, v%d %s row_mask:0xf bank_mask:0xf" % (v, v, v, dpp))
        for sw in ("v_permlane16_swap_b32", "v_permlane32_swap_b32"):
            A("v_mov_b32 v%d, v%d" % (tmp, v))
            A.nop(2)
            A("%s v%d, v%d" % (sw, v, tmp))
            A.nop(1)
            A("v_add_u32 v%d, v%d, v%d" % (v, v, tmp))
    def ln_stats(s1, s2):
        A("v_mul_f32 v%d, %s, v%d" % (s1, f32(1.0 / 512), s1))
        A("v_mul_f32 v%d, %s, v%d" % (s2, f32(1.0 / 512), s2))
        A("v_fma_f32 v%d, -v%d, v%d, v%d" % (s2, s1, s1, s2))
        A("v_max_f32 v%d, 0, v%d" % (s2, s2))
        A("v_add_f32 v%d, %s, v%d" % (s2, f32(1e-5), s2))
        A("v_rsq_f32 v%d, v%d" % (s2, s2))

    A("s_cmp_ge_u32 s2, 256")
    A("s_cbranch_scc1 K_END")
    stamp(0)
    A("s_load_dwordx16 s[8:23], s[0:1], 0")
    A("s_load_dwordx4 s[24:27], s[0:1], 64")
    A("s_load_dwordx2 s[28:29], s[0:1], 80")
    A("v_and_b32 v%d, 63, v0" % vL)
    A("v_lshrrev_b32 v%d, 6, v0" % vT0)
    A("v_lshlrev_b32 v%d, 4, v%d" % (vL16, vL))
    A("v_readfirstlane_b32 s%d, v%d" % (sWv, vT0))
    A("s_and_b32 s%d, s2, 7" % sa)
    A("s_lshr_b32 s%d, s2, 3" % sb)
    A("s_lshr_b32 s%d, s%d, 1" % (sB, sa))
    A("s_lshr_b32 s%d, s%d, 3" % (sc, sb))
    A("s_lshl_b32 s%d, s%d, 2" % (sd, sc))
    A("s_add_u32 s%d, s%d, s%d" % (sB, sB, sd))
    A("s_and_b32 s%d, s%d, 1" % (sHP, sa))
    A("s_lshl_b32 s%d, s%d, 3" % (sHP, sHP))
    A("s_and_b32 s%d, s%d, 7" % (sKC, sb))
    A("s_add_u32 s%d, s%d, s%d" % (sHP, sHP, sKC))
    A("s_lshl_b32 s%d, s%d, 1" % (sc, sc))
    A("s_add_u32 s%d, s%d, s%d" % (sKC, sKC, sc))
    A("s_and_b32 s%d, s%d, 7" % (sKC, sKC))
    A("s_and_b32 s%d, s%d, 3" % (sT, sWv))
    A("s_lshr_b32 s%d, s%d, 2" % (sC, sWv))
    A("s_lshl_b32 s%d, s%d, 4" % (sWGL, sB))
    A("s_add_u32 s%d, s%d, s%d" % (sWGL, sWGL, sHP))
    A("s_cmp_eq_u32 s%d, 0" % sC)
    A("s_cbranch_scc0 K_PRO_LD")
    A("s_lshl_b32 s%d, s%d, 2" % (sa, sWGL))
    A("s_add_u32 s%d, s%d, s%d" % (sa, sa, sT))
    A("s_lshl_b32 s%d, s%d, 11" % (sb, sa))
    for i in range(4):
        A("v_mov_b32 v%d, -1" % (vT0 + i))
    A("s_waitcnt lgkmcnt(0)")
    srd(sX, pX, 0x200000)
    A("buffer_load_dwordx4 %s, v%d, %s, s%d offen" % (vr(vRow, 4), vL16, sr(sX, 4), sb))
    A("buffer_load_dwordx4 %s, v%d, %s, s%d offen offset:1024" % (vr(vRow + 4, 4), vL16, sr(sX, 4), sb))
    srd(sWS, pWS, WS_SIZE)
    A("s_or_b32 s%d, s2, s%d" % (sa, sWv))
    A("s_cmp_lg_u32 s%d, 0" % sa)
    A("s_cbranch_scc1 K_NONONCE")
    srd(sGA, pDBG, 256)
    A("s_memrealtime s[68:69]")
    A("s_waitcnt lgkmcnt(0)")
    A("s_or_b32 s69, s69, 0x80000000")
    A("v_mov_b32 v%d, s68" % vNon)
    A("v_mov_b32 v%d, s69" % (vNon + 1))
    A("s_mov_b64 exec, 1")
    A("buffer_store_dwordx2 %s, v%d, %s, 0 offen sc1" % (vr(vNon, 2), vL16, sr(sGA, 4)))
    A("s_mov_b64 exec, -1")
    A.label("K_NONONCE")
    def clr(soff, off=0):
        A("buffer_store_dwordx4 %s, v%d, %s, s%d offen offset:%d sc1" % (vr(vT0, 4), vL16, sr(sWS, 4), soff, off))
    A("s_cmp_lg_u32 s%d, 0" % sT)
    A("s_cbranch_scc1 K_NOCLRP")
    A("s_lshl_b32 s%d, s%d, 10" % (sa, sWGL))
    A("s_add_u32 s%d, s%d, 0x%x" % (sa, sa, WS_P))
    clr(sa)
    A.label("K_NOCLRP")
    A("s_cmp_lg_u32 s2, 1")
    A("s_cbranch_scc1 K_PRO_DONE")
    A("s_lshl_b32 s%d, s%d, 11" % (sa, sT))
    A("s_add_u32 s%d, s%d, 0x%x" % (sa, sa, WS_A))
    clr(sa); clr(sa, 1024)
    A("s_branch K_PRO_DONE")
    A.label("K_PRO_LD")
    A("v_lshrrev_b32 v%d, 3, v%d" % (vT0, vL))
    A("v_lshrrev_b32 v%d, 1, v%d" % (vT1, vT0))
    A("v_and_b32 v%d, 7, v%d" % (vT2, vL))
    A("v_xor_b32 v%d, v%d, v%d" % (vT2, vT2, vT1))
    A("v_lshlrev_b32 v%d, 4, v%d" % (vT2, vT2))
    A("v_lshl_add_u32 v%d, v%d, 10, v%d" % (vXg, vT0, vT2))
    A("v_xor_b32 v%d, 64, v%d" % (vXg + 1, vXg))
    A("v_add_u32 v%d, %d, v%d" % (vXg + 1, 8192 - 1024, vXg + 1))
    A("v_add_u32 v%d, %d, v%d" % (vXg + 2, 2 * (8192 - 1024), vXg))
    A("v_add_u32 v%d, %d, v%d" % (vXg + 3, 2 * (8192 - 1024), vXg + 1))
    A("s_lshl_b32 s%d, s%d, 17" % (sXbase, sB))
    A("s_lshl_b32 s%d, s%d, 15" % (sa, sT))
    A("s_add_u32 s%d, s%d, s%d" % (sXbase, sXbase, sa))
    A("s_movk_i32 s%d, 0x1556" % sb)
    for q in range(3):
        src = vL
        if q:
            A("v_add_u32 v%d, %d, v%d" % (vT0, 64 * q, vL))
            src = vT0
        A("v_mul_u32_u24 v%d, s%d, v%d" % (vT1, sb, src))
        A("v_lshrrev_b32 v%d, 16, v%d" % (vT1, vT1))
        A("v_mul_u32_u24 v%d, 12, v%d" % (vT2, vT1))
        A("v_sub_u32 v%d, v%d, v%d" % (vT2, src, vT2))
        A("v_lshrrev_b32 v%d, 2, v%d" % (vT3, vT2))
        A("v_and_b32 v%d, 3, v%d" % (vT2, vT2))
        A("v_lshlrev_b32 v%d, 4, v%d" % (vT2, vT2))
        A("v_lshl_add_u32 v%d, v%d, 10, v%d" % (vT2, vT3, vT2))
        A("v_mul_u32_u24 v%d, 0xc00, v%d" % (vT1, vT1))
        A("v_add_u32 v%d, v%d, v%d" % (vWg + q, vT1, vT2))
        if q:
            A("v_subrev_u32 v%d, %d, v%d" % (vWg + q, 1024 * q, vWg + q))
    A("s_lshl_b32 s%d, s%d, 6" % (sWbase, sHP))
    A("s_mul_i32 s%d, s%d, 49152" % (sa, sT))
    A("s_add_u32 s%d, s%d, s%d" % (sWbase, sWbase, sa))
    A("s_lshl_b32 s%d, s%d, 12" % (sSlotX, sT))
    A("s_lshl_b32 s%d, s%d, 10" % (sDW, sT))
    A("s_sub_u32 s%d, %d, s%d" % (sDW, XS, sDW))
    A("s_waitcnt lgkmcnt(0)")
    srd(sX, pX, 0x200000)
    srd(sW, pW, 0x180000)
    stamp(1)

    def dma_stage():
        A("s_lshl_b32 s%d, s%d, 7" % (sXo, sKC))
        A("s_mov_b32 m0, s%d" % sSlotX)
        A("s_add_u32 s%d, s%d, s%d" % (sXo, sXo, sXbase))
        for i in range(4):
            A("buffer_load_dwordx4 v%d, %s, s%d offen offset:%d lds" % (vXg + i, sr(sX, 4), sXo, i * 1024))
            if i == 0:
                A("s_mul_i32 s%d, s%d, 196608" % (sWo, sKC))
                A("s_add_u32 s%d, s%d, s%d" % (sa, sSlotX, sDW))
            if i == 1:
                A("s_add_u32 s%d, s%d, s%d" % (sWo, sWo, sWbase))
                A("s_add_u32 s%d, s%d, 1" % (sKC, sKC))
            if i == 2:
                A("s_and_b32 s%d, s%d, 7" % (sKC, sKC))
                A("s_add_u32 s%d, s%d, %d" % (sSlotX, sSlotX, SLOT))
        A("s_mov_b32 m0, s%d" % sa)
        A("s_nop 0")
        for i in range(3):
            A("buffer_load_dwordx4 v%d, %s, s%d offen offset:%d lds" % (vWg + i, sr(sW, 4), sWo, i * 1024))
            if i == 0:
                A("s_cmp_ge_u32 s%d, %d" % (sSlotX, NSL * SLOT))
                A("s_cselect_b32 s%d, %d, 0" % (sa, NSL * SLOT))
                A("s_sub_u32 s%d, s%d, s%d" % (sSlotX, sSlotX, sa))
    def build_mask(first):
        for r in range(0, 16, 2):
            for k in range(2):
                jr = ((r + k) >> 3) * 16 + ((r + k) & 7)
                A("v_cmp_%s_i32 %s, %d, v%d" % ("gt" if first else "le", "vcc" if k == 0 else sr(sKu, 2), jr, vIG))
            A.nop(1)
            A("v_cndmask_b32 v%d, v%d, v%d, vcc" % (vCm + r, vU0, vU1))
            A("v_cndmask_b32 v%d, v%d, v%d, %s" % (vCm + r + 1, vU0, vU1, sr(sKu, 2)))
    def common_setup(loader, ta, tb, tc):
        t0, t1, t2, t3 = vE, vE + 1, vE + 2, vE + 3
        A("v_and_b32 v%d, 31, v%d" % (vN, vL))
        A("v_lshrrev_b32 v%d, 5, v%d" % (vG, vL))
        A("v_and_b32 v%d, 0x13, v%d" % (vKap, vN))
        A("v_and_b32 v%d, 4, v%d" % (t0, vN))
        A("v_lshl_or_b32 v%d, v%d, 1, v%d" % (vKap, t0, vKap))
        A("v_and_b32 v%d, 8, v%d" % (t0, vN))
        A("v_lshrrev_b32 v%d, 1, v%d" % (t0, t0))
        A("v_or_b32 v%d, v%d, v%d" % (vKap, vKap, t0))
        A("v_mov_b32 v%d, 0x3f803f80" % vOnes)
        A("s_lshr_b32 s%d, s2, 6" % ta)
        A("s_and_b32 s%d, s2, 7" % sCG)
        A("s_cmp_lt_u32 s%d, 3" % ta)
        A("s_cselect_b32 s%d, 0, 6" % tb)
        A("s_min_u32 s%d, s%d, 2" % (ta, ta))
        A("s_lshr_b32 s%d, s%d, 1" % (tc, sCG))
        A("s_add_u32 s%d, s%d, s%d" % (ta, ta, tc))
        A("s_add_u32 s%d, s%d, 1" % (ta, ta))
        A("s_and_b32 s%d, s%d, 3" % (ta, ta))
        A("s_add_u32 s%d, s%d, s%d" % (sCG, sCG, tb))
        A("s_and_b32 s%d, s%d, 7" % (sCG, sCG))
        A("s_bfe_u32 s%d, s2, 0x20004" % tb)
        A("s_lshl_b32 s%d, s%d, 2" % (tb, tb))
        A("s_add_u32 s%d, s%d, s%d" % (ta, ta, tb))
        A("s_lshl_b32 s%d, s%d, 1" % (sG3, ta))
        A("s_bfe_u32 s%d, s2, 0x10003" % tb)
        A("s_add_u32 s%d, s%d, s%d" % (sG3, sG3, tb))
        A("v_lshrrev_b32 v%d, 3, v%d" % (t0, vL))
        A("v_and_b32 v%d, 3, v%d" % (t1, t0))
        A("v_lshrrev_b32 v%d, 2, v%d" % (t0, t0))
        A("v_lshl_add_u32 v%d, v%d, 3, v%d" % (t1, t0, t1))
        A("s_lshr_b32 s%d, s%d, 1" % (ta, sT))
        A("s_lshl_b32 s%d, s%d, 4" % (ta, ta))
        A("s_and_b32 s%d, s%d, 1" % (tb, sT))
        A("s_lshl_b32 s%d, s%d, 2" % (tb, tb))
        A("s_add_u32 s%d, s%d, s%d" % (ta, ta, tb))
        A("s_lshl_b32 s%d, s%d, 6" % (tb, sG3))
        A("s_add_u32 s%d, s%d, s%d" % (ta, ta, tb))
        if loader:
            A("s_add_u32 s%d, s%d, 32" % (ta, ta))
        A("v_add_u32 v%d, s%d, v%d" % (vTok, ta, t1))
        A("s_and_b32 s%d, s2, 7" % ta)
        A("s_lshr_b32 s%d, s2, 3" % tb)
        A("s_mul_i32 s%d, s%d, 11" % (sJ, ta))
        A("s_add_u32 s%d, s%d, s%d" % (sJ, sJ, tb))
        A("s_cmp_lt_u32 s%d, 11" % tb)
        A("s_cselect_b32 s%d, 1, 0" % sRole)
        A("s_cmp_lt_u32 s%d, 86" % sJ)
        A("s_cselect_b32 s%d, s%d, 0" % (sRole, sRole))
        A("s_sub_u32 s%d, s%d, 11" % (tb, tb))
        A("s_lshl_b32 s%d, s%d, 2" % (ta, ta))
        A("s_add_u32 s%d, s%d, s%d" % (ta, ta, tb))
        A("s_cmp_lt_u32 s%d, 4" % tb)
        A("s_cselect_b32 s%d, 2, s%d" % (sRole, sRole))
        A("s_cmp_lt_u32 s%d, 4" % tb)
        A("s_cselect_b32 s%d, s%d, s%d" % (sJ, ta, sJ))
        if not loader:
            A("v_bfe_u32 v%d, v%d, 2, 2" % (t2, vL))
            A("v_lshl_add_u32 v%d, v%d, 3, v%d" % (t2, vG, t2))
            A("v_mul_u32_u24 v%d, 192, v%d" % (t3, t2))
            A("v_bfe_u32 v%d, v%d, 4, 1" % (t2, vL))
            A("v_lshl_add_u32 v%d, v%d, 5, v%d" % (t3, t2, t3))
            A("v_and_b32 v%d, 1, v%d" % (t2, vL))
            A("v_lshl_add_u32 v%d, v%d, 4, v%d" % (t3, t2, t3))
            A("v_bfe_u32 v%d, v%d, 1, 1" % (t2, vL))
            A("v_lshl_add_u32 v%d, v%d, 3, v%d" % (t3, t2, t3))
            A("v_bfe_u32 v%d, v%d, 1, 3" % (t0, vKap))
            A("v_xor_b32 v%d, v%d, v%d" % (t0, t0, vG))
            A("v_lshlrev_b32 v%d, 4, v%d" % (t0, t0))
            A("s_lshl_b32 s%d, s%d, 12" % (ta, sT))
            A("v_lshl_add_u32 v%d, v%d, 7, s%d" % (t1, vKap, ta))
            for i in range(4):
                A("s_add_u32 s%d, s%d, %d" % (ta, sT, i))
                A("s_and_b32 s%d, s%d, 3" % (ta, ta))
                A("s_lshl_b32 s%d, s%d, 5" % (tb, ta))
                A("s_mul_i32 s%d, s%d, 3072" % (ta, ta))
                A("s_add_u32 s%d, s%d, %d" % (ta, ta, XS))
                A("v_xor_b32 v%d, s%d, v%d" % (t2, tb, t0))
                A("v_add_u32 v%d, v%d, v%d" % (vXa + i, t1, t2))
                A("v_add_u32 v%d, s%d, v%d" % (vWa + i, ta, t3))
                A("v_mov_b32 v%d, v%d" % (vXc + i, vXa + i))
                A("v_mov_b32 v%d, v%d" % (vWc + i, vWa + i))
            A("v_mov_b32 v%d, 0x3f803f80" % vOne2)
            A("v_mov_b32 v%d, 0x3f803f80" % (vOne2 + 1))
            for i in range(12):
                A("v_mov_b32 v%d, 0" % (vCq + i))
            A("s_lshl_b32 s%d, s%d, 2" % (ta, sT))
            A("s_add_u32 s%d, s%d, %d" % (ta, ta, L_CSP))
            A("v_lshl_add_u32 v%d, v%d, 4, s%d" % (vLSa, vN, ta))
            for i in range(48):
                A("v_mov_b32 v%d, 0" % (vAcV + i))
            for i in range(32):
                A("v_mov_b32 v%d, 0" % (vB + 32 + i))
            A("s_mov_b32 s%d, 0" % sRd)
            A("s_mov_b32 s%d, s%d" % (sTq, sT))
        else:
            A("s_lshl_b32 s%d, s%d, 2" % (ta, sWGL))
            A("s_add_u32 s%d, s%d, s%d" % (ta, ta, sT))
            A("s_lshl_b32 s%d, s%d, 5" % (ta, ta))
            A("v_lshl_add_u32 v%d, v%d, 4, s%d" % (vLSa, vG, ta))
            A("s_lshl_b32 s%d, s%d, 2" % (ta, sB))
            A("s_add_u32 s%d, s%d, s%d" % (ta, ta, sT))
            A("s_lshl_b32 s%d, s%d, 9" % (ta, ta))
            A("v_lshl_add_u32 v%d, v%d, 4, s%d" % (vLSb, vKap, ta))
            A("s_lshr_b32 s%d, s%d, 1" % (ta, sG3))
            A("s_lshl_b32 s%d, s%d, 11" % (ta, ta))
            A("v_and_b32 v%d, 15, v%d" % (t0, vL))
            A("v_lshl_add_u32 v%d, v%d, 7, s%d" % (vLSc, t0, ta))
            A("s_mov_b32 s%d, 0" % sPub)
            A("s_sub_u32 s%d, 3, s%d" % (sTq, sT))
            srd(sWS, pWS, WS_SIZE)
            srd(sGA, pDBG, 256)
        A("v_lshlrev_b32 v%d, 3, v%d" % (vIG, vG))
        A("v_sub_u32 v%d, v%d, v%d" % (vIG, vKap, vIG))
        A("v_mov_b32 v%d, %s" % (vU0, f32(-BIG)))
        A("v_mov_b32 v%d, 0" % vU1)
        build_mask(False)
        A("v_add_u32 v%d, %d, v%d" % (vKb, L_K + (1024 if loader else 0), vL16))
        A("v_add_u32 v%d, %d, v%d" % (vVb, L_V + (256 if loader else 0), vL16))
        for i in range(16):
            A("v_mov_b32 v%d, v%d" % (vVa + i, vOnes))
        for i in range(16):
            A("v_mov_b32 v%d, 0" % (vO + i))
        A("s_lshl_b32 s%d, s%d, 4" % (ta, sT))
        A("s_add_u32 s%d, s%d, %d" % (ta, ta, L_PAY))
        A("v_lshl_add_u32 v%d, v%d, 3, s%d" % (vU1, vG, ta))
        A("s_mov_b32 s%d, 0" % sS)

    setupL = cap(lambda: common_setup(True, sd, sb, sc))
    dmaL = cap(lambda: (dma_stage(), dma_stage()))
    nld = sum(1 for l in dmaL if "buffer_load" in l)
    per = (len(setupL) + nld - 1) // nld
    pos = 0
    for l in dmaL:
        A.L.append(l)
        if "buffer_load" in l:
            end = min(len(setupL), pos + per)
            while end < len(setupL) and (any(k in setupL[end - 1] for k in ("s_cmp", "v_cmp", "s_nop", "vcc_")) or "v_cndmask" in setupL[end]):
                end += 1
            A.L.extend(setupL[pos:end])
            pos = end
    A.L.extend(setupL[pos:])
    A("s_branch K_LOOP1")
    A.label("K_PRO_DONE")
    common_setup(False, sa, sb, sc)

    stamp(1)
    A("s_waitcnt vmcnt(0)")
    a0, b0, a1, b1 = vE, vE + 1, vE + 2, vE + 3
    for i in range(4):
        z = "0" if i == 0 else None
        A("v_dot2_f32_bf16 v%d, v%d, v%d, %s" % (a0, vRow + i, vOnes, z or "v%d" % a0))
        A("v_dot2_f32_bf16 v%d, v%d, v%d, %s" % (b0, vRow + i, vRow + i, z or "v%d" % b0))
        A("v_dot2_f32_bf16 v%d, v%d, v%d, %s" % (a1, vRow + 4 + i, vOnes, z or "v%d" % a1))
        A("v_dot2_f32_bf16 v%d, v%d, v%d, %s" % (b1, vRow + 4 + i, vRow + 4 + i, z or "v%d" % b1))
    A.nop(3)
    A("v_permlane32_swap_b32 v%d, v%d" % (a0, a1))
    A("v_permlane32_swap_b32 v%d, v%d" % (b0, b1))
    A.nop(1)
    A("v_add_f32 v%d, v%d, v%d" % (a0, a0, a1))
    A("v_add_f32 v%d, v%d, v%d" % (b0, b0, b1))
    A.nop(2)
    A("v_permlane16_swap_b32 v%d, v%d" % (a0, b0))
    A.nop(1)
    A("v_add_f32 v%d, v%d, v%d" % (a0, a0, b0))
    for dpp in ("quad_perm:[1,0,3,2]", "quad_perm:[2,3,0,1]", "row_half_mirror", "row_mirror"):
        A.nop(2)
        A("v_add_f32_dpp v%d, v%d, v%d %s row_mask:0xf bank_mask:0xf" % (a0, a0, a0, dpp))
    A("v_mov_b32 v%d, v%d" % (b0, a0))
    A.nop(2)
    A("v_permlane16_swap_b32 v%d, v%d" % (a0, b0))
    A.nop(1)
    ln_stats(a0, b0)
    A.nop(1)
    A("v_mov_b32 v%d, v%d" % (vRow, b0))
    A("v_mul_f32_e64 v%d, -v%d, v%d" % (vRow + 1, a0, b0))
    A("ds_write_b64 v%d, %s" % (vU1, vr(vRow, 2)))
    stamp(2)
    def rd_advance():
        A("s_add_u32 s%d, s%d, %d" % (sRd, sRd, SLOT))
        A("s_cmp_eq_u32 s%d, %d" % (sRd, NSL * SLOT))
        A("s_cselect_b32 s%d, 0, s%d" % (sRd, sRd))
        A("s_add_u32 s%d, s%d, 1" % (sS, sS))
    def rd0(k):
        B = vB + 16 * k
        A("ds_read_b128 %s, v%d" % (vr(B, 4), vXc + k))
        for seg in (1, 2, 0):
            for half in range(2):
                A("ds_read_b64_tr_b16 %s, v%d offset:%d" % (vr(B + 4 + 4 * seg + 2 * half, 2), vWc + k, 4 * half * 192 + seg * 64))
    def mm(k, which):
        B = vB + 16 * k
        X = vr(B, 4)
        if which == "K":
            A("%s %s, %s, %s, %s" % (MFMA, vr(vAc1, 16), vr(B + 8, 4), X, vr(vAc1, 16)))
        elif which == "V":
            A("%s %s, %s, %s, %s" % (MFMA, vr(vAcV, 16), X, vr(B + 12, 4), vr(vAcV, 16)))
        else:
            A("%s %s, %s, %s, %s" % (MFMA, vr(vAc0, 16), vr(B + 4, 4), X, vr(vAc0, 16)))
    def weave(fill, k):
        n = (len(fill) + 2) // 3
        for gi, w in enumerate("KVQ"):
            mm(k, w)
            A.L.extend(fill[gi * n:(gi + 1) * n])
    def adv(k):
        A("v_add_u32 v%d, s%d, v%d" % (vXc + k, sRd, vXa + k))
        A("v_add_u32 v%d, s%d, v%d" % (vWc + k, sRd, vWa + k))
    def cs4(h):
        for acc, off in ((vCq, 4), (vCk, 8), (vCv, 12)):
            A("%s %s, %s, %s, %s" % (MFMA4, vr(acc, 4), vr(vOne2, 2), vr(vB + off + 2 * h, 2), vr(acc, 4)))
    A.label("K_LOOP0")
    A("s_waitcnt lgkmcnt(0)")
    A("s_barrier")
    weave(cap(lambda: (rd0(0), rd_advance())), 2)
    weave(cap(lambda: (rd0(1), adv(0), adv(1))), 3)
    A("s_waitcnt lgkmcnt(7)")
    weave(cap(lambda: (rd0(2), rd0(3))), 0)
    cs4(0)
    cs4(1)
    A("s_waitcnt lgkmcnt(14)")
    mm(1, "K")
    adv(2)
    adv(3)
    mm(1, "V")
    A("s_cmp_lt_u32 s%d, 8" % sS)
    mm(1, "Q")
    A("s_cbranch_scc1 K_LOOP0")
    for acc in (vCq, vCk, vCv):
        A("v_mov_b32 v%d, v%d" % (acc + 1, acc))
    A("s_waitcnt lgkmcnt(0)")
    mm(2, "V")
    for acc in (vCq, vCk, vCv):
        A("v_permlane32_swap_b32 v%d, v%d" % (acc, acc + 1))
    for acc in (vCq, vCk, vCv):
        A("v_add_f32 v%d, v%d, v%d" % (acc, acc, acc + 1))
    for seg, acc in enumerate((vCq, vCk, vCv)):
        A("ds_write_b32 v%d, v%d offset:%d" % (vLSa, acc, seg * 512))
    mm(3, "V")
    A("s_waitcnt lgkmcnt(0)")
    A("s_barrier")
    mm(2, "K")
    A("s_lshl_b32 s%d, s%d, 7" % (sa, sT))
    A("s_add_u32 s%d, s%d, %d" % (sa, sa, L_STR))
    A("v_lshl_add_u32 v%d, v%d, 2, s%d" % (vU0, vKap, sa))
    A("v_lshlrev_b32 v%d, 4, v%d" % (vT1, vG))
    mm(3, "K")
    A("v_add_u32 v%d, %d, v%d" % (vT1, L_CS, vT1))
    A("s_lshl_b32 s%d, s%d, 12" % (sa, sT))
    A("s_add_u32 s%d, s%d, %d" % (sa, sa, L_VX))
    A("v_add_u32 v%d, s%d, v%d" % (vT0, sa, vL16))
    mm(2, "Q")
    A("v_mov_b32 v%d, %d" % (vU1, L_NON))
    for q in range(4):
        A("ds_write_b128 v%d, %s offset:%d" % (vT0, vr(vAcV + 4 * q, 4), q * 1024))
    mm(3, "Q")
    stamp(3)
    A("s_lshl_b32 s%d, s%d, 11" % (sa, sT))
    A("s_add_u32 s%d, s%d, %d" % (sb, sa, L_K + 8 * 2048))
    A("v_add_u32 v%d, s%d, v%d" % (vT0, sb, vL16))
    A("s_lshl_b32 s%d, s%d, 14" % (sd, sWGL))
    A("s_add_u32 s%d, s%d, s%d" % (sd, sd, sa))
    A("s_waitcnt lgkmcnt(0)")
    A("s_barrier")
    A("ds_read_b32 v%d, v%d" % (vT2, vU0))
    A("ds_read_b32 v%d, v%d offset:%d" % (vT3, vU0, L_STM - L_STR))
    for tile in (1, 0):
        for a in range(4):
            A("ds_read_b128 %s, v%d offset:%d" % (vr(vE + 16 * tile + 4 * a, 4), vT1, tile * 128 + a * 32))
    A("ds_read_b64 %s, v%d" % (vr(vNon, 2), vU1))
    A("s_waitcnt lgkmcnt(9)")
    for r in range(16):
        A("v_mul_f32 v%d, v%d, v%d" % (vAc1 + r, vAc1 + r, vT2))
    A("s_waitcnt lgkmcnt(5)")
    for r in range(16):
        A("v_fmac_f32 v%d, v%d, v%d" % (vAc1 + r, vE + 16 + r, vT3))
    def pack_store(acc, soff):
        for i in range(8):
            A("v_cvt_pk_bf16_f32 v%d, v%d, v%d" % (vPk + i, acc + 2 * i, acc + 2 * i + 1))
        A("buffer_store_dwordx4 %s, v%d, %s, s%d offen sc1" % (vr(vPk, 4), vL16, sr(sWS, 4), soff))
        A("buffer_store_dwordx4 %s, v%d, %s, s%d offen offset:1024 sc1" % (vr(vPk + 4, 4), vL16, sr(sWS, 4), soff))
        sumu(vGc, vPk, 8)
        A("ds_write_b128 v%d, %s" % (vT0, vr(vPk, 4)))
        A("ds_write_b128 v%d, %s offset:1024" % (vT0, vr(vPk + 4, 4)))
        wave_sumu(vGc, vGc + 1)
        A("s_lshl_b32 s%d, s%d, 3" % (sb, sWGL))
        A("s_add_u32 s%d, s%d, s%d" % (sb, sb, sWv))
        A("s_lshl_b32 s%d, s%d, 6" % (sb, sb))
        A("s_add_u32 s%d, s%d, 0x%x" % (sb, sb, WS_FKV))
        A("s_waitcnt lgkmcnt(2)")
        A("v_mov_b32 v%d, v%d" % (vGc + 2, vNon))
        A("v_mov_b32 v%d, v%d" % (vGc + 3, vNon + 1))
        A("s_mov_b64 exec, 1")
        A("buffer_store_dwordx4 %s, v%d, %s, s%d offen sc1" % (vr(vGc, 4), vL16, sr(sWS, 4), sb))
        A("s_mov_b64 exec, -1")
    pack_store(vAc1, sd)
    A("v_mul_f32 v%d, %s, v%d" % (vT2, f32(0.25 * LOG2E), vT2))
    A("v_mul_f32 v%d, %s, v%d" % (vT3, f32(0.25 * LOG2E), vT3))
    A("s_waitcnt lgkmcnt(2)")
    for r in range(8, 16):
        A("v_mul_f32 v%d, v%d, v%d" % (vAc0 + r, vAc0 + r, vT2))
        A("v_fmac_f32 v%d, v%d, v%d" % (vAc0 + r, vE + r, vT3))
    for i in range(4):
        A("v_cvt_pk_bf16_f32 v%d, v%d, v%d" % (vPk + 8 + i, vAc0 + 8 + 2 * i, vAc0 + 8 + 2 * i + 1))
    A("s_lshl_b32 s%d, s%d, 10" % (sa, sT))
    A("s_add_u32 s%d, s%d, %d" % (sa, sa, L_Q))
    A("v_add_u32 v%d, s%d, v%d" % (vT0, sa, vL16))
    A("ds_write_b128 v%d, %s" % (vT0, vr(vPk + 8, 4)))
    for r in range(8):
        A("v_mul_f32 v%d, v%d, v%d" % (vAc0 + r, vAc0 + r, vT2))
        A("v_fmac_f32 v%d, v%d, v%d" % (vAc0 + r, vE + r, vT3))
    for i in range(4):
        A("v_cvt_pk_bf16_f32 v%d, v%d, v%d" % (vQ + i, vAc0 + 2 * i, vAc0 + 2 * i + 1))
    A("s_branch K_PUB")

    A.label("K_LOOP1")
    A("v_mov_b32 v%d, 0" % vT0)
    A("buffer_load_dwordx2 %s, v%d, %s, 0 offen sc1" % (vr(vNon, 2), vT0, sr(sGA, 4)))
    stamp(2)
    def try_publish(lab, blocking=False):
        A.label(lab + "_r")
        A("s_cmp_lg_u32 s%d, 0" % sPub)
        A("s_cbranch_scc1 %s" % lab)
        if blocking:
            A("s_waitcnt vmcnt(0)")
        A("v_readfirstlane_b32 s%d, v%d" % (sPub, vNon + 1))
        A("ds_read_b64 %s, v%d" % (vr(vRow, 2), vU1))
        A("s_cmp_lg_u32 s%d, 0" % sPub)
        A("s_cbranch_scc1 %s_ok" % lab)
        A("buffer_load_dwordx2 %s, v%d, %s, 0 offen sc1" % (vr(vNon, 2), vT0, sr(sGA, 4)))
        if blocking:
            spin_tail(lab + "_r", sS)
        A("s_branch %s" % lab)
        A.label(lab + "_ok")
        A("v_mov_b32 v%d, v%d" % (vRow + 2, vNon))
        A("v_mov_b32 v%d, v%d" % (vRow + 3, vNon + 1))
        A("s_mov_b32 s%d, 0x%x" % (sb, WS_LS))
        A("s_mov_b32 exec_lo, 1")
        A("s_mov_b32 exec_hi, 1")
        A("s_waitcnt lgkmcnt(0)")
        A("buffer_store_dwordx4 %s, v%d, %s, s%d offen sc1" % (vr(vRow, 4), vLSa, sr(sWS, 4), sb))
        A("s_mov_b64 exec, -1")
        A.label(lab)
    A.label("K_LOOP1T")
    A("s_waitcnt vmcnt(7)")
    A("s_barrier")
    A("s_and_b32 s%d, s%d, 1" % (sb, sS))
    A("s_cmp_eq_u32 s%d, 0" % sb)
    A("s_cselect_b32 s%d, s%d, 0" % (sb, sS))
    A("s_cmp_eq_u32 s%d, 0" % sb)
    A("s_cbranch_scc1 K_L1_PUB")
    try_publish("K_L1_PUB")
    dma_stage()
    A("s_add_u32 s%d, s%d, 1" % (sS, sS))
    A("s_cmp_lt_u32 s%d, 6" % sS)
    A("s_cbranch_scc1 K_LOOP1T")
    A("s_waitcnt vmcnt(7)")
    A("s_barrier")
    try_publish("K_L1_PUB2", blocking=True)
    A("s_mov_b32 s%d, 0x%x" % (sb, WS_LS))
    A("buffer_load_dwordx4 %s, v%d, %s, s%d offen sc1" % (vr(vRow + 4, 4), vLSb, sr(sWS, 4), sb))
    A("buffer_load_dwordx4 %s, v%d, %s, s%d offen sc1" % (vr(vGc, 4), vLSc, sr(sWS, 4), sb))
    A("s_lshl_b32 s%d, s%d, 7" % (sc, sT))
    A("s_add_u32 s%d, s%d, %d" % (sc, sc, L_STR))
    A("v_lshl_add_u32 v%d, v%d, 5, s%d" % (vT1, vG, sc))
    A("v_lshl_add_u32 v%d, v%d, 2, s%d" % (vU0, vKap, sc))
    A("v_mov_b32 v%d, %d" % (vT3, L_NON))
    A("ds_write_b64 v%d, %s" % (vT3, vr(vNon, 2)))
    A("s_lshl_b32 s%d, s%d, 12" % (sc, sT))
    A("s_add_u32 s%d, s%d, %d" % (sc, sc, L_VX))
    A("v_add_u32 v%d, s%d, v%d" % (vT3, sc, vL16))
    A("v_lshlrev_b32 v%d, 4, v%d" % (vT2, vN))
    A("v_add_u32 v%d, %d, v%d" % (vT2, L_CSP, vT2))
    A("s_mov_b32 s%d, 0" % sCnt)
    A("s_waitcnt vmcnt(2)")
    A("s_barrier")
    A.label("K_LS_CHK")
    A("s_waitcnt vmcnt(0)")
    A("v_cmp_eq_u64 vcc, %s, %s" % (vr(vRow + 6, 2), vr(vNon, 2)))
    A("v_cmp_eq_u64 s[68:69], %s, %s" % (vr(vGc + 2, 2), vr(vNon, 2)))
    A("s_and_b64 vcc, vcc, s[68:69]")
    A("s_cmp_eq_u64 vcc, exec")
    A("s_cbranch_scc1 K_LS_OK")
    A("buffer_load_dwordx4 %s, v%d, %s, s%d offen sc1" % (vr(vRow + 4, 4), vLSb, sr(sWS, 4), sb))
    A("buffer_load_dwordx4 %s, v%d, %s, s%d offen sc1" % (vr(vGc, 4), vLSc, sr(sWS, 4), sb))
    spin_tail("K_LS_CHK", sCnt)
    A.label("K_LS_OK")
    A("ds_write_b32 v%d, v%d" % (vU0, vRow + 4))
    A("ds_write_b32 v%d, v%d offset:%d" % (vU0, vRow + 5, L_STM - L_STR))
    A("s_waitcnt lgkmcnt(0)")
    for q in range(4):
        off = (q & 1) * 16 + (q >> 1) * 64
        A("ds_read_b128 %s, v%d offset:%d" % (vr(vE + 4 * q, 4), vT1, off))
        A("ds_read_b128 %s, v%d offset:%d" % (vr(vE + 16 + 4 * q, 4), vT1, off + L_STM - L_STR))
    A("s_barrier")
    for seg, acc in enumerate((vCq, vCk, vCv)):
        A("ds_read_b128 %s, v%d offset:%d" % (vr(acc, 4), vT2, seg * 512))
    A("v_lshlrev_b32 v%d, 2, v%d" % (vT2, vN))
    A("v_add_u32 v%d, %d, v%d" % (vT2, L_CS, vT2))
    A("s_lshl_b32 s%d, s%d, 11" % (sb, sT))
    A("s_add_u32 s%d, s%d, %d" % (sc, sb, L_V + 8 * 2048))
    A("v_add_u32 v%d, s%d, v%d" % (vT0, sc, vL16))
    A("s_lshl_b32 s%d, s%d, 14" % (sc, sWGL))
    A("s_add_u32 s%d, s%d, s%d" % (sc, sc, sb))
    A("s_add_u32 s%d, s%d, 8192" % (sc, sc))
    A("s_waitcnt lgkmcnt(0)")
    for acc in (vCq, vCk, vCv):
        A("v_add_f32 v%d, v%d, v%d" % (acc, acc, acc + 1))
        A("v_add_f32 v%d, v%d, v%d" % (acc + 2, acc + 2, acc + 3))
    for acc in (vCq, vCk, vCv):
        A("v_add_f32 v%d, v%d, v%d" % (acc, acc, acc + 2))
    A("ds_write_b32 v%d, v%d" % (vT2, vCq))
    A("ds_write_b32 v%d, v%d offset:128" % (vT2, vCk))
    stamp(3)
    for r in range(16):
        A("v_mul_f32 v%d, v%d, v%d" % (vE + 16 + r, vE + 16 + r, vCv))
    A("s_waitcnt lgkmcnt(0)")
    A("s_barrier")
    for q in range(4):
        A("ds_read_b128 %s, v%d offset:%d" % (vr(vAc0 + 4 * q, 4), vT3, q * 1024))
    for q in range(4):
        A("s_waitcnt lgkmcnt(%d)" % (3 - q))
        for r in range(4 * q, 4 * q + 4):
            A("v_fma_f32 v%d, v%d, v%d, v%d" % (vAc0 + r, vAc0 + r, vE + r, vE + 16 + r))
    pack_store(vAc0, sc)

    A.label("K_PUB")
    A("s_mov_b32 s%d, 0" % sWoN)
    A("s_mov_b32 s%d, 0x0000ffff" % sMaskV)
    A("s_mov_b32 s%d, 0x0000ffff" % (sMaskV + 1))
    A("v_mov_b32 v%d, %s" % (vMold, f32(-BIG)))
    A("s_lshl_b32 s%d, s%d, 10" % (sa, sTq))
    A("s_add_u32 s%d, s%d, %d" % (sa, sa, L_Q))
    A("v_add_u32 v%d, s%d, v%d" % (vT0, sa, vL16))
    A("s_waitcnt lgkmcnt(0)")
    A("s_barrier")
    stamp(4)
    A("s_cmp_eq_u32 s%d, 0" % sC)
    A("s_cbranch_scc1 K_HAVEQ")
    A("ds_read_b128 %s, v%d" % (vr(vQ, 4), vT0))
    A.label("K_HAVEQ")
    A("s_cmp_lg_u32 s%d, 0" % sTq)
    A("s_cbranch_scc1 K_NOP0")
    A("s_setprio 2")
    A.label("K_NOP0")
    A("s_mov_b32 s%d, 0" % sChunk)
    A("s_add_u32 s%d, s%d, 8" % (sa, sTq))
    A("s_mov_b32 s%d, 8" % sb)
    A("s_mov_b32 s%d, s%d" % (sN, sTq))
    A.label("K_CHUNK")
    A("s_lshl_b32 s%d, s%d, 11" % (sKm, sa))
    A("s_lshl_b32 s%d, s%d, 11" % (sKu, sb))
    A("v_add_u32 v%d, s%d, v%d" % (vKad, sKm, vKb))
    A("ds_read_b128 %s, v%d" % (vr(vKbf, 4), vKad))
    A("v_add_u32 v%d, s%d, v%d" % (vKad, sKu, vKb))
    A("ds_read_b128 %s, v%d" % (vr(vKa, 4), vKad))
    A("v_add_u32 v%d, s%d, v%d" % (vVad, sKm, vVb))
    A("s_mov_b64 exec, %s" % sr(sMaskV, 2))
    A("ds_read_b128 %s, v%d" % (vr(vVbf, 4), vVad))
    A("ds_read_b128 %s, v%d offset:1024" % (vr(vVbf + 4, 4), vVad))
    A("s_mov_b64 exec, -1")
    A("v_add_u32 v%d, s%d, v%d" % (vVad, sKu, vVb))
    A("v_mov_b32 v%d, v%d" % (vM, vMold))
    A("s_mov_b32 s%d, 0" % sI)
    A("s_waitcnt lgkmcnt(3)")
    A("%s %s, %s, %s, %s" % (MFMA, vr(vSb, 16), vr(vKbf, 4), vr(vQ, 4), vr(vCm, 16)))
    def max16(S):
        for i in range(8):
            A("v_max3_f32 v%d, v%d, v%d, v%d" % (vM, S + 2 * i, S + 2 * i + 1, vM))
    A.nop(6)
    A.label("K_P1")
    A("s_waitcnt lgkmcnt(0)")
    A("%s %s, %s, %s, 0" % (MFMA, vr(vSa, 16), vr(vKa, 4), vr(vQ, 4)))
    A("ds_read_b128 %s, v%d offset:2048" % (vr(vKbf, 4), vKad))
    A.nop(3)
    max16(vSb)
    A("s_cmp_ge_u32 s%d, s%d" % (sI, sN))
    A("s_cbranch_scc1 K_P1_DONE")
    A("s_add_u32 s%d, s%d, 1" % (sI, sI))
    A("s_waitcnt lgkmcnt(0)")
    A("%s %s, %s, %s, 0" % (MFMA, vr(vSb, 16), vr(vKbf, 4), vr(vQ, 4)))
    A("v_add_u32 v%d, 4096, v%d" % (vKad, vKad))
    A("ds_read_b128 %s, v%d" % (vr(vKa, 4), vKad))
    max16(vSa)
    A("s_cmp_ge_u32 s%d, s%d" % (sI, sN))
    A("s_cbranch_scc1 K_P1_DONE")
    A("s_add_u32 s%d, s%d, 1" % (sI, sI))
    A("s_branch K_P1")
    A.label("K_P1_DONE")
    A("v_mov_b32 v%d, v%d" % (vT0, vM))
    A("s_waitcnt lgkmcnt(0)")
    A("v_add_u32 v%d, s%d, v%d" % (vKad, sKm, vKb))
    A("ds_read_b128 %s, v%d" % (vr(vKbf, 4), vKad))
    A("v_permlane32_swap_b32 v%d, v%d" % (vM, vT0))
    A("v_add_u32 v%d, s%d, v%d" % (vKad, sKu, vKb))
    A("ds_read_b128 %s, v%d" % (vr(vKa, 4), vKad))
    A("v_max_f32 v%d, v%d, v%d" % (vM, vM, vT0))
    A("v_sub_f32 v%d, v%d, v%d" % (vT0, vMold, vM))
    A("v_exp_f32 v%d, v%d" % (vT0, vT0))
    A("v_mov_b32 v%d, v%d" % (vMold, vM))
    for r in range(16):
        A("v_sub_f32 v%d, v%d, v%d" % (vCm + r, vCm + r, vM))
    A("s_waitcnt lgkmcnt(1)")
    A("v_sub_f32 v%d, 0, v%d" % (vCn, vM))
    A("%s %s, %s, %s, %s" % (MFMA, vr(vSb, 16), vr(vKbf, 4), vr(vQ, 4), vr(vCm, 16)))
    for r in range(1, 16):
        A("v_mov_b32 v%d, v%d" % (vCn + r, vCn))
    for r in range(9):
        A("v_mul_f32 v%d, v%d, v%d" % (vO + r, vO + r, vT0))
    A("s_mov_b32 s%d, 0" % sI)
    def wo_piece(lab):
        A("s_cmp_eq_u32 s%d, 0" % sWoN)
        A("s_cbranch_scc1 %s" % lab)
        A("s_add_u32 s%d, s%d, s%d" % (sa, sWoL, sWoR))
        A("s_mov_b32 m0, s%d" % sa)
        A("s_lshl_b32 s%d, s%d, 3" % (sa, sWoR))
        A("s_add_u32 s%d, s%d, s%d" % (sa, sa, sWoG))
        A("buffer_load_dwordx4 v%d, %s, s%d offen lds" % (vWoA, sr(sW, 4), sa))
        A("s_add_u32 s%d, s%d, 1024" % (sWoR, sWoR))
        A("s_and_b32 s%d, s%d, 0x1fff" % (sWoR, sWoR))
        A("s_sub_u32 s%d, s%d, 1" % (sWoN, sWoN))
        A.label(lab)
    def softmax_pv(S, V):
        for r in range(16):
            A("v_exp_f32 v%d, v%d" % (S + r, S + r))
            if r == 3:
                wo_piece("K_WOP%d" % S)
            if r == 11:
                wo_piece("K_WOQ%d" % S)
        for i in range(8):
            A("v_cvt_pk_bf16_f32 v%d, v%d, v%d" % (vP + i, S + 2 * i, S + 2 * i + 1))
        A.nop(1)
        A("%s %s, %s, %s, %s" % (MFMA, vr(vO, 16), vr(V, 4), vr(vP, 4), vr(vO, 16)))
        A("%s %s, %s, %s, %s" % (MFMA, vr(vO, 16), vr(V + 4, 4), vr(vP + 4, 4), vr(vO, 16)))
    A.label("K_P2")
    A("s_waitcnt lgkmcnt(0)")
    A("%s %s, %s, %s, %s" % (MFMA, vr(vSa, 16), vr(vKa, 4), vr(vQ, 4), vr(vCn, 16)))
    A("ds_read_b128 %s, v%d offset:2048" % (vr(vKbf, 4), vKad))
    A("s_mov_b64 exec, %s" % sr(sMaskV, 2))
    A("ds_read_b128 %s, v%d" % (vr(vVa, 4), vVad))
    A("ds_read_b128 %s, v%d offset:1024" % (vr(vVa + 4, 4), vVad))
    A("s_mov_b64 exec, -1")
    softmax_pv(vSb, vVbf)
    A("s_cmp_ge_u32 s%d, s%d" % (sI, sN))
    A("s_cbranch_scc1 K_P2_DONE")
    A("s_add_u32 s%d, s%d, 1" % (sI, sI))
    A("s_waitcnt lgkmcnt(0)")
    A("%s %s, %s, %s, %s" % (MFMA, vr(vSb, 16), vr(vKbf, 4), vr(vQ, 4), vr(vCn, 16)))
    A("v_add_u32 v%d, 4096, v%d" % (vKad, vKad))
    A("ds_read_b128 %s, v%d" % (vr(vKa, 4), vKad))
    A("s_mov_b64 exec, %s" % sr(sMaskV, 2))
    A("ds_read_b128 %s, v%d offset:2048" % (vr(vVbf, 4), vVad))
    A("ds_read_b128 %s, v%d offset:3072" % (vr(vVbf + 4, 4), vVad))
    A("s_mov_b64 exec, -1")
    A("v_add_u32 v%d, 4096, v%d" % (vVad, vVad))
    softmax_pv(vSa, vVa)
    A("s_cmp_ge_u32 s%d, s%d" % (sI, sN))
    A("s_cbranch_scc1 K_P2_DONE")
    A("s_add_u32 s%d, s%d, 1" % (sI, sI))
    A("s_branch K_P2")
    A.label("K_P2_DONE")
    A("s_waitcnt lgkmcnt(0)")
    A("s_cmp_lg_u32 s%d, 0" % sChunk)
    A("s_cbranch_scc1 K_ATT_DONE")
    stamp(5)
    A("s_cmp_lg_u32 s%d, 0" % sTq)
    A("s_cbranch_scc1 K_FETCH_ISSUED")
    A("s_cmp_eq_u32 s%d, 0" % sB)
    A("s_cbranch_scc1 K_FETCH_ISSUED")
    A("s_lshl_b32 s%d, s%d, 14" % (sa, sWGL))
    A("s_lshl_b32 s%d, s%d, 13" % (sb, sC))
    A("s_add_u32 s%d, s%d, s%d" % (sa, sa, sb))
    A("s_sub_u32 s%d, s%d, 0x40000" % (sa, sa))
    A("s_add_u32 s%d, s%d, 4096" % (sb, sa))
    A("s_cmp_eq_u32 s%d, 1" % sB)
    A("s_cselect_b32 s%d, 0, 0x40000" % sc)
    A("s_sub_u32 s%d, s%d, s%d" % (sd, sb, sc))
    A("s_sub_u32 s%d, s%d, s%d" % (sc, sa, sc))
    A("s_lshl_b32 s%d, s%d, 9" % (sI, sWGL))
    A("s_lshl_b32 s68, s%d, 8" % sC)
    A("s_add_u32 s%d, s%d, s68" % (sI, sI))
    A("s_add_u32 s%d, s%d, 0x%x" % (sI, sI, WS_FKV - 16384))
    A("s_cmp_eq_u32 s%d, 1" % sB)
    A("s_cselect_b32 s68, 0xff, 0xf")
    A("s_mov_b32 vcc_lo, s68")
    A("s_mov_b32 vcc_hi, 0")
    A("v_and_b32 v%d, 3, v%d" % (vT2, vL))
    A("v_lshlrev_b32 v%d, 6, v%d" % (vT2, vT2))
    A("v_add_u32 v%d, 8192, v%d" % (vT3, vT2))
    A("v_cndmask_b32 v%d, v%d, v%d, vcc" % (vT2, vT2, vT3))
    A("v_mov_b32 v%d, 0" % (vKV + 64))
    def kv_loads():
        A("s_mov_b64 exec, 0xff")
        A("buffer_load_dwordx4 %s, v%d, %s, s%d offen sc1" % (vr(vKV + 64, 4), vT2, sr(sWS, 4), sI))
        A("s_mov_b64 exec, -1")
        for hgrp, so in enumerate((sa, sb, sc, sd)):
            for q in range(4):
                A("buffer_load_dwordx4 %s, v%d, %s, s%d offen offset:%d sc1" % (vr(vKV + 16 * hgrp + 4 * q, 4), vL16, sr(sWS, 4), so, q * 1024))
    kv_loads()
    A.label("K_FETCH_ISSUED")
    A("v_mov_b32 v%d, %s" % (vU0, f32(-BIG)))
    A("s_cmp_eq_u32 s%d, 1" % sB)
    A("s_cselect_b32 s%d, %s, 0" % (sCnt, f32(-BIG)))
    A("v_mov_b32 v%d, s%d" % (vU1, sCnt))
    build_mask(True)
    srd(sGB, pWR, 1024)
    A("s_cmp_ge_u32 s%d, 2" % sTq)
    A("s_cbranch_scc1 K_B3")
    A("s_setprio 2")
    A("s_cmp_eq_u32 s%d, 1" % sTq)
    A("s_cbranch_scc1 K_B3")
    A("s_cmp_eq_u32 s%d, 0" % sB)
    A("s_cbranch_scc1 K_B3")
    A("s_mul_i32 s68, s%d, %d" % (sC, L_V - L_K))
    A("s_add_u32 s68, s68, %d" % L_K)
    A("v_add_u32 v%d, s68, v%d" % (vT1, vL16))
    A("s_mov_b32 s%d, 0" % sCnt)
    A.label("K_KVCHK")
    A("s_waitcnt vmcnt(0)")
    A("v_cmp_eq_u64 vcc, %s, %s" % (vr(vKV + 66, 2), vr(vNon, 2)))
    A("s_and_b32 s68, vcc_lo, 0xff")
    A("s_cmp_eq_u32 s68, 0xff")
    A("s_cbranch_scc0 K_KVRETRY")
    for i in range(16):
        off = (8192 if i < 8 else 0) + (i & 7) * 1024
        A("ds_write_b128 v%d, %s offset:%d" % (vT1, vr(vKV + 4 * i, 4), off))
    A("v_sub_u32 v%d, 0, v%d" % (vT0, vKV + 64))
    sumu(vT0, vKV, 64, init=vT0)
    wave_sumu(vT0, vT3)
    A.nop(1)
    A("v_readfirstlane_b32 s68, v%d" % vT0)
    A("s_cmp_eq_u32 s68, 0")
    A("s_cbranch_scc1 K_B3W")
    A("s_waitcnt lgkmcnt(0)")
    A.label("K_KVRETRY")
    kv_loads()
    spin_tail("K_KVCHK", sCnt)
    A.label("K_B3W")
    A("s_waitcnt lgkmcnt(0)")
    A.label("K_B3")
    A("s_barrier")
    stamp(6)
    A("v_and_b32 v%d, 7, v%d" % (vT0, vL))
    A("v_lshlrev_b32 v%d, 4, v%d" % (vT0, vT0))
    A("s_lshl_b32 s%d, s%d, 7" % (sa, sCG))
    A("v_lshl_add_u32 v%d, v%d, 10, v%d" % (vT1, vTok, vT0))
    A("buffer_load_dwordx4 %s, v%d, %s, s%d offen" % (vr(vXr, 4), vT1, sr(sX, 4), sa))
    A("buffer_load_dwordx4 %s, v%d, %s, s%d offen" % (vr(vWr, 4), vT0, sr(sGB, 4), sa))
    A("buffer_load_dwordx4 %s, v%d, %s, 0 offen" % (vr(vWR4, 4), vL16, sr(sGB, 4)))
    srd(sW, pWO, 0x80000)
    A("v_lshrrev_b32 v%d, 3, v%d" % (vT0, vL))
    A("v_bfe_u32 v%d, v%d, 4, 1" % (vT1, vL))
    A("v_lshlrev_b32 v%d, 2, v%d" % (vT1, vT1))
    A("v_and_b32 v%d, 7, v%d" % (vT2, vL))
    A("v_xor_b32 v%d, v%d, v%d" % (vT2, vT2, vT1))
    A("v_lshlrev_b32 v%d, 4, v%d" % (vT2, vT2))
    A("v_lshl_add_u32 v%d, v%d, 10, v%d" % (vWoA, vT0, vT2))
    A("s_lshl_b32 s%d, s%d, 16" % (sWoG, sWv))
    A("s_add_u32 s%d, s%d, s%d" % (sWoG, sWoG, sa))
    A("s_lshl_b32 s%d, s%d, 13" % (sWoL, sWv))
    A("s_add_u32 s%d, s%d, %d" % (sWoL, sWoL, L_WO))
    A("s_bfe_u32 s%d, s2, 0x30003" % sWoR)
    A("s_lshl_b32 s%d, s%d, 10" % (sWoR, sWoR))
    A("s_mov_b32 s%d, 8" % sWoN)
    A("s_cmp_lt_u32 s%d, 2" % sTq)
    A("s_cbranch_scc1 K_TOUCHED")
    A("s_lshl_b32 s%d, s%d, 1" % (sc, sC))
    A("s_add_u32 s%d, s%d, s%d" % (sc, sc, sTq))
    A("s_and_b32 s%d, s2, 7" % sa)
    A("s_lshr_b32 s%d, s2, 3" % sb)
    A("s_mul_i32 s%d, s%d, 44032" % (sb, sb))
    A("s_cmp_eq_u32 s%d, 5" % sc)
    A("s_cbranch_scc1 K_TOUCHED")
    A("s_cmp_eq_u32 s%d, 4" % sc)
    A("s_cbranch_scc1 K_TOUCH_D")
    A("s_cmp_eq_u32 s%d, 2" % sc)
    A("s_cselect_b32 s%d, s%d, s%d" % (sGA, pWG, pWU))
    A("s_cselect_b32 s%d, s%d, s%d" % (sGA + 1, pWG + 1, pWU + 1))
    A("s_mov_b32 s%d, %d" % (sGA + 2, 512 * 2752))
    A("s_mov_b32 s%d, 0x20000" % (sGA + 3))
    A("v_lshrrev_b32 v%d, 2, v%d" % (vT0, vL))
    A("v_mul_u32_u24 v%d, 2752, v%d" % (vT0, vT0))
    A("v_and_b32 v%d, 3, v%d" % (vT1, vL))
    A("v_lshl_add_u32 v%d, v%d, 6, v%d" % (vT2, vT1, vT0))
    A("v_lshlrev_b32 v%d, 6, v%d" % (vT1, vT1))
    A("v_min_u32 v%d, 92, v%d" % (vT1, vT1))
    A("v_add_u32 v%d, v%d, v%d" % (vT3, vT1, vT0))
    A("s_mul_i32 s%d, s%d, 352" % (sa, sa))
    A("s_add_u32 s%d, s%d, s%d" % (sa, sa, sb))
    A("buffer_load_dword v%d, v%d, %s, s%d offen" % (vU0, vT2, sr(sGA, 4), sa))
    A("buffer_load_dword v%d, v%d, %s, s%d offen offset:256" % (vU1, vT3, sr(sGA, 4), sa))
    A("s_branch K_TOUCHED")
    A.label("K_TOUCH_D")
    srd(sGA, pWD, 1376 * 1024)
    A("v_min_u32 v%d, 42, v%d" % (vT0, vL))
    A("v_lshlrev_b32 v%d, 10, v%d" % (vT0, vT0))
    A("s_lshl_b32 s%d, s%d, 7" % (sa, sa))
    A("s_add_u32 s%d, s%d, s%d" % (sa, sa, sb))
    A("buffer_load_dword v%d, v%d, %s, s%d offen" % (vU0, vT0, sr(sGA, 4), sa))
    A("buffer_load_dword v%d, v%d, %s, s%d offen offset:64" % (vU1, vT0, sr(sGA, 4), sa))
    A.label("K_TOUCHED")
    A("s_cmp_eq_u32 s%d, 0" % sB)
    A("s_cbranch_scc1 K_ATT_DONE")
    A("s_mov_b32 s%d, 1" % sChunk)
    A("s_add_u32 s%d, s%d, 1" % (sb, sTq))
    A("s_mov_b32 s%d, s%d" % (sa, sTq))
    A("s_cmp_eq_u32 s%d, 1" % sB)
    A("s_cselect_b32 s%d, 4, s%d" % (sb, sb))
    A("s_cselect_b32 s%d, 4, s%d" % (sa, sa))
    A("s_sub_u32 s%d, 8, s%d" % (sN, sb))
    A("s_branch K_CHUNK")
    A.label("K_ATT_DONE")
    stamp(7)
    A("s_lshl_b32 s%d, s%d, 2" % (sa, sB))
    A("s_add_u32 s%d, s%d, s%d" % (sa, sa, sTq))
    A("s_lshl_b32 s%d, s%d, 5" % (sa, sa))
    A("s_lshl_b32 s%d, s%d, 1" % (sb, sHP))
    A("s_add_u32 s%d, s%d, s%d" % (sa, sa, sb))
    A("s_add_u32 s%d, s%d, s%d" % (sa, sa, sC))
    A("s_lshl_b32 s%d, s%d, 10" % (sb, sa))
    A("s_add_u32 s%d, s%d, 0x%x" % (sb, sb, WS_O))
    A("s_lshl_b32 s%d, s%d, 6" % (sa, sa))
    A("s_add_u32 s%d, s%d, 0x%x" % (sa, sa, WS_FO))
    A.nop(2)
    A("v_rcp_f32 v%d, v%d" % (vT0, vO + 8))
    A.nop(1)
    for r in range(8):
        A("v_mul_f32 v%d, v%d, v%d" % (vO + r, vO + r, vT0))
    for i in range(4):
        A("v_cvt_pk_bf16_f32 v%d, v%d, v%d" % (vP + i, vO + 2 * i, vO + 2 * i + 1))
    A("buffer_store_dwordx4 %s, v%d, %s, s%d offen sc1" % (vr(vP, 4), vL16, sr(sWS, 4), sb))
    sumu(vP + 4, vP, 4)
    wave_sumu(vP + 4, vP + 5)
    A("v_mov_b32 v%d, v%d" % (vP + 6, vNon))
    A("v_mov_b32 v%d, v%d" % (vP + 7, vNon + 1))
    A("s_mov_b64 exec, 1")
    A("buffer_store_dwordx4 %s, v%d, %s, s%d offen sc1" % (vr(vP + 4, 4), vL16, sr(sWS, 4), sa))
    A("s_mov_b64 exec, -1")
    A("s_setprio 0")
    stamp(8)
    A.label("K_WOREST")
    wo_piece("K_WODONE")
    A("s_cmp_lg_u32 s%d, 0" % sWoN)
    A("s_cbranch_scc1 K_WOREST")
    A("s_cmp_eq_u32 s%d, 0" % sB)
    A("s_cbranch_scc1 K_WOW0")
    A("s_waitcnt vmcnt(2)")
    A("s_branch K_WOW1")
    A.label("K_WOW0")
    A("s_waitcnt vmcnt(0)")
    A.label("K_WOW1")
    A("s_barrier")
    A("s_lshl_b32 s%d, s%d, 1" % (sa, sG3))
    A("s_add_u32 s%d, s%d, s%d" % (sa, sa, sC))
    A("s_lshl_b32 s%d, s%d, 2" % (sa, sa))
    A("s_add_u32 s%d, s%d, s%d" % (sa, sa, sT))
    A("s_lshl_b32 s%d, s%d, 9" % (sd, sa))
    A("s_add_u32 s%d, s%d, 0x%x" % (sd, sd, WS_FO))
    A("s_lshl_b32 s%d, s%d, 13" % (sa, sa))
    A("s_add_u32 s%d, s%d, 0x%x" % (sa, sa, WS_O))
    A("s_add_u32 s%d, s%d, 4096" % (sb, sa))
    A("v_lshlrev_b32 v%d, 6, v%d" % (vT0, vL))
    A("v_mov_b32 v%d, 0" % vOG)
    A("s_mov_b64 exec, 0xff")
    A("buffer_load_dwordx4 %s, v%d, %s, s%d offen sc1" % (vr(vOG, 4), vT0, sr(sWS, 4), sd))
    A("s_mov_b64 exec, -1")
    A("v_bfe_u32 v%d, v%d, 2, 2" % (vT1, vL))
    A("v_lshl_add_u32 v%d, v%d, 3, v%d" % (vT2, vG, vT1))
    A("s_lshl_b32 s%d, s%d, 14" % (sc, sT))
    A("s_add_u32 s%d, s%d, %d" % (sc, sc, L_WO))
    A("v_lshl_add_u32 v%d, v%d, 7, s%d" % (vWOa, vT2, sc))
    A("v_lshrrev_b32 v%d, 1, v%d" % (vT1, vT1))
    A("v_lshl_add_u32 v%d, v%d, 6, v%d" % (vWOa, vT1, vWOa))
    A("v_bfe_u32 v%d, v%d, 4, 1" % (vT1, vL))
    A("v_lshl_add_u32 v%d, v%d, 5, v%d" % (vWOa, vT1, vWOa))
    A("v_and_b32 v%d, 3, v%d" % (vT1, vL))
    A("v_lshl_add_u32 v%d, v%d, 3, v%d" % (vWOa, vT1, vWOa))
    A("v_xor_b32 v%d, 64, v%d" % (vWOa + 1, vWOa))
    for s in range(8):
        for C in range(2):
            for half in range(2):
                A("ds_read_b64_tr_b16 %s, v%d offset:%d" % (vr(vAW + (s * 2 + C) * 4 + 2 * half, 2), vWOa + C, (16 * s + 4 * half) * 128))
    A("v_and_b32 v%d, 15, v%d" % (vT2, vN))
    A("v_xor_b32 v%d, v%d, v%d" % (vT2, vT2, vG))
    A("v_lshlrev_b32 v%d, 4, v%d" % (vT2, vT2))
    A("s_lshl_b32 s%d, s%d, 13" % (sc, sWv))
    A("s_add_u32 s%d, s%d, %d" % (sc, sc, L_RED))
    A("v_lshl_add_u32 v%d, v%d, 8, s%d" % (vT1, vN, sc))
    for u in range(8):
        A("v_xor_b32 v%d, %d, v%d" % (vRa + u, (2 * u) << 4, vT2))
        A("v_add_u32 v%d, v%d, v%d" % (vRa + u, vRa + u, vT1))
    A("v_lshrrev_b32 v%d, 3, v%d" % (vT3, vL))
    A("s_lshl_b32 s%d, s%d, 3" % (sc, sT))
    A("v_add_u32 v%d, s%d, v%d" % (vT3, sc, vT3))
    A("v_and_b32 v%d, 7, v%d" % (vT1, vL))
    A("v_lshlrev_b32 v%d, 1, v%d" % (vT1, vT1))
    A("v_and_b32 v%d, 15, v%d" % (vT2, vT3))
    A("v_xor_b32 v%d, v%d, v%d" % (vT1, vT1, vT2))
    A("v_lshlrev_b32 v%d, 4, v%d" % (vT1, vT1))
    A("s_lshl_b32 s%d, s%d, 15" % (sc, sC))
    A("s_add_u32 s%d, s%d, %d" % (sc, sc, L_RED))
    A("v_lshl_add_u32 v%d, v%d, 8, s%d" % (vT3, vT3, sc))
    A("v_add_u32 v%d, v%d, v%d" % (vT2, vT3, vT1))
    A("v_xor_b32 v%d, 16, v%d" % (vT1, vT1))
    A("v_add_u32 v%d, v%d, v%d" % (vT3, vT3, vT1))
    A("s_mov_b32 s%d, 0" % sCnt)
    A("s_mov_b64 exec, 0xff")
    A.label("K_POLLO")
    A("s_waitcnt vmcnt(0)")
    A("v_cmp_eq_u64 vcc, %s, %s" % (vr(vOG + 2, 2), vr(vNon, 2)))
    A("s_cmp_eq_u64 vcc, exec")
    A("s_cbranch_scc1 K_POLLO_OK")
    A("buffer_load_dwordx4 %s, v%d, %s, s%d offen sc1" % (vr(vOG, 4), vT0, sr(sWS, 4), sd))
    spin_tail("K_POLLO", sCnt)
    A.label("K_POLLO_OK")
    A("s_mov_b64 exec, -1")
    stamp(9)
    A.label("K_OLOAD")
    for s in range(8):
        A("buffer_load_dwordx4 %s, v%d, %s, s%d offen offset:%d sc1" % (vr(vOF + 4 * s, 4), vL16, sr(sWS, 4), sa if s < 4 else sb, (s & 3) * 1024))
    A("v_sub_u32 v%d, 0, v%d" % (vChk, vOG))
    A("s_waitcnt lgkmcnt(0)")
    for s in range(8):
        A("s_waitcnt vmcnt(%d)" % (7 - s))
        A("%s %s, %s, %s, %s" % (MFMA, vr(vH0, 16), vr(vAW + (s * 2) * 4, 4), vr(vOF + 4 * s, 4), "0" if s == 0 else vr(vH0, 16)))
        A("v_add3_u32 v%d, v%d, v%d, v%d" % (vChk, vOF + 4 * s, vOF + 4 * s + 1, vChk))
        A("%s %s, %s, %s, %s" % (MFMA, vr(vH1, 16), vr(vAW + (s * 2 + 1) * 4, 4), vr(vOF + 4 * s, 4), "0" if s == 0 else vr(vH1, 16)))
        A("v_add3_u32 v%d, v%d, v%d, v%d" % (vChk, vOF + 4 * s + 2, vOF + 4 * s + 3, vChk))
    wave_sumu(vChk, vT1)
    A.nop(1)
    A("v_readfirstlane_b32 s68, v%d" % vChk)
    A("s_cmp_eq_u32 s68, 0")
    A("s_cbranch_scc1 K_OOK")
    spin_tail("K_OLOAD", sCnt)
    A.label("K_OOK")
    A("s_barrier")
    stamp(10)
    A("v_and_b32 v%d, 7, v%d" % (vT0, vL))
    A("v_lshlrev_b32 v%d, 4, v%d" % (vT1, vT0))
    A("v_lshl_add_u32 v%d, v%d, 10, v%d" % (vT1, vTok, vT1))
    A("s_lshl_b32 s%d, s%d, 7" % (sd, sCG))
    A("s_add_u32 s%d, s%d, 0x%x" % (sa, sd, WS_H))
    A.nop(2)
    for u in range(8):
        A("ds_write_b128 v%d, %s" % (vRa + u, vr(vH0 + 4 * u, 4)))
    A("v_lshrrev_b32 v%d, 3, v%d" % (vPa, vL))
    A("v_lshlrev_b32 v%d, 4, v%d" % (vChk, vPa))
    A("v_lshl_add_u32 v%d, v%d, 10, v%d" % (vPa, vT0, vChk))
    A("s_lshl_b32 s%d, s%d, 13" % (sb, sG3))
    A("s_lshl_b32 s%d, s%d, 7" % (sc, sWv))
    A("s_add_u32 s%d, s%d, s%d" % (sb, sb, sc))
    A("s_add_u32 s%d, s%d, 0x%x" % (sb, sb, WS_P))
    A("s_lshl_b32 s%d, s%d, 10" % (sc, sCG))
    A("s_add_u32 s%d, s%d, s%d" % (sc, sc, sb))
    A("s_waitcnt lgkmcnt(0)")
    A("s_barrier")
    for q in range(4):
        A("ds_read_b128 %s, v%d offset:%d" % (vr(vOF + 8 * q, 4), vT2, q * 8192))
        A("ds_read_b128 %s, v%d offset:%d" % (vr(vOF + 8 * q + 4, 4), vT3, q * 8192))
    for i in range(4):
        A("v_lshlrev_b32 v%d, 16, v%d" % (vH0 + 2 * i, vXr + i))
        A("v_and_b32 v%d, 0xffff0000, v%d" % (vH0 + 2 * i + 1, vXr + i))
    A("s_waitcnt lgkmcnt(0)")
    for i in range(8):
        A("v_add_f32 v%d, v%d, v%d" % (vOF + i, vOF + i, vOF + 8 + i))
        A("v_add_f32 v%d, v%d, v%d" % (vOF + 16 + i, vOF + 16 + i, vOF + 24 + i))
    for i in range(8):
        A("v_add_f32 v%d, v%d, v%d" % (vOF + i, vOF + i, vOF + 16 + i))
    for i in range(4):
        A("v_cvt_pk_bf16_f32 v%d, v%d, v%d" % (vOF + 8 + i, vOF + 2 * i, vOF + 2 * i + 1))
    for i in range(4):
        A("v_lshlrev_b32 v%d, 16, v%d" % (vOF + 2 * i, vOF + 8 + i))
        A("v_and_b32 v%d, 0xffff0000, v%d" % (vOF + 2 * i + 1, vOF + 8 + i))
    for i in range(8):
        A("v_add_f32 v%d, v%d, v%d" % (vOF + i, vOF + i, vH0 + i))
    for i in range(4):
        A("v_cvt_pk_bf16_f32 v%d, v%d, v%d" % (vHp + i, vOF + 2 * i, vOF + 2 * i + 1))
    s1, s2, s3 = vOF + 16, vOF + 17, vOF + 18
    for i in range(4):
        for (acc, other) in ((s1, None), (s2, "self"), (s3, "w")):
            o = vOnes if other is None else (vHp + i if other == "self" else vWr + i)
            A("v_dot2_f32_bf16 v%d, v%d, v%d, %s" % (acc, vHp + i, o, "0" if i == 0 else "v%d" % acc))
    sumu(s3 + 1, vHp, 4)
    A("buffer_store_dwordx4 %s, v%d, %s, s%d offen sc1" % (vr(vHp, 4), vT1, sr(sWS, 4), sa))
    def red8(regs):
        for dpp in ("quad_perm:[1,0,3,2]", "quad_perm:[2,3,0,1]", "row_half_mirror"):
            for acc in regs:
                A("v_add_f32_dpp v%d, v%d, v%d %s row_mask:0xf bank_mask:0xf" % (acc, acc, acc, dpp))
    for dpp in ("quad_perm:[1,0,3,2]", "quad_perm:[2,3,0,1]", "row_half_mirror"):
        for acc in (s1, s2, s3):
            A("v_add_f32_dpp v%d, v%d, v%d %s row_mask:0xf bank_mask:0xf" % (acc, acc, acc, dpp))
        A("v_add_u32_dpp v%d, v%d, v%d %s row_mask:0xf bank_mask:0xf" % (s3 + 1, s3 + 1, s3 + 1, dpp))
    for acc in (s1, s2, s3, s3 + 1):
        A("v_min_u32 v%d, -2, v%d" % (acc, acc))
    A("s_mov_b32 exec_lo, 0x01010101")
    A("s_mov_b32 exec_hi, 0x01010101")
    A("buffer_store_dwordx4 %s, v%d, %s, s%d offen sc1" % (vr(s1, 4), vChk, sr(sWS, 4), sc))
    A("s_mov_b64 exec, -1")
    for i in range(3):
        A("v_mov_b32 v%d, v%d" % (vS + i, s1 + i))
    A("s_lshl_b32 s%d, 0x01010101, s%d" % (sMaskV, sCG))
    A("s_not_b32 s%d, s%d" % (sMaskV, sMaskV))
    A("s_mov_b32 s%d, s%d" % (sMaskV + 1, sMaskV))
    stamp(11)
    srd(sW, pOUT, 0x200000)
    for i in range(4):
        A("v_dot2_f32_bf16 v%d, v%d, v%d, %s" % (vW1, vWR4 + i, vOnes, "0" if i == 0 else "v%d" % vW1))
    A.nop(3)
    for dpp in ("quad_perm:[1,0,3,2]", "quad_perm:[2,3,0,1]", "row_half_mirror", "row_mirror"):
        A("v_add_f32_dpp v%d, v%d, v%d %s row_mask:0xf bank_mask:0xf" % (vW1, vW1, vW1, dpp))
        A.nop(2)
    for sw in ("v_permlane16_swap_b32", "v_permlane32_swap_b32"):
        A("v_mov_b32 v%d, v%d" % (vT0, vW1))
        A.nop(2)
        A("%s v%d, v%d" % (sw, vW1, vT0))
        A.nop(1)
        A("v_add_f32 v%d, v%d, v%d" % (vW1, vW1, vT0))
    A("s_cmp_eq_u32 s%d, 0" % sRole)
    A("s_cbranch_scc1 K_NOFA")
    for i in range(24):
        A("v_mov_b32 v%d, v%d" % (vBF + i, vOnes))
    A.label("K_NOFA")
    for i in range(4):
        A("v_lshlrev_b32 v%d, 16, v%d" % (vX + 2 * i, vHp + i))
        A("v_and_b32 v%d, 0xffff0000, v%d" % (vX + 2 * i + 1, vHp + i))
    A("v_sub_u32 v%d, 2047, v%d" % (vT0, vTok))
    A("s_lshl_b32 s68, s%d, 3" % sWv)
    A("s_add_u32 s68, s68, %d" % L_TOP)
    A("v_mov_b32 v%d, s68" % vT3)
    A("s_mov_b32 s%d, 0xfffff800" % sI2)
    A("v_mov_b32 v%d, 0" % vK2)
    A("s_mov_b32 s%d, 0" % sCnt)
    A("s_mov_b64 exec, %s" % sr(sMaskV, 2))
    A.label("K_POLL1")
    A("buffer_load_dwordx4 %s, v%d, %s, s%d offen sc1" % (vr(vS, 4), vPa, sr(sWS, 4), sb))
    A("s_waitcnt vmcnt(0)")
    maxu(vT2, vS, 4)
    A("v_cmp_eq_u32 vcc, -1, v%d" % vT2)
    A("s_cmp_eq_u64 vcc, 0")
    A("s_cbranch_scc1 K_POLL1_OK")
    spin_tail("K_POLL1", sCnt)
    A.label("K_POLL1_OK")
    A("s_mov_b64 exec, -1")
    stamp(12)
    red8((vS, vS + 1, vS + 2))
    ln_stats(vS, vS + 1)
    A("v_fma_f32 v%d, -v%d, v%d, v%d" % (vS + 2, vS, vW1, vS + 2))
    A("v_mul_f32 v%d, v%d, v%d" % (vS + 2, vS + 2, vS + 1))
    A("v_ashrrev_i32 v%d, 31, v%d" % (vK1, vS + 2))
    A("v_or_b32 v%d, 0x80000000, v%d" % (vK1, vK1))
    A("v_xor_b32 v%d, v%d, v%d" % (vK1, vK1, vS + 2))
    A("v_and_or_b32 v%d, v%d, s%d, v%d" % (vK1, vK1, sI2, vT0))
    def merge(p1=vP1, p2=vP2):
        A("v_max_u32 v%d, v%d, v%d" % (vK2, vK2, p2))
        A("v_med3_u32 v%d, v%d, v%d, v%d" % (vK2, vK1, p1, vK2))
        A("v_max_u32 v%d, v%d, v%d" % (vK1, vK1, p1))
    def merge_dpp(dpp):
        A.nop(2)
        A("v_mov_b32_dpp v%d, v%d %s row_mask:0xf bank_mask:0xf" % (vP1, vK1, dpp))
        A("v_mov_b32_dpp v%d, v%d %s row_mask:0xf bank_mask:0xf" % (vP2, vK2, dpp))
        merge()
    def merge_swap(sw):
        A("v_mov_b32 v%d, v%d" % (vP1, vK1))
        A("v_mov_b32 v%d, v%d" % (vP2, vK2))
        A.nop(2)
        A("%s v%d, v%d" % (sw, vK1, vP1))
        A("%s v%d, v%d" % (sw, vK2, vP2))
        A.nop(1)
        merge()
    merge_dpp("row_ror:8")
    merge_swap("v_permlane16_swap_b32")
    merge_swap("v_permlane32_swap_b32")
    A("ds_write_b64 v%d, %s" % (vT3, vr(vK1, 2)))
    A("s_waitcnt lgkmcnt(0)")
    A("s_barrier")
    A("s_cmp_eq_u32 s%d, 0" % sWv)
    A("s_cbranch_scc1 K_W0")
    A("s_cmp_eq_u32 s%d, 0" % sC)
    A("s_cbranch_scc1 K_STG_DONE")
    A("s_cmp_eq_u32 s%d, 0" % sRole)
    A("s_cbranch_scc1 K_STG_DONE")
    A("s_mov_b32 s%d, s%d" % (sc, sT))
    A("v_lshrrev_b32 v%d, 1, v%d" % (vT0, vL))
    A("v_and_b32 v%d, 1, v%d" % (vT2, vL))
    A("v_lshlrev_b32 v%d, 4, v%d" % (vT2, vT2))
    A("s_lshl_b32 s%d, s%d, 5" % (sa, sJ))
    A("s_cmp_eq_u32 s%d, 1" % sRole)
    A("s_cbranch_scc0 K_FFN_D")
    srd(sGA, pWG, 512 * 2752)
    srd(sGB, pWU, 512 * 2752)
    A("v_mul_u32_u24 v%d, 2752, v%d" % (vT0, vT0))
    A("v_add_u32 v%d, v%d, v%d" % (vT0, vT0, vT2))
    A("s_mul_i32 s%d, s%d, %d" % (sb, sc, 128 * 2752))
    A("s_add_u32 s%d, s%d, s%d" % (sa, sa, sb))
    A("s_lshl_b32 s%d, s%d, 12" % (sb, sc))
    for q in range(4):
        A("s_add_u32 s%d, s%d, %d" % (sc, sb, L_F + q * 1024))
        A("s_mov_b32 m0, s%d" % sc)
        A("s_add_u32 s%d, s%d, %d" % (sc, sb, L_FU + q * 1024))
        A("buffer_load_dwordx4 v%d, %s, s%d offen lds" % (vT0, sr(sGA, 4), sa))
        A("s_mov_b32 m0, s%d" % sc)
        A("s_nop 0")
        A("buffer_load_dwordx4 v%d, %s, s%d offen lds" % (vT0, sr(sGB, 4), sa))
        A("s_add_u32 s%d, s%d, %d" % (sa, sa, 32 * 2752))
    A("s_branch K_STG_DONE")
    A.label("K_FFN_D")
    srd(sGA, pWD, 1376 * 1024)
    A("v_lshl_add_u32 v%d, v%d, 10, v%d" % (vT0, vT0, vT2))
    A("s_lshl_b32 s%d, s%d, 15" % (sb, sc))
    A("s_add_u32 s%d, s%d, s%d" % (sa, sa, sb))
    A("s_lshl_b32 s%d, s%d, 10" % (sb, sc))
    A("s_add_u32 s%d, s%d, %d" % (sb, sb, L_F))
    A.label("K_FFN_DL")
    A("s_mov_b32 m0, s%d" % sb)
    A("s_add_u32 s%d, s%d, 4096" % (sb, sb))
    A("buffer_load_dwordx4 v%d, %s, s%d offen lds" % (vT0, sr(sGA, 4), sa))
    A("s_add_u32 s%d, s%d, 0x20000" % (sa, sa))
    A("s_cmp_lt_u32 s%d, %d" % (sb, L_F + 43 * 1024))
    A("s_cbranch_scc1 K_FFN_DL")
    A.label("K_STG_DONE")
    A("s_waitcnt vmcnt(0)")
    A("s_branch K_L2WAIT")
    A.label("K_W0")
    A("v_and_b32 v%d, 7, v%d" % (vT2, vL))
    A("v_lshlrev_b32 v%d, 3, v%d" % (vT2, vT2))
    A("v_add_u32 v%d, %d, v%d" % (vT2, L_TOP, vT2))
    A("ds_read_b64 %s, v%d" % (vr(vK1, 2), vT2))
    A("v_lshlrev_b32 v%d, 6, v%d" % (vT2, vN))
    A("s_mov_b32 s%d, 0x%x" % (sa, WS_E))
    A("s_lshl_b32 s%d, s%d, 6" % (sc, sG3))
    A("s_add_u32 s%d, s%d, s%d" % (sc, sc, sa))
    A("s_and_b32 s68, s%d, 7" % sG3)
    A("s_cmp_eq_u32 s68, s%d" % sCG)
    A("s_cbranch_scc0 K_NOPUB2")
    A("s_waitcnt lgkmcnt(0)")
    for dpp in ("quad_perm:[1,0,3,2]", "quad_perm:[2,3,0,1]", "row_half_mirror"):
        merge_dpp(dpp)
    A("v_mov_b32 v%d, v%d" % (vAcc, vK1))
    A("v_mov_b32 v%d, v%d" % (vAcc + 1, vK2))
    A("v_mov_b32 v%d, v%d" % (vAcc + 2, vNon))
    A("v_mov_b32 v%d, v%d" % (vAcc + 3, vNon + 1))
    A("s_mov_b64 exec, 1")
    A("buffer_store_dwordx4 %s, v%d, %s, s%d offen sc1" % (vr(vAcc, 4), vT2, sr(sWS, 4), sc))
    A("s_mov_b64 exec, -1")
    A.label("K_NOPUB2")
    A("s_mov_b32 s%d, 0" % sCnt)
    A("s_mov_b32 exec_hi, 0")
    A.label("K_POLL2")
    A("buffer_load_dwordx4 %s, v%d, %s, s%d offen sc1" % (vr(vAcc + 4, 4), vT2, sr(sWS, 4), sa))
    A("s_waitcnt vmcnt(0)")
    A("v_cmp_eq_u64 vcc, %s, %s" % (vr(vAcc + 6, 2), vr(vNon, 2)))
    A("s_cmp_eq_u64 vcc, exec")
    A("s_cbranch_scc1 K_POLL2_OK")
    spin_tail("K_POLL2", sCnt)
    A.label("K_POLL2_OK")
    A("s_mov_b64 exec, -1")
    A("s_waitcnt lgkmcnt(0)")
    A("v_mov_b32 v%d, v%d" % (vK1, vAcc + 4))
    A("v_mov_b32 v%d, v%d" % (vK2, vAcc + 5))
    for dpp in ("quad_perm:[1,0,3,2]", "quad_perm:[2,3,0,1]", "row_half_mirror", "row_mirror"):
        merge_dpp(dpp)
    merge_swap("v_permlane16_swap_b32")
    A("s_mov_b64 exec, 1")
    A("ds_write_b64 v%d, %s offset:64" % (vT3, vr(vK1, 2)))
    A("s_mov_b64 exec, -1")
    A("s_waitcnt lgkmcnt(0)")
    A.label("K_L2WAIT")
    for i in range(8):
        A("v_sub_f32 v%d, v%d, v%d" % (vX + 8 + i, vX + i, vS))
        A("v_fmac_f32 v%d, v%d, v%d" % (vX + i, vX + 8 + i, vS + 1))
    for i in range(4):
        A("v_cvt_pk_bf16_f32 v%d, v%d, v%d" % (vHp + i, vX + 2 * i, vX + 2 * i + 1))
    A("v_mov_b32 v%d, %d" % (vT3, L_TOP + 64))
    A("v_mov_b32 v%d, 0" % (vSel + 1))
    A("s_barrier")
    A("ds_read_b64 %s, v%d" % (vr(vK1, 2), vT3))
    A("s_waitcnt lgkmcnt(0)")
    A("v_readfirstlane_b32 s%d, v%d" % (sI1, vK1))
    A("v_readfirstlane_b32 s%d, v%d" % (sI2, vK2))
    A("s_and_b32 s%d, s%d, 0x7ff" % (sI1, sI1))
    A("s_sub_u32 s%d, 2047, s%d" % (sI1, sI1))
    A("s_and_b32 s%d, s%d, 0x7ff" % (sI2, sI2))
    A("s_sub_u32 s%d, 2047, s%d" % (sI2, sI2))
    stamp(13)
    A("s_cmp_eq_u32 s%d, 0" % sRole)
    A("s_cbranch_scc1 K_OWN")
    A("s_lshr_b32 s%d, s%d, 2" % (sI, sJ))
    A("s_and_b32 s%d, s%d, 3" % (sN, sJ))
    A("s_cmp_eq_u32 s%d, 1" % sRole)
    A("s_cselect_b32 s%d, s%d, s%d" % (sI, sWv, sI))
    A("s_cselect_b32 s%d, 0, s%d" % (sN, sN))
    A("s_cbranch_scc1 K_SEL")
    A("s_cmp_eq_u32 s%d, 0" % sWv)
    A("s_cbranch_scc0 K_OWN")
    A.label("K_SEL")
    A("v_mov_b32 v%d, s%d" % (vT0, sI1))
    A("v_mov_b32 v%d, s%d" % (vT2, sI2))
    A("s_mov_b32 vcc_lo, 0xaaaaaaaa")
    A("s_mov_b32 vcc_hi, 0xaaaaaaaa")
    A("v_cndmask_b32 v%d, v%d, v%d, vcc" % (vPa, vT0, vT2))
    A("v_lshlrev_b32 v%d, 10, v%d" % (vPa, vPa))
    A("v_lshl_add_u32 v%d, v%d, 4, v%d" % (vPa, vG, vPa))
    A("s_lshl_b32 s%d, s%d, 7" % (sc, sI))
    A("s_add_u32 s%d, s%d, 0x%x" % (sc, sc, WS_H))
    def h_loads():
        A("s_mov_b32 exec_lo, 3")
        A("s_mov_b32 exec_hi, 3")
        for s in range(4):
            A("s_add_u32 s68, s%d, %d" % (sN, s))
            A("s_and_b32 s68, s68, 3")
            A("s_lshl_b32 s68, s68, 5")
            A("s_add_u32 s68, s68, s%d" % sc)
            A("buffer_load_dwordx4 %s, v%d, %s, s68 offen sc1" % (vr(vBF + 4 * s, 4), vPa, sr(sWS, 4)))
        A("s_mov_b64 exec, -1")
    h_loads()
    A("s_mov_b32 vcc_lo, 0xffff0000")
    A("s_mov_b32 vcc_hi, 0xffff0000")
    A("v_cndmask_b32 v%d, v%d, v%d, vcc" % (vT0, vT0, vT2))
    A("v_lshrrev_b32 v%d, 6, v%d" % (vT2, vT0))
    A("v_lshlrev_b32 v%d, 13, v%d" % (vT2, vT2))
    A("v_bfe_u32 v%d, v%d, 4, 2" % (vT3, vT0))
    A("v_lshl_add_u32 v%d, v%d, 8, v%d" % (vT2, vT3, vT2))
    A("v_bfe_u32 v%d, v%d, 2, 1" % (vT3, vT0))
    A("v_lshl_add_u32 v%d, v%d, 7, v%d" % (vT2, vT3, vT2))
    A("v_bfe_u32 v%d, v%d, 3, 1" % (vT3, vT0))
    A("v_lshl_add_u32 v%d, v%d, 6, v%d" % (vT2, vT3, vT2))
    A("v_and_b32 v%d, 3, v%d" % (vT3, vT0))
    A("v_lshl_add_u32 v%d, v%d, 4, v%d" % (vT2, vT3, vT2))
    A("v_and_b32 v%d, 7, v%d" % (vT3, vL))
    A("v_lshl_add_u32 v%d, v%d, 10, v%d" % (vT2, vT3, vT2))
    A("s_mov_b32 s68, 0x%x" % WS_P)
    A("buffer_load_dwordx4 %s, v%d, %s, s68 offen sc1" % (vr(vSs, 4), vT2, sr(sWS, 4)))
    A("v_and_b32 v%d, 14, v%d" % (vT2, vL))
    A("v_lshlrev_b32 v%d, 1, v%d" % (vT2, vT2))
    A("v_lshl_add_u32 v%d, v%d, 10, v%d" % (vSel + 1, vT0, vT2))
    def h_check(retry, ok):
        sumu(vT2, vBF, 16)
        A("s_add_u32 s%d, s%d, 16" % (sb, sI))
        A("v_readlane_b32 s68, v%d, s%d" % (vSs + 3, sI))
        A("v_readlane_b32 s69, v%d, s%d" % (vSs + 3, sb))
        A("v_readlane_b32 s%d, v%d, 0" % (sa, vT2))
        A("v_readlane_b32 s%d, v%d, 32" % (sb, vT2))
        A("s_add_u32 s%d, s%d, s%d" % (sa, sa, sb))
        A("s_min_u32 s%d, s%d, -2" % (sa, sa))
        A("s_xor_b32 s68, s68, s%d" % sa)
        A("v_readlane_b32 s%d, v%d, 1" % (sa, vT2))
        A("v_readlane_b32 s%d, v%d, 33" % (sb, vT2))
        A("s_add_u32 s%d, s%d, s%d" % (sa, sa, sb))
        A("s_min_u32 s%d, s%d, -2" % (sa, sa))
        A("s_xor_b32 s69, s69, s%d" % sa)
        A("s_or_b32 s68, s68, s69")
        A("s_cbranch_scc0 %s" % ok)
        h_loads()
        A("s_waitcnt vmcnt(0)")
        spin_tail(retry, sCnt)
    A.label("K_OWN")
    A("v_cmp_ne_u32 vcc, s%d, v%d" % (sI1, vTok))
    A("v_cmp_ne_u32 s[68:69], s%d, v%d" % (sI2, vTok))
    A("s_and_b64 exec, vcc, s[68:69]")
    A("buffer_store_dwordx4 %s, v%d, %s, s%d offen" % (vr(vHp, 4), vT1, sr(sW, 4), sd))
    A("s_mov_b64 exec, -1")
    A("s_cmp_eq_u32 s%d, 0" % sRole)
    A("s_cbranch_scc1 K_FIN")
    A("v_bfe_u32 v%d, v%d, 2, 2" % (vT0, vL))
    A("v_and_b32 v%d, 3, v%d" % (vT2, vL))
    A("s_cmp_eq_u32 s%d, 1" % sRole)
    A("s_cbranch_scc0 K_FA_D")
    A("v_lshl_add_u32 v%d, v%d, 3, v%d" % (vT0, vG, vT0))
    A("s_lshl_b32 s68, s%d, 11" % sWv)
    A("s_add_u32 s68, s68, %d" % L_F)
    A("v_lshl_add_u32 v%d, v%d, 5, s68" % (vT0, vT0))
    A("v_lshl_add_u32 v%d, v%d, 3, v%d" % (vT0, vT2, vT0))
    A("v_bfe_u32 v%d, v%d, 4, 1" % (vT2, vL))
    A("v_mul_u32_u24 v%d, %d, v%d" % (vT2, L_FU - L_F, vT2))
    A("v_add_u32 v%d, v%d, v%d" % (vT0, vT0, vT2))
    for s in range(4):
        for half in range(2):
            A("ds_read_b64_tr_b16 %s, v%d offset:%d" % (vr(vFA + 4 * s + 2 * half, 2), vT0, (16 * s + 4 * half) * 32))
    A("s_branch K_FA_DONE")
    A.label("K_FA_D")
    A("v_lshrrev_b32 v%d, 4, v%d" % (vT3, vL))
    A("v_lshl_add_u32 v%d, v%d, 3, v%d" % (vT0, vT3, vT0))
    A("s_lshl_b32 s68, s%d, 10" % sWv)
    A("s_add_u32 s68, s68, %d" % L_F)
    A("v_lshl_add_u32 v%d, v%d, 5, s68" % (vT0, vT0))
    A("v_lshl_add_u32 v%d, v%d, 3, v%d" % (vT0, vT2, vT0))
    for i in range(6):
        if i == 5:
            A("s_cmp_lt_u32 s%d, 3" % sWv)
            A("s_cbranch_scc0 K_FA_DONE")
        for half in range(2):
            A("ds_read_b64_tr_b16 %s, v%d offset:%d" % (vr(vFA + 4 * i + 2 * half, 2), vT0, i * 8192 + 4 * half * 32))
    A.label("K_FA_DONE")
    A("s_cmp_eq_u32 s%d, 1" % sRole)
    A("s_cbranch_scc0 K_DOWN")
    A("v_lshlrev_b32 v%d, 7, v%d" % (vT0, vN))
    A("v_lshl_add_u32 v%d, v%d, 4, v%d" % (vT0, vG, vT0))
    A("s_mul_i32 s%d, s%d, 384" % (sa, sWv))
    A("s_add_u32 s%d, s%d, %d" % (sa, sa, L_R2))
    A("v_add_u32 v%d, s%d, v%d" % (vT0, sa, vT0))
    A("s_mov_b32 s%d, 0" % sCnt)
    A("s_waitcnt vmcnt(1) lgkmcnt(0)")
    A.label("K_HCHK")
    for s in range(4):
        A("%s %s, %s, %s, %s" % (MFMA, vr(vAcc, 16), vr(vFA + 4 * s, 4), vr(vBF + 4 * s, 4), "0" if s == 0 else vr(vAcc, 16)))
    h_check("K_HCHK", "K_HOK")
    A.label("K_HOK")
    A("s_mov_b32 exec_lo, 7")
    A("s_mov_b32 exec_hi, 7")
    for a_ in range(4):
        A("ds_write_b128 v%d, %s offset:%d" % (vT0, vr(vAcc + 4 * a_, 4), a_ * 32))
    A("s_mov_b64 exec, -1")
    A("s_cmp_eq_u32 s%d, 0" % sWv)
    A("s_cbranch_scc1 K_GU_W0")
    A("s_waitcnt lgkmcnt(0)")
    A("s_barrier")
    A("s_branch K_FIN")
    A.label("K_GU_W0")
    red8((vSs, vSs + 1, vSs + 2))
    ln_stats(vSs, vSs + 1)
    A("v_bfe_u32 v%d, v%d, 4, 1" % (vT0, vL))
    A("v_and_b32 v%d, 15, v%d" % (vT2, vL))
    A("v_lshlrev_b32 v%d, 2, v%d" % (vT3, vT2))
    A("v_mul_u32_u24 v%d, 1536, v%d" % (vT2, vG))
    A("v_add_u32 v%d, v%d, v%d" % (vT3, vT3, vT2))
    A("v_add_u32 v%d, %d, v%d" % (vT3, L_R2, vT3))
    A("v_lshl_add_u32 v%d, v%d, 7, v%d" % (vT2, vT0, vT3))
    A("v_add_u32 v%d, 768, v%d" % (vP1, vT2))
    A("v_add_u32 v%d, 768, v%d" % (vP2, vT3))
    A("v_lshlrev_b32 v%d, 1, v%d" % (vT0, vL))
    A("s_lshl_b32 s%d, s%d, 6" % (sa, sJ))
    A("s_add_u32 s%d, s%d, 0x%x" % (sa, sa, WS_A))
    A("s_waitcnt lgkmcnt(0)")
    A("s_barrier")
    stamp(14)
    for hh, (ra, rb) in enumerate(((vT2, vT3), (vP1, vP2))):
        for w_ in range(2):
            A("ds_read2_b32 %s, v%d offset0:%d offset1:%d" % (vr(vX + 8 * hh + 4 * w_, 2), ra, w_ * 96, w_ * 96 + 16))
            A("ds_read2_b32 %s, v%d offset0:%d offset1:%d" % (vr(vX + 8 * hh + 4 * w_ + 2, 2), rb, w_ * 96 + 64, w_ * 96 + 80))
    A("s_waitcnt lgkmcnt(0)")
    for i in range(4):
        A("v_add_f32 v%d, v%d, v%d" % (vX + i, vX + i, vX + 4 + i))
        A("v_add_f32 v%d, v%d, v%d" % (vX + 8 + i, vX + 8 + i, vX + 12 + i))
    for i in range(4):
        A("v_add_f32 v%d, v%d, v%d" % (vX + i, vX + i, vX + 8 + i))
    for i in range(4):
        A("v_mov_b32 v%d, v%d" % (vX + 4 + i, vX + i))
    A.nop(1)
    for i in range(4):
        A("v_permlane32_swap_b32 v%d, v%d" % (vX + i, vX + 4 + i))
    for i in range(4):
        A("v_add_f32 v%d, v%d, v%d" % (vX + i, vX + i, vX + 4 + i))
    A("v_fma_f32 v%d, -v%d, v%d, v%d" % (vX, vSs, vX + 2, vX))
    A("v_fma_f32 v%d, -v%d, v%d, v%d" % (vX + 1, vSs, vX + 3, vX + 1))
    A("v_mul_f32 v%d, v%d, v%d" % (vX, vX, vSs + 1))
    A("v_mul_f32 v%d, v%d, v%d" % (vX + 1, vX + 1, vSs + 1))
    A("v_mul_f32 v%d, %s, v%d" % (vX + 2, f32(-LOG2E), vX))
    A("v_exp_f32 v%d, v%d" % (vX + 2, vX + 2))
    A("v_mul_f32 v%d, v%d, v%d" % (vX, vX, vX + 1))
    A("v_add_f32 v%d, 1.0, v%d" % (vX + 2, vX + 2))
    A("v_rcp_f32 v%d, v%d" % (vX + 2, vX + 2))
    A.nop(1)
    A("v_mul_f32 v%d, v%d, v%d" % (vX, vX, vX + 2))
    A.nop(2)
    A("v_mov_b32_dpp v%d, v%d quad_perm:[1,0,3,2] row_mask:0xf bank_mask:0xf" % (vX + 1, vX))
    A("v_cvt_pk_bf16_f32 v%d, v%d, v%d" % (vX + 2, vX, vX + 1))
    A("v_min_u32 v%d, -2, v%d" % (vX + 2, vX + 2))
    A("s_mov_b32 exec_lo, 0x55555555")
    A("s_mov_b32 exec_hi, 0")
    A("buffer_store_dword v%d, v%d, %s, s%d offen sc1" % (vX + 2, vT0, sr(sWS, 4), sa))
    A("s_mov_b64 exec, -1")
    A("s_branch K_FIN")
    A.label("K_DOWN")
    A("s_cmp_eq_u32 s%d, 0" % sWv)
    A("s_cbranch_scc0 K_D_POLL")
    A("s_mov_b32 s%d, 0" % sCnt)
    A("s_waitcnt vmcnt(0)")
    A.label("K_DH")
    h_check("K_DH", "K_DH_OK")
    A.label("K_DH_OK")
    A("v_lshlrev_b32 v%d, 5, v%d" % (vT0, vN))
    A("v_lshl_add_u32 v%d, v%d, 4, v%d" % (vT0, vG, vT0))
    A("v_add_u32 v%d, %d, v%d" % (vT0, L_TOP + 128, vT0))
    A("s_mov_b32 exec_lo, 3")
    A("s_mov_b32 exec_hi, 3")
    A("ds_write_b128 v%d, %s" % (vT0, vr(vBF, 4)))
    A("s_mov_b64 exec, -1")
    A("v_and_b32 v%d, 30, v%d" % (vT0, vL))
    A("v_lshlrev_b32 v%d, 1, v%d" % (vT0, vT0))
    A("v_add_u32 v%d, %d, v%d" % (vT0, L_TOP + 128, vT0))
    A("s_waitcnt lgkmcnt(0)")
    A("ds_read_b32 v%d, v%d" % (vSel, vT0))
    A("s_waitcnt lgkmcnt(0)")
    red8((vSs, vSs + 1, vSs + 2))
    ln_stats(vSs, vSs + 1)
    A("v_lshlrev_b32 v%d, 16, v%d" % (vX, vSel))
    A("v_and_b32 v%d, 0xffff0000, v%d" % (vSel, vSel))
    A("v_fma_f32 v%d, -v%d, v%d, v%d" % (vSs + 2, vSs, vW1, vSs + 2))
    A("v_mul_f32 v%d, v%d, v%d" % (vSs + 2, vSs + 2, vSs + 1))
    A("v_mul_f32 v%d, %s, v%d" % (vSs + 2, f32(-LOG2E), vSs + 2))
    A("v_exp_f32 v%d, v%d" % (vSs + 2, vSs + 2))
    A("s_mov_b32 vcc_lo, 0x55555555")
    A("s_mov_b32 vcc_hi, 0x55555555")
    A("v_cndmask_b32 v%d, v%d, v%d, vcc" % (vSel, vSel, vX))
    A("v_add_f32 v%d, 1.0, v%d" % (vSs + 2, vSs + 2))
    A("v_rcp_f32 v%d, v%d" % (vSs + 2, vSs + 2))
    A("v_sub_f32 v%d, v%d, v%d" % (vX + 1, vSel, vSs))
    A("v_fmac_f32 v%d, v%d, v%d" % (vSel, vX + 1, vSs + 1))
    A.label("K_D_POLL")
    A("v_and_b32 v%d, 1, v%d" % (vT0, vL))
    A("v_lshlrev_b32 v%d, 5, v%d" % (vT0, vT0))
    A("v_lshl_add_u32 v%d, v%d, 6, v%d" % (vT0, vG, vT0))
    A("v_bfe_u32 v%d, v%d, 4, 1" % (vT2, vL))
    A("v_lshl_add_u32 v%d, v%d, 4, v%d" % (vT0, vT2, vT0))
    A("v_lshrrev_b32 v%d, 4, v%d" % (vT2, vL))
    A("s_lshl_b32 s68, s%d, 7" % sWv)
    A("s_add_u32 s%d, s68, 0x%x" % (sa, WS_A))
    A("s_add_u32 s%d, s%d, 4096" % (sc, sa))
    A("v_and_b32 v%d, 15, v%d" % (vT3, vL))
    A("v_lshlrev_b32 v%d, 6, v%d" % (vT3, vT3))
    A("v_lshl_add_u32 v%d, v%d, 4, v%d" % (vT3, vT2, vT3))
    A("s_add_u32 s68, s68, %d" % L_R2)
    A("v_add_u32 v%d, s68, v%d" % (vT3, vT3))
    A("s_mov_b32 exec_lo, 0x00030003")
    A("s_mov_b32 exec_hi, 0x00030003")
    A("s_mov_b32 s%d, 0" % sCnt)
    A.label("K_POLLA")
    for i in range(5):
        if i < 4:
            A("buffer_load_dwordx4 %s, v%d, %s, s%d offen offset:%d sc1" % (vr(vBF + 4 * i, 4), vT0, sr(sWS, 4), sa, i * 1024))
        else:
            A("buffer_load_dwordx4 %s, v%d, %s, s%d offen sc1" % (vr(vBF + 4 * i, 4), vT0, sr(sWS, 4), sc))
    A("s_cmp_lt_u32 s%d, 3" % sWv)
    A("s_cbranch_scc0 K_POLLA5")
    A("buffer_load_dwordx4 %s, v%d, %s, s%d offen offset:1024 sc1" % (vr(vBF + 20, 4), vT0, sr(sWS, 4), sc))
    A.label("K_POLLA5")
    A("s_waitcnt vmcnt(0) lgkmcnt(0)")
    maxu(vT2, vBF, 24)
    A("v_cmp_eq_u32 vcc, -1, v%d" % vT2)
    A("s_cmp_eq_u64 vcc, 0")
    A("s_cbranch_scc1 K_POLLA_OK")
    spin_tail("K_POLLA", sCnt)
    A.label("K_POLLA_OK")
    A("s_mov_b64 exec, -1")
    stamp(14)
    for i in range(5):
        A("%s %s, %s, %s, %s" % (MFMA16, vr(vAcc, 4), vr(vFA + 4 * i, 4), vr(vBF + 4 * i, 4), "0" if i == 0 else vr(vAcc, 4)))
    A("s_cmp_lt_u32 s%d, 3" % sWv)
    A("s_cbranch_scc0 K_D5")
    A("%s %s, %s, %s, %s" % (MFMA16, vr(vAcc, 4), vr(vFA + 20, 4), vr(vBF + 20, 4), vr(vAcc, 4)))
    A.label("K_D5")
    A("v_lshlrev_b32 v%d, 2, v%d" % (vT0, vN))
    A("v_lshl_add_u32 v%d, v%d, 9, v%d" % (vT0, vG, vT0))
    A("v_add_u32 v%d, %d, v%d" % (vT0, L_R2, vT0))
    A("s_mov_b32 exec_lo, 0x00030003")
    A("s_mov_b32 exec_hi, 0x00030003")
    A.nop(3)
    A("ds_write_b128 v%d, %s" % (vT3, vr(vAcc, 4)))
    A("s_mov_b64 exec, -1")
    A("s_waitcnt lgkmcnt(0)")
    A("s_barrier")
    A("s_cmp_eq_u32 s%d, 0" % sWv)
    A("s_cbranch_scc0 K_FIN")
    A("ds_read2_b32 %s, v%d offset0:0 offset1:32" % (vr(vX + 2, 2), vT0))
    A("ds_read2_b32 %s, v%d offset0:64 offset1:96" % (vr(vX + 4, 2), vT0))
    A("s_lshl_b32 s%d, s%d, 5" % (sa, sJ))
    A("s_waitcnt lgkmcnt(0)")
    A("v_add_f32 v%d, v%d, v%d" % (vX + 2, vX + 2, vX + 3))
    A("v_add_f32 v%d, v%d, v%d" % (vX + 4, vX + 4, vX + 5))
    A("v_add_f32 v%d, v%d, v%d" % (vX, vX + 2, vX + 4))
    A("v_mov_b32 v%d, v%d" % (vX + 2, vX))
    A.nop(2)
    A("v_permlane32_swap_b32 v%d, v%d" % (vX, vX + 2))
    A.nop(1)
    A("v_add_f32 v%d, v%d, v%d" % (vX, vX, vX + 2))
    A("v_fmac_f32 v%d, v%d, v%d" % (vSel, vX, vSs + 2))
    A.nop(2)
    A("v_mov_b32_dpp v%d, v%d quad_perm:[1,0,3,2] row_mask:0xf bank_mask:0xf" % (vX, vSel))
    A("v_cvt_pk_bf16_f32 v%d, v%d, v%d" % (vSel, vSel, vX))
    A("s_mov_b32 exec_lo, 0x55555555")
    A("s_mov_b32 exec_hi, 0")
    A("buffer_store_dword v%d, v%d, %s, s%d offen" % (vSel, vSel + 1, sr(sW, 4), sa))
    A("s_mov_b64 exec, -1")
    A.label("K_FIN")
    if STAMPS:
        A("s_waitcnt vmcnt(0)")
        stamp(15)
        A("s_waitcnt lgkmcnt(0)")
        if opt.get("dbgout"):
            A("s_cmp_eq_u32 s2, %d" % opt["dbgout"])
            A("s_cbranch_scc0 K_END")
            A("s_cmp_eq_u32 s%d, 0" % sWv)
            A("s_cbranch_scc0 K_END")
            srd(sGA, pDBG, 256)
            A("v_mov_b32 v%d, 0" % vT0)
            A("s_mov_b64 exec, 1")
            for i, st in enumerate((0, 2, 3, 4, 5, 6, 7, 9, 10, 11, 12, 13, 14, 15)):
                A("v_mov_b32 v%d, s%d" % (vT2, 70 + 2 * st))
                A("v_sub_u32 v%d, v%d, v%d" % (vT2, vT2, vNon))
                A("buffer_store_dword v%d, v%d, %s, 0 offen offset:%d" % (vT2, vT0, sr(sGA, 4), 8 + 4 * i))
                A.nop(2)
            A("s_branch K_END")
        A("s_lshl_b32 s%d, s2, 3" % sa)
        A("s_add_u32 s%d, s%d, s%d" % (sa, sa, sWv))
        A("s_mul_i32 s%d, s%d, %d" % (sa, sa, NSTAMP_SLOTS * 8))
        A("s_add_u32 s%d, s%d, 0x%x" % (sa, sa, WS_STAMP))
        A("v_mov_b32 v%d, 0" % vT0)
        A("s_mov_b64 exec, 1")
        for i in range(16):
            A("v_mov_b32 v%d, s%d" % (vT2, 70 + 2 * i))
            A("v_mov_b32 v%d, s%d" % (vT3, 71 + 2 * i))
            A("buffer_store_dwordx2 %s, v%d, %s, s%d offen offset:%d" % (vr(vT2, 2), vT0, sr(sWS, 4), sa, i * 8))
            A.nop(2)
    A.label("K_END")
    A("s_endpgm")
    return A.text(), 256, LDS

HEADER = open("sequential_preLN__sliding_block__moe_arch_mod__prompt.s.ref").read().split("; Override launch")[0]

def build(opt):
    k, nv, lds = gen(opt)
    s = HEADER
    s += "; @launch grid=(256,1,1) block=(512,1,1) lds=%d\n" % lds
    s += '.amdgcn_target "amdgcn-amd-amdhsa--gfx950"\n.text\n'
    s += ".globl %s\n.p2align 8\n.type %s,@function\n%s:\n%s" % (KNAME, KNAME, KNAME, k)
    s += '.section .rodata,"a"\n'
    s += """.p2align 6
.amdhsa_kernel %s
  .amdhsa_next_free_vgpr %d
  .amdhsa_next_free_sgpr 102
  .amdhsa_accum_offset %d
  .amdhsa_group_segment_fixed_size 0
  .amdhsa_kernarg_size 88
  .amdhsa_user_sgpr_count 2
  .amdhsa_user_sgpr_kernarg_segment_ptr 1
  .amdhsa_system_sgpr_workgroup_id_x 1
.end_amdhsa_kernel
""" % (KNAME, nv, (nv + 3) // 4 * 4)
    return s

if __name__ == "__main__":
    out = sys.argv[1] if len(sys.argv) > 1 else "k.s"
    opt = {}
    for a in sys.argv[2:]:
        k, v = a.split("=")
        opt[k] = int(v)
    open(out, "w").write(build(opt))
```

```python
import sys, struct

def f32(x):
    return "0x%08x" % struct.unpack("<I", struct.pack("<f", x))[0]

WS_KV = 0x000000
WS_O = 0x400000
WS_H = 0x600000
WS_P = 0x800000
WS_A = 0x840000
WS_LS = 0x850000
WS_E = 0x860000
WS_FKV = 0x880000
WS_FO = 0x8a0000
WS_P2 = 0x8c0000
WS_SIZE = 0x10000000
WS_STAMP = 0x8000000
NSTAMP_SLOTS = 24

LOG2E = 1.4426950408889634
BIG = 1.0e30
SPIN_LIMIT = 100000
MFMA = "v_mfma_f32_32x32x16_bf16"
MFMA16 = "v_mfma_f32_16x16x32_bf16"
MFMA4 = "v_mfma_f32_4x4x4_16b_bf16"
KNAME = "sequential_preLN__sliding_block__moe_arch_mod__prompt_kernel"

class Asm:
    def __init__(self):
        self.L = []
    def __call__(self, s):
        self.L.append("    " + s.strip())
    def label(self, s):
        self.L.append(s + ":")
    def nop(self, n):
        while n > 0:
            k = min(n, 16)
            self.L.append("    s_nop %d" % (k - 1))
            n -= k
    def text(self):
        return "\n".join(self.L) + "\n"

def vr(b, n):
    assert b % 2 == 0, "unaligned vgpr tuple %d" % b
    return "v[%d:%d]" % (b, b + n - 1)
def sr(b, n):
    return "s[%d:%d]" % (b, b + n - 1)

def gen(opt):
    A = Asm()
    STAMPS = opt.get("stamps", 0)
    def stamp(i):
        if STAMPS:
            A("s_memrealtime %s" % sr(70 + 2 * i, 2))
    def srd(d, base, size):
        A("s_mov_b32 s%d, s%d" % (d, base))
        A("s_mov_b32 s%d, s%d" % (d + 1, base + 1))
        A("s_mov_b32 s%d, 0x%x" % (d + 2, size))
        A("s_mov_b32 s%d, 0x20000" % (d + 3))
    def cap(fn):
        keep = A.L; A.L = []; fn(); out = A.L; A.L = keep; return out
    pX, pW, pWO, pBX, pWR, pWG, pWU, pWD, pOUT, pDBG, pWS = 8, 10, 12, 14, 16, 18, 20, 22, 24, 26, 28
    sCG, sG3 = 14, 15
    sX, sW, sWS, sGA, sGB = 32, 36, 40, 44, 48
    sWv, sT, sC, sB, sHP, sTq, sWGL, sRole, sJ = 52, 53, 54, 55, 56, 57, 58, 59, 60
    sa, sb, sc, sd = 61, 62, 63, 64
    sKC, sXo, sWo, sSlotX, sDW = 3, 4, 5, 6, 7
    sXbase, sWbase = 30, 31
    sRd, sPub, sS = 65, 66, 67
    sN, sI, sChunk, sCnt = 3, 4, 5, 6
    sMaskV = 30
    sKu, sKm = 68, 69
    sI1, sI2 = 65, 66
    sWoG, sWoL, sWoR, sWoN = 65, 66, 67, 7
    vWoA, vWoB = 41, 40
    XS, WSL = 16384, 12288
    NSL = 5
    SLOT = XS + WSL
    L_WO = 86016
    L_K = 0
    L_V = 24576
    L_Q = 49152
    L_VX = 90112
    L_STR = 151552
    L_STM = 152064
    L_CS = 152576
    L_PAY = 153088
    L_NON = 153152
    L_CSP = 153600
    L_TOP = 155648
    L_R2 = 155904
    L_RED = L_WO
    L_F = 0
    L_FU = L_F + 16384 + 128
    LDS = 163840
    vL, vN, vG, vKap, vL16, vOnes, vTok = 1, 2, 3, 4, 5, 6, 7
    vT0, vT1, vT2, vT3 = 8, 9, 10, 11
    vNon = 12
    vXr = 14
    vWr = 18
    vFA = 200
    vWR4 = 248
    vW1 = 252
    vKb, vVb, vIG = 253, 254, 255
    vXg = 22
    vWg = 14
    vXa, vXc, vWa, vWc = 26, 30, 34, 38
    vU0, vU1 = 42, 43
    vOne2 = 44
    vB = 48
    vAcV, vAc0, vAc1 = 128, 144, 160
    vRow = 176
    vLSa, vLSb, vLSc = 184, 185, 186
    vCq, vCk, vCv = 188, 192, 196
    vGc = 112
    vE = 48
    vPk = 80
    vQ = 22
    vKad, vVad, vM, vMold = 26, 27, 30, 31
    vKa, vKbf = 32, 36
    vSa, vSb = 44, 60
    vCn = 76
    vP = 96
    vKV = 104
    vCm = 200
    vVa, vVbf = 216, 224
    vO = 232
    vWOa = 26
    vRa = 28
    vOF = 44
    vH0, vH1 = 76, 92
    vAW = 108
    vChk = 40
    vOG = 172
    vHp = 36
    vPa = 41
    vS = 44
    vK1, vK2, vP1, vP2 = 58, 59, 60, 61
    vX = 64
    vBF = 80
    vAcc = 104
    vSs = 120
    vSel = 124

    def spin_tail(lab, cnt):
        A("s_add_u32 s%d, s%d, 1" % (cnt, cnt))
        A("s_cmp_lt_u32 s%d, %d" % (cnt, SPIN_LIMIT))
        A("s_cbranch_scc1 %s" % lab)
    def maxu(dst, base, n):
        A("v_max_u32 v%d, v%d, v%d" % (dst, base, base + 1))
        for i in range(2, n, 2):
            A("v_max3_u32 v%d, v%d, v%d, v%d" % (dst, base + i, base + i + 1, dst))
    def sumu(dst, base, n, init=None):
        regs = [base + i for i in range(n)]
        if init is None:
            A("v_add_u32 v%d, v%d, v%d" % (dst, regs[0], regs[1])); regs = regs[2:]
        else:
            A("v_add3_u32 v%d, v%d, v%d, v%d" % (dst, regs[0], regs[1], init)); regs = regs[2:]
        for i in range(0, len(regs), 2):
            A("v_add3_u32 v%d, v%d, v%d, v%d" % (dst, regs[i], regs[i + 1], dst))
    def wave_sumu(v, tmp):
        for dpp in ("quad_perm:[1,0,3,2]", "quad_perm:[2,3,0,1]", "row_half_mirror", "row_mirror"):
            A.nop(2)
            A("v_add_u32_dpp v%d, v%d, v%d %s row_mask:0xf bank_mask:0xf" % (v, v, v, dpp))
        for sw in ("v_permlane16_swap_b32", "v_permlane32_swap_b32"):
            A("v_mov_b32 v%d, v%d" % (tmp, v))
            A.nop(2)
            A("%s v%d, v%d" % (sw, v, tmp))
            A.nop(1)
            A("v_add_u32 v%d, v%d, v%d" % (v, v, tmp))
    def ln_stats(s1, s2):
        A("v_mul_f32 v%d, %s, v%d" % (s1, f32(1.0 / 512), s1))
        A("v_mul_f32 v%d, %s, v%d" % (s2, f32(1.0 / 512), s2))
        A("v_fma_f32 v%d, -v%d, v%d, v%d" % (s2, s1, s1, s2))
        A("v_max_f32 v%d, 0, v%d" % (s2, s2))
        A("v_add_f32 v%d, %s, v%d" % (s2, f32(1e-5), s2))
        A("v_rsq_f32 v%d, v%d" % (s2, s2))

    A("s_cmp_ge_u32 s2, 256")
    A("s_cbranch_scc1 K_END")
    stamp(0)
    A("s_load_dwordx16 s[8:23], s[0:1], 0")
    A("s_load_dwordx4 s[24:27], s[0:1], 64")
    A("s_load_dwordx2 s[28:29], s[0:1], 80")
    A("v_and_b32 v%d, 63, v0" % vL)
    A("v_lshrrev_b32 v%d, 6, v0" % vT0)
    A("v_lshlrev_b32 v%d, 4, v%d" % (vL16, vL))
    A("v_readfirstlane_b32 s%d, v%d" % (sWv, vT0))
    A("s_and_b32 s%d, s2, 7" % sa)
    A("s_lshr_b32 s%d, s2, 3" % sb)
    A("s_lshr_b32 s%d, s%d, 1" % (sB, sa))
    A("s_lshr_b32 s%d, s%d, 3" % (sc, sb))
    A("s_lshl_b32 s%d, s%d, 2" % (sd, sc))
    A("s_add_u32 s%d, s%d, s%d" % (sB, sB, sd))
    A("s_and_b32 s%d, s%d, 1" % (sHP, sa))
    A("s_lshl_b32 s%d, s%d, 3" % (sHP, sHP))
    A("s_and_b32 s%d, s%d, 7" % (sKC, sb))
    A("s_add_u32 s%d, s%d, s%d" % (sHP, sHP, sKC))
    A("s_lshl_b32 s%d, s%d, 1" % (sc, sc))
    A("s_add_u32 s%d, s%d, s%d" % (sKC, sKC, sc))
    A("s_and_b32 s%d, s%d, 7" % (sKC, sKC))
    A("s_and_b32 s%d, s%d, 3" % (sT, sWv))
    A("s_lshr_b32 s%d, s%d, 2" % (sC, sWv))
    A("s_lshl_b32 s%d, s%d, 4" % (sWGL, sB))
    A("s_add_u32 s%d, s%d, s%d" % (sWGL, sWGL, sHP))
    A("s_cmp_eq_u32 s%d, 0" % sC)
    A("s_cbranch_scc0 K_PRO_LD")
    A("s_lshl_b32 s%d, s%d, 2" % (sa, sWGL))
    A("s_add_u32 s%d, s%d, s%d" % (sa, sa, sT))
    A("s_lshl_b32 s%d, s%d, 11" % (sb, sa))
    for i in range(4):
        A("v_mov_b32 v%d, -1" % (vT0 + i))
    A("s_waitcnt lgkmcnt(0)")
    srd(sX, pX, 0x200000)
    A("buffer_load_dwordx4 %s, v%d, %s, s%d offen" % (vr(vRow, 4), vL16, sr(sX, 4), sb))
    A("buffer_load_dwordx4 %s, v%d, %s, s%d offen offset:1024" % (vr(vRow + 4, 4), vL16, sr(sX, 4), sb))
    srd(sWS, pWS, WS_SIZE)
    A("s_or_b32 s%d, s2, s%d" % (sa, sWv))
    A("s_cmp_lg_u32 s%d, 0" % sa)
    A("s_cbranch_scc1 K_NONONCE")
    srd(sGA, pDBG, 256)
    A("s_memrealtime s[68:69]")
    A("s_waitcnt lgkmcnt(0)")
    A("s_or_b32 s69, s69, 0x80000000")
    A("v_mov_b32 v%d, s68" % vNon)
    A("v_mov_b32 v%d, s69" % (vNon + 1))
    A("s_mov_b64 exec, 1")
    A("buffer_store_dwordx2 %s, v%d, %s, 0 offen sc1" % (vr(vNon, 2), vL16, sr(sGA, 4)))
    A("s_mov_b64 exec, -1")
    A.label("K_NONONCE")
    def clr(soff, off=0):
        A("buffer_store_dwordx4 %s, v%d, %s, s%d offen offset:%d sc1" % (vr(vT0, 4), vL16, sr(sWS, 4), soff, off))
    A("s_cmp_lg_u32 s%d, 0" % sT)
    A("s_cbranch_scc1 K_NOCLRP")
    A("s_lshl_b32 s%d, s%d, 10" % (sa, sWGL))
    A("s_add_u32 s%d, s%d, 0x%x" % (sa, sa, WS_P))
    clr(sa)
    A("s_add_u32 s%d, s%d, 0x%x" % (sa, sa, WS_P2 - WS_P))
    clr(sa)
    A.label("K_NOCLRP")
    A("s_cmp_lg_u32 s2, 1")
    A("s_cbranch_scc1 K_PRO_DONE")
    A("s_lshl_b32 s%d, s%d, 11" % (sa, sT))
    A("s_add_u32 s%d, s%d, 0x%x" % (sa, sa, WS_A))
    clr(sa); clr(sa, 1024)
    A("s_branch K_PRO_DONE")
    A.label("K_PRO_LD")
    A("v_lshrrev_b32 v%d, 3, v%d" % (vT0, vL))
    A("v_lshrrev_b32 v%d, 1, v%d" % (vT1, vT0))
    A("v_and_b32 v%d, 7, v%d" % (vT2, vL))
    A("v_xor_b32 v%d, v%d, v%d" % (vT2, vT2, vT1))
    A("v_lshlrev_b32 v%d, 4, v%d" % (vT2, vT2))
    A("v_lshl_add_u32 v%d, v%d, 10, v%d" % (vXg, vT0, vT2))
    A("v_xor_b32 v%d, 64, v%d" % (vXg + 1, vXg))
    A("v_add_u32 v%d, %d, v%d" % (vXg + 1, 8192 - 1024, vXg + 1))
    A("v_add_u32 v%d, %d, v%d" % (vXg + 2, 2 * (8192 - 1024), vXg))
    A("v_add_u32 v%d, %d, v%d" % (vXg + 3, 2 * (8192 - 1024), vXg + 1))
    A("s_lshl_b32 s%d, s%d, 17" % (sXbase, sB))
    A("s_lshl_b32 s%d, s%d, 15" % (sa, sT))
    A("s_add_u32 s%d, s%d, s%d" % (sXbase, sXbase, sa))
    A("s_movk_i32 s%d, 0x1556" % sb)
    for q in range(3):
        src = vL
        if q:
            A("v_add_u32 v%d, %d, v%d" % (vT0, 64 * q, vL))
            src = vT0
        A("v_mul_u32_u24 v%d, s%d, v%d" % (vT1, sb, src))
        A("v_lshrrev_b32 v%d, 16, v%d" % (vT1, vT1))
        A("v_mul_u32_u24 v%d, 12, v%d" % (vT2, vT1))
        A("v_sub_u32 v%d, v%d, v%d" % (vT2, src, vT2))
        A("v_lshrrev_b32 v%d, 2, v%d" % (vT3, vT2))
        A("v_and_b32 v%d, 3, v%d" % (vT2, vT2))
        A("v_lshlrev_b32 v%d, 4, v%d" % (vT2, vT2))
        A("v_lshl_add_u32 v%d, v%d, 10, v%d" % (vT2, vT3, vT2))
        A("v_mul_u32_u24 v%d, 0xc00, v%d" % (vT1, vT1))
        A("v_add_u32 v%d, v%d, v%d" % (vWg + q, vT1, vT2))
        if q:
            A("v_subrev_u32 v%d, %d, v%d" % (vWg + q, 1024 * q, vWg + q))
    A("s_lshl_b32 s%d, s%d, 6" % (sWbase, sHP))
    A("s_mul_i32 s%d, s%d, 49152" % (sa, sT))
    A("s_add_u32 s%d, s%d, s%d" % (sWbase, sWbase, sa))
    A("s_lshl_b32 s%d, s%d, 12" % (sSlotX, sT))
    A("s_lshl_b32 s%d, s%d, 10" % (sDW, sT))
    A("s_sub_u32 s%d, %d, s%d" % (sDW, XS, sDW))
    A("s_waitcnt lgkmcnt(0)")
    srd(sX, pX, 0x200000)
    srd(sW, pW, 0x180000)
    stamp(1)

    def dma_stage():
        A("s_lshl_b32 s%d, s%d, 7" % (sXo, sKC))
        A("s_mov_b32 m0, s%d" % sSlotX)
        A("s_add_u32 s%d, s%d, s%d" % (sXo, sXo, sXbase))
        for i in range(4):
            A("buffer_load_dwordx4 v%d, %s, s%d offen offset:%d lds" % (vXg + i, sr(sX, 4), sXo, i * 1024))
            if i == 0:
                A("s_mul_i32 s%d, s%d, 196608" % (sWo, sKC))
                A("s_add_u32 s%d, s%d, s%d" % (sa, sSlotX, sDW))
            if i == 1:
                A("s_add_u32 s%d, s%d, s%d" % (sWo, sWo, sWbase))
                A("s_add_u32 s%d, s%d, 1" % (sKC, sKC))
            if i == 2:
                A("s_and_b32 s%d, s%d, 7" % (sKC, sKC))
                A("s_add_u32 s%d, s%d, %d" % (sSlotX, sSlotX, SLOT))
        A("s_mov_b32 m0, s%d" % sa)
        A("s_nop 0")
        for i in range(3):
            A("buffer_load_dwordx4 v%d, %s, s%d offen offset:%d lds" % (vWg + i, sr(sW, 4), sWo, i * 1024))
            if i == 0:
                A("s_cmp_ge_u32 s%d, %d" % (sSlotX, NSL * SLOT))
                A("s_cselect_b32 s%d, %d, 0" % (sa, NSL * SLOT))
                A("s_sub_u32 s%d, s%d, s%d" % (sSlotX, sSlotX, sa))
    def build_mask(first):
        for r in range(0, 16, 2):
            for k in range(2):
                jr = ((r + k) >> 3) * 16 + ((r + k) & 7)
                A("v_cmp_%s_i32 %s, %d, v%d" % ("gt" if first else "le", "vcc" if k == 0 else sr(sKu, 2), jr, vIG))
            A.nop(1)
            A("v_cndmask_b32 v%d, v%d, v%d, vcc" % (vCm + r, vU0, vU1))
            A("v_cndmask_b32 v%d, v%d, v%d, %s" % (vCm + r + 1, vU0, vU1, sr(sKu, 2)))
    def common_setup(loader, ta, tb, tc):
        t0, t1, t2, t3 = vE, vE + 1, vE + 2, vE + 3
        A("v_and_b32 v%d, 31, v%d" % (vN, vL))
        A("v_lshrrev_b32 v%d, 5, v%d" % (vG, vL))
        A("v_and_b32 v%d, 0x13, v%d" % (vKap, vN))
        A("v_and_b32 v%d, 4, v%d" % (t0, vN))
        A("v_lshl_or_b32 v%d, v%d, 1, v%d" % (vKap, t0, vKap))
        A("v_and_b32 v%d, 8, v%d" % (t0, vN))
        A("v_lshrrev_b32 v%d, 1, v%d" % (t0, t0))
        A("v_or_b32 v%d, v%d, v%d" % (vKap, vKap, t0))
        A("v_mov_b32 v%d, 0x3f803f80" % vOnes)
        M3 = opt.get("m3", 1)
        if M3 == 0:
            A("s_lshr_b32 s%d, s2, 6" % ta)
            A("s_and_b32 s%d, s2, 7" % sCG)
            A("s_cmp_lt_u32 s%d, 3" % ta)
            A("s_cselect_b32 s%d, 0, 6" % tb)
            A("s_min_u32 s%d, s%d, 2" % (ta, ta))
            A("s_lshr_b32 s%d, s%d, 1" % (tc, sCG))
            A("s_add_u32 s%d, s%d, s%d" % (ta, ta, tc))
            A("s_add_u32 s%d, s%d, 1" % (ta, ta))
            A("s_and_b32 s%d, s%d, 3" % (ta, ta))
            A("s_add_u32 s%d, s%d, s%d" % (sCG, sCG, tb))
            A("s_and_b32 s%d, s%d, 7" % (sCG, sCG))
            A("s_bfe_u32 s%d, s2, 0x20004" % tb)
            A("s_lshl_b32 s%d, s%d, 2" % (tb, tb))
            A("s_add_u32 s%d, s%d, s%d" % (ta, ta, tb))
            A("s_lshl_b32 s%d, s%d, 1" % (sG3, ta))
            A("s_bfe_u32 s%d, s2, 0x10003" % tb)
            A("s_add_u32 s%d, s%d, s%d" % (sG3, sG3, tb))
        elif M3 == 1:
            A("s_add_u32 s%d, s%d, 1" % (ta, sB))
            A("s_and_b32 s%d, s%d, 15" % (ta, ta))
            A("s_lshl_b32 s%d, s%d, 1" % (sG3, ta))
            A("s_lshr_b32 s%d, s%d, 3" % (tb, sHP))
            A("s_add_u32 s%d, s%d, s%d" % (sG3, sG3, tb))
            A("s_and_b32 s%d, s%d, 7" % (sCG, sHP))
        else:
            A("s_add_u32 s%d, s%d, 1" % (ta, sB))
            A("s_and_b32 s%d, s%d, 15" % (ta, ta))
            A("s_lshl_b32 s%d, s%d, 1" % (sG3, ta))
            A("s_bfe_u32 s%d, s%d, 0x10002" % (tb, sHP))
            A("s_add_u32 s%d, s%d, s%d" % (sG3, sG3, tb))
            A("s_lshr_b32 s%d, s%d, 3" % (tb, sHP))
            A("s_lshl_b32 s%d, s%d, 2" % (tb, tb))
            A("s_and_b32 s%d, s%d, 3" % (sCG, sHP))
            A("s_add_u32 s%d, s%d, s%d" % (sCG, sCG, tb))
        A("v_lshrrev_b32 v%d, 3, v%d" % (t0, vL))
        A("v_and_b32 v%d, 3, v%d" % (t1, t0))
        A("v_lshrrev_b32 v%d, 2, v%d" % (t0, t0))
        A("v_lshl_add_u32 v%d, v%d, 3, v%d" % (t1, t0, t1))
        A("s_lshr_b32 s%d, s%d, 1" % (ta, sT))
        A("s_lshl_b32 s%d, s%d, 4" % (ta, ta))
        A("s_and_b32 s%d, s%d, 1" % (tb, sT))
        A("s_lshl_b32 s%d, s%d, 2" % (tb, tb))
        A("s_add_u32 s%d, s%d, s%d" % (ta, ta, tb))
        A("s_lshl_b32 s%d, s%d, 6" % (tb, sG3))
        A("s_add_u32 s%d, s%d, s%d" % (ta, ta, tb))
        if loader:
            A("s_add_u32 s%d, s%d, 32" % (ta, ta))
        A("v_add_u32 v%d, s%d, v%d" % (vTok, ta, t1))
        A("s_and_b32 s%d, s2, 7" % ta)
        A("s_lshr_b32 s%d, s2, 3" % tb)
        A("s_mul_i32 s%d, s%d, 11" % (sJ, ta))
        A("s_add_u32 s%d, s%d, s%d" % (sJ, sJ, tb))
        A("s_cmp_lt_u32 s%d, 11" % tb)
        A("s_cselect_b32 s%d, 1, 0" % sRole)
        A("s_cmp_lt_u32 s%d, 86" % sJ)
        A("s_cselect_b32 s%d, s%d, 0" % (sRole, sRole))
        A("s_sub_u32 s%d, s%d, 11" % (tb, tb))
        A("s_lshl_b32 s%d, s%d, 2" % (ta, ta))
        A("s_add_u32 s%d, s%d, s%d" % (ta, ta, tb))
        A("s_cmp_lt_u32 s%d, 4" % tb)
        A("s_cselect_b32 s%d, 2, s%d" % (sRole, sRole))
        A("s_cmp_lt_u32 s%d, 4" % tb)
        A("s_cselect_b32 s%d, s%d, s%d" % (sJ, ta, sJ))
        if not loader:
            A("v_bfe_u32 v%d, v%d, 2, 2" % (t2, vL))
            A("v_lshl_add_u32 v%d, v%d, 3, v%d" % (t2, vG, t2))
            A("v_mul_u32_u24 v%d, 192, v%d" % (t3, t2))
            A("v_bfe_u32 v%d, v%d, 4, 1" % (t2, vL))
            A("v_lshl_add_u32 v%d, v%d, 5, v%d" % (t3, t2, t3))
            A("v_and_b32 v%d, 1, v%d" % (t2, vL))
            A("v_lshl_add_u32 v%d, v%d, 4, v%d" % (t3, t2, t3))
            A("v_bfe_u32 v%d, v%d, 1, 1" % (t2, vL))
            A("v_lshl_add_u32 v%d, v%d, 3, v%d" % (t3, t2, t3))
            A("v_bfe_u32 v%d, v%d, 1, 3" % (t0, vKap))
            A("v_xor_b32 v%d, v%d, v%d" % (t0, t0, vG))
            A("v_lshlrev_b32 v%d, 4, v%d" % (t0, t0))
            A("s_lshl_b32 s%d, s%d, 12" % (ta, sT))
            A("v_lshl_add_u32 v%d, v%d, 7, s%d" % (t1, vKap, ta))
            for i in range(4):
                A("s_add_u32 s%d, s%d, %d" % (ta, sT, i))
                A("s_and_b32 s%d, s%d, 3" % (ta, ta))
                A("s_lshl_b32 s%d, s%d, 5" % (tb, ta))
                A("s_mul_i32 s%d, s%d, 3072" % (ta, ta))
                A("s_add_u32 s%d, s%d, %d" % (ta, ta, XS))
                A("v_xor_b32 v%d, s%d, v%d" % (t2, tb, t0))
                A("v_add_u32 v%d, v%d, v%d" % (vXa + i, t1, t2))
                A("v_add_u32 v%d, s%d, v%d" % (vWa + i, ta, t3))
                A("v_mov_b32 v%d, v%d" % (vXc + i, vXa + i))
                A("v_mov_b32 v%d, v%d" % (vWc + i, vWa + i))
            A("v_mov_b32 v%d, 0x3f803f80" % vOne2)
            A("v_mov_b32 v%d, 0x3f803f80" % (vOne2 + 1))
            for i in range(12):
                A("v_mov_b32 v%d, 0" % (vCq + i))
            A("s_lshl_b32 s%d, s%d, 2" % (ta, sT))
            A("s_add_u32 s%d, s%d, %d" % (ta, ta, L_CSP))
            A("v_lshl_add_u32 v%d, v%d, 4, s%d" % (vLSa, vN, ta))
            for i in range(48):
                A("v_mov_b32 v%d, 0" % (vAcV + i))
            for i in range(32):
                A("v_mov_b32 v%d, 0" % (vB + 32 + i))
            A("s_mov_b32 s%d, 0" % sRd)
            A("s_mov_b32 s%d, s%d" % (sTq, sT))
        else:
            A("s_lshl_b32 s%d, s%d, 2" % (ta, sWGL))
            A("s_add_u32 s%d, s%d, s%d" % (ta, ta, sT))
            A("s_lshl_b32 s%d, s%d, 6" % (ta, ta))
            A("v_lshl_add_u32 v%d, v%d, 4, s%d" % (vLSa, vG, ta))
            A("s_lshl_b32 s%d, s%d, 2" % (ta, sB))
            A("s_add_u32 s%d, s%d, s%d" % (ta, ta, sT))
            A("s_lshl_b32 s%d, s%d, 10" % (ta, ta))
            A("v_lshrrev_b32 v%d, 1, v%d" % (t0, vKap))
            A("v_lshl_add_u32 v%d, v%d, 6, s%d" % (vLSb, t0, ta))
            A("v_and_b32 v%d, 1, v%d" % (t0, vKap))
            A("v_lshl_add_u32 v%d, v%d, 4, v%d" % (vLSb, t0, vLSb))
            A("s_lshr_b32 s%d, s%d, 1" % (ta, sG3))
            A("s_lshl_b32 s%d, s%d, 12" % (ta, ta))
            A("v_and_b32 v%d, 15, v%d" % (t0, vL))
            A("v_lshl_add_u32 v%d, v%d, 8, s%d" % (vLSc, t0, ta))
            A("s_mov_b32 s%d, 0" % sPub)
            A("s_sub_u32 s%d, 3, s%d" % (sTq, sT))
            srd(sWS, pWS, WS_SIZE)
            srd(sGA, pDBG, 256)
        A("v_lshlrev_b32 v%d, 3, v%d" % (vIG, vG))
        A("v_sub_u32 v%d, v%d, v%d" % (vIG, vKap, vIG))
        A("v_mov_b32 v%d, %s" % (vU0, f32(-BIG)))
        A("v_mov_b32 v%d, 0" % vU1)
        build_mask(False)
        A("v_add_u32 v%d, %d, v%d" % (vKb, L_K + (1024 if loader else 0), vL16))
        A("v_add_u32 v%d, %d, v%d" % (vVb, L_V + (256 if loader else 0), vL16))
        for i in range(16):
            A("v_mov_b32 v%d, v%d" % (vVa + i, vOnes))
        for i in range(16):
            A("v_mov_b32 v%d, 0" % (vO + i))
        A("s_lshl_b32 s%d, s%d, 4" % (ta, sT))
        A("s_add_u32 s%d, s%d, %d" % (ta, ta, L_PAY))
        A("v_lshl_add_u32 v%d, v%d, 3, s%d" % (vU1, vG, ta))
        A("s_mov_b32 s%d, 0" % sS)

    setupL = cap(lambda: common_setup(True, sd, sb, sc))
    dmaL = cap(lambda: (dma_stage(), dma_stage()))
    nld = sum(1 for l in dmaL if "buffer_load" in l)
    per = (len(setupL) + nld - 1) // nld
    pos = 0
    for l in dmaL:
        A.L.append(l)
        if "buffer_load" in l:
            end = min(len(setupL), pos + per)
            while end < len(setupL) and (any(k in setupL[end - 1] for k in ("s_cmp", "v_cmp", "s_nop", "vcc_")) or "v_cndmask" in setupL[end]):
                end += 1
            A.L.extend(setupL[pos:end])
            pos = end
    A.L.extend(setupL[pos:])
    A("s_branch K_LOOP1")
    A.label("K_PRO_DONE")
    common_setup(False, sa, sb, sc)

    stamp(1)
    A("s_waitcnt vmcnt(0)")
    a0, b0, a1, b1 = vE, vE + 1, vE + 2, vE + 3
    for i in range(4):
        z = "0" if i == 0 else None
        A("v_dot2_f32_bf16 v%d, v%d, v%d, %s" % (a0, vRow + i, vOnes, z or "v%d" % a0))
        A("v_dot2_f32_bf16 v%d, v%d, v%d, %s" % (b0, vRow + i, vRow + i, z or "v%d" % b0))
        A("v_dot2_f32_bf16 v%d, v%d, v%d, %s" % (a1, vRow + 4 + i, vOnes, z or "v%d" % a1))
        A("v_dot2_f32_bf16 v%d, v%d, v%d, %s" % (b1, vRow + 4 + i, vRow + 4 + i, z or "v%d" % b1))
    A.nop(3)
    A("v_permlane32_swap_b32 v%d, v%d" % (a0, a1))
    A("v_permlane32_swap_b32 v%d, v%d" % (b0, b1))
    A.nop(1)
    A("v_add_f32 v%d, v%d, v%d" % (a0, a0, a1))
    A("v_add_f32 v%d, v%d, v%d" % (b0, b0, b1))
    A.nop(2)
    A("v_permlane16_swap_b32 v%d, v%d" % (a0, b0))
    A.nop(1)
    A("v_add_f32 v%d, v%d, v%d" % (a0, a0, b0))
    for dpp in ("quad_perm:[1,0,3,2]", "quad_perm:[2,3,0,1]", "row_half_mirror", "row_mirror"):
        A.nop(2)
        A("v_add_f32_dpp v%d, v%d, v%d %s row_mask:0xf bank_mask:0xf" % (a0, a0, a0, dpp))
    A("v_mov_b32 v%d, v%d" % (b0, a0))
    A.nop(2)
    A("v_permlane16_swap_b32 v%d, v%d" % (a0, b0))
    A.nop(1)
    ln_stats(a0, b0)
    A.nop(1)
    A("v_mov_b32 v%d, v%d" % (vRow, b0))
    A("v_mul_f32_e64 v%d, -v%d, v%d" % (vRow + 1, a0, b0))
    A("ds_write_b64 v%d, %s" % (vU1, vr(vRow, 2)))
    stamp(2)
    def rd_advance():
        A("s_add_u32 s%d, s%d, %d" % (sRd, sRd, SLOT))
        A("s_cmp_eq_u32 s%d, %d" % (sRd, NSL * SLOT))
        A("s_cselect_b32 s%d, 0, s%d" % (sRd, sRd))
        A("s_add_u32 s%d, s%d, 1" % (sS, sS))
    def rd0(k):
        B = vB + 16 * k
        A("ds_read_b128 %s, v%d" % (vr(B, 4), vXc + k))
        for seg in (1, 2, 0):
            for half in range(2):
                A("ds_read_b64_tr_b16 %s, v%d offset:%d" % (vr(B + 4 + 4 * seg + 2 * half, 2), vWc + k, 4 * half * 192 + seg * 64))
    def mm(k, which):
        B = vB + 16 * k
        X = vr(B, 4)
        if which == "K":
            A("%s %s, %s, %s, %s" % (MFMA, vr(vAc1, 16), vr(B + 8, 4), X, vr(vAc1, 16)))
        elif which == "V":
            A("%s %s, %s, %s, %s" % (MFMA, vr(vAcV, 16), X, vr(B + 12, 4), vr(vAcV, 16)))
        else:
            A("%s %s, %s, %s, %s" % (MFMA, vr(vAc0, 16), vr(B + 4, 4), X, vr(vAc0, 16)))
    def weave(fill, k):
        n = (len(fill) + 2) // 3
        for gi, w in enumerate("KVQ"):
            mm(k, w)
            A.L.extend(fill[gi * n:(gi + 1) * n])
    def adv(k):
        A("v_add_u32 v%d, s%d, v%d" % (vXc + k, sRd, vXa + k))
        A("v_add_u32 v%d, s%d, v%d" % (vWc + k, sRd, vWa + k))
    def cs4(h):
        for acc, off in ((vCq, 4), (vCk, 8), (vCv, 12)):
            A("%s %s, %s, %s, %s" % (MFMA4, vr(acc, 4), vr(vOne2, 2), vr(vB + off + 2 * h, 2), vr(acc, 4)))
    A("s_waitcnt lgkmcnt(0)")
    A.label("K_LOOP0")
    A("s_barrier")
    A("s_waitcnt lgkmcnt(7)")
    weave(cap(lambda: (rd0(0), rd_advance())), 2)
    A("s_waitcnt lgkmcnt(7)")
    weave(cap(lambda: (rd0(1), adv(0), adv(1))), 3)
    A("s_waitcnt lgkmcnt(7)")
    weave(cap(lambda: (rd0(2), rd0(3))), 0)
    cs4(0)
    cs4(1)
    A("s_waitcnt lgkmcnt(14)")
    mm(1, "K")
    adv(2)
    adv(3)
    mm(1, "V")
    A("s_cmp_lt_u32 s%d, 8" % sS)
    mm(1, "Q")
    A("s_cbranch_scc1 K_LOOP0")
    for acc in (vCq, vCk, vCv):
        A("v_mov_b32 v%d, v%d" % (acc + 1, acc))
    A("s_waitcnt lgkmcnt(0)")
    mm(2, "V")
    for acc in (vCq, vCk, vCv):
        A("v_permlane32_swap_b32 v%d, v%d" % (acc, acc + 1))
    for acc in (vCq, vCk, vCv):
        A("v_add_f32 v%d, v%d, v%d" % (acc, acc, acc + 1))
    for seg, acc in enumerate((vCq, vCk, vCv)):
        A("ds_write_b32 v%d, v%d offset:%d" % (vLSa, acc, seg * 512))
    mm(3, "V")
    A("s_waitcnt lgkmcnt(0)")
    A("s_barrier")
    mm(2, "K")
    A("s_lshl_b32 s%d, s%d, 7" % (sa, sT))
    A("s_add_u32 s%d, s%d, %d" % (sa, sa, L_STR))
    A("v_lshl_add_u32 v%d, v%d, 2, s%d" % (vU0, vKap, sa))
    A("v_lshlrev_b32 v%d, 4, v%d" % (vT1, vG))
    mm(3, "K")
    A("v_add_u32 v%d, %d, v%d" % (vT1, L_CS, vT1))
    A("s_lshl_b32 s%d, s%d, 12" % (sa, sT))
    A("s_add_u32 s%d, s%d, %d" % (sa, sa, L_VX))
    A("v_add_u32 v%d, s%d, v%d" % (vT0, sa, vL16))
    mm(2, "Q")
    A("v_mov_b32 v%d, %d" % (vU1, L_NON))
    for q in range(4):
        A("ds_write_b128 v%d, %s offset:%d" % (vT0, vr(vAcV + 4 * q, 4), q * 1024))
    mm(3, "Q")
    stamp(3)
    A("s_lshl_b32 s%d, s%d, 11" % (sa, sT))
    A("s_add_u32 s%d, s%d, %d" % (sb, sa, L_K + 8 * 2048))
    A("v_add_u32 v%d, s%d, v%d" % (vT0, sb, vL16))
    A("s_lshl_b32 s%d, s%d, 14" % (sd, sWGL))
    A("s_add_u32 s%d, s%d, s%d" % (sd, sd, sa))
    A("s_waitcnt lgkmcnt(0)")
    A("s_barrier")
    A("ds_read_b32 v%d, v%d" % (vT2, vU0))
    A("ds_read_b32 v%d, v%d offset:%d" % (vT3, vU0, L_STM - L_STR))
    for tile in (1, 0):
        for a in range(4):
            A("ds_read_b128 %s, v%d offset:%d" % (vr(vE + 16 * tile + 4 * a, 4), vT1, tile * 128 + a * 32))
    A("ds_read_b64 %s, v%d" % (vr(vNon, 2), vU1))
    A("s_waitcnt lgkmcnt(9)")
    for r in range(16):
        A("v_mul_f32 v%d, v%d, v%d" % (vAc1 + r, vAc1 + r, vT2))
    A("s_waitcnt lgkmcnt(5)")
    for r in range(16):
        A("v_fmac_f32 v%d, v%d, v%d" % (vAc1 + r, vE + 16 + r, vT3))
    def pack_store(acc, soff):
        for i in range(8):
            A("v_cvt_pk_bf16_f32 v%d, v%d, v%d" % (vPk + i, acc + 2 * i, acc + 2 * i + 1))
        A("buffer_store_dwordx4 %s, v%d, %s, s%d offen sc1" % (vr(vPk, 4), vL16, sr(sWS, 4), soff))
        A("buffer_store_dwordx4 %s, v%d, %s, s%d offen offset:1024 sc1" % (vr(vPk + 4, 4), vL16, sr(sWS, 4), soff))
        sumu(vGc, vPk, 8)
        A("ds_write_b128 v%d, %s" % (vT0, vr(vPk, 4)))
        A("ds_write_b128 v%d, %s offset:1024" % (vT0, vr(vPk + 4, 4)))
        wave_sumu(vGc, vGc + 1)
        A("s_lshl_b32 s%d, s%d, 3" % (sb, sWGL))
        A("s_add_u32 s%d, s%d, s%d" % (sb, sb, sWv))
        A("s_lshl_b32 s%d, s%d, 6" % (sb, sb))
        A("s_add_u32 s%d, s%d, 0x%x" % (sb, sb, WS_FKV))
        A("s_waitcnt lgkmcnt(2)")
        A("v_mov_b32 v%d, v%d" % (vGc + 2, vNon))
        A("v_mov_b32 v%d, v%d" % (vGc + 3, vNon + 1))
        A("s_mov_b64 exec, 1")
        A("buffer_store_dwordx4 %s, v%d, %s, s%d offen sc1" % (vr(vGc, 4), vL16, sr(sWS, 4), sb))
        A("s_mov_b64 exec, -1")
    pack_store(vAc1, sd)
    A("v_mul_f32 v%d, %s, v%d" % (vT2, f32(0.25 * LOG2E), vT2))
    A("v_mul_f32 v%d, %s, v%d" % (vT3, f32(0.25 * LOG2E), vT3))
    A("s_waitcnt lgkmcnt(2)")
    for r in range(8, 16):
        A("v_mul_f32 v%d, v%d, v%d" % (vAc0 + r, vAc0 + r, vT2))
        A("v_fmac_f32 v%d, v%d, v%d" % (vAc0 + r, vE + r, vT3))
    for i in range(4):
        A("v_cvt_pk_bf16_f32 v%d, v%d, v%d" % (vPk + 8 + i, vAc0 + 8 + 2 * i, vAc0 + 8 + 2 * i + 1))
    A("s_lshl_b32 s%d, s%d, 10" % (sa, sT))
    A("s_add_u32 s%d, s%d, %d" % (sa, sa, L_Q))
    A("v_add_u32 v%d, s%d, v%d" % (vT0, sa, vL16))
    A("ds_write_b128 v%d, %s" % (vT0, vr(vPk + 8, 4)))
    for r in range(8):
        A("v_mul_f32 v%d, v%d, v%d" % (vAc0 + r, vAc0 + r, vT2))
        A("v_fmac_f32 v%d, v%d, v%d" % (vAc0 + r, vE + r, vT3))
    for i in range(4):
        A("v_cvt_pk_bf16_f32 v%d, v%d, v%d" % (vQ + i, vAc0 + 2 * i, vAc0 + 2 * i + 1))
    A("s_branch K_PUB")

    A.label("K_LOOP1")
    A("v_mov_b32 v%d, 0" % vT0)
    A("buffer_load_dwordx2 %s, v%d, %s, 0 offen sc1" % (vr(vNon, 2), vT0, sr(sGA, 4)))
    stamp(2)
    def try_publish(lab, blocking=False):
        A.label(lab + "_r")
        A("s_cmp_lg_u32 s%d, 0" % sPub)
        A("s_cbranch_scc1 %s" % lab)
        if blocking:
            A("s_waitcnt vmcnt(0)")
        A("v_readfirstlane_b32 s%d, v%d" % (sPub, vNon + 1))
        A("ds_read_b64 %s, v%d" % (vr(vRow, 2), vU1))
        A("s_cmp_lg_u32 s%d, 0" % sPub)
        A("s_cbranch_scc1 %s_ok" % lab)
        A("buffer_load_dwordx2 %s, v%d, %s, 0 offen sc1" % (vr(vNon, 2), vT0, sr(sGA, 4)))
        if blocking:
            spin_tail(lab + "_r", sS)
        A("s_branch %s" % lab)
        A.label(lab + "_ok")
        A("v_mov_b32 v%d, v%d" % (vRow + 2, vNon))
        A("v_mov_b32 v%d, v%d" % (vRow + 3, vNon + 1))
        A("s_mov_b32 s%d, 0x%x" % (sb, WS_LS))
        A("s_mov_b32 exec_lo, 1")
        A("s_mov_b32 exec_hi, 1")
        A("s_waitcnt lgkmcnt(0)")
        A("buffer_store_dwordx4 %s, v%d, %s, s%d offen sc1" % (vr(vRow, 4), vLSa, sr(sWS, 4), sb))
        A("s_mov_b64 exec, -1")
        A.label(lab)
    A.label("K_LOOP1T")
    A("s_sub_u32 s%d, s%d, 3" % (sb, sS))
    A("s_cmp_lt_u32 s%d, 2" % sb)
    A("s_cbranch_scc1 K_L1_W8")
    A("s_waitcnt vmcnt(7)")
    A.label("K_L1_W8")
    A("s_waitcnt vmcnt(8)")
    if opt.get("p1st"):
        for k in range(0, 6, 2 if opt["p1st"] == 2 else 1):
            A("s_cmp_eq_u32 s%d, %d" % (sS, k))
            A("s_cbranch_scc0 K_DST%d" % k)
            stamp(4 + k)
            A.label("K_DST%d" % k)
    A("s_barrier")
    if opt.get("p1st") == 2:
        for k in range(0, 6, 2):
            A("s_cmp_eq_u32 s%d, %d" % (sS, k))
            A("s_cbranch_scc0 K_DSU%d" % k)
            stamp(5 + k)
            A.label("K_DSU%d" % k)
    dma_stage()
    A("s_cmp_lg_u32 s%d, 2" % sS)
    A("s_cbranch_scc1 K_L1_PUB")
    try_publish("K_L1_PUB")
    A("s_add_u32 s%d, s%d, 1" % (sS, sS))
    A("s_cmp_lt_u32 s%d, 6" % sS)
    A("s_cbranch_scc1 K_LOOP1T")
    A("s_waitcnt vmcnt(7)")
    if opt.get("p1st"): stamp(10)
    A("s_barrier")
    try_publish("K_L1_PUB2", blocking=True)
    A("s_mov_b32 s%d, 0x%x" % (sb, WS_LS))
    A("buffer_load_dwordx4 %s, v%d, %s, s%d offen sc1" % (vr(vRow + 4, 4), vLSb, sr(sWS, 4), sb))
    A("buffer_load_dwordx4 %s, v%d, %s, s%d offen sc1" % (vr(vGc, 4), vLSc, sr(sWS, 4), sb))
    A("s_lshl_b32 s%d, s%d, 7" % (sc, sT))
    A("s_add_u32 s%d, s%d, %d" % (sc, sc, L_STR))
    A("v_lshl_add_u32 v%d, v%d, 5, s%d" % (vT1, vG, sc))
    A("v_lshl_add_u32 v%d, v%d, 2, s%d" % (vU0, vKap, sc))
    A("v_mov_b32 v%d, %d" % (vT3, L_NON))
    A("ds_write_b64 v%d, %s" % (vT3, vr(vNon, 2)))
    A("s_lshl_b32 s%d, s%d, 12" % (sc, sT))
    A("s_add_u32 s%d, s%d, %d" % (sc, sc, L_VX))
    A("v_add_u32 v%d, s%d, v%d" % (vT3, sc, vL16))
    A("v_lshlrev_b32 v%d, 4, v%d" % (vT2, vN))
    A("v_add_u32 v%d, %d, v%d" % (vT2, L_CSP, vT2))
    A("s_mov_b32 s%d, 0" % sCnt)
    A("s_waitcnt vmcnt(2)")
    if opt.get("p1st"): stamp(11)
    A("s_barrier")
    if opt.get("p1st"): stamp(12)
    A.label("K_LS_CHK")
    A("s_waitcnt vmcnt(0)")
    A("v_cmp_eq_u64 vcc, %s, %s" % (vr(vRow + 6, 2), vr(vNon, 2)))
    A("v_cmp_eq_u64 s[68:69], %s, %s" % (vr(vGc + 2, 2), vr(vNon, 2)))
    A("s_and_b64 vcc, vcc, s[68:69]")
    A("s_cmp_eq_u64 vcc, exec")
    A("s_cbranch_scc1 K_LS_OK")
    A("buffer_load_dwordx4 %s, v%d, %s, s%d offen sc1" % (vr(vRow + 4, 4), vLSb, sr(sWS, 4), sb))
    A("buffer_load_dwordx4 %s, v%d, %s, s%d offen sc1" % (vr(vGc, 4), vLSc, sr(sWS, 4), sb))
    spin_tail("K_LS_CHK", sCnt)
    A.label("K_LS_OK")
    A("ds_write_b32 v%d, v%d" % (vU0, vRow + 4))
    A("ds_write_b32 v%d, v%d offset:%d" % (vU0, vRow + 5, L_STM - L_STR))
    A("s_waitcnt lgkmcnt(0)")
    for q in range(4):
        off = (q & 1) * 16 + (q >> 1) * 64
        A("ds_read_b128 %s, v%d offset:%d" % (vr(vE + 4 * q, 4), vT1, off))
        A("ds_read_b128 %s, v%d offset:%d" % (vr(vE + 16 + 4 * q, 4), vT1, off + L_STM - L_STR))
    if opt.get("p1st"): stamp(13)
    A("s_barrier")
    if opt.get("p1st"): stamp(14)
    for seg, acc in enumerate((vCq, vCk, vCv)):
        A("ds_read_b128 %s, v%d offset:%d" % (vr(acc, 4), vT2, seg * 512))
    A("v_lshlrev_b32 v%d, 2, v%d" % (vT2, vN))
    A("v_add_u32 v%d, %d, v%d" % (vT2, L_CS, vT2))
    A("s_lshl_b32 s%d, s%d, 11" % (sb, sT))
    A("s_add_u32 s%d, s%d, %d" % (sc, sb, L_V + 8 * 2048))
    A("v_add_u32 v%d, s%d, v%d" % (vT0, sc, vL16))
    A("s_lshl_b32 s%d, s%d, 14" % (sc, sWGL))
    A("s_add_u32 s%d, s%d, s%d" % (sc, sc, sb))
    A("s_add_u32 s%d, s%d, 8192" % (sc, sc))
    A("s_waitcnt lgkmcnt(0)")
    for acc in (vCq, vCk, vCv):
        A("v_add_f32 v%d, v%d, v%d" % (acc, acc, acc + 1))
        A("v_add_f32 v%d, v%d, v%d" % (acc + 2, acc + 2, acc + 3))
    for acc in (vCq, vCk, vCv):
        A("v_add_f32 v%d, v%d, v%d" % (acc, acc, acc + 2))
    A("ds_write_b32 v%d, v%d" % (vT2, vCq))
    A("ds_write_b32 v%d, v%d offset:128" % (vT2, vCk))
    stamp(3)
    for r in range(16):
        A("v_mul_f32 v%d, v%d, v%d" % (vE + 16 + r, vE + 16 + r, vCv))
    A("s_waitcnt lgkmcnt(0)")
    A("s_barrier")
    for q in range(4):
        A("ds_read_b128 %s, v%d offset:%d" % (vr(vAc0 + 4 * q, 4), vT3, q * 1024))
    for q in range(4):
        A("s_waitcnt lgkmcnt(%d)" % (3 - q))
        for r in range(4 * q, 4 * q + 4):
            A("v_fma_f32 v%d, v%d, v%d, v%d" % (vAc0 + r, vAc0 + r, vE + r, vE + 16 + r))
    pack_store(vAc0, sc)

    A.label("K_PUB")
    A("s_mov_b32 s%d, 0" % sWoN)
    A("s_mov_b32 s%d, 0x0000ffff" % sMaskV)
    A("s_mov_b32 s%d, 0x0000ffff" % (sMaskV + 1))
    A("v_mov_b32 v%d, %s" % (vMold, f32(-BIG)))
    A("s_lshl_b32 s%d, s%d, 10" % (sa, sTq))
    A("s_add_u32 s%d, s%d, %d" % (sa, sa, L_Q))
    A("v_add_u32 v%d, s%d, v%d" % (vT0, sa, vL16))
    A("s_waitcnt lgkmcnt(0)")
    A("s_barrier")
    if opt.get("p1st"):
        A("s_branch K_FIN")
    stamp(4)
    A("s_cmp_eq_u32 s%d, 0" % sC)
    A("s_cbranch_scc1 K_HAVEQ")
    A("ds_read_b128 %s, v%d" % (vr(vQ, 4), vT0))
    A.label("K_HAVEQ")
    A("s_cmp_lg_u32 s%d, 0" % sTq)
    A("s_cbranch_scc1 K_NOP0")
    A("s_setprio 2")
    A.label("K_NOP0")
    A("s_mov_b32 s%d, 0" % sChunk)
    A("s_add_u32 s%d, s%d, 8" % (sa, sTq))
    A("s_mov_b32 s%d, 8" % sb)
    A("s_mov_b32 s%d, s%d" % (sN, sTq))
    A.label("K_CHUNK")
    A("s_lshl_b32 s%d, s%d, 11" % (sKm, sa))
    A("s_lshl_b32 s%d, s%d, 11" % (sKu, sb))
    A("v_add_u32 v%d, s%d, v%d" % (vKad, sKm, vKb))
    A("ds_read_b128 %s, v%d" % (vr(vKbf, 4), vKad))
    A("v_add_u32 v%d, s%d, v%d" % (vKad, sKu, vKb))
    A("ds_read_b128 %s, v%d" % (vr(vKa, 4), vKad))
    A("v_add_u32 v%d, s%d, v%d" % (vVad, sKm, vVb))
    A("s_mov_b64 exec, %s" % sr(sMaskV, 2))
    A("ds_read_b128 %s, v%d" % (vr(vVbf, 4), vVad))
    A("ds_read_b128 %s, v%d offset:1024" % (vr(vVbf + 4, 4), vVad))
    A("s_mov_b64 exec, -1")
    A("v_add_u32 v%d, s%d, v%d" % (vVad, sKu, vVb))
    A("v_mov_b32 v%d, v%d" % (vM, vMold))
    A("s_mov_b32 s%d, 0" % sI)
    A("s_waitcnt lgkmcnt(3)")
    A("%s %s, %s, %s, %s" % (MFMA, vr(vSb, 16), vr(vKbf, 4), vr(vQ, 4), vr(vCm, 16)))
    def wo_piece(lab):
        A("s_cmp_eq_u32 s%d, 0" % sWoN)
        A("s_cbranch_scc1 %s" % lab)
        A("s_add_u32 s%d, s%d, s%d" % (sa, sWoL, sWoR))
        A("s_mov_b32 m0, s%d" % sa)
        A("s_lshl_b32 s%d, s%d, 3" % (sa, sWoR))
        A("s_add_u32 s%d, s%d, s%d" % (sa, sa, sWoG))
        A("buffer_load_dwordx4 v%d, %s, s%d offen lds" % (vWoA, sr(sW, 4), sa))
        A("s_add_u32 s%d, s%d, 2048" % (sWoR, sWoR))
        A("buffer_load_dwordx4 v%d, %s, s%d offen offset:1024 lds" % (vWoB, sr(sW, 4), sa))
        A("s_and_b32 s%d, s%d, 0x1fff" % (sWoR, sWoR))
        A("s_sub_u32 s%d, s%d, 1" % (sWoN, sWoN))
        A.label(lab)
    def max16(S):
        for i in range(8):
            A("v_max3_f32 v%d, v%d, v%d, v%d" % (vM, S + 2 * i, S + 2 * i + 1, vM))
    A.nop(6)
    A.label("K_P1")
    A("s_waitcnt lgkmcnt(0)")
    A("%s %s, %s, %s, 0" % (MFMA, vr(vSa, 16), vr(vKa, 4), vr(vQ, 4)))
    A("ds_read_b128 %s, v%d offset:2048" % (vr(vKbf, 4), vKad))
    A.nop(3)
    max16(vSb)
    A("s_cmp_ge_u32 s%d, s%d" % (sI, sN))
    A("s_cbranch_scc1 K_P1_DONE")
    A("s_add_u32 s%d, s%d, 1" % (sI, sI))
    A("s_waitcnt lgkmcnt(0)")
    A("%s %s, %s, %s, 0" % (MFMA, vr(vSb, 16), vr(vKbf, 4), vr(vQ, 4)))
    A("v_add_u32 v%d, 4096, v%d" % (vKad, vKad))
    A("ds_read_b128 %s, v%d" % (vr(vKa, 4), vKad))
    max16(vSa)
    A("s_cmp_ge_u32 s%d, s%d" % (sI, sN))
    A("s_cbranch_scc1 K_P1_DONE")
    A("s_add_u32 s%d, s%d, 1" % (sI, sI))
    A("s_branch K_P1")
    A.label("K_P1_DONE")
    A("v_mov_b32 v%d, v%d" % (vT0, vM))
    A("s_waitcnt lgkmcnt(0)")
    A("v_add_u32 v%d, s%d, v%d" % (vKad, sKm, vKb))
    A("ds_read_b128 %s, v%d" % (vr(vKbf, 4), vKad))
    A("v_permlane32_swap_b32 v%d, v%d" % (vM, vT0))
    A("v_add_u32 v%d, s%d, v%d" % (vKad, sKu, vKb))
    A("ds_read_b128 %s, v%d" % (vr(vKa, 4), vKad))
    A("v_max_f32 v%d, v%d, v%d" % (vM, vM, vT0))
    A("v_sub_f32 v%d, v%d, v%d" % (vT0, vMold, vM))
    A("v_exp_f32 v%d, v%d" % (vT0, vT0))
    A("v_mov_b32 v%d, v%d" % (vMold, vM))
    for r in range(16):
        A("v_sub_f32 v%d, v%d, v%d" % (vCm + r, vCm + r, vM))
    A("s_waitcnt lgkmcnt(1)")
    A("v_sub_f32 v%d, 0, v%d" % (vCn, vM))
    A("%s %s, %s, %s, %s" % (MFMA, vr(vSb, 16), vr(vKbf, 4), vr(vQ, 4), vr(vCm, 16)))
    for r in range(1, 16):
        A("v_mov_b32 v%d, v%d" % (vCn + r, vCn))
    for r in range(9):
        A("v_mul_f32 v%d, v%d, v%d" % (vO + r, vO + r, vT0))
    A("s_mov_b32 s%d, 0" % sI)
    def softmax_pv(S, V):
        for r in range(16):
            A("v_exp_f32 v%d, v%d" % (S + r, S + r))
            if r == 7:
                wo_piece("K_WOP%d" % S)
        for i in range(8):
            A("v_cvt_pk_bf16_f32 v%d, v%d, v%d" % (vP + i, S + 2 * i, S + 2 * i + 1))
        A.nop(1)
        A("%s %s, %s, %s, %s" % (MFMA, vr(vO, 16), vr(V, 4), vr(vP, 4), vr(vO, 16)))
        A("%s %s, %s, %s, %s" % (MFMA, vr(vO, 16), vr(V + 4, 4), vr(vP + 4, 4), vr(vO, 16)))
    A.label("K_P2")
    A("s_waitcnt lgkmcnt(0)")
    A("%s %s, %s, %s, %s" % (MFMA, vr(vSa, 16), vr(vKa, 4), vr(vQ, 4), vr(vCn, 16)))
    A("ds_read_b128 %s, v%d offset:2048" % (vr(vKbf, 4), vKad))
    A("s_mov_b64 exec, %s" % sr(sMaskV, 2))
    A("ds_read_b128 %s, v%d" % (vr(vVa, 4), vVad))
    A("ds_read_b128 %s, v%d offset:1024" % (vr(vVa + 4, 4), vVad))
    A("s_mov_b64 exec, -1")
    softmax_pv(vSb, vVbf)
    A("s_cmp_ge_u32 s%d, s%d" % (sI, sN))
    A("s_cbranch_scc1 K_P2_DONE")
    A("s_add_u32 s%d, s%d, 1" % (sI, sI))
    A("s_waitcnt lgkmcnt(0)")
    A("%s %s, %s, %s, %s" % (MFMA, vr(vSb, 16), vr(vKbf, 4), vr(vQ, 4), vr(vCn, 16)))
    A("v_add_u32 v%d, 4096, v%d" % (vKad, vKad))
    A("ds_read_b128 %s, v%d" % (vr(vKa, 4), vKad))
    A("s_mov_b64 exec, %s" % sr(sMaskV, 2))
    A("ds_read_b128 %s, v%d offset:2048" % (vr(vVbf, 4), vVad))
    A("ds_read_b128 %s, v%d offset:3072" % (vr(vVbf + 4, 4), vVad))
    A("s_mov_b64 exec, -1")
    A("v_add_u32 v%d, 4096, v%d" % (vVad, vVad))
    softmax_pv(vSa, vVa)
    A("s_cmp_ge_u32 s%d, s%d" % (sI, sN))
    A("s_cbranch_scc1 K_P2_DONE")
    A("s_add_u32 s%d, s%d, 1" % (sI, sI))
    A("s_branch K_P2")
    A.label("K_P2_DONE")
    A("s_waitcnt lgkmcnt(0)")
    A("s_cmp_lg_u32 s%d, 0" % sChunk)
    A("s_cbranch_scc1 K_ATT_DONE")
    stamp(5)
    A("s_cmp_lg_u32 s%d, 0" % sTq)
    A("s_cbranch_scc1 K_FETCH_ISSUED")
    A("s_cmp_eq_u32 s%d, 0" % sB)
    A("s_cbranch_scc1 K_FETCH_ISSUED")
    A("s_lshl_b32 s%d, s%d, 14" % (sa, sWGL))
    A("s_lshl_b32 s%d, s%d, 13" % (sb, sC))
    A("s_add_u32 s%d, s%d, s%d" % (sa, sa, sb))
    A("s_sub_u32 s%d, s%d, 0x40000" % (sa, sa))
    A("s_add_u32 s%d, s%d, 4096" % (sb, sa))
    A("s_cmp_eq_u32 s%d, 1" % sB)
    A("s_cselect_b32 s%d, 0, 0x40000" % sc)
    A("s_sub_u32 s%d, s%d, s%d" % (sd, sb, sc))
    A("s_sub_u32 s%d, s%d, s%d" % (sc, sa, sc))
    A("s_lshl_b32 s%d, s%d, 9" % (sI, sWGL))
    A("s_lshl_b32 s68, s%d, 8" % sC)
    A("s_add_u32 s%d, s%d, s68" % (sI, sI))
    A("s_add_u32 s%d, s%d, 0x%x" % (sI, sI, WS_FKV - 16384))
    A("s_cmp_eq_u32 s%d, 1" % sB)
    A("s_cselect_b32 s68, 0xff, 0xf")
    A("s_mov_b32 vcc_lo, s68")
    A("s_mov_b32 vcc_hi, 0")
    A("v_and_b32 v%d, 3, v%d" % (vT2, vL))
    A("v_lshlrev_b32 v%d, 6, v%d" % (vT2, vT2))
    A("v_add_u32 v%d, 8192, v%d" % (vT3, vT2))
    A("v_cndmask_b32 v%d, v%d, v%d, vcc" % (vT2, vT2, vT3))
    A("v_mov_b32 v%d, 0" % (vKV + 64))
    def kv_loads():
        A("s_mov_b64 exec, 0xff")
        A("buffer_load_dwordx4 %s, v%d, %s, s%d offen sc1" % (vr(vKV + 64, 4), vT2, sr(sWS, 4), sI))
        A("s_mov_b64 exec, -1")
        for hgrp, so in enumerate((sa, sb, sc, sd)):
            for q in range(4):
                A("buffer_load_dwordx4 %s, v%d, %s, s%d offen offset:%d sc1" % (vr(vKV + 16 * hgrp + 4 * q, 4), vL16, sr(sWS, 4), so, q * 1024))
    kv_loads()
    A.label("K_FETCH_ISSUED")
    A("v_mov_b32 v%d, %s" % (vU0, f32(-BIG)))
    A("s_cmp_eq_u32 s%d, 1" % sB)
    A("s_cselect_b32 s%d, %s, 0" % (sCnt, f32(-BIG)))
    A("v_mov_b32 v%d, s%d" % (vU1, sCnt))
    build_mask(True)
    srd(sGB, pWR, 1024)
    A("s_cmp_ge_u32 s%d, 2" % sTq)
    A("s_cbranch_scc1 K_B3")
    A("s_setprio 2")
    A("s_cmp_eq_u32 s%d, 1" % sTq)
    A("s_cbranch_scc1 K_B3")
    A("s_cmp_eq_u32 s%d, 0" % sB)
    A("s_cbranch_scc1 K_B3")
    A("s_mul_i32 s68, s%d, %d" % (sC, L_V - L_K))
    A("s_add_u32 s68, s68, %d" % L_K)
    A("v_add_u32 v%d, s68, v%d" % (vT1, vL16))
    A("s_mov_b32 s%d, 0" % sCnt)
    A.label("K_KVCHK")
    A("s_waitcnt vmcnt(0)")
    A("v_cmp_eq_u64 vcc, %s, %s" % (vr(vKV + 66, 2), vr(vNon, 2)))
    A("s_and_b32 s68, vcc_lo, 0xff")
    A("s_cmp_eq_u32 s68, 0xff")
    A("s_cbranch_scc0 K_KVRETRY")
    for i in range(16):
        off = (8192 if i < 8 else 0) + (i & 7) * 1024
        A("ds_write_b128 v%d, %s offset:%d" % (vT1, vr(vKV + 4 * i, 4), off))
    A("v_sub_u32 v%d, 0, v%d" % (vT0, vKV + 64))
    sumu(vT0, vKV, 64, init=vT0)
    wave_sumu(vT0, vT3)
    A.nop(1)
    A("v_readfirstlane_b32 s68, v%d" % vT0)
    A("s_cmp_eq_u32 s68, 0")
    A("s_cbranch_scc1 K_B3W")
    A("s_waitcnt lgkmcnt(0)")
    A.label("K_KVRETRY")
    kv_loads()
    spin_tail("K_KVCHK", sCnt)
    A.label("K_B3W")
    A("s_waitcnt lgkmcnt(0)")
    A.label("K_B3")
    A("s_barrier")
    stamp(6)
    A("v_and_b32 v%d, 7, v%d" % (vT0, vL))
    A("v_lshlrev_b32 v%d, 4, v%d" % (vT0, vT0))
    A("s_lshl_b32 s%d, s%d, 7" % (sa, sCG))
    A("v_lshl_add_u32 v%d, v%d, 10, v%d" % (vT1, vTok, vT0))
    A("buffer_load_dwordx4 %s, v%d, %s, s%d offen" % (vr(vXr, 4), vT1, sr(sX, 4), sa))
    A("buffer_load_dwordx4 %s, v%d, %s, s%d offen" % (vr(vWr, 4), vT0, sr(sGB, 4), sa))
    A("buffer_load_dwordx4 %s, v%d, %s, 0 offen" % (vr(vWR4, 4), vL16, sr(sGB, 4)))
    srd(sW, pWO, 0x80000)
    A("v_lshrrev_b32 v%d, 3, v%d" % (vT0, vL))
    A("v_bfe_u32 v%d, v%d, 4, 1" % (vT1, vL))
    A("v_lshlrev_b32 v%d, 2, v%d" % (vT1, vT1))
    A("v_and_b32 v%d, 7, v%d" % (vT2, vL))
    A("v_xor_b32 v%d, v%d, v%d" % (vT2, vT2, vT1))
    A("v_lshlrev_b32 v%d, 4, v%d" % (vT2, vT2))
    A("v_lshl_add_u32 v%d, v%d, 10, v%d" % (vWoA, vT0, vT2))
    A("v_add_u32 v%d, %d, v%d" % (vWoB, 8192 - 1024, vWoA))
    A("s_lshl_b32 s%d, s%d, 16" % (sWoG, sWv))
    A("s_add_u32 s%d, s%d, s%d" % (sWoG, sWoG, sa))
    A("s_lshl_b32 s%d, s%d, 13" % (sWoL, sWv))
    A("s_add_u32 s%d, s%d, %d" % (sWoL, sWoL, L_WO))
    A("s_bfe_u32 s%d, s2, 0x20006" % sWoR)
    A("s_lshl_b32 s%d, s%d, 11" % (sWoR, sWoR))
    A("s_mov_b32 s%d, 4" % sWoN)
    A("s_cmp_lt_u32 s%d, 2" % sTq)
    A("s_cbranch_scc1 K_TOUCHED")
    A("s_lshl_b32 s%d, s%d, 1" % (sc, sC))
    A("s_add_u32 s%d, s%d, s%d" % (sc, sc, sTq))
    A("s_and_b32 s%d, s2, 7" % sa)
    A("s_lshr_b32 s%d, s2, 3" % sb)
    A("s_mul_i32 s%d, s%d, 44032" % (sb, sb))
    A("s_cmp_eq_u32 s%d, 5" % sc)
    A("s_cbranch_scc1 K_TOUCHED")
    A("s_cmp_eq_u32 s%d, 4" % sc)
    A("s_cbranch_scc1 K_TOUCH_D")
    A("s_cmp_eq_u32 s%d, 2" % sc)
    A("s_cselect_b32 s%d, s%d, s%d" % (sGA, pWG, pWU))
    A("s_cselect_b32 s%d, s%d, s%d" % (sGA + 1, pWG + 1, pWU + 1))
    A("s_mov_b32 s%d, %d" % (sGA + 2, 512 * 2752))
    A("s_mov_b32 s%d, 0x20000" % (sGA + 3))
    A("v_lshrrev_b32 v%d, 2, v%d" % (vT0, vL))
    A("v_mul_u32_u24 v%d, 2752, v%d" % (vT0, vT0))
    A("v_and_b32 v%d, 3, v%d" % (vT1, vL))
    A("v_lshl_add_u32 v%d, v%d, 6, v%d" % (vT2, vT1, vT0))
    A("v_lshlrev_b32 v%d, 6, v%d" % (vT1, vT1))
    A("v_min_u32 v%d, 92, v%d" % (vT1, vT1))
    A("v_add_u32 v%d, v%d, v%d" % (vT3, vT1, vT0))
    A("s_mul_i32 s%d, s%d, 352" % (sa, sa))
    A("s_add_u32 s%d, s%d, s%d" % (sa, sa, sb))
    A("buffer_load_dword v%d, v%d, %s, s%d offen" % (vU0, vT2, sr(sGA, 4), sa))
    A("buffer_load_dword v%d, v%d, %s, s%d offen offset:256" % (vU1, vT3, sr(sGA, 4), sa))
    A("s_branch K_TOUCHED")
    A.label("K_TOUCH_D")
    srd(sGA, pWD, 1376 * 1024)
    A("v_min_u32 v%d, 42, v%d" % (vT0, vL))
    A("v_lshlrev_b32 v%d, 10, v%d" % (vT0, vT0))
    A("s_lshl_b32 s%d, s%d, 7" % (sa, sa))
    A("s_add_u32 s%d, s%d, s%d" % (sa, sa, sb))
    A("buffer_load_dword v%d, v%d, %s, s%d offen" % (vU0, vT0, sr(sGA, 4), sa))
    A("buffer_load_dword v%d, v%d, %s, s%d offen offset:64" % (vU1, vT0, sr(sGA, 4), sa))
    A.label("K_TOUCHED")
    A("s_cmp_eq_u32 s%d, 0" % sB)
    A("s_cbranch_scc1 K_ATT_DONE")
    A("s_mov_b32 s%d, 1" % sChunk)
    A("s_add_u32 s%d, s%d, 1" % (sb, sTq))
    A("s_mov_b32 s%d, s%d" % (sa, sTq))
    A("s_cmp_eq_u32 s%d, 1" % sB)
    A("s_cselect_b32 s%d, 4, s%d" % (sb, sb))
    A("s_cselect_b32 s%d, 4, s%d" % (sa, sa))
    A("s_sub_u32 s%d, 8, s%d" % (sN, sb))
    A("s_branch K_CHUNK")
    A.label("K_ATT_DONE")
    stamp(7)
    A("s_lshl_b32 s%d, s%d, 2" % (sa, sB))
    A("s_add_u32 s%d, s%d, s%d" % (sa, sa, sTq))
    A("s_lshl_b32 s%d, s%d, 5" % (sa, sa))
    A("s_lshl_b32 s%d, s%d, 1" % (sb, sHP))
    A("s_add_u32 s%d, s%d, s%d" % (sa, sa, sb))
    A("s_add_u32 s%d, s%d, s%d" % (sa, sa, sC))
    A("s_lshl_b32 s%d, s%d, 10" % (sb, sa))
    A("s_add_u32 s%d, s%d, 0x%x" % (sb, sb, WS_O))
    A("s_lshl_b32 s%d, s%d, 6" % (sa, sa))
    A("s_add_u32 s%d, s%d, 0x%x" % (sa, sa, WS_FO))
    A.nop(2)
    A("v_rcp_f32 v%d, v%d" % (vT0, vO + 8))
    A.nop(1)
    for r in range(8):
        A("v_mul_f32 v%d, v%d, v%d" % (vO + r, vO + r, vT0))
    for i in range(4):
        A("v_cvt_pk_bf16_f32 v%d, v%d, v%d" % (vP + i, vO + 2 * i, vO + 2 * i + 1))
    A("buffer_store_dwordx4 %s, v%d, %s, s%d offen sc1" % (vr(vP, 4), vL16, sr(sWS, 4), sb))
    sumu(vP + 4, vP, 4)
    wave_sumu(vP + 4, vP + 5)
    A("v_mov_b32 v%d, v%d" % (vP + 6, vNon))
    A("v_mov_b32 v%d, v%d" % (vP + 7, vNon + 1))
    A("s_mov_b64 exec, 1")
    A("buffer_store_dwordx4 %s, v%d, %s, s%d offen sc1" % (vr(vP + 4, 4), vL16, sr(sWS, 4), sa))
    A("s_mov_b64 exec, -1")
    A("s_setprio 0")
    stamp(8)
    A.label("K_WOREST")
    wo_piece("K_WODONE")
    A("s_cmp_lg_u32 s%d, 0" % sWoN)
    A("s_cbranch_scc1 K_WOREST")
    A("s_cmp_eq_u32 s%d, 0" % sB)
    A("s_cbranch_scc1 K_WOW0")
    A("s_waitcnt vmcnt(2)")
    A("s_branch K_WOW1")
    A.label("K_WOW0")
    A("s_waitcnt vmcnt(0)")
    A.label("K_WOW1")
    A("s_barrier")
    A("s_lshl_b32 s%d, s%d, 1" % (sa, sG3))
    A("s_add_u32 s%d, s%d, s%d" % (sa, sa, sC))
    A("s_lshl_b32 s%d, s%d, 2" % (sa, sa))
    A("s_add_u32 s%d, s%d, s%d" % (sa, sa, sT))
    A("s_lshl_b32 s%d, s%d, 9" % (sd, sa))
    A("s_add_u32 s%d, s%d, 0x%x" % (sd, sd, WS_FO))
    A("s_lshl_b32 s%d, s%d, 13" % (sa, sa))
    A("s_add_u32 s%d, s%d, 0x%x" % (sa, sa, WS_O))
    A("s_add_u32 s%d, s%d, 4096" % (sb, sa))
    A("v_lshlrev_b32 v%d, 6, v%d" % (vT0, vL))
    A("v_mov_b32 v%d, 0" % vOG)
    A("s_mov_b64 exec, 0xff")
    A("buffer_load_dwordx4 %s, v%d, %s, s%d offen sc1" % (vr(vOG, 4), vT0, sr(sWS, 4), sd))
    A("s_mov_b64 exec, -1")
    A("v_bfe_u32 v%d, v%d, 2, 2" % (vT1, vL))
    A("v_lshl_add_u32 v%d, v%d, 3, v%d" % (vT2, vG, vT1))
    A("s_lshl_b32 s%d, s%d, 14" % (sc, sT))
    A("s_add_u32 s%d, s%d, %d" % (sc, sc, L_WO))
    A("v_lshl_add_u32 v%d, v%d, 7, s%d" % (vWOa, vT2, sc))
    A("v_lshrrev_b32 v%d, 1, v%d" % (vT1, vT1))
    A("v_lshl_add_u32 v%d, v%d, 6, v%d" % (vWOa, vT1, vWOa))
    A("v_bfe_u32 v%d, v%d, 4, 1" % (vT1, vL))
    A("v_lshl_add_u32 v%d, v%d, 5, v%d" % (vWOa, vT1, vWOa))
    A("v_and_b32 v%d, 3, v%d" % (vT1, vL))
    A("v_lshl_add_u32 v%d, v%d, 3, v%d" % (vWOa, vT1, vWOa))
    A("v_xor_b32 v%d, 64, v%d" % (vWOa + 1, vWOa))
    for s in range(8):
        for C in range(2):
            for half in range(2):
                A("ds_read_b64_tr_b16 %s, v%d offset:%d" % (vr(vAW + (s * 2 + C) * 4 + 2 * half, 2), vWOa + C, (16 * s + 4 * half) * 128))
    A("v_and_b32 v%d, 15, v%d" % (vT2, vN))
    A("v_xor_b32 v%d, v%d, v%d" % (vT2, vT2, vG))
    A("v_lshlrev_b32 v%d, 4, v%d" % (vT2, vT2))
    A("s_lshl_b32 s%d, s%d, 13" % (sc, sWv))
    A("s_add_u32 s%d, s%d, %d" % (sc, sc, L_RED))
    A("v_lshl_add_u32 v%d, v%d, 8, s%d" % (vT1, vN, sc))
    for u in range(8):
        A("v_xor_b32 v%d, %d, v%d" % (vRa + u, (2 * u) << 4, vT2))
        A("v_add_u32 v%d, v%d, v%d" % (vRa + u, vRa + u, vT1))
    A("v_lshrrev_b32 v%d, 3, v%d" % (vT3, vL))
    A("s_lshl_b32 s%d, s%d, 3" % (sc, sT))
    A("v_add_u32 v%d, s%d, v%d" % (vT3, sc, vT3))
    A("v_and_b32 v%d, 7, v%d" % (vT1, vL))
    A("v_lshlrev_b32 v%d, 1, v%d" % (vT1, vT1))
    A("v_and_b32 v%d, 15, v%d" % (vT2, vT3))
    A("v_xor_b32 v%d, v%d, v%d" % (vT1, vT1, vT2))
    A("v_lshlrev_b32 v%d, 4, v%d" % (vT1, vT1))
    A("s_lshl_b32 s%d, s%d, 15" % (sc, sC))
    A("s_add_u32 s%d, s%d, %d" % (sc, sc, L_RED))
    A("v_lshl_add_u32 v%d, v%d, 8, s%d" % (vT3, vT3, sc))
    A("v_add_u32 v%d, v%d, v%d" % (vT2, vT3, vT1))
    A("v_xor_b32 v%d, 16, v%d" % (vT1, vT1))
    A("v_add_u32 v%d, v%d, v%d" % (vT3, vT3, vT1))
    A("s_mov_b32 s%d, 0" % sCnt)
    A("s_mov_b64 exec, 0xff")
    A.label("K_POLLO")
    A("s_waitcnt vmcnt(0)")
    A("v_cmp_eq_u64 vcc, %s, %s" % (vr(vOG + 2, 2), vr(vNon, 2)))
    A("s_cmp_eq_u64 vcc, exec")
    A("s_cbranch_scc1 K_POLLO_OK")
    A("buffer_load_dwordx4 %s, v%d, %s, s%d offen sc1" % (vr(vOG, 4), vT0, sr(sWS, 4), sd))
    spin_tail("K_POLLO", sCnt)
    A.label("K_POLLO_OK")
    A("s_mov_b64 exec, -1")
    stamp(9)
    A.label("K_OLOAD")
    for s in range(8):
        A("buffer_load_dwordx4 %s, v%d, %s, s%d offen offset:%d sc1" % (vr(vOF + 4 * s, 4), vL16, sr(sWS, 4), sa if s < 4 else sb, (s & 3) * 1024))
    A("v_sub_u32 v%d, 0, v%d" % (vChk, vOG))
    A("s_waitcnt lgkmcnt(0)")
    for s in range(8):
        A("s_waitcnt vmcnt(%d)" % (7 - s))
        A("%s %s, %s, %s, %s" % (MFMA, vr(vH0, 16), vr(vAW + (s * 2) * 4, 4), vr(vOF + 4 * s, 4), "0" if s == 0 else vr(vH0, 16)))
        A("v_add3_u32 v%d, v%d, v%d, v%d" % (vChk, vOF + 4 * s, vOF + 4 * s + 1, vChk))
        A("%s %s, %s, %s, %s" % (MFMA, vr(vH1, 16), vr(vAW + (s * 2 + 1) * 4, 4), vr(vOF + 4 * s, 4), "0" if s == 0 else vr(vH1, 16)))
        A("v_add3_u32 v%d, v%d, v%d, v%d" % (vChk, vOF + 4 * s + 2, vOF + 4 * s + 3, vChk))
    wave_sumu(vChk, vT1)
    A.nop(1)
    A("v_readfirstlane_b32 s68, v%d" % vChk)
    A("s_cmp_eq_u32 s68, 0")
    A("s_cbranch_scc1 K_OOK")
    spin_tail("K_OLOAD", sCnt)
    A.label("K_OOK")
    A("s_barrier")
    stamp(10)
    A("v_and_b32 v%d, 7, v%d" % (vT0, vL))
    A("v_lshlrev_b32 v%d, 4, v%d" % (vT1, vT0))
    A("v_lshl_add_u32 v%d, v%d, 10, v%d" % (vT1, vTok, vT1))
    A("s_lshl_b32 s%d, s%d, 7" % (sd, sCG))
    A("s_add_u32 s%d, s%d, 0x%x" % (sa, sd, WS_H))
    A.nop(2)
    for u in range(8):
        A("ds_write_b128 v%d, %s" % (vRa + u, vr(vH0 + 4 * u, 4)))
    A("v_lshrrev_b32 v%d, 3, v%d" % (vPa, vL))
    A("v_lshlrev_b32 v%d, 4, v%d" % (vChk, vPa))
    A("v_lshl_add_u32 v%d, v%d, 10, v%d" % (vPa, vT0, vChk))
    A("s_lshl_b32 s%d, s%d, 13" % (sb, sG3))
    A("s_lshl_b32 s%d, s%d, 7" % (sc, sWv))
    A("s_add_u32 s%d, s%d, s%d" % (sb, sb, sc))
    A("s_add_u32 s%d, s%d, 0x%x" % (sb, sb, WS_P))
    A("s_lshl_b32 s%d, s%d, 10" % (sc, sCG))
    A("s_add_u32 s%d, s%d, s%d" % (sc, sc, sb))
    A("s_waitcnt lgkmcnt(0)")
    A("s_barrier")
    for q in range(4):
        A("ds_read_b128 %s, v%d offset:%d" % (vr(vOF + 8 * q, 4), vT2, q * 8192))
        A("ds_read_b128 %s, v%d offset:%d" % (vr(vOF + 8 * q + 4, 4), vT3, q * 8192))
    for i in range(4):
        A("v_lshlrev_b32 v%d, 16, v%d" % (vH0 + 2 * i, vXr + i))
        A("v_and_b32 v%d, 0xffff0000, v%d" % (vH0 + 2 * i + 1, vXr + i))
    A("s_waitcnt lgkmcnt(0)")
    for i in range(8):
        A("v_add_f32 v%d, v%d, v%d" % (vOF + i, vOF + i, vOF + 8 + i))
        A("v_add_f32 v%d, v%d, v%d" % (vOF + 16 + i, vOF + 16 + i, vOF + 24 + i))
    for i in range(8):
        A("v_add_f32 v%d, v%d, v%d" % (vOF + i, vOF + i, vOF + 16 + i))
    for i in range(4):
        A("v_cvt_pk_bf16_f32 v%d, v%d, v%d" % (vOF + 8 + i, vOF + 2 * i, vOF + 2 * i + 1))
    for i in range(4):
        A("v_lshlrev_b32 v%d, 16, v%d" % (vOF + 2 * i, vOF + 8 + i))
        A("v_and_b32 v%d, 0xffff0000, v%d" % (vOF + 2 * i + 1, vOF + 8 + i))
    for i in range(8):
        A("v_add_f32 v%d, v%d, v%d" % (vOF + i, vOF + i, vH0 + i))
    for i in range(4):
        A("v_cvt_pk_bf16_f32 v%d, v%d, v%d" % (vHp + i, vOF + 2 * i, vOF + 2 * i + 1))
    s1, s2, s3 = vOF + 16, vOF + 17, vOF + 18
    for i in range(4):
        for (acc, other) in ((s1, None), (s2, "self"), (s3, "w")):
            o = vOnes if other is None else (vHp + i if other == "self" else vWr + i)
            A("v_dot2_f32_bf16 v%d, v%d, v%d, %s" % (acc, vHp + i, o, "0" if i == 0 else "v%d" % acc))
    sumu(s3 + 1, vHp, 4)
    A("buffer_store_dwordx4 %s, v%d, %s, s%d offen sc1" % (vr(vHp, 4), vT1, sr(sWS, 4), sa))
    def red8(regs):
        for dpp in ("quad_perm:[1,0,3,2]", "quad_perm:[2,3,0,1]", "row_half_mirror"):
            for acc in regs:
                A("v_add_f32_dpp v%d, v%d, v%d %s row_mask:0xf bank_mask:0xf" % (acc, acc, acc, dpp))
    for dpp in ("quad_perm:[1,0,3,2]", "quad_perm:[2,3,0,1]", "row_half_mirror"):
        for acc in (s1, s2, s3):
            A("v_add_f32_dpp v%d, v%d, v%d %s row_mask:0xf bank_mask:0xf" % (acc, acc, acc, dpp))
        A("v_add_u32_dpp v%d, v%d, v%d %s row_mask:0xf bank_mask:0xf" % (s3 + 1, s3 + 1, s3 + 1, dpp))
    for acc in (s1, s2, s3, s3 + 1):
        A("v_min_u32 v%d, -2, v%d" % (acc, acc))
    A("s_mov_b32 exec_lo, 0x01010101")
    A("s_mov_b32 exec_hi, 0x01010101")
    A("s_add_u32 s68, s%d, 0x%x" % (sc, WS_P2 - WS_P))
    A("buffer_store_dwordx4 %s, v%d, %s, s68 offen" % (vr(s1, 4), vChk, sr(sWS, 4)))
    A("buffer_store_dwordx4 %s, v%d, %s, s%d offen sc1" % (vr(s1, 4), vChk, sr(sWS, 4), sc))
    A("s_mov_b64 exec, -1")
    A("s_add_u32 s%d, s%d, 0x%x" % (sc, sb, WS_P2 - WS_P))
    for i in range(3):
        A("v_mov_b32 v%d, v%d" % (vS + i, s1 + i))
    A("s_lshl_b32 s%d, 0x01010101, s%d" % (sMaskV, sCG))
    A("s_not_b32 s%d, s%d" % (sMaskV, sMaskV))
    A("s_mov_b32 s%d, s%d" % (sMaskV + 1, sMaskV))
    stamp(11)
    srd(sW, pOUT, 0x200000)
    for i in range(4):
        A("v_dot2_f32_bf16 v%d, v%d, v%d, %s" % (vW1, vWR4 + i, vOnes, "0" if i == 0 else "v%d" % vW1))
    A.nop(3)
    for dpp in ("quad_perm:[1,0,3,2]", "quad_perm:[2,3,0,1]", "row_half_mirror", "row_mirror"):
        A("v_add_f32_dpp v%d, v%d, v%d %s row_mask:0xf bank_mask:0xf" % (vW1, vW1, vW1, dpp))
        A.nop(2)
    for sw in ("v_permlane16_swap_b32", "v_permlane32_swap_b32"):
        A("v_mov_b32 v%d, v%d" % (vT0, vW1))
        A.nop(2)
        A("%s v%d, v%d" % (sw, vW1, vT0))
        A.nop(1)
        A("v_add_f32 v%d, v%d, v%d" % (vW1, vW1, vT0))
    A("s_cmp_eq_u32 s%d, 0" % sRole)
    A("s_cbranch_scc1 K_NOFA")
    for i in range(24):
        A("v_mov_b32 v%d, v%d" % (vBF + i, vOnes))
    A.label("K_NOFA")
    for i in range(4):
        A("v_lshlrev_b32 v%d, 16, v%d" % (vX + 2 * i, vHp + i))
        A("v_and_b32 v%d, 0xffff0000, v%d" % (vX + 2 * i + 1, vHp + i))
    A("v_sub_u32 v%d, 2047, v%d" % (vT0, vTok))
    A("s_lshl_b32 s68, s%d, 3" % sWv)
    A("s_add_u32 s68, s68, %d" % L_TOP)
    A("v_mov_b32 v%d, s68" % vT3)
    A("s_mov_b32 s%d, 0xfffff800" % sI2)
    A("v_mov_b32 v%d, 0" % vK2)
    A("s_mov_b32 s%d, 0" % sCnt)
    A("s_mov_b64 exec, %s" % sr(sMaskV, 2))
    A.label("K_POLL1")
    A("s_and_b32 s68, s%d, 3" % sCnt)
    A("s_cmp_eq_u32 s68, 3")
    A("s_cselect_b32 s68, s%d, s%d" % (sb, sc))
    A("buffer_load_dwordx4 %s, v%d, %s, s68 offen sc1" % (vr(vS, 4), vPa, sr(sWS, 4)))
    A("s_waitcnt vmcnt(0)")
    maxu(vT2, vS, 4)
    A("v_cmp_eq_u32 vcc, -1, v%d" % vT2)
    A("s_cmp_eq_u64 vcc, 0")
    A("s_cbranch_scc1 K_POLL1_OK")
    A("s_mov_b64 exec, vcc")
    spin_tail("K_POLL1", sCnt)
    A.label("K_POLL1_OK")
    A("s_mov_b64 exec, -1")
    stamp(12)
    red8((vS, vS + 1, vS + 2))
    ln_stats(vS, vS + 1)
    A("v_fma_f32 v%d, -v%d, v%d, v%d" % (vS + 2, vS, vW1, vS + 2))
    A("v_mul_f32 v%d, v%d, v%d" % (vS + 2, vS + 2, vS + 1))
    A("v_ashrrev_i32 v%d, 31, v%d" % (vK1, vS + 2))
    A("v_or_b32 v%d, 0x80000000, v%d" % (vK1, vK1))
    A("v_xor_b32 v%d, v%d, v%d" % (vK1, vK1, vS + 2))
    A("v_and_or_b32 v%d, v%d, s%d, v%d" % (vK1, vK1, sI2, vT0))
    def merge(p1=vP1, p2=vP2):
        A("v_max_u32 v%d, v%d, v%d" % (vK2, vK2, p2))
        A("v_med3_u32 v%d, v%d, v%d, v%d" % (vK2, vK1, p1, vK2))
        A("v_max_u32 v%d, v%d, v%d" % (vK1, vK1, p1))
    def merge_dpp(dpp):
        A.nop(2)
        A("v_mov_b32_dpp v%d, v%d %s row_mask:0xf bank_mask:0xf" % (vP1, vK1, dpp))
        A("v_mov_b32_dpp v%d, v%d %s row_mask:0xf bank_mask:0xf" % (vP2, vK2, dpp))
        merge()
    def merge_swap(sw):
        A("v_mov_b32 v%d, v%d" % (vP1, vK1))
        A("v_mov_b32 v%d, v%d" % (vP2, vK2))
        A.nop(2)
        A("%s v%d, v%d" % (sw, vK1, vP1))
        A("%s v%d, v%d" % (sw, vK2, vP2))
        A.nop(1)
        merge()
    merge_dpp("row_ror:8")
    merge_swap("v_permlane16_swap_b32")
    merge_swap("v_permlane32_swap_b32")
    A("ds_write_b64 v%d, %s" % (vT3, vr(vK1, 2)))
    A("s_waitcnt lgkmcnt(0)")
    A("s_barrier")
    A("s_cmp_eq_u32 s%d, 0" % sWv)
    A("s_cbranch_scc1 K_W0")
    A("s_cmp_eq_u32 s%d, 0" % sC)
    A("s_cbranch_scc1 K_STG_DONE")
    A("s_cmp_eq_u32 s%d, 0" % sRole)
    A("s_cbranch_scc1 K_STG_DONE")
    A("s_mov_b32 s%d, s%d" % (sc, sT))
    A("v_lshrrev_b32 v%d, 1, v%d" % (vT0, vL))
    A("v_and_b32 v%d, 1, v%d" % (vT2, vL))
    A("v_lshlrev_b32 v%d, 4, v%d" % (vT2, vT2))
    A("s_lshl_b32 s%d, s%d, 5" % (sa, sJ))
    A("s_cmp_eq_u32 s%d, 1" % sRole)
    A("s_cbranch_scc0 K_FFN_D")
    srd(sGA, pWG, 512 * 2752)
    srd(sGB, pWU, 512 * 2752)
    A("v_mul_u32_u24 v%d, 2752, v%d" % (vT0, vT0))
    A("v_add_u32 v%d, v%d, v%d" % (vT0, vT0, vT2))
    A("s_mul_i32 s%d, s%d, %d" % (sb, sc, 128 * 2752))
    A("s_add_u32 s%d, s%d, s%d" % (sa, sa, sb))
    A("s_lshl_b32 s%d, s%d, 12" % (sb, sc))
    for q in range(4):
        A("s_add_u32 s%d, s%d, %d" % (sc, sb, L_F + q * 1024))
        A("s_mov_b32 m0, s%d" % sc)
        A("s_add_u32 s%d, s%d, %d" % (sc, sb, L_FU + q * 1024))
        A("buffer_load_dwordx4 v%d, %s, s%d offen lds" % (vT0, sr(sGA, 4), sa))
        A("s_mov_b32 m0, s%d" % sc)
        A("s_nop 0")
        A("buffer_load_dwordx4 v%d, %s, s%d offen lds" % (vT0, sr(sGB, 4), sa))
        A("s_add_u32 s%d, s%d, %d" % (sa, sa, 32 * 2752))
    A("s_branch K_STG_DONE")
    A.label("K_FFN_D")
    srd(sGA, pWD, 1376 * 1024)
    A("v_lshl_add_u32 v%d, v%d, 10, v%d" % (vT0, vT0, vT2))
    A("s_lshl_b32 s%d, s%d, 15" % (sb, sc))
    A("s_add_u32 s%d, s%d, s%d" % (sa, sa, sb))
    A("s_lshl_b32 s%d, s%d, 10" % (sb, sc))
    A("s_add_u32 s%d, s%d, %d" % (sb, sb, L_F))
    A.label("K_FFN_DL")
    A("s_mov_b32 m0, s%d" % sb)
    A("s_add_u32 s%d, s%d, 4096" % (sb, sb))
    A("buffer_load_dwordx4 v%d, %s, s%d offen lds" % (vT0, sr(sGA, 4), sa))
    A("s_add_u32 s%d, s%d, 0x20000" % (sa, sa))
    A("s_cmp_lt_u32 s%d, %d" % (sb, L_F + 43 * 1024))
    A("s_cbranch_scc1 K_FFN_DL")
    A.label("K_STG_DONE")
    A("s_waitcnt vmcnt(0)")
    A("s_branch K_L2WAIT")
    A.label("K_W0")
    A("v_and_b32 v%d, 7, v%d" % (vT2, vL))
    A("v_lshlrev_b32 v%d, 3, v%d" % (vT2, vT2))
    A("v_add_u32 v%d, %d, v%d" % (vT2, L_TOP, vT2))
    A("ds_read_b64 %s, v%d" % (vr(vK1, 2), vT2))
    A("v_lshlrev_b32 v%d, 6, v%d" % (vT2, vN))
    A("s_mov_b32 s%d, 0x%x" % (sa, WS_E))
    A("s_lshl_b32 s%d, s%d, 6" % (sc, sG3))
    A("s_add_u32 s%d, s%d, s%d" % (sc, sc, sa))
    A("s_and_b32 s68, s%d, 7" % sG3)
    A("s_cmp_eq_u32 s68, s%d" % sCG)
    A("s_cbranch_scc0 K_NOPUB2")
    A("s_waitcnt lgkmcnt(0)")
    for dpp in ("quad_perm:[1,0,3,2]", "quad_perm:[2,3,0,1]", "row_half_mirror"):
        merge_dpp(dpp)
    A("v_mov_b32 v%d, v%d" % (vAcc, vK1))
    A("v_mov_b32 v%d, v%d" % (vAcc + 1, vK2))
    A("v_mov_b32 v%d, v%d" % (vAcc + 2, vNon))
    A("v_mov_b32 v%d, v%d" % (vAcc + 3, vNon + 1))
    A("s_mov_b64 exec, 1")
    A("buffer_store_dwordx4 %s, v%d, %s, s%d offen sc1" % (vr(vAcc, 4), vT2, sr(sWS, 4), sc))
    A("s_mov_b64 exec, -1")
    A.label("K_NOPUB2")
    A("s_mov_b32 s%d, 0" % sCnt)
    A("s_mov_b32 exec_hi, 0")
    A.label("K_POLL2")
    A("buffer_load_dwordx4 %s, v%d, %s, s%d offen sc1" % (vr(vAcc + 4, 4), vT2, sr(sWS, 4), sa))
    A("s_waitcnt vmcnt(0)")
    A("v_cmp_eq_u64 vcc, %s, %s" % (vr(vAcc + 6, 2), vr(vNon, 2)))
    A("s_cmp_eq_u64 vcc, exec")
    A("s_cbranch_scc1 K_POLL2_OK")
    spin_tail("K_POLL2", sCnt)
    A.label("K_POLL2_OK")
    A("s_mov_b64 exec, -1")
    A("s_waitcnt lgkmcnt(0)")
    A("v_mov_b32 v%d, v%d" % (vK1, vAcc + 4))
    A("v_mov_b32 v%d, v%d" % (vK2, vAcc + 5))
    for dpp in ("quad_perm:[1,0,3,2]", "quad_perm:[2,3,0,1]", "row_half_mirror", "row_mirror"):
        merge_dpp(dpp)
    merge_swap("v_permlane16_swap_b32")
    A("s_mov_b64 exec, 1")
    A("ds_write_b64 v%d, %s offset:64" % (vT3, vr(vK1, 2)))
    A("s_mov_b64 exec, -1")
    A("s_waitcnt lgkmcnt(0)")
    A.label("K_L2WAIT")
    for i in range(8):
        A("v_sub_f32 v%d, v%d, v%d" % (vX + 8 + i, vX + i, vS))
        A("v_fmac_f32 v%d, v%d, v%d" % (vX + i, vX + 8 + i, vS + 1))
    for i in range(4):
        A("v_cvt_pk_bf16_f32 v%d, v%d, v%d" % (vHp + i, vX + 2 * i, vX + 2 * i + 1))
    A("v_mov_b32 v%d, %d" % (vT3, L_TOP + 64))
    A("v_mov_b32 v%d, 0" % (vSel + 1))
    A("s_barrier")
    A("ds_read_b64 %s, v%d" % (vr(vK1, 2), vT3))
    A("s_waitcnt lgkmcnt(0)")
    A("v_readfirstlane_b32 s%d, v%d" % (sI1, vK1))
    A("v_readfirstlane_b32 s%d, v%d" % (sI2, vK2))
    A("s_and_b32 s%d, s%d, 0x7ff" % (sI1, sI1))
    A("s_sub_u32 s%d, 2047, s%d" % (sI1, sI1))
    A("s_and_b32 s%d, s%d, 0x7ff" % (sI2, sI2))
    A("s_sub_u32 s%d, 2047, s%d" % (sI2, sI2))
    stamp(13)
    A("s_cmp_eq_u32 s%d, 0" % sRole)
    A("s_cbranch_scc1 K_OWN")
    A("s_lshr_b32 s%d, s%d, 2" % (sI, sJ))
    A("s_and_b32 s%d, s%d, 3" % (sN, sJ))
    A("s_cmp_eq_u32 s%d, 1" % sRole)
    A("s_cselect_b32 s%d, s%d, s%d" % (sI, sWv, sI))
    A("s_cselect_b32 s%d, 0, s%d" % (sN, sN))
    A("s_cbranch_scc1 K_SEL")
    A("s_cmp_eq_u32 s%d, 0" % sWv)
    A("s_cbranch_scc0 K_OWN")
    A.label("K_SEL")
    A("v_mov_b32 v%d, s%d" % (vT0, sI1))
    A("v_mov_b32 v%d, s%d" % (vT2, sI2))
    A("s_mov_b32 vcc_lo, 0xaaaaaaaa")
    A("s_mov_b32 vcc_hi, 0xaaaaaaaa")
    A("v_cndmask_b32 v%d, v%d, v%d, vcc" % (vPa, vT0, vT2))
    A("v_lshlrev_b32 v%d, 10, v%d" % (vPa, vPa))
    A("v_lshl_add_u32 v%d, v%d, 4, v%d" % (vPa, vG, vPa))
    A("s_lshl_b32 s%d, s%d, 7" % (sc, sI))
    A("s_add_u32 s%d, s%d, 0x%x" % (sc, sc, WS_H))
    def h_loads():
        A("s_mov_b32 exec_lo, 3")
        A("s_mov_b32 exec_hi, 3")
        for s in range(4):
            A("s_add_u32 s68, s%d, %d" % (sN, s))
            A("s_and_b32 s68, s68, 3")
            A("s_lshl_b32 s68, s68, 5")
            A("s_add_u32 s68, s68, s%d" % sc)
            A("buffer_load_dwordx4 %s, v%d, %s, s68 offen sc1" % (vr(vBF + 4 * s, 4), vPa, sr(sWS, 4)))
        A("s_mov_b64 exec, -1")
    h_loads()
    A("s_mov_b32 vcc_lo, 0xffff0000")
    A("s_mov_b32 vcc_hi, 0xffff0000")
    A("v_cndmask_b32 v%d, v%d, v%d, vcc" % (vT0, vT0, vT2))
    A("v_lshrrev_b32 v%d, 6, v%d" % (vT2, vT0))
    A("v_lshlrev_b32 v%d, 13, v%d" % (vT2, vT2))
    A("v_bfe_u32 v%d, v%d, 4, 2" % (vT3, vT0))
    A("v_lshl_add_u32 v%d, v%d, 8, v%d" % (vT2, vT3, vT2))
    A("v_bfe_u32 v%d, v%d, 2, 1" % (vT3, vT0))
    A("v_lshl_add_u32 v%d, v%d, 7, v%d" % (vT2, vT3, vT2))
    A("v_bfe_u32 v%d, v%d, 3, 1" % (vT3, vT0))
    A("v_lshl_add_u32 v%d, v%d, 6, v%d" % (vT2, vT3, vT2))
    A("v_and_b32 v%d, 3, v%d" % (vT3, vT0))
    A("v_lshl_add_u32 v%d, v%d, 4, v%d" % (vT2, vT3, vT2))
    A("v_and_b32 v%d, 7, v%d" % (vT3, vL))
    A("v_lshl_add_u32 v%d, v%d, 10, v%d" % (vU0, vT3, vT2))
    def ss_load():
        A("s_mov_b32 s68, 0x%x" % WS_P)
        A("buffer_load_dwordx4 %s, v%d, %s, s68 offen sc1" % (vr(vSs, 4), vU0, sr(sWS, 4)))
    ss_load()
    A("v_and_b32 v%d, 14, v%d" % (vT2, vL))
    A("v_lshlrev_b32 v%d, 1, v%d" % (vT2, vT2))
    A("v_lshl_add_u32 v%d, v%d, 10, v%d" % (vSel + 1, vT0, vT2))
    def h_check(retry, ok):
        sumu(vT2, vBF, 16)
        maxu(vT3, vSs, 4)
        A("s_add_u32 s%d, s%d, 16" % (sb, sI))
        A("v_cmp_eq_u32 vcc, -1, v%d" % vT3)
        A("v_readlane_b32 s68, v%d, s%d" % (vSs + 3, sI))
        A("v_readlane_b32 s69, v%d, s%d" % (vSs + 3, sb))
        A("v_readlane_b32 s%d, v%d, 0" % (sa, vT2))
        A("v_readlane_b32 s%d, v%d, 32" % (sb, vT2))
        A("s_add_u32 s%d, s%d, s%d" % (sa, sa, sb))
        A("s_min_u32 s%d, s%d, -2" % (sa, sa))
        A("s_xor_b32 s68, s68, s%d" % sa)
        A("v_readlane_b32 s%d, v%d, 1" % (sa, vT2))
        A("v_readlane_b32 s%d, v%d, 33" % (sb, vT2))
        A("s_add_u32 s%d, s%d, s%d" % (sa, sa, sb))
        A("s_min_u32 s%d, s%d, -2" % (sa, sa))
        A("s_xor_b32 s69, s69, s%d" % sa)
        A("s_or_b32 s68, s68, s69")
        A("s_or_b32 s68, s68, vcc_lo")
        A("s_or_b32 s68, s68, vcc_hi")
        A("s_cbranch_scc0 %s" % ok)
        h_loads()
        ss_load()
        A("s_waitcnt vmcnt(0)")
        spin_tail(retry, sCnt)
    A.label("K_OWN")
    A("v_cmp_ne_u32 vcc, s%d, v%d" % (sI1, vTok))
    A("v_cmp_ne_u32 s[68:69], s%d, v%d" % (sI2, vTok))
    A("s_and_b64 exec, vcc, s[68:69]")
    A("buffer_store_dwordx4 %s, v%d, %s, s%d offen" % (vr(vHp, 4), vT1, sr(sW, 4), sd))
    A("s_mov_b64 exec, -1")
    A("s_cmp_eq_u32 s%d, 0" % sRole)
    A("s_cbranch_scc1 K_FIN")
    A("v_bfe_u32 v%d, v%d, 2, 2" % (vT0, vL))
    A("v_and_b32 v%d, 3, v%d" % (vT2, vL))
    A("s_cmp_eq_u32 s%d, 1" % sRole)
    A("s_cbranch_scc0 K_FA_D")
    A("v_lshl_add_u32 v%d, v%d, 3, v%d" % (vT0, vG, vT0))
    A("s_lshl_b32 s68, s%d, 11" % sWv)
    A("s_add_u32 s68, s68, %d" % L_F)
    A("v_lshl_add_u32 v%d, v%d, 5, s68" % (vT0, vT0))
    A("v_lshl_add_u32 v%d, v%d, 3, v%d" % (vT0, vT2, vT0))
    A("v_bfe_u32 v%d, v%d, 4, 1" % (vT2, vL))
    A("v_mul_u32_u24 v%d, %d, v%d" % (vT2, L_FU - L_F, vT2))
    A("v_add_u32 v%d, v%d, v%d" % (vT0, vT0, vT2))
    for s in range(4):
        for half in range(2):
            A("ds_read_b64_tr_b16 %s, v%d offset:%d" % (vr(vFA + 4 * s + 2 * half, 2), vT0, (16 * s + 4 * half) * 32))
    A("s_branch K_FA_DONE")
    A.label("K_FA_D")
    A("v_lshrrev_b32 v%d, 4, v%d" % (vT3, vL))
    A("v_lshl_add_u32 v%d, v%d, 3, v%d" % (vT0, vT3, vT0))
    A("s_lshl_b32 s68, s%d, 10" % sWv)
    A("s_add_u32 s68, s68, %d" % L_F)
    A("v_lshl_add_u32 v%d, v%d, 5, s68" % (vT0, vT0))
    A("v_lshl_add_u32 v%d, v%d, 3, v%d" % (vT0, vT2, vT0))
    for i in range(6):
        if i == 5:
            A("s_cmp_lt_u32 s%d, 3" % sWv)
            A("s_cbranch_scc0 K_FA_DONE")
        for half in range(2):
            A("ds_read_b64_tr_b16 %s, v%d offset:%d" % (vr(vFA + 4 * i + 2 * half, 2), vT0, i * 8192 + 4 * half * 32))
    A.label("K_FA_DONE")
    A("s_cmp_eq_u32 s%d, 1" % sRole)
    A("s_cbranch_scc0 K_DOWN")
    A("v_lshlrev_b32 v%d, 7, v%d" % (vT0, vN))
    A("v_lshl_add_u32 v%d, v%d, 4, v%d" % (vT0, vG, vT0))
    A("s_mul_i32 s%d, s%d, 384" % (sa, sWv))
    A("s_add_u32 s%d, s%d, %d" % (sa, sa, L_R2))
    A("v_add_u32 v%d, s%d, v%d" % (vT0, sa, vT0))
    A("s_mov_b32 s%d, 0" % sCnt)
    A("s_waitcnt vmcnt(1) lgkmcnt(0)")
    A.label("K_HCHK")
    for s in range(4):
        A("%s %s, %s, %s, %s" % (MFMA, vr(vAcc, 16), vr(vFA + 4 * s, 4), vr(vBF + 4 * s, 4), "0" if s == 0 else vr(vAcc, 16)))
    h_check("K_HCHK", "K_HOK")
    A.label("K_HOK")
    A("s_mov_b32 exec_lo, 7")
    A("s_mov_b32 exec_hi, 7")
    for a_ in range(4):
        A("ds_write_b128 v%d, %s offset:%d" % (vT0, vr(vAcc + 4 * a_, 4), a_ * 32))
    A("s_mov_b64 exec, -1")
    A("s_cmp_eq_u32 s%d, 0" % sWv)
    A("s_cbranch_scc1 K_GU_W0")
    A("s_waitcnt lgkmcnt(0)")
    A("s_barrier")
    A("s_branch K_FIN")
    A.label("K_GU_W0")
    red8((vSs, vSs + 1, vSs + 2))
    ln_stats(vSs, vSs + 1)
    A("v_bfe_u32 v%d, v%d, 4, 1" % (vT0, vL))
    A("v_and_b32 v%d, 15, v%d" % (vT2, vL))
    A("v_lshlrev_b32 v%d, 2, v%d" % (vT3, vT2))
    A("v_mul_u32_u24 v%d, 1536, v%d" % (vT2, vG))
    A("v_add_u32 v%d, v%d, v%d" % (vT3, vT3, vT2))
    A("v_add_u32 v%d, %d, v%d" % (vT3, L_R2, vT3))
    A("v_lshl_add_u32 v%d, v%d, 7, v%d" % (vT2, vT0, vT3))
    A("v_add_u32 v%d, 768, v%d" % (vP1, vT2))
    A("v_add_u32 v%d, 768, v%d" % (vP2, vT3))
    A("v_lshlrev_b32 v%d, 1, v%d" % (vT0, vL))
    A("s_lshl_b32 s%d, s%d, 6" % (sa, sJ))
    A("s_add_u32 s%d, s%d, 0x%x" % (sa, sa, WS_A))
    A("s_waitcnt lgkmcnt(0)")
    A("s_barrier")
    stamp(14)
    for hh, (ra, rb) in enumerate(((vT2, vT3), (vP1, vP2))):
        for w_ in range(2):
            A("ds_read2_b32 %s, v%d offset0:%d offset1:%d" % (vr(vX + 8 * hh + 4 * w_, 2), ra, w_ * 96, w_ * 96 + 16))
            A("ds_read2_b32 %s, v%d offset0:%d offset1:%d" % (vr(vX + 8 * hh + 4 * w_ + 2, 2), rb, w_ * 96 + 64, w_ * 96 + 80))
    A("s_waitcnt lgkmcnt(0)")
    for i in range(4):
        A("v_add_f32 v%d, v%d, v%d" % (vX + i, vX + i, vX + 4 + i))
        A("v_add_f32 v%d, v%d, v%d" % (vX + 8 + i, vX + 8 + i, vX + 12 + i))
    for i in range(4):
        A("v_add_f32 v%d, v%d, v%d" % (vX + i, vX + i, vX + 8 + i))
    for i in range(4):
        A("v_mov_b32 v%d, v%d" % (vX + 4 + i, vX + i))
    A.nop(1)
    for i in range(4):
        A("v_permlane32_swap_b32 v%d, v%d" % (vX + i, vX + 4 + i))
    for i in range(4):
        A("v_add_f32 v%d, v%d, v%d" % (vX + i, vX + i, vX + 4 + i))
    A("v_fma_f32 v%d, -v%d, v%d, v%d" % (vX, vSs, vX + 2, vX))
    A("v_fma_f32 v%d, -v%d, v%d, v%d" % (vX + 1, vSs, vX + 3, vX + 1))
    A("v_mul_f32 v%d, v%d, v%d" % (vX, vX, vSs + 1))
    A("v_mul_f32 v%d, v%d, v%d" % (vX + 1, vX + 1, vSs + 1))
    A("v_mul_f32 v%d, %s, v%d" % (vX + 2, f32(-LOG2E), vX))
    A("v_exp_f32 v%d, v%d" % (vX + 2, vX + 2))
    A("v_mul_f32 v%d, v%d, v%d" % (vX, vX, vX + 1))
    A("v_add_f32 v%d, 1.0, v%d" % (vX + 2, vX + 2))
    A("v_rcp_f32 v%d, v%d" % (vX + 2, vX + 2))
    A.nop(1)
    A("v_mul_f32 v%d, v%d, v%d" % (vX, vX, vX + 2))
    A.nop(2)
    A("v_mov_b32_dpp v%d, v%d quad_perm:[1,0,3,2] row_mask:0xf bank_mask:0xf" % (vX + 1, vX))
    A("v_cvt_pk_bf16_f32 v%d, v%d, v%d" % (vX + 2, vX, vX + 1))
    A("v_min_u32 v%d, -2, v%d" % (vX + 2, vX + 2))
    A("s_mov_b32 exec_lo, 0x55555555")
    A("s_mov_b32 exec_hi, 0")
    A("buffer_store_dword v%d, v%d, %s, s%d offen sc1" % (vX + 2, vT0, sr(sWS, 4), sa))
    A("s_mov_b64 exec, -1")
    A("s_branch K_FIN")
    A.label("K_DOWN")
    A("s_cmp_eq_u32 s%d, 0" % sWv)
    A("s_cbranch_scc0 K_D_POLL")
    A("s_mov_b32 s%d, 0" % sCnt)
    A("s_waitcnt vmcnt(0)")
    A.label("K_DH")
    h_check("K_DH", "K_DH_OK")
    A.label("K_DH_OK")
    A("v_lshlrev_b32 v%d, 5, v%d" % (vT0, vN))
    A("v_lshl_add_u32 v%d, v%d, 4, v%d" % (vT0, vG, vT0))
    A("v_add_u32 v%d, %d, v%d" % (vT0, L_TOP + 128, vT0))
    A("s_mov_b32 exec_lo, 3")
    A("s_mov_b32 exec_hi, 3")
    A("ds_write_b128 v%d, %s" % (vT0, vr(vBF, 4)))
    A("s_mov_b64 exec, -1")
    A("v_and_b32 v%d, 30, v%d" % (vT0, vL))
    A("v_lshlrev_b32 v%d, 1, v%d" % (vT0, vT0))
    A("v_add_u32 v%d, %d, v%d" % (vT0, L_TOP + 128, vT0))
    A("s_waitcnt lgkmcnt(0)")
    A("ds_read_b32 v%d, v%d" % (vSel, vT0))
    A("s_waitcnt lgkmcnt(0)")
    red8((vSs, vSs + 1, vSs + 2))
    ln_stats(vSs, vSs + 1)
    A("v_lshlrev_b32 v%d, 16, v%d" % (vX, vSel))
    A("v_and_b32 v%d, 0xffff0000, v%d" % (vSel, vSel))
    A("v_fma_f32 v%d, -v%d, v%d, v%d" % (vSs + 2, vSs, vW1, vSs + 2))
    A("v_mul_f32 v%d, v%d, v%d" % (vSs + 2, vSs + 2, vSs + 1))
    A("v_mul_f32 v%d, %s, v%d" % (vSs + 2, f32(-LOG2E), vSs + 2))
    A("v_exp_f32 v%d, v%d" % (vSs + 2, vSs + 2))
    A("s_mov_b32 vcc_lo, 0x55555555")
    A("s_mov_b32 vcc_hi, 0x55555555")
    A("v_cndmask_b32 v%d, v%d, v%d, vcc" % (vSel, vSel, vX))
    A("v_add_f32 v%d, 1.0, v%d" % (vSs + 2, vSs + 2))
    A("v_rcp_f32 v%d, v%d" % (vSs + 2, vSs + 2))
    A("v_sub_f32 v%d, v%d, v%d" % (vX + 1, vSel, vSs))
    A("v_fmac_f32 v%d, v%d, v%d" % (vSel, vX + 1, vSs + 1))
    A.label("K_D_POLL")
    A("v_and_b32 v%d, 1, v%d" % (vT0, vL))
    A("v_lshlrev_b32 v%d, 5, v%d" % (vT0, vT0))
    A("v_lshl_add_u32 v%d, v%d, 6, v%d" % (vT0, vG, vT0))
    A("v_bfe_u32 v%d, v%d, 4, 1" % (vT2, vL))
    A("v_lshl_add_u32 v%d, v%d, 4, v%d" % (vT0, vT2, vT0))
    A("v_lshrrev_b32 v%d, 4, v%d" % (vT2, vL))
    A("s_lshl_b32 s68, s%d, 7" % sWv)
    A("s_add_u32 s%d, s68, 0x%x" % (sa, WS_A))
    A("s_add_u32 s%d, s%d, 4096" % (sc, sa))
    A("v_and_b32 v%d, 15, v%d" % (vT3, vL))
    A("v_lshlrev_b32 v%d, 6, v%d" % (vT3, vT3))
    A("v_lshl_add_u32 v%d, v%d, 4, v%d" % (vT3, vT2, vT3))
    A("s_add_u32 s68, s68, %d" % L_R2)
    A("v_add_u32 v%d, s68, v%d" % (vT3, vT3))
    A("s_mov_b32 exec_lo, 0x00030003")
    A("s_mov_b32 exec_hi, 0x00030003")
    A("s_mov_b32 s%d, 0" % sCnt)
    A.label("K_POLLA")
    for i in range(5):
        if i < 4:
            A("buffer_load_dwordx4 %s, v%d, %s, s%d offen offset:%d sc1" % (vr(vBF + 4 * i, 4), vT0, sr(sWS, 4), sa, i * 1024))
        else:
            A("buffer_load_dwordx4 %s, v%d, %s, s%d offen sc1" % (vr(vBF + 4 * i, 4), vT0, sr(sWS, 4), sc))
    A("s_cmp_lt_u32 s%d, 3" % sWv)
    A("s_cbranch_scc0 K_POLLA5")
    A("buffer_load_dwordx4 %s, v%d, %s, s%d offen offset:1024 sc1" % (vr(vBF + 20, 4), vT0, sr(sWS, 4), sc))
    A.label("K_POLLA5")
    A("s_waitcnt vmcnt(0) lgkmcnt(0)")
    maxu(vT2, vBF, 24)
    A("v_cmp_eq_u32 vcc, -1, v%d" % vT2)
    A("s_cmp_eq_u64 vcc, 0")
    A("s_cbranch_scc1 K_POLLA_OK")
    spin_tail("K_POLLA", sCnt)
    A.label("K_POLLA_OK")
    A("s_mov_b64 exec, -1")
    stamp(14)
    for i in range(5):
        A("%s %s, %s, %s, %s" % (MFMA16, vr(vAcc, 4), vr(vFA + 4 * i, 4), vr(vBF + 4 * i, 4), "0" if i == 0 else vr(vAcc, 4)))
    A("s_cmp_lt_u32 s%d, 3" % sWv)
    A("s_cbranch_scc0 K_D5")
    A("%s %s, %s, %s, %s" % (MFMA16, vr(vAcc, 4), vr(vFA + 20, 4), vr(vBF + 20, 4), vr(vAcc, 4)))
    A.label("K_D5")
    A("v_lshlrev_b32 v%d, 2, v%d" % (vT0, vN))
    A("v_lshl_add_u32 v%d, v%d, 9, v%d" % (vT0, vG, vT0))
    A("v_add_u32 v%d, %d, v%d" % (vT0, L_R2, vT0))
    A("s_mov_b32 exec_lo, 0x00030003")
    A("s_mov_b32 exec_hi, 0x00030003")
    A.nop(3)
    A("ds_write_b128 v%d, %s" % (vT3, vr(vAcc, 4)))
    A("s_mov_b64 exec, -1")
    A("s_waitcnt lgkmcnt(0)")
    A("s_barrier")
    A("s_cmp_eq_u32 s%d, 0" % sWv)
    A("s_cbranch_scc0 K_FIN")
    A("ds_read2_b32 %s, v%d offset0:0 offset1:32" % (vr(vX + 2, 2), vT0))
    A("ds_read2_b32 %s, v%d offset0:64 offset1:96" % (vr(vX + 4, 2), vT0))
    A("s_lshl_b32 s%d, s%d, 5" % (sa, sJ))
    A("s_waitcnt lgkmcnt(0)")
    A("v_add_f32 v%d, v%d, v%d" % (vX + 2, vX + 2, vX + 3))
    A("v_add_f32 v%d, v%d, v%d" % (vX + 4, vX + 4, vX + 5))
    A("v_add_f32 v%d, v%d, v%d" % (vX, vX + 2, vX + 4))
    A("v_mov_b32 v%d, v%d" % (vX + 2, vX))
    A.nop(2)
    A("v_permlane32_swap_b32 v%d, v%d" % (vX, vX + 2))
    A.nop(1)
    A("v_add_f32 v%d, v%d, v%d" % (vX, vX, vX + 2))
    A("v_fmac_f32 v%d, v%d, v%d" % (vSel, vX, vSs + 2))
    A.nop(2)
    A("v_mov_b32_dpp v%d, v%d quad_perm:[1,0,3,2] row_mask:0xf bank_mask:0xf" % (vX, vSel))
    A("v_cvt_pk_bf16_f32 v%d, v%d, v%d" % (vSel, vSel, vX))
    A("s_mov_b32 exec_lo, 0x55555555")
    A("s_mov_b32 exec_hi, 0")
    A("buffer_store_dword v%d, v%d, %s, s%d offen" % (vSel, vSel + 1, sr(sW, 4), sa))
    A("s_mov_b64 exec, -1")
    A.label("K_FIN")
    if STAMPS:
        A("s_waitcnt vmcnt(0)")
        stamp(15)
        A("s_waitcnt lgkmcnt(0)")
        if opt.get("dbgout"):
            A("s_cmp_eq_u32 s2, %d" % opt["dbgout"])
            A("s_cbranch_scc0 K_END")
            A("s_cmp_eq_u32 s%d, 0" % sWv)
            A("s_cbranch_scc0 K_END")
            srd(sGA, pDBG, 256)
            A("v_mov_b32 v%d, 0" % vT0)
            A("s_mov_b64 exec, 1")
            for i, st in enumerate((0, 2, 3, 4, 5, 6, 7, 9, 10, 11, 12, 13, 14, 15)):
                A("v_mov_b32 v%d, s%d" % (vT2, 70 + 2 * st))
                A("v_sub_u32 v%d, v%d, v%d" % (vT2, vT2, vNon))
                A("buffer_store_dword v%d, v%d, %s, 0 offen offset:%d" % (vT2, vT0, sr(sGA, 4), 8 + 4 * i))
                A.nop(2)
            A("s_branch K_END")
        A("s_lshl_b32 s%d, s2, 3" % sa)
        A("s_add_u32 s%d, s%d, s%d" % (sa, sa, sWv))
        A("s_mul_i32 s%d, s%d, %d" % (sa, sa, NSTAMP_SLOTS * 8))
        A("s_add_u32 s%d, s%d, 0x%x" % (sa, sa, WS_STAMP))
        A("v_mov_b32 v%d, 0" % vT0)
        A("s_mov_b64 exec, 1")
        for i in range(16):
            A("v_mov_b32 v%d, s%d" % (vT2, 70 + 2 * i))
            A("v_mov_b32 v%d, s%d" % (vT3, 71 + 2 * i))
            A("buffer_store_dwordx2 %s, v%d, %s, s%d offen offset:%d" % (vr(vT2, 2), vT0, sr(sWS, 4), sa, i * 8))
            A.nop(2)
    A.label("K_END")
    A("s_endpgm")
    return A.text(), 256, LDS

HEADER = open("sequential_preLN__sliding_block__moe_arch_mod__prompt.s.ref").read().split("; Override launch")[0]

def build(opt):
    k, nv, lds = gen(opt)
    s = HEADER
    s += "; @launch grid=(256,1,1) block=(512,1,1) lds=%d\n" % lds
    s += '.amdgcn_target "amdgcn-amd-amdhsa--gfx950"\n.text\n'
    s += ".globl %s\n.p2align 8\n.type %s,@function\n%s:\n%s" % (KNAME, KNAME, KNAME, k)
    s += '.section .rodata,"a"\n'
    s += """.p2align 6
.amdhsa_kernel %s
  .amdhsa_next_free_vgpr %d
  .amdhsa_next_free_sgpr 102
  .amdhsa_accum_offset %d
  .amdhsa_group_segment_fixed_size 0
  .amdhsa_kernarg_size 88
  .amdhsa_user_sgpr_count 2
  .amdhsa_user_sgpr_kernarg_segment_ptr 1
  .amdhsa_system_sgpr_workgroup_id_x 1
.end_amdhsa_kernel
""" % (KNAME, nv, (nv + 3) // 4 * 4)
    return s

if __name__ == "__main__":
    out = sys.argv[1] if len(sys.argv) > 1 else "k.s"
    opt = {}
    for a in sys.argv[2:]:
        k, v = a.split("=")
        opt[k] = int(v)
    open(out, "w").write(build(opt))
```

```python
import sys, struct

def f32(x):
    return "0x%08x" % struct.unpack("<I", struct.pack("<f", x))[0]

WS_KV = 0x000000
WS_O = 0x400000
WS_H = 0x600000
WS_P = 0x800000
WS_A = 0x840000
WS_LS = 0x850000
WS_E = 0x860000
WS_FKV = 0x880000
WS_FO = 0x8a0000
WS_P2 = 0x8c0000
WS_SIZE = 0x10000000
WS_STAMP = 0x8000000
NSTAMP_SLOTS = 24

LOG2E = 1.4426950408889634
BIG = 1.0e30
SPIN_LIMIT = 100000
MFMA = "v_mfma_f32_32x32x16_bf16"
MFMA16 = "v_mfma_f32_16x16x32_bf16"
MFMA4 = "v_mfma_f32_4x4x4_16b_bf16"
KNAME = "sequential_preLN__sliding_block__moe_arch_mod__prompt_kernel"

class Asm:
    def __init__(self):
        self.L = []
    def __call__(self, s):
        self.L.append("    " + s.strip())
    def label(self, s):
        self.L.append(s + ":")
    def nop(self, n):
        while n > 0:
            k = min(n, 16)
            self.L.append("    s_nop %d" % (k - 1))
            n -= k
    def text(self):
        return "\n".join(self.L) + "\n"

def vr(b, n):
    assert b % 2 == 0, "unaligned vgpr tuple %d" % b
    return "v[%d:%d]" % (b, b + n - 1)
def sr(b, n):
    return "s[%d:%d]" % (b, b + n - 1)

def gen(opt):
    A = Asm()
    STAMPS = opt.get("stamps", 0)
    def stamp(i):
        if STAMPS:
            A("s_memrealtime %s" % sr(70 + 2 * i, 2))
    def srd(d, base, size):
        A("s_mov_b32 s%d, s%d" % (d, base))
        A("s_mov_b32 s%d, s%d" % (d + 1, base + 1))
        A("s_mov_b32 s%d, 0x%x" % (d + 2, size))
        A("s_mov_b32 s%d, 0x20000" % (d + 3))
    def cap(fn):
        keep = A.L; A.L = []; fn(); out = A.L; A.L = keep; return out
    pX, pW, pWO, pBX, pWR, pWG, pWU, pWD, pOUT, pDBG, pWS = 8, 10, 12, 14, 16, 18, 20, 22, 24, 26, 28
    sCG, sG3 = 14, 15
    sX, sW, sWS, sGA, sGB = 32, 36, 40, 44, 48
    sWv, sT, sC, sB, sHP, sTq, sWGL, sRole, sJ = 52, 53, 54, 55, 56, 57, 58, 59, 60
    sa, sb, sc, sd = 61, 62, 63, 64
    sKC, sXo, sWo, sSlotX, sDW = 3, 4, 5, 6, 7
    sXbase, sWbase = 30, 31
    sRd, sPub, sS = 65, 66, 67
    sN, sI, sChunk, sCnt = 3, 4, 5, 6
    sMaskV = 30
    sFa, sFg, sFon = 1, 10, 11
    sN1 = 0
    sKu, sKm = 68, 69
    sI1, sI2 = 65, 66
    sWoG, sWoL, sWoR, sWoN = 65, 66, 67, 7
    vWoA, vWoB = 41, 40
    XS, WSL = 16384, 12288
    NSL = 5
    SLOT = XS + WSL
    L_WO = 86016
    L_K = 0
    L_V = 24576
    L_Q = 49152
    L_VX = 90112
    L_STR = 151552
    L_STM = 152064
    L_CS = 152576
    L_PAY = 153088
    L_NON = 153152
    L_CSP = 153600
    L_TOP = 155648
    L_R2 = 155904
    L_RED = L_WO
    L_F = 0
    L_FU = L_F + 16384 + 128
    LDS = 163840
    vL, vN, vG, vKap, vL16, vOnes, vTok = 1, 2, 3, 4, 5, 6, 7
    vT0, vT1, vT2, vT3 = 8, 9, 10, 11
    vNon = 12
    vXr = 14
    vWr = 18
    vFA = 200
    vWR4 = 248
    vW1 = 252
    vKb, vVb, vIG = 253, 254, 255
    vXg = 22
    vWg = 14
    vXa, vXc, vWa, vWc = 26, 30, 34, 38
    vU0, vU1 = 42, 43
    vOne2 = 44
    vB = 48
    vAcV, vAc0, vAc1 = 128, 144, 160
    vRow = 176
    vLSa, vLSb, vLSc = 184, 185, 186
    vCq, vCk, vCv = 188, 192, 196
    vGc = 112
    vE = 48
    vPk = 80
    vQ = 22
    vKad, vVad, vM, vMold = 26, 27, 30, 31
    vKa, vKbf = 32, 36
    vSa, vSb = 44, 60
    vCn = 76
    vP = 96
    vKV = 104
    vCm = 200
    vVa, vVbf = 216, 224
    vO = 232
    vWOa = 26
    vRa = 28
    vOF = 44
    vH0, vH1 = 76, 92
    vAW = 108
    vChk = 40
    vOG = 172
    vHp = 36
    vPa = 41
    vS = 44
    vK1, vK2, vP1, vP2 = 58, 59, 60, 61
    vX = 64
    vBF = 80
    vAcc = 104
    vSs = 120
    vSel = 124

    def spin_tail(lab, cnt):
        A("s_add_u32 s%d, s%d, 1" % (cnt, cnt))
        A("s_cmp_lt_u32 s%d, %d" % (cnt, SPIN_LIMIT))
        A("s_cbranch_scc1 %s" % lab)
    def maxu(dst, base, n):
        A("v_max_u32 v%d, v%d, v%d" % (dst, base, base + 1))
        for i in range(2, n, 2):
            A("v_max3_u32 v%d, v%d, v%d, v%d" % (dst, base + i, base + i + 1, dst))
    def sumu(dst, base, n, init=None):
        regs = [base + i for i in range(n)]
        if init is None:
            A("v_add_u32 v%d, v%d, v%d" % (dst, regs[0], regs[1])); regs = regs[2:]
        else:
            A("v_add3_u32 v%d, v%d, v%d, v%d" % (dst, regs[0], regs[1], init)); regs = regs[2:]
        for i in range(0, len(regs), 2):
            A("v_add3_u32 v%d, v%d, v%d, v%d" % (dst, regs[i], regs[i + 1], dst))
    def wave_sumu(v, tmp):
        for dpp in ("quad_perm:[1,0,3,2]", "quad_perm:[2,3,0,1]", "row_half_mirror", "row_mirror"):
            A.nop(2)
            A("v_add_u32_dpp v%d, v%d, v%d %s row_mask:0xf bank_mask:0xf" % (v, v, v, dpp))
        for sw in ("v_permlane16_swap_b32", "v_permlane32_swap_b32"):
            A("v_mov_b32 v%d, v%d" % (tmp, v))
            A.nop(2)
            A("%s v%d, v%d" % (sw, v, tmp))
            A.nop(1)
            A("v_add_u32 v%d, v%d, v%d" % (v, v, tmp))
    def ln_stats(s1, s2):
        A("v_mul_f32 v%d, %s, v%d" % (s1, f32(1.0 / 512), s1))
        A("v_mul_f32 v%d, %s, v%d" % (s2, f32(1.0 / 512), s2))
        A("v_fma_f32 v%d, -v%d, v%d, v%d" % (s2, s1, s1, s2))
        A("v_max_f32 v%d, 0, v%d" % (s2, s2))
        A("v_add_f32 v%d, %s, v%d" % (s2, f32(1e-5), s2))
        A("v_rsq_f32 v%d, v%d" % (s2, s2))

    A("s_cmp_ge_u32 s2, 256")
    A("s_cbranch_scc1 K_END")
    stamp(0)
    A("s_load_dwordx16 s[8:23], s[0:1], 0")
    A("s_load_dwordx4 s[24:27], s[0:1], 64")
    A("s_load_dwordx2 s[28:29], s[0:1], 80")
    A("v_and_b32 v%d, 63, v0" % vL)
    A("v_lshrrev_b32 v%d, 6, v0" % vT0)
    A("v_lshlrev_b32 v%d, 4, v%d" % (vL16, vL))
    A("v_readfirstlane_b32 s%d, v%d" % (sWv, vT0))
    A("s_and_b32 s%d, s2, 7" % sa)
    A("s_lshr_b32 s%d, s2, 3" % sb)
    A("s_lshr_b32 s%d, s%d, 1" % (sB, sa))
    A("s_lshr_b32 s%d, s%d, 3" % (sc, sb))
    A("s_lshl_b32 s%d, s%d, 2" % (sd, sc))
    A("s_add_u32 s%d, s%d, s%d" % (sB, sB, sd))
    A("s_and_b32 s%d, s%d, 1" % (sHP, sa))
    A("s_lshl_b32 s%d, s%d, 3" % (sHP, sHP))
    A("s_and_b32 s%d, s%d, 7" % (sKC, sb))
    A("s_add_u32 s%d, s%d, s%d" % (sHP, sHP, sKC))
    A("s_lshl_b32 s%d, s%d, 1" % (sc, sc))
    A("s_add_u32 s%d, s%d, s%d" % (sKC, sKC, sc))
    A("s_and_b32 s%d, s%d, 7" % (sKC, sKC))
    A("s_and_b32 s%d, s%d, 3" % (sT, sWv))
    A("s_lshr_b32 s%d, s%d, 2" % (sC, sWv))
    A("s_lshl_b32 s%d, s%d, 4" % (sWGL, sB))
    A("s_add_u32 s%d, s%d, s%d" % (sWGL, sWGL, sHP))
    A("s_cmp_eq_u32 s%d, 0" % sC)
    A("s_cbranch_scc0 K_PRO_LD")
    A("s_lshl_b32 s%d, s%d, 2" % (sa, sWGL))
    A("s_add_u32 s%d, s%d, s%d" % (sa, sa, sT))
    A("s_lshl_b32 s%d, s%d, 11" % (sb, sa))
    for i in range(4):
        A("v_mov_b32 v%d, -1" % (vT0 + i))
    A("s_waitcnt lgkmcnt(0)")
    srd(sX, pX, 0x200000)
    A("buffer_load_dwordx4 %s, v%d, %s, s%d offen" % (vr(vRow, 4), vL16, sr(sX, 4), sb))
    A("buffer_load_dwordx4 %s, v%d, %s, s%d offen offset:1024" % (vr(vRow + 4, 4), vL16, sr(sX, 4), sb))
    srd(sWS, pWS, WS_SIZE)
    A("s_or_b32 s%d, s2, s%d" % (sa, sWv))
    A("s_cmp_lg_u32 s%d, 0" % sa)
    A("s_cbranch_scc1 K_NONONCE")
    srd(sGA, pDBG, 256)
    A("s_memrealtime s[68:69]")
    A("s_waitcnt lgkmcnt(0)")
    A("s_or_b32 s69, s69, 0x80000000")
    A("v_mov_b32 v%d, s68" % vNon)
    A("v_mov_b32 v%d, s69" % (vNon + 1))
    A("s_mov_b64 exec, 1")
    A("buffer_store_dwordx2 %s, v%d, %s, 0 offen sc1" % (vr(vNon, 2), vL16, sr(sGA, 4)))
    A("s_mov_b64 exec, -1")
    A.label("K_NONONCE")
    def clr(soff, off=0):
        A("buffer_store_dwordx4 %s, v%d, %s, s%d offen offset:%d sc1" % (vr(vT0, 4), vL16, sr(sWS, 4), soff, off))
    A("s_cmp_lg_u32 s%d, 0" % sT)
    A("s_cbranch_scc1 K_NOCLRP")
    A("s_lshl_b32 s%d, s%d, 10" % (sa, sWGL))
    A("s_add_u32 s%d, s%d, 0x%x" % (sa, sa, WS_P))
    clr(sa)
    A("s_add_u32 s%d, s%d, 0x%x" % (sa, sa, WS_P2 - WS_P))
    clr(sa)
    A.label("K_NOCLRP")
    A("s_cmp_lg_u32 s2, 1")
    A("s_cbranch_scc1 K_PRO_DONE")
    A("s_lshl_b32 s%d, s%d, 11" % (sa, sT))
    A("s_add_u32 s%d, s%d, 0x%x" % (sa, sa, WS_A))
    clr(sa); clr(sa, 1024)
    A("s_branch K_PRO_DONE")
    A.label("K_PRO_LD")
    A("v_lshrrev_b32 v%d, 3, v%d" % (vT0, vL))
    A("v_lshrrev_b32 v%d, 1, v%d" % (vT1, vT0))
    A("v_and_b32 v%d, 7, v%d" % (vT2, vL))
    A("v_xor_b32 v%d, v%d, v%d" % (vT2, vT2, vT1))
    A("v_lshlrev_b32 v%d, 4, v%d" % (vT2, vT2))
    A("v_lshl_add_u32 v%d, v%d, 10, v%d" % (vXg, vT0, vT2))
    A("v_xor_b32 v%d, 64, v%d" % (vXg + 1, vXg))
    A("v_add_u32 v%d, %d, v%d" % (vXg + 1, 8192 - 1024, vXg + 1))
    A("v_add_u32 v%d, %d, v%d" % (vXg + 2, 2 * (8192 - 1024), vXg))
    A("v_add_u32 v%d, %d, v%d" % (vXg + 3, 2 * (8192 - 1024), vXg + 1))
    A("s_lshl_b32 s%d, s%d, 17" % (sXbase, sB))
    A("s_lshl_b32 s%d, s%d, 15" % (sa, sT))
    A("s_add_u32 s%d, s%d, s%d" % (sXbase, sXbase, sa))
    A("s_movk_i32 s%d, 0x1556" % sb)
    for q in range(3):
        src = vL
        if q:
            A("v_add_u32 v%d, %d, v%d" % (vT0, 64 * q, vL))
            src = vT0
        A("v_mul_u32_u24 v%d, s%d, v%d" % (vT1, sb, src))
        A("v_lshrrev_b32 v%d, 16, v%d" % (vT1, vT1))
        A("v_mul_u32_u24 v%d, 12, v%d" % (vT2, vT1))
        A("v_sub_u32 v%d, v%d, v%d" % (vT2, src, vT2))
        A("v_lshrrev_b32 v%d, 2, v%d" % (vT3, vT2))
        A("v_and_b32 v%d, 3, v%d" % (vT2, vT2))
        A("v_lshlrev_b32 v%d, 4, v%d" % (vT2, vT2))
        A("v_lshl_add_u32 v%d, v%d, 10, v%d" % (vT2, vT3, vT2))
        A("v_mul_u32_u24 v%d, 0xc00, v%d" % (vT1, vT1))
        A("v_add_u32 v%d, v%d, v%d" % (vWg + q, vT1, vT2))
        if q:
            A("v_subrev_u32 v%d, %d, v%d" % (vWg + q, 1024 * q, vWg + q))
    A("s_lshl_b32 s%d, s%d, 6" % (sWbase, sHP))
    A("s_mul_i32 s%d, s%d, 49152" % (sa, sT))
    A("s_add_u32 s%d, s%d, s%d" % (sWbase, sWbase, sa))
    A("s_lshl_b32 s%d, s%d, 12" % (sSlotX, sT))
    A("s_lshl_b32 s%d, s%d, 10" % (sDW, sT))
    A("s_sub_u32 s%d, %d, s%d" % (sDW, XS, sDW))
    A("s_waitcnt lgkmcnt(0)")
    srd(sX, pX, 0x200000)
    srd(sW, pW, 0x180000)
    stamp(1)

    def dma_stage():
        A("s_lshl_b32 s%d, s%d, 7" % (sXo, sKC))
        A("s_mov_b32 m0, s%d" % sSlotX)
        A("s_add_u32 s%d, s%d, s%d" % (sXo, sXo, sXbase))
        for i in range(4):
            A("buffer_load_dwordx4 v%d, %s, s%d offen offset:%d lds" % (vXg + i, sr(sX, 4), sXo, i * 1024))
            if i == 0:
                A("s_mul_i32 s%d, s%d, 196608" % (sWo, sKC))
                A("s_add_u32 s%d, s%d, s%d" % (sa, sSlotX, sDW))
            if i == 1:
                A("s_add_u32 s%d, s%d, s%d" % (sWo, sWo, sWbase))
                A("s_add_u32 s%d, s%d, 1" % (sKC, sKC))
            if i == 2:
                A("s_and_b32 s%d, s%d, 7" % (sKC, sKC))
                A("s_add_u32 s%d, s%d, %d" % (sSlotX, sSlotX, SLOT))
        A("s_mov_b32 m0, s%d" % sa)
        A("s_nop 0")
        for i in range(3):
            A("buffer_load_dwordx4 v%d, %s, s%d offen offset:%d lds" % (vWg + i, sr(sW, 4), sWo, i * 1024))
            if i == 0:
                A("s_cmp_ge_u32 s%d, %d" % (sSlotX, NSL * SLOT))
                A("s_cselect_b32 s%d, %d, 0" % (sa, NSL * SLOT))
                A("s_sub_u32 s%d, s%d, s%d" % (sSlotX, sSlotX, sa))
    def build_mask(first):
        for r in range(0, 16, 2):
            for k in range(2):
                jr = ((r + k) >> 3) * 16 + ((r + k) & 7)
                A("v_cmp_%s_i32 %s, %d, v%d" % ("gt" if first else "le", "vcc" if k == 0 else sr(sKu, 2), jr, vIG))
            A.nop(1)
            A("v_cndmask_b32 v%d, v%d, v%d, vcc" % (vCm + r, vU0, vU1))
            A("v_cndmask_b32 v%d, v%d, v%d, %s" % (vCm + r + 1, vU0, vU1, sr(sKu, 2)))
    def common_setup(loader, ta, tb, tc):
        t0, t1, t2, t3 = vE, vE + 1, vE + 2, vE + 3
        A("v_and_b32 v%d, 31, v%d" % (vN, vL))
        A("v_lshrrev_b32 v%d, 5, v%d" % (vG, vL))
        A("v_and_b32 v%d, 0x13, v%d" % (vKap, vN))
        A("v_and_b32 v%d, 4, v%d" % (t0, vN))
        A("v_lshl_or_b32 v%d, v%d, 1, v%d" % (vKap, t0, vKap))
        A("v_and_b32 v%d, 8, v%d" % (t0, vN))
        A("v_lshrrev_b32 v%d, 1, v%d" % (t0, t0))
        A("v_or_b32 v%d, v%d, v%d" % (vKap, vKap, t0))
        A("v_mov_b32 v%d, 0x3f803f80" % vOnes)
        M3 = opt.get("m3", 1)
        if M3 == 0:
            A("s_lshr_b32 s%d, s2, 6" % ta)
            A("s_and_b32 s%d, s2, 7" % sCG)
            A("s_cmp_lt_u32 s%d, 3" % ta)
            A("s_cselect_b32 s%d, 0, 6" % tb)
            A("s_min_u32 s%d, s%d, 2" % (ta, ta))
            A("s_lshr_b32 s%d, s%d, 1" % (tc, sCG))
            A("s_add_u32 s%d, s%d, s%d" % (ta, ta, tc))
            A("s_add_u32 s%d, s%d, 1" % (ta, ta))
            A("s_and_b32 s%d, s%d, 3" % (ta, ta))
            A("s_add_u32 s%d, s%d, s%d" % (sCG, sCG, tb))
            A("s_and_b32 s%d, s%d, 7" % (sCG, sCG))
            A("s_bfe_u32 s%d, s2, 0x20004" % tb)
            A("s_lshl_b32 s%d, s%d, 2" % (tb, tb))
            A("s_add_u32 s%d, s%d, s%d" % (ta, ta, tb))
            A("s_lshl_b32 s%d, s%d, 1" % (sG3, ta))
            A("s_bfe_u32 s%d, s2, 0x10003" % tb)
            A("s_add_u32 s%d, s%d, s%d" % (sG3, sG3, tb))
        elif M3 == 1:
            A("s_add_u32 s%d, s%d, 1" % (ta, sB))
            A("s_and_b32 s%d, s%d, 15" % (ta, ta))
            A("s_lshl_b32 s%d, s%d, 1" % (sG3, ta))
            A("s_lshr_b32 s%d, s%d, 3" % (tb, sHP))
            A("s_add_u32 s%d, s%d, s%d" % (sG3, sG3, tb))
            A("s_and_b32 s%d, s%d, 7" % (sCG, sHP))
        else:
            A("s_add_u32 s%d, s%d, 1" % (ta, sB))
            A("s_and_b32 s%d, s%d, 15" % (ta, ta))
            A("s_lshl_b32 s%d, s%d, 1" % (sG3, ta))
            A("s_bfe_u32 s%d, s%d, 0x10002" % (tb, sHP))
            A("s_add_u32 s%d, s%d, s%d" % (sG3, sG3, tb))
            A("s_lshr_b32 s%d, s%d, 3" % (tb, sHP))
            A("s_lshl_b32 s%d, s%d, 2" % (tb, tb))
            A("s_and_b32 s%d, s%d, 3" % (sCG, sHP))
            A("s_add_u32 s%d, s%d, s%d" % (sCG, sCG, tb))
        A("v_lshrrev_b32 v%d, 3, v%d" % (t0, vL))
        A("v_and_b32 v%d, 3, v%d" % (t1, t0))
        A("v_lshrrev_b32 v%d, 2, v%d" % (t0, t0))
        A("v_lshl_add_u32 v%d, v%d, 3, v%d" % (t1, t0, t1))
        A("s_lshr_b32 s%d, s%d, 1" % (ta, sT))
        A("s_lshl_b32 s%d, s%d, 4" % (ta, ta))
        A("s_and_b32 s%d, s%d, 1" % (tb, sT))
        A("s_lshl_b32 s%d, s%d, 2" % (tb, tb))
        A("s_add_u32 s%d, s%d, s%d" % (ta, ta, tb))
        A("s_lshl_b32 s%d, s%d, 6" % (tb, sG3))
        A("s_add_u32 s%d, s%d, s%d" % (ta, ta, tb))
        if loader:
            A("s_add_u32 s%d, s%d, 32" % (ta, ta))
        A("v_add_u32 v%d, s%d, v%d" % (vTok, ta, t1))
        A("s_and_b32 s%d, s2, 7" % ta)
        A("s_lshr_b32 s%d, s2, 3" % tb)
        A("s_mul_i32 s%d, s%d, 11" % (sJ, ta))
        A("s_add_u32 s%d, s%d, s%d" % (sJ, sJ, tb))
        A("s_cmp_lt_u32 s%d, 11" % tb)
        A("s_cselect_b32 s%d, 1, 0" % sRole)
        A("s_cmp_lt_u32 s%d, 86" % sJ)
        A("s_cselect_b32 s%d, s%d, 0" % (sRole, sRole))
        A("s_sub_u32 s%d, s%d, 11" % (tb, tb))
        A("s_lshl_b32 s%d, s%d, 2" % (ta, ta))
        A("s_add_u32 s%d, s%d, s%d" % (ta, ta, tb))
        A("s_cmp_lt_u32 s%d, 4" % tb)
        A("s_cselect_b32 s%d, 2, s%d" % (sRole, sRole))
        A("s_cmp_lt_u32 s%d, 4" % tb)
        A("s_cselect_b32 s%d, s%d, s%d" % (sJ, ta, sJ))
        if not loader:
            A("v_bfe_u32 v%d, v%d, 2, 2" % (t2, vL))
            A("v_lshl_add_u32 v%d, v%d, 3, v%d" % (t2, vG, t2))
            A("v_mul_u32_u24 v%d, 192, v%d" % (t3, t2))
            A("v_bfe_u32 v%d, v%d, 4, 1" % (t2, vL))
            A("v_lshl_add_u32 v%d, v%d, 5, v%d" % (t3, t2, t3))
            A("v_and_b32 v%d, 1, v%d" % (t2, vL))
            A("v_lshl_add_u32 v%d, v%d, 4, v%d" % (t3, t2, t3))
            A("v_bfe_u32 v%d, v%d, 1, 1" % (t2, vL))
            A("v_lshl_add_u32 v%d, v%d, 3, v%d" % (t3, t2, t3))
            A("v_bfe_u32 v%d, v%d, 1, 3" % (t0, vKap))
            A("v_xor_b32 v%d, v%d, v%d" % (t0, t0, vG))
            A("v_lshlrev_b32 v%d, 4, v%d" % (t0, t0))
            A("s_lshl_b32 s%d, s%d, 12" % (ta, sT))
            A("v_lshl_add_u32 v%d, v%d, 7, s%d" % (t1, vKap, ta))
            for i in range(4):
                A("s_add_u32 s%d, s%d, %d" % (ta, sT, i))
                A("s_and_b32 s%d, s%d, 3" % (ta, ta))
                A("s_lshl_b32 s%d, s%d, 5" % (tb, ta))
                A("s_mul_i32 s%d, s%d, 3072" % (ta, ta))
                A("s_add_u32 s%d, s%d, %d" % (ta, ta, XS))
                A("v_xor_b32 v%d, s%d, v%d" % (t2, tb, t0))
                A("v_add_u32 v%d, v%d, v%d" % (vXa + i, t1, t2))
                A("v_add_u32 v%d, s%d, v%d" % (vWa + i, ta, t3))
                A("v_mov_b32 v%d, v%d" % (vXc + i, vXa + i))
                A("v_mov_b32 v%d, v%d" % (vWc + i, vWa + i))
            A("v_mov_b32 v%d, 0x3f803f80" % vOne2)
            A("v_mov_b32 v%d, 0x3f803f80" % (vOne2 + 1))
            for i in range(12):
                A("v_mov_b32 v%d, 0" % (vCq + i))
            A("s_lshl_b32 s%d, s%d, 2" % (ta, sT))
            A("s_add_u32 s%d, s%d, %d" % (ta, ta, L_CSP))
            A("v_lshl_add_u32 v%d, v%d, 4, s%d" % (vLSa, vN, ta))
            for i in range(48):
                A("v_mov_b32 v%d, 0" % (vAcV + i))
            for i in range(32):
                A("v_mov_b32 v%d, 0" % (vB + 32 + i))
            A("s_mov_b32 s%d, 0" % sRd)
            A("s_mov_b32 s%d, s%d" % (sTq, sT))
        else:
            A("s_lshl_b32 s%d, s%d, 2" % (ta, sWGL))
            A("s_add_u32 s%d, s%d, s%d" % (ta, ta, sT))
            A("s_lshl_b32 s%d, s%d, 6" % (ta, ta))
            A("v_lshl_add_u32 v%d, v%d, 4, s%d" % (vLSa, vG, ta))
            A("s_lshl_b32 s%d, s%d, 2" % (ta, sB))
            A("s_add_u32 s%d, s%d, s%d" % (ta, ta, sT))
            A("s_lshl_b32 s%d, s%d, 10" % (ta, ta))
            A("v_lshrrev_b32 v%d, 1, v%d" % (t0, vKap))
            A("v_lshl_add_u32 v%d, v%d, 6, s%d" % (vLSb, t0, ta))
            A("v_and_b32 v%d, 1, v%d" % (t0, vKap))
            A("v_lshl_add_u32 v%d, v%d, 4, v%d" % (vLSb, t0, vLSb))
            A("s_lshr_b32 s%d, s%d, 1" % (ta, sG3))
            A("s_lshl_b32 s%d, s%d, 12" % (ta, ta))
            A("v_and_b32 v%d, 15, v%d" % (t0, vL))
            A("v_lshl_add_u32 v%d, v%d, 8, s%d" % (vLSc, t0, ta))
            A("s_mov_b32 s%d, 0" % sPub)
            A("s_sub_u32 s%d, 3, s%d" % (sTq, sT))
            srd(sWS, pWS, WS_SIZE)
            srd(sGA, pDBG, 256)
        A("v_lshlrev_b32 v%d, 3, v%d" % (vIG, vG))
        A("v_sub_u32 v%d, v%d, v%d" % (vIG, vKap, vIG))
        A("v_mov_b32 v%d, %s" % (vU0, f32(-BIG)))
        A("v_mov_b32 v%d, 0" % vU1)
        build_mask(False)
        A("v_add_u32 v%d, %d, v%d" % (vKb, L_K + (1024 if loader else 0), vL16))
        A("v_add_u32 v%d, %d, v%d" % (vVb, L_V + (256 if loader else 0), vL16))
        for i in range(16):
            A("v_mov_b32 v%d, v%d" % (vVa + i, vOnes))
        for i in range(16):
            A("v_mov_b32 v%d, 0" % (vO + i))
        A("s_lshl_b32 s%d, s%d, 4" % (ta, sT))
        A("s_add_u32 s%d, s%d, %d" % (ta, ta, L_PAY))
        A("v_lshl_add_u32 v%d, v%d, 3, s%d" % (vU1, vG, ta))
        A("s_mov_b32 s%d, 0" % sS)

    setupL = cap(lambda: common_setup(True, sd, sb, sc))
    dmaL = cap(lambda: (dma_stage(), dma_stage()))
    nld = sum(1 for l in dmaL if "buffer_load" in l)
    per = (len(setupL) + nld - 1) // nld
    pos = 0
    for l in dmaL:
        A.L.append(l)
        if "buffer_load" in l:
            end = min(len(setupL), pos + per)
            while end < len(setupL) and (any(k in setupL[end - 1] for k in ("s_cmp", "v_cmp", "s_nop", "vcc_")) or "v_cndmask" in setupL[end]):
                end += 1
            A.L.extend(setupL[pos:end])
            pos = end
    A.L.extend(setupL[pos:])
    A("s_branch K_LOOP1")
    A.label("K_PRO_DONE")
    common_setup(False, sa, sb, sc)

    stamp(1)
    A("s_waitcnt vmcnt(0)")
    a0, b0, a1, b1 = vE, vE + 1, vE + 2, vE + 3
    for i in range(4):
        z = "0" if i == 0 else None
        A("v_dot2_f32_bf16 v%d, v%d, v%d, %s" % (a0, vRow + i, vOnes, z or "v%d" % a0))
        A("v_dot2_f32_bf16 v%d, v%d, v%d, %s" % (b0, vRow + i, vRow + i, z or "v%d" % b0))
        A("v_dot2_f32_bf16 v%d, v%d, v%d, %s" % (a1, vRow + 4 + i, vOnes, z or "v%d" % a1))
        A("v_dot2_f32_bf16 v%d, v%d, v%d, %s" % (b1, vRow + 4 + i, vRow + 4 + i, z or "v%d" % b1))
    A.nop(3)
    A("v_permlane32_swap_b32 v%d, v%d" % (a0, a1))
    A("v_permlane32_swap_b32 v%d, v%d" % (b0, b1))
    A.nop(1)
    A("v_add_f32 v%d, v%d, v%d" % (a0, a0, a1))
    A("v_add_f32 v%d, v%d, v%d" % (b0, b0, b1))
    A.nop(2)
    A("v_permlane16_swap_b32 v%d, v%d" % (a0, b0))
    A.nop(1)
    A("v_add_f32 v%d, v%d, v%d" % (a0, a0, b0))
    for dpp in ("quad_perm:[1,0,3,2]", "quad_perm:[2,3,0,1]", "row_half_mirror", "row_mirror"):
        A.nop(2)
        A("v_add_f32_dpp v%d, v%d, v%d %s row_mask:0xf bank_mask:0xf" % (a0, a0, a0, dpp))
    A("v_mov_b32 v%d, v%d" % (b0, a0))
    A.nop(2)
    A("v_permlane16_swap_b32 v%d, v%d" % (a0, b0))
    A.nop(1)
    ln_stats(a0, b0)
    A.nop(1)
    A("v_mov_b32 v%d, v%d" % (vRow, b0))
    A("v_mul_f32_e64 v%d, -v%d, v%d" % (vRow + 1, a0, b0))
    A("ds_write_b64 v%d, %s" % (vU1, vr(vRow, 2)))
    stamp(2)
    def rd_advance():
        A("s_add_u32 s%d, s%d, %d" % (sRd, sRd, SLOT))
        A("s_cmp_eq_u32 s%d, %d" % (sRd, NSL * SLOT))
        A("s_cselect_b32 s%d, 0, s%d" % (sRd, sRd))
        A("s_add_u32 s%d, s%d, 1" % (sS, sS))
    def rd0(k):
        B = vB + 16 * k
        A("ds_read_b128 %s, v%d" % (vr(B, 4), vXc + k))
        for seg in (1, 2, 0):
            for half in range(2):
                A("ds_read_b64_tr_b16 %s, v%d offset:%d" % (vr(B + 4 + 4 * seg + 2 * half, 2), vWc + k, 4 * half * 192 + seg * 64))
    def mm(k, which):
        B = vB + 16 * k
        X = vr(B, 4)
        if which == "K":
            A("%s %s, %s, %s, %s" % (MFMA, vr(vAc1, 16), vr(B + 8, 4), X, vr(vAc1, 16)))
        elif which == "V":
            A("%s %s, %s, %s, %s" % (MFMA, vr(vAcV, 16), X, vr(B + 12, 4), vr(vAcV, 16)))
        else:
            A("%s %s, %s, %s, %s" % (MFMA, vr(vAc0, 16), vr(B + 4, 4), X, vr(vAc0, 16)))
    def weave(fill, k):
        n = (len(fill) + 2) // 3
        for gi, w in enumerate("KVQ"):
            mm(k, w)
            A.L.extend(fill[gi * n:(gi + 1) * n])
    def adv(k):
        A("v_add_u32 v%d, s%d, v%d" % (vXc + k, sRd, vXa + k))
        A("v_add_u32 v%d, s%d, v%d" % (vWc + k, sRd, vWa + k))
    def cs4(h):
        for acc, off in ((vCq, 4), (vCk, 8), (vCv, 12)):
            A("%s %s, %s, %s, %s" % (MFMA4, vr(acc, 4), vr(vOne2, 2), vr(vB + off + 2 * h, 2), vr(acc, 4)))
    A("s_waitcnt lgkmcnt(0)")
    A.label("K_LOOP0")
    A("s_barrier")
    A("s_waitcnt lgkmcnt(7)")
    weave(cap(lambda: (rd0(0), rd_advance())), 2)
    A("s_waitcnt lgkmcnt(7)")
    weave(cap(lambda: (rd0(1), adv(0), adv(1))), 3)
    A("s_waitcnt lgkmcnt(7)")
    weave(cap(lambda: (rd0(2), rd0(3))), 0)
    cs4(0)
    cs4(1)
    A("s_waitcnt lgkmcnt(14)")
    mm(1, "K")
    adv(2)
    adv(3)
    mm(1, "V")
    A("s_cmp_lt_u32 s%d, 8" % sS)
    mm(1, "Q")
    A("s_cbranch_scc1 K_LOOP0")
    for acc in (vCq, vCk, vCv):
        A("v_mov_b32 v%d, v%d" % (acc + 1, acc))
    A("s_waitcnt lgkmcnt(0)")
    mm(2, "V")
    for acc in (vCq, vCk, vCv):
        A("v_permlane32_swap_b32 v%d, v%d" % (acc, acc + 1))
    for acc in (vCq, vCk, vCv):
        A("v_add_f32 v%d, v%d, v%d" % (acc, acc, acc + 1))
    for seg, acc in enumerate((vCq, vCk, vCv)):
        A("ds_write_b32 v%d, v%d offset:%d" % (vLSa, acc, seg * 512))
    mm(3, "V")
    A("s_waitcnt lgkmcnt(0)")
    A("s_barrier")
    mm(2, "K")
    A("s_lshl_b32 s%d, s%d, 7" % (sa, sT))
    A("s_add_u32 s%d, s%d, %d" % (sa, sa, L_STR))
    A("v_lshl_add_u32 v%d, v%d, 2, s%d" % (vU0, vKap, sa))
    A("v_lshlrev_b32 v%d, 4, v%d" % (vT1, vG))
    mm(3, "K")
    A("v_add_u32 v%d, %d, v%d" % (vT1, L_CS, vT1))
    A("s_lshl_b32 s%d, s%d, 12" % (sa, sT))
    A("s_add_u32 s%d, s%d, %d" % (sa, sa, L_VX))
    A("v_add_u32 v%d, s%d, v%d" % (vT0, sa, vL16))
    mm(2, "Q")
    A("v_mov_b32 v%d, %d" % (vU1, L_NON))
    for q in range(4):
        A("ds_write_b128 v%d, %s offset:%d" % (vT0, vr(vAcV + 4 * q, 4), q * 1024))
    mm(3, "Q")
    stamp(3)
    A("s_lshl_b32 s%d, s%d, 11" % (sa, sT))
    A("s_add_u32 s%d, s%d, %d" % (sb, sa, L_K + 8 * 2048))
    A("v_add_u32 v%d, s%d, v%d" % (vT0, sb, vL16))
    A("s_lshl_b32 s%d, s%d, 14" % (sd, sWGL))
    A("s_add_u32 s%d, s%d, s%d" % (sd, sd, sa))
    A("s_waitcnt lgkmcnt(0)")
    A("s_barrier")
    A("ds_read_b32 v%d, v%d" % (vT2, vU0))
    A("ds_read_b32 v%d, v%d offset:%d" % (vT3, vU0, L_STM - L_STR))
    for tile in (1, 0):
        for a in range(4):
            A("ds_read_b128 %s, v%d offset:%d" % (vr(vE + 16 * tile + 4 * a, 4), vT1, tile * 128 + a * 32))
    A("ds_read_b64 %s, v%d" % (vr(vNon, 2), vU1))
    A("s_waitcnt lgkmcnt(9)")
    for r in range(16):
        A("v_mul_f32 v%d, v%d, v%d" % (vAc1 + r, vAc1 + r, vT2))
    A("s_waitcnt lgkmcnt(5)")
    for r in range(16):
        A("v_fmac_f32 v%d, v%d, v%d" % (vAc1 + r, vE + 16 + r, vT3))
    def pack_store(acc, soff):
        for i in range(8):
            A("v_cvt_pk_bf16_f32 v%d, v%d, v%d" % (vPk + i, acc + 2 * i, acc + 2 * i + 1))
        A("buffer_store_dwordx4 %s, v%d, %s, s%d offen sc1" % (vr(vPk, 4), vL16, sr(sWS, 4), soff))
        A("buffer_store_dwordx4 %s, v%d, %s, s%d offen offset:1024 sc1" % (vr(vPk + 4, 4), vL16, sr(sWS, 4), soff))
        sumu(vGc, vPk, 8)
        A("ds_write_b128 v%d, %s" % (vT0, vr(vPk, 4)))
        A("ds_write_b128 v%d, %s offset:1024" % (vT0, vr(vPk + 4, 4)))
        wave_sumu(vGc, vGc + 1)
        A("s_lshl_b32 s%d, s%d, 3" % (sb, sWGL))
        A("s_add_u32 s%d, s%d, s%d" % (sb, sb, sWv))
        A("s_lshl_b32 s%d, s%d, 6" % (sb, sb))
        A("s_add_u32 s%d, s%d, 0x%x" % (sb, sb, WS_FKV))
        A("s_waitcnt lgkmcnt(2)")
        A("v_mov_b32 v%d, v%d" % (vGc + 2, vNon))
        A("v_mov_b32 v%d, v%d" % (vGc + 3, vNon + 1))
        A("s_mov_b64 exec, 1")
        A("buffer_store_dwordx4 %s, v%d, %s, s%d offen sc1" % (vr(vGc, 4), vL16, sr(sWS, 4), sb))
        A("s_mov_b64 exec, -1")
    pack_store(vAc1, sd)
    A("v_mul_f32 v%d, %s, v%d" % (vT2, f32(0.25 * LOG2E), vT2))
    A("v_mul_f32 v%d, %s, v%d" % (vT3, f32(0.25 * LOG2E), vT3))
    A("s_waitcnt lgkmcnt(2)")
    for r in range(8, 16):
        A("v_mul_f32 v%d, v%d, v%d" % (vAc0 + r, vAc0 + r, vT2))
        A("v_fmac_f32 v%d, v%d, v%d" % (vAc0 + r, vE + r, vT3))
    for i in range(4):
        A("v_cvt_pk_bf16_f32 v%d, v%d, v%d" % (vPk + 8 + i, vAc0 + 8 + 2 * i, vAc0 + 8 + 2 * i + 1))
    A("s_lshl_b32 s%d, s%d, 10" % (sa, sT))
    A("s_add_u32 s%d, s%d, %d" % (sa, sa, L_Q))
    A("v_add_u32 v%d, s%d, v%d" % (vT0, sa, vL16))
    A("ds_write_b128 v%d, %s" % (vT0, vr(vPk + 8, 4)))
    for r in range(8):
        A("v_mul_f32 v%d, v%d, v%d" % (vAc0 + r, vAc0 + r, vT2))
        A("v_fmac_f32 v%d, v%d, v%d" % (vAc0 + r, vE + r, vT3))
    for i in range(4):
        A("v_cvt_pk_bf16_f32 v%d, v%d, v%d" % (vQ + i, vAc0 + 2 * i, vAc0 + 2 * i + 1))
    A("s_branch K_PUB")

    A.label("K_LOOP1")
    A("v_mov_b32 v%d, 0" % vT0)
    A("buffer_load_dwordx2 %s, v%d, %s, 0 offen sc1" % (vr(vNon, 2), vT0, sr(sGA, 4)))
    stamp(2)
    def try_publish(lab, blocking=False):
        A.label(lab + "_r")
        A("s_cmp_lg_u32 s%d, 0" % sPub)
        A("s_cbranch_scc1 %s" % lab)
        if blocking:
            A("s_waitcnt vmcnt(0)")
        A("v_readfirstlane_b32 s%d, v%d" % (sPub, vNon + 1))
        A("ds_read_b64 %s, v%d" % (vr(vRow, 2), vU1))
        A("s_cmp_lg_u32 s%d, 0" % sPub)
        A("s_cbranch_scc1 %s_ok" % lab)
        A("buffer_load_dwordx2 %s, v%d, %s, 0 offen sc1" % (vr(vNon, 2), vT0, sr(sGA, 4)))
        if blocking:
            spin_tail(lab + "_r", sS)
        A("s_branch %s" % lab)
        A.label(lab + "_ok")
        A("v_mov_b32 v%d, v%d" % (vRow + 2, vNon))
        A("v_mov_b32 v%d, v%d" % (vRow + 3, vNon + 1))
        A("s_mov_b32 s%d, 0x%x" % (sb, WS_LS))
        A("s_mov_b32 exec_lo, 1")
        A("s_mov_b32 exec_hi, 1")
        A("s_waitcnt lgkmcnt(0)")
        A("buffer_store_dwordx4 %s, v%d, %s, s%d offen sc1" % (vr(vRow, 4), vLSa, sr(sWS, 4), sb))
        A("s_mov_b64 exec, -1")
        A.label(lab)
    A.label("K_LOOP1T")
    A("s_sub_u32 s%d, s%d, 3" % (sb, sS))
    A("s_cmp_lt_u32 s%d, 2" % sb)
    A("s_cbranch_scc1 K_L1_W8")
    A("s_waitcnt vmcnt(7)")
    A.label("K_L1_W8")
    A("s_waitcnt vmcnt(8)")
    if opt.get("p1st"):
        for k in range(0, 6, 2 if opt["p1st"] == 2 else 1):
            A("s_cmp_eq_u32 s%d, %d" % (sS, k))
            A("s_cbranch_scc0 K_DST%d" % k)
            stamp(4 + k)
            A.label("K_DST%d" % k)
    A("s_barrier")
    if opt.get("p1st") == 2:
        for k in range(0, 6, 2):
            A("s_cmp_eq_u32 s%d, %d" % (sS, k))
            A("s_cbranch_scc0 K_DSU%d" % k)
            stamp(5 + k)
            A.label("K_DSU%d" % k)
    dma_stage()
    A("s_cmp_lg_u32 s%d, 2" % sS)
    A("s_cbranch_scc1 K_L1_PUB")
    try_publish("K_L1_PUB")
    A("s_add_u32 s%d, s%d, 1" % (sS, sS))
    A("s_cmp_lt_u32 s%d, 6" % sS)
    A("s_cbranch_scc1 K_LOOP1T")
    A("s_waitcnt vmcnt(7)")
    if opt.get("p1st"): stamp(10)
    A("s_barrier")
    try_publish("K_L1_PUB2", blocking=True)
    A("s_mov_b32 s%d, 0x%x" % (sb, WS_LS))
    A("buffer_load_dwordx4 %s, v%d, %s, s%d offen sc1" % (vr(vRow + 4, 4), vLSb, sr(sWS, 4), sb))
    A("buffer_load_dwordx4 %s, v%d, %s, s%d offen sc1" % (vr(vGc, 4), vLSc, sr(sWS, 4), sb))
    A("s_lshl_b32 s%d, s%d, 7" % (sc, sT))
    A("s_add_u32 s%d, s%d, %d" % (sc, sc, L_STR))
    A("v_lshl_add_u32 v%d, v%d, 5, s%d" % (vT1, vG, sc))
    A("v_lshl_add_u32 v%d, v%d, 2, s%d" % (vU0, vKap, sc))
    A("v_mov_b32 v%d, %d" % (vT3, L_NON))
    A("ds_write_b64 v%d, %s" % (vT3, vr(vNon, 2)))
    A("s_lshl_b32 s%d, s%d, 12" % (sc, sT))
    A("s_add_u32 s%d, s%d, %d" % (sc, sc, L_VX))
    A("v_add_u32 v%d, s%d, v%d" % (vT3, sc, vL16))
    A("v_lshlrev_b32 v%d, 4, v%d" % (vT2, vN))
    A("v_add_u32 v%d, %d, v%d" % (vT2, L_CSP, vT2))
    A("s_mov_b32 s%d, 0" % sCnt)
    A("s_waitcnt vmcnt(2)")
    if opt.get("p1st"): stamp(11)
    A("s_barrier")
    if opt.get("p1st"): stamp(12)
    A.label("K_LS_CHK")
    A("s_waitcnt vmcnt(0)")
    A("v_cmp_eq_u64 vcc, %s, %s" % (vr(vRow + 6, 2), vr(vNon, 2)))
    A("v_cmp_eq_u64 s[68:69], %s, %s" % (vr(vGc + 2, 2), vr(vNon, 2)))
    A("s_and_b64 vcc, vcc, s[68:69]")
    A("s_cmp_eq_u64 vcc, exec")
    A("s_cbranch_scc1 K_LS_OK")
    A("buffer_load_dwordx4 %s, v%d, %s, s%d offen sc1" % (vr(vRow + 4, 4), vLSb, sr(sWS, 4), sb))
    A("buffer_load_dwordx4 %s, v%d, %s, s%d offen sc1" % (vr(vGc, 4), vLSc, sr(sWS, 4), sb))
    spin_tail("K_LS_CHK", sCnt)
    A.label("K_LS_OK")
    A("ds_write_b32 v%d, v%d" % (vU0, vRow + 4))
    A("ds_write_b32 v%d, v%d offset:%d" % (vU0, vRow + 5, L_STM - L_STR))
    A("s_waitcnt lgkmcnt(0)")
    for q in range(4):
        off = (q & 1) * 16 + (q >> 1) * 64
        A("ds_read_b128 %s, v%d offset:%d" % (vr(vE + 4 * q, 4), vT1, off))
        A("ds_read_b128 %s, v%d offset:%d" % (vr(vE + 16 + 4 * q, 4), vT1, off + L_STM - L_STR))
    if opt.get("p1st"): stamp(13)
    A("s_barrier")
    if opt.get("p1st"): stamp(14)
    for seg, acc in enumerate((vCq, vCk, vCv)):
        A("ds_read_b128 %s, v%d offset:%d" % (vr(acc, 4), vT2, seg * 512))
    A("v_lshlrev_b32 v%d, 2, v%d" % (vT2, vN))
    A("v_add_u32 v%d, %d, v%d" % (vT2, L_CS, vT2))
    A("s_lshl_b32 s%d, s%d, 11" % (sb, sT))
    A("s_add_u32 s%d, s%d, %d" % (sc, sb, L_V + 8 * 2048))
    A("v_add_u32 v%d, s%d, v%d" % (vT0, sc, vL16))
    A("s_lshl_b32 s%d, s%d, 14" % (sc, sWGL))
    A("s_add_u32 s%d, s%d, s%d" % (sc, sc, sb))
    A("s_add_u32 s%d, s%d, 8192" % (sc, sc))
    A("s_waitcnt lgkmcnt(0)")
    for acc in (vCq, vCk, vCv):
        A("v_add_f32 v%d, v%d, v%d" % (acc, acc, acc + 1))
        A("v_add_f32 v%d, v%d, v%d" % (acc + 2, acc + 2, acc + 3))
    for acc in (vCq, vCk, vCv):
        A("v_add_f32 v%d, v%d, v%d" % (acc, acc, acc + 2))
    A("ds_write_b32 v%d, v%d" % (vT2, vCq))
    A("ds_write_b32 v%d, v%d offset:128" % (vT2, vCk))
    stamp(3)
    for r in range(16):
        A("v_mul_f32 v%d, v%d, v%d" % (vE + 16 + r, vE + 16 + r, vCv))
    A("s_waitcnt lgkmcnt(0)")
    A("s_barrier")
    for q in range(4):
        A("ds_read_b128 %s, v%d offset:%d" % (vr(vAc0 + 4 * q, 4), vT3, q * 1024))
    for q in range(4):
        A("s_waitcnt lgkmcnt(%d)" % (3 - q))
        for r in range(4 * q, 4 * q + 4):
            A("v_fma_f32 v%d, v%d, v%d, v%d" % (vAc0 + r, vAc0 + r, vE + r, vE + 16 + r))
    pack_store(vAc0, sc)

    A.label("K_PUB")
    A("s_mov_b32 s%d, 0" % sWoN)
    A("s_mov_b32 s%d, 0x0000ffff" % sMaskV)
    A("s_mov_b32 s%d, 0x0000ffff" % (sMaskV + 1))
    A("v_mov_b32 v%d, %s" % (vMold, f32(-BIG)))
    A("s_lshl_b32 s%d, s%d, 10" % (sa, sTq))
    A("s_add_u32 s%d, s%d, %d" % (sa, sa, L_Q))
    A("v_add_u32 v%d, s%d, v%d" % (vT0, sa, vL16))
    A("s_waitcnt lgkmcnt(0)")
    A("s_barrier")
    if opt.get("p1st"):
        A("s_branch K_FIN")
    stamp(4)
    A("s_cmp_eq_u32 s%d, 0" % sC)
    A("s_cbranch_scc1 K_HAVEQ")
    A("ds_read_b128 %s, v%d" % (vr(vQ, 4), vT0))
    A.label("K_HAVEQ")
    A("s_cmp_ge_u32 s%d, 2" % sTq)
    A("s_cbranch_scc1 K_NOP0")
    A("s_setprio 2")
    A.label("K_NOP0")
    A("s_mov_b32 s%d, 0" % sChunk)
    A("s_mov_b32 s%d, 0" % sN1)
    A.label("K_CHUNK0")
    A("s_add_u32 s%d, s%d, 8" % (sa, sTq))
    A("s_mov_b32 s%d, 8" % sb)
    A("s_mov_b32 s%d, s%d" % (sN, sTq))
    A.label("K_CHUNK")
    A("s_lshl_b32 s%d, s%d, 11" % (sKm, sa))
    A("s_lshl_b32 s%d, s%d, 11" % (sKu, sb))
    A("v_add_u32 v%d, s%d, v%d" % (vKad, sKm, vKb))
    A("ds_read_b128 %s, v%d" % (vr(vKbf, 4), vKad))
    A("v_add_u32 v%d, s%d, v%d" % (vKad, sKu, vKb))
    A("ds_read_b128 %s, v%d" % (vr(vKa, 4), vKad))
    A("v_add_u32 v%d, s%d, v%d" % (vVad, sKm, vVb))
    A("s_mov_b64 exec, %s" % sr(sMaskV, 2))
    A("ds_read_b128 %s, v%d" % (vr(vVbf, 4), vVad))
    A("ds_read_b128 %s, v%d offset:1024" % (vr(vVbf + 4, 4), vVad))
    A("s_mov_b64 exec, -1")
    A("v_add_u32 v%d, s%d, v%d" % (vVad, sKu, vVb))
    A("v_mov_b32 v%d, v%d" % (vM, vMold))
    A("s_mov_b32 s%d, 0" % sI)
    A("s_waitcnt lgkmcnt(3)")
    A("%s %s, %s, %s, %s" % (MFMA, vr(vSb, 16), vr(vKbf, 4), vr(vQ, 4), vr(vCm, 16)))
    def wo_piece(lab, gate=False):
        if gate:
            A("s_cmp_lt_u32 s%d, %d" % (sI, opt.get("wost", 0)))
            A("s_cbranch_scc1 %s" % lab)
        A("s_cmp_eq_u32 s%d, 0" % sWoN)
        A("s_cbranch_scc1 %s" % lab)
        A("s_add_u32 s%d, s%d, s%d" % (sa, sWoL, sWoR))
        A("s_mov_b32 m0, s%d" % sa)
        A("s_lshl_b32 s%d, s%d, 3" % (sa, sWoR))
        A("s_add_u32 s%d, s%d, s%d" % (sa, sa, sWoG))
        A("buffer_load_dwordx4 v%d, %s, s%d offen lds" % (vWoA, sr(sW, 4), sa))
        A("s_add_u32 s%d, s%d, 2048" % (sWoR, sWoR))
        A("buffer_load_dwordx4 v%d, %s, s%d offen offset:1024 lds" % (vWoB, sr(sW, 4), sa))
        A("s_sub_u32 s%d, s%d, 1" % (sWoN, sWoN))
        A.label(lab)
    def max16(S):
        for i in range(8):
            A("v_max3_f32 v%d, v%d, v%d, v%d" % (vM, S + 2 * i, S + 2 * i + 1, vM))
    A.nop(6)
    A.label("K_P1")
    A("s_waitcnt lgkmcnt(0)")
    A("%s %s, %s, %s, 0" % (MFMA, vr(vSa, 16), vr(vKa, 4), vr(vQ, 4)))
    A("ds_read_b128 %s, v%d offset:2048" % (vr(vKbf, 4), vKad))
    A.nop(3)
    max16(vSb)
    A("s_cmp_ge_u32 s%d, s%d" % (sI, sN1))
    A("s_cbranch_scc1 K_P1_DONE")
    A("s_add_u32 s%d, s%d, 1" % (sI, sI))
    A("s_waitcnt lgkmcnt(0)")
    A("%s %s, %s, %s, 0" % (MFMA, vr(vSb, 16), vr(vKbf, 4), vr(vQ, 4)))
    A("v_add_u32 v%d, 4096, v%d" % (vKad, vKad))
    A("ds_read_b128 %s, v%d" % (vr(vKa, 4), vKad))
    max16(vSa)
    A("s_cmp_ge_u32 s%d, s%d" % (sI, sN1))
    A("s_cbranch_scc1 K_P1_DONE")
    A("s_add_u32 s%d, s%d, 1" % (sI, sI))
    A("s_branch K_P1")
    A.label("K_P1_DONE")
    A("v_mov_b32 v%d, v%d" % (vT0, vM))
    A("s_waitcnt lgkmcnt(0)")
    A("v_add_u32 v%d, s%d, v%d" % (vKad, sKm, vKb))
    A("ds_read_b128 %s, v%d" % (vr(vKbf, 4), vKad))
    A("v_permlane32_swap_b32 v%d, v%d" % (vM, vT0))
    A("v_add_u32 v%d, s%d, v%d" % (vKad, sKu, vKb))
    A("ds_read_b128 %s, v%d" % (vr(vKa, 4), vKad))
    A("v_max_f32 v%d, v%d, v%d" % (vM, vM, vT0))
    A("v_sub_f32 v%d, v%d, v%d" % (vT0, vMold, vM))
    A("v_exp_f32 v%d, v%d" % (vT0, vT0))
    A("v_mov_b32 v%d, v%d" % (vMold, vM))
    for r in range(16):
        A("v_sub_f32 v%d, v%d, v%d" % (vCm + r, vCm + r, vM))
    A("s_waitcnt lgkmcnt(1)")
    A("v_sub_f32 v%d, 0, v%d" % (vCn, vM))
    A("%s %s, %s, %s, %s" % (MFMA, vr(vSb, 16), vr(vKbf, 4), vr(vQ, 4), vr(vCm, 16)))
    for r in range(1, 16):
        A("v_mov_b32 v%d, v%d" % (vCn + r, vCn))
    for r in range(9):
        A("v_mul_f32 v%d, v%d, v%d" % (vO + r, vO + r, vT0))
    A("s_mov_b32 s%d, 0" % sI)
    def softmax_pv(S, V):
        for r in range(16):
            A("v_exp_f32 v%d, v%d" % (S + r, S + r))
            if r == 3 and opt.get("wost", 0):
                wo_piece("K_WOP%d" % S, True)
            if r == 11 and opt.get("wost", 0):
                wo_piece("K_WOQ%d" % S, True)
        for i in range(8):
            A("v_cvt_pk_bf16_f32 v%d, v%d, v%d" % (vP + i, S + 2 * i, S + 2 * i + 1))
        A.nop(1)
        A("%s %s, %s, %s, %s" % (MFMA, vr(vO, 16), vr(V, 4), vr(vP, 4), vr(vO, 16)))
        A("%s %s, %s, %s, %s" % (MFMA, vr(vO, 16), vr(V + 4, 4), vr(vP + 4, 4), vr(vO, 16)))
    A.label("K_P2")
    A("s_waitcnt lgkmcnt(0)")
    A("%s %s, %s, %s, %s" % (MFMA, vr(vSa, 16), vr(vKa, 4), vr(vQ, 4), vr(vCn, 16)))
    A("ds_read_b128 %s, v%d offset:2048" % (vr(vKbf, 4), vKad))
    A("s_mov_b64 exec, %s" % sr(sMaskV, 2))
    A("ds_read_b128 %s, v%d" % (vr(vVa, 4), vVad))
    A("ds_read_b128 %s, v%d offset:1024" % (vr(vVa + 4, 4), vVad))
    A("s_mov_b64 exec, -1")
    softmax_pv(vSb, vVbf)
    A("s_cmp_ge_u32 s%d, s%d" % (sI, sN))
    A("s_cbranch_scc1 K_P2_DONE")
    A("s_add_u32 s%d, s%d, 1" % (sI, sI))
    A("s_waitcnt lgkmcnt(0)")
    A("%s %s, %s, %s, %s" % (MFMA, vr(vSb, 16), vr(vKbf, 4), vr(vQ, 4), vr(vCn, 16)))
    A("v_add_u32 v%d, 4096, v%d" % (vKad, vKad))
    A("ds_read_b128 %s, v%d" % (vr(vKa, 4), vKad))
    A("s_mov_b64 exec, %s" % sr(sMaskV, 2))
    A("ds_read_b128 %s, v%d offset:2048" % (vr(vVbf, 4), vVad))
    A("ds_read_b128 %s, v%d offset:3072" % (vr(vVbf + 4, 4), vVad))
    A("s_mov_b64 exec, -1")
    A("v_add_u32 v%d, 4096, v%d" % (vVad, vVad))
    softmax_pv(vSa, vVa)
    A("s_cmp_ge_u32 s%d, s%d" % (sI, sN))
    A("s_cbranch_scc1 K_P2_DONE")
    A("s_add_u32 s%d, s%d, 1" % (sI, sI))
    A("s_branch K_P2")
    A.label("K_P2_DONE")
    A("s_waitcnt lgkmcnt(0)")
    A("s_cmp_eq_u32 s%d, 1" % sChunk)
    A("s_cbranch_scc1 K_ATT_CHECK")
    A("s_cmp_eq_u32 s%d, 2" % sChunk)
    A("s_cbranch_scc1 K_SLOW1")
    A("s_cmp_eq_u32 s%d, 3" % sChunk)
    A("s_cbranch_scc1 K_ATT_DONE")
    stamp(5)
    A("s_mov_b32 s%d, 0" % sFon)
    A("v_lshlrev_b32 v%d, 6, v%d" % (vKV + 36, vL))
    A("v_mov_b32 v%d, 0" % (vKV + 32))
    A("s_cmp_ge_u32 s%d, 2" % sTq)
    A("s_cbranch_scc1 K_FETCH_ISSUED")
    A("s_cmp_le_u32 s%d, s%d" % (sB, sTq))
    A("s_cbranch_scc1 K_FETCH_ISSUED")
    A("s_mov_b32 s%d, 1" % sFon)
    A("s_add_u32 s%d, s%d, 1" % (sa, sTq))
    A("s_lshl_b32 s%d, s%d, 4" % (sa, sa))
    A("s_sub_u32 s%d, s%d, s%d" % (sa, sWGL, sa))
    A("s_lshl_b32 s%d, s%d, 1" % (sa, sa))
    A("s_add_u32 s%d, s%d, s%d" % (sa, sa, sC))
    A("s_lshl_b32 s%d, s%d, 13" % (sFa, sa))
    A("s_lshl_b32 s%d, s%d, 8" % (sFg, sa))
    A("s_add_u32 s%d, s%d, 0x%x" % (sFg, sFg, WS_FKV))
    def kv_loads():
        A("s_add_u32 s%d, s%d, 4096" % (sb, sFa))
        for q in range(8):
            A("buffer_load_dwordx4 %s, v%d, %s, s%d offen offset:%d sc1" % (vr(vKV + 4 * q, 4), vL16, sr(sWS, 4), sFa if q < 4 else sb, (q & 3) * 1024))
        A("s_mov_b64 exec, 0xf")
        A("buffer_load_dwordx4 %s, v%d, %s, s%d offen sc1" % (vr(vKV + 32, 4), vKV + 36, sr(sWS, 4), sFg))
        A("s_mov_b64 exec, -1")
    kv_loads()
    A.label("K_FETCH_ISSUED")
    A("v_mov_b32 v%d, %s" % (vU0, f32(-BIG)))
    A("s_cmp_eq_u32 s%d, 1" % sB)
    A("s_cselect_b32 s%d, %s, 0" % (sCnt, f32(-BIG)))
    A("v_add_f32 v%d, s%d, v%d" % (vU1, sCnt, vCn))
    build_mask(True)
    srd(sGB, pWR, 1024)
    srd(sW, pWO, 0x80000)
    A("v_lshrrev_b32 v%d, 3, v%d" % (vT0, vL))
    A("v_bfe_u32 v%d, v%d, 4, 1" % (vT1, vL))
    A("v_lshlrev_b32 v%d, 2, v%d" % (vT1, vT1))
    A("v_and_b32 v%d, 7, v%d" % (vT2, vL))
    A("v_xor_b32 v%d, v%d, v%d" % (vT2, vT2, vT1))
    A("v_lshlrev_b32 v%d, 4, v%d" % (vT2, vT2))
    A("v_lshl_add_u32 v%d, v%d, 10, v%d" % (vWoA, vT0, vT2))
    A("v_add_u32 v%d, %d, v%d" % (vWoB, 8192 - 1024, vWoA))
    A("s_lshl_b32 s%d, s%d, 7" % (sd, sCG))
    A("s_lshl_b32 s%d, s%d, 1" % (sWoL, sC))
    A("s_add_u32 s%d, s%d, s%d" % (sWoL, sWoL, sTq))
    A("s_lshl_b32 s%d, s%d, 17" % (sWoG, sWoL))
    A("s_add_u32 s%d, s%d, s%d" % (sWoG, sWoG, sd))
    A("s_lshl_b32 s%d, s%d, 14" % (sWoL, sWoL))
    A("s_add_u32 s%d, s%d, %d" % (sWoL, sWoL, L_WO))
    A("s_mov_b32 s%d, 0" % sWoR)
    A("s_cmp_lt_u32 s%d, 2" % sTq)
    A("s_cselect_b32 s%d, 8, 0" % sWoN)
    def chunk1_params():
        A("s_add_u32 s%d, s%d, 1" % (sb, sTq))
        A("s_mov_b32 s%d, s%d" % (sa, sTq))
        A("s_cmp_eq_u32 s%d, 1" % sB)
        A("s_cselect_b32 s%d, 4, s%d" % (sb, sb))
        A("s_cselect_b32 s%d, 4, s%d" % (sa, sa))
        A("s_sub_u32 s%d, 8, s%d" % (sN, sb))
    chunk1_params()
    A("s_lshl_b32 s%d, s%d, 11" % (sa, sa))
    A("s_lshl_b32 s%d, s%d, 11" % (sb, sb))
    A("v_add_u32 v%d, s%d, v%d" % (vKV + 40, sa, vKb))
    A("v_add_u32 v%d, s%d, v%d" % (vKad, sb, vKb))
    A("v_add_u32 v%d, s%d, v%d" % (vKV + 41, sa, vVb))
    A("v_add_u32 v%d, s%d, v%d" % (vVad, sb, vVb))
    A("s_mov_b32 s%d, 0" % sI)
    A("s_mov_b32 s%d, 1" % sChunk)
    A("v_and_b32 v%d, 7, v%d" % (vKV + 42, vL))
    A("v_lshlrev_b32 v%d, 4, v%d" % (vKV + 42, vKV + 42))
    A("v_lshl_add_u32 v%d, v%d, 10, v%d" % (vKV + 43, vTok, vKV + 42))
    A("s_cmp_eq_u32 s%d, 0" % sFon)
    A("s_cbranch_scc1 K_B3")
    A("s_mul_i32 s68, s%d, %d" % (sC, L_V - L_K))
    A("s_lshl_b32 s69, s%d, 13" % sTq)
    A("s_sub_u32 s68, s68, s69")
    A("s_add_u32 s68, s68, %d" % (L_K + 8192))
    A("v_add_u32 v%d, s68, v%d" % (vT1, vL16))
    A("s_mov_b32 s%d, 0" % sCnt)
    A.label("K_KVCHK")
    A("s_waitcnt vmcnt(0)")
    A("v_cmp_eq_u64 vcc, %s, %s" % (vr(vKV + 34, 2), vr(vNon, 2)))
    A("s_and_b32 s68, vcc_lo, 0xf")
    A("s_cmp_eq_u32 s68, 0xf")
    A("s_cbranch_scc0 K_KVRETRY")
    for i in range(8):
        A("ds_write_b128 v%d, %s offset:%d" % (vT1, vr(vKV + 4 * i, 4), i * 1024))
    A("v_sub_u32 v%d, 0, v%d" % (vT0, vKV + 32))
    sumu(vT0, vKV, 32, init=vT0)
    wave_sumu(vT0, vT3)
    A.nop(1)
    A("v_readfirstlane_b32 s68, v%d" % vT0)
    A("s_cmp_eq_u32 s68, 0")
    A("s_cbranch_scc1 K_B3W")
    A("s_waitcnt lgkmcnt(0)")
    A.label("K_KVRETRY")
    kv_loads()
    spin_tail("K_KVCHK", sCnt)
    A.label("K_B3W")
    A("s_waitcnt lgkmcnt(0)")
    A.label("K_B3")
    A("s_barrier")
    stamp(6)
    A("ds_read_b128 %s, v%d" % (vr(vKbf, 4), vKV + 40))
    A("ds_read_b128 %s, v%d" % (vr(vKa, 4), vKad))
    A("s_mov_b64 exec, %s" % sr(sMaskV, 2))
    A("ds_read_b128 %s, v%d" % (vr(vVbf, 4), vKV + 41))
    A("ds_read_b128 %s, v%d offset:1024" % (vr(vVbf + 4, 4), vKV + 41))
    A("s_mov_b64 exec, -1")
    A("buffer_load_dwordx4 %s, v%d, %s, s%d offen" % (vr(vXr, 4), vKV + 43, sr(sX, 4), sd))
    A("buffer_load_dwordx4 %s, v%d, %s, s%d offen" % (vr(vWr, 4), vKV + 42, sr(sGB, 4), sd))
    A("buffer_load_dwordx4 %s, v%d, %s, 0 offen" % (vr(vWR4, 4), vL16, sr(sGB, 4)))
    A("s_waitcnt lgkmcnt(3)")
    A("%s %s, %s, %s, %s" % (MFMA, vr(vSb, 16), vr(vKbf, 4), vr(vQ, 4), vr(vCm, 16)))
    A("s_cmp_lt_u32 s%d, %d" % (sTq, 9 if opt.get("notouch") else 2))
    A("s_cbranch_scc1 K_TOUCHED")
    A("s_lshl_b32 s%d, s%d, 1" % (sc, sC))
    A("s_add_u32 s%d, s%d, s%d" % (sc, sc, sTq))
    A("s_and_b32 s%d, s2, 7" % sa)
    A("s_lshr_b32 s%d, s2, 3" % sb)
    A("s_mul_i32 s%d, s%d, 44032" % (sb, sb))
    A("s_cmp_eq_u32 s%d, 5" % sc)
    A("s_cbranch_scc0 K_TOUCH_F")
    A("v_lshlrev_b32 v%d, 7, v%d" % (vT0, vL))
    A("s_lshr_b32 s%d, s2, 3" % sb)
    A("s_lshl_b32 s%d, s%d, 14" % (sb, sb))
    A("buffer_load_dword v%d, v%d, %s, s%d offen" % (vU0, vT0, sr(sW, 4), sb))
    A("s_add_u32 s%d, s%d, 8192" % (sb, sb))
    A("buffer_load_dword v%d, v%d, %s, s%d offen" % (vU1, vT0, sr(sW, 4), sb))
    A("s_branch K_TOUCHED")
    A.label("K_TOUCH_F")
    A("s_cmp_eq_u32 s%d, 4" % sc)
    A("s_cbranch_scc1 K_TOUCH_D")
    A("s_cmp_eq_u32 s%d, 2" % sc)
    A("s_cselect_b32 s%d, s%d, s%d" % (sGA, pWG, pWU))
    A("s_cselect_b32 s%d, s%d, s%d" % (sGA + 1, pWG + 1, pWU + 1))
    A("s_mov_b32 s%d, %d" % (sGA + 2, 512 * 2752))
    A("s_mov_b32 s%d, 0x20000" % (sGA + 3))
    A("v_lshrrev_b32 v%d, 2, v%d" % (vT0, vL))
    A("v_mul_u32_u24 v%d, 2752, v%d" % (vT0, vT0))
    A("v_and_b32 v%d, 3, v%d" % (vT1, vL))
    if opt.get("t128", 1):
        A("v_lshlrev_b32 v%d, 7, v%d" % (vT1, vT1))
        A("v_min_u32 v%d, 348, v%d" % (vT1, vT1))
        A("v_add_u32 v%d, v%d, v%d" % (vT2, vT1, vT0))
    else:
        A("v_lshl_add_u32 v%d, v%d, 6, v%d" % (vT2, vT1, vT0))
        A("v_lshlrev_b32 v%d, 6, v%d" % (vT1, vT1))
        A("v_min_u32 v%d, 92, v%d" % (vT1, vT1))
        A("v_add_u32 v%d, v%d, v%d" % (vT3, vT1, vT0))
    A("s_mul_i32 s%d, s%d, 352" % (sa, sa))
    A("s_add_u32 s%d, s%d, s%d" % (sa, sa, sb))
    A("buffer_load_dword v%d, v%d, %s, s%d offen" % (vU0, vT2, sr(sGA, 4), sa))
    if not opt.get("t128", 1):
        A("buffer_load_dword v%d, v%d, %s, s%d offen offset:256" % (vU1, vT3, sr(sGA, 4), sa))
    A("s_branch K_TOUCHED")
    A.label("K_TOUCH_D")
    srd(sGA, pWD, 1376 * 1024)
    A("v_min_u32 v%d, 42, v%d" % (vT0, vL))
    A("v_lshlrev_b32 v%d, 10, v%d" % (vT0, vT0))
    A("s_lshl_b32 s%d, s%d, 7" % (sa, sa))
    A("s_add_u32 s%d, s%d, s%d" % (sa, sa, sb))
    A("buffer_load_dword v%d, v%d, %s, s%d offen" % (vU0, vT0, sr(sGA, 4), sa))
    if not opt.get("t128", 1):
        A("buffer_load_dword v%d, v%d, %s, s%d offen offset:64" % (vU1, vT0, sr(sGA, 4), sa))
    A.label("K_TOUCHED")
    A("s_cmp_eq_u32 s%d, 0" % sB)
    A("s_cbranch_scc1 K_ATT_CHECK")
    A.nop(1)
    A("s_branch K_P2")
    A.label("K_SLOW1")
    A("s_cmp_eq_u32 s%d, 0" % sB)
    A("s_cbranch_scc1 K_ATT_DONE")
    A("v_mov_b32 v%d, %s" % (vU0, f32(-BIG)))
    A("s_cmp_eq_u32 s%d, 1" % sB)
    A("s_cselect_b32 s%d, %s, 0" % (sCnt, f32(-BIG)))
    A("v_mov_b32 v%d, s%d" % (vU1, sCnt))
    build_mask(True)
    A("s_mov_b32 s%d, 3" % sChunk)
    chunk1_params()
    A("s_mov_b32 s%d, s%d" % (sN1, sN))
    A("s_branch K_CHUNK")
    A.label("K_ATT_CHECK")
    A("s_waitcnt lgkmcnt(0)")
    A.nop(10)
    A("v_cmp_gt_f32 vcc, %s, v%d" % (f32(2.0 ** 60), vO + 8))
    A("s_cmp_eq_u64 vcc, exec")
    A("s_cbranch_scc%d K_ATT_DONE" % (0 if opt.get("forceslow") else 1))
    A("s_waitcnt vmcnt(0)")
    A("v_mov_b32 v%d, %s" % (vU0, f32(-BIG)))
    A("v_mov_b32 v%d, 0" % vU1)
    build_mask(False)
    for i in range(16):
        A("v_mov_b32 v%d, 0" % (vO + i))
    A("v_mov_b32 v%d, %s" % (vMold, f32(-BIG)))
    A("s_mov_b32 s%d, 2" % sChunk)
    A("s_mov_b32 s%d, s%d" % (sN1, sTq))
    A("s_branch K_CHUNK0")
    A.label("K_ATT_DONE")
    stamp(7)
    A("s_lshl_b32 s%d, s%d, 2" % (sa, sB))
    A("s_add_u32 s%d, s%d, s%d" % (sa, sa, sTq))
    A("s_lshl_b32 s%d, s%d, 5" % (sa, sa))
    A("s_lshl_b32 s%d, s%d, 1" % (sb, sHP))
    A("s_add_u32 s%d, s%d, s%d" % (sa, sa, sb))
    A("s_add_u32 s%d, s%d, s%d" % (sa, sa, sC))
    A("s_lshl_b32 s%d, s%d, 10" % (sb, sa))
    A("s_add_u32 s%d, s%d, 0x%x" % (sb, sb, WS_O))
    A("s_lshl_b32 s%d, s%d, 6" % (sa, sa))
    A("s_add_u32 s%d, s%d, 0x%x" % (sa, sa, WS_FO))
    A.nop(2)
    A("v_rcp_f32 v%d, v%d" % (vT0, vO + 8))
    A.nop(1)
    for r in range(8):
        A("v_mul_f32 v%d, v%d, v%d" % (vO + r, vO + r, vT0))
    for i in range(4):
        A("v_cvt_pk_bf16_f32 v%d, v%d, v%d" % (vP + i, vO + 2 * i, vO + 2 * i + 1))
    A("buffer_store_dwordx4 %s, v%d, %s, s%d offen sc1" % (vr(vP, 4), vL16, sr(sWS, 4), sb))
    sumu(vP + 4, vP, 4)
    wave_sumu(vP + 4, vP + 5)
    A("v_mov_b32 v%d, v%d" % (vP + 6, vNon))
    A("v_mov_b32 v%d, v%d" % (vP + 7, vNon + 1))
    A("s_mov_b64 exec, 1")
    A("buffer_store_dwordx4 %s, v%d, %s, s%d offen sc1" % (vr(vP + 4, 4), vL16, sr(sWS, 4), sa))
    A("s_mov_b64 exec, -1")
    A("s_setprio 0")
    stamp(8)
    A("s_cmp_eq_u32 s%d, 0" % sWoN)
    A("s_cbranch_scc1 K_WOW1")
    A.label("K_WOREST")
    wo_piece("K_WODONE")
    A("s_cmp_lg_u32 s%d, 0" % sWoN)
    A("s_cbranch_scc1 K_WOREST")
    A("s_waitcnt vmcnt(0)")
    A.label("K_WOW1")
    A("s_barrier")
    A("s_lshl_b32 s%d, s%d, 1" % (sa, sG3))
    A("s_add_u32 s%d, s%d, s%d" % (sa, sa, sC))
    A("s_lshl_b32 s%d, s%d, 2" % (sa, sa))
    A("s_add_u32 s%d, s%d, s%d" % (sa, sa, sT))
    A("s_lshl_b32 s%d, s%d, 9" % (sd, sa))
    A("s_add_u32 s%d, s%d, 0x%x" % (sd, sd, WS_FO))
    A("s_lshl_b32 s%d, s%d, 13" % (sa, sa))
    A("s_add_u32 s%d, s%d, 0x%x" % (sa, sa, WS_O))
    A("s_add_u32 s%d, s%d, 4096" % (sb, sa))
    A("v_lshlrev_b32 v%d, 6, v%d" % (vT0, vL))
    A("v_mov_b32 v%d, 0" % vOG)
    A("s_mov_b64 exec, 0xff")
    A("buffer_load_dwordx4 %s, v%d, %s, s%d offen sc1" % (vr(vOG, 4), vT0, sr(sWS, 4), sd))
    A("s_mov_b64 exec, -1")
    A("v_bfe_u32 v%d, v%d, 2, 2" % (vT1, vL))
    A("v_lshl_add_u32 v%d, v%d, 3, v%d" % (vT2, vG, vT1))
    A("s_lshl_b32 s%d, s%d, 14" % (sc, sT))
    A("s_add_u32 s%d, s%d, %d" % (sc, sc, L_WO))
    A("v_lshl_add_u32 v%d, v%d, 7, s%d" % (vWOa, vT2, sc))
    A("v_lshrrev_b32 v%d, 1, v%d" % (vT1, vT1))
    A("v_lshl_add_u32 v%d, v%d, 6, v%d" % (vWOa, vT1, vWOa))
    A("v_bfe_u32 v%d, v%d, 4, 1" % (vT1, vL))
    A("v_lshl_add_u32 v%d, v%d, 5, v%d" % (vWOa, vT1, vWOa))
    A("v_and_b32 v%d, 3, v%d" % (vT1, vL))
    A("v_lshl_add_u32 v%d, v%d, 3, v%d" % (vWOa, vT1, vWOa))
    A("v_xor_b32 v%d, 64, v%d" % (vWOa + 1, vWOa))
    for s in range(8):
        for C in range(2):
            for half in range(2):
                A("ds_read_b64_tr_b16 %s, v%d offset:%d" % (vr(vAW + (s * 2 + C) * 4 + 2 * half, 2), vWOa + C, (16 * s + 4 * half) * 128))
    A("v_and_b32 v%d, 15, v%d" % (vT2, vN))
    A("v_xor_b32 v%d, v%d, v%d" % (vT2, vT2, vG))
    A("v_lshlrev_b32 v%d, 4, v%d" % (vT2, vT2))
    A("s_lshl_b32 s%d, s%d, 13" % (sc, sWv))
    A("s_add_u32 s%d, s%d, %d" % (sc, sc, L_RED))
    A("v_lshl_add_u32 v%d, v%d, 8, s%d" % (vT1, vN, sc))
    for u in range(8):
        A("v_xor_b32 v%d, %d, v%d" % (vRa + u, (2 * u) << 4, vT2))
        A("v_add_u32 v%d, v%d, v%d" % (vRa + u, vRa + u, vT1))
    A("v_lshrrev_b32 v%d, 3, v%d" % (vT3, vL))
    A("s_lshl_b32 s%d, s%d, 3" % (sc, sT))
    A("v_add_u32 v%d, s%d, v%d" % (vT3, sc, vT3))
    A("v_and_b32 v%d, 7, v%d" % (vT1, vL))
    A("v_lshlrev_b32 v%d, 1, v%d" % (vT1, vT1))
    A("v_and_b32 v%d, 15, v%d" % (vT2, vT3))
    A("v_xor_b32 v%d, v%d, v%d" % (vT1, vT1, vT2))
    A("v_lshlrev_b32 v%d, 4, v%d" % (vT1, vT1))
    A("s_lshl_b32 s%d, s%d, 15" % (sc, sC))
    A("s_add_u32 s%d, s%d, %d" % (sc, sc, L_RED))
    A("v_lshl_add_u32 v%d, v%d, 8, s%d" % (vT3, vT3, sc))
    A("v_add_u32 v%d, v%d, v%d" % (vT2, vT3, vT1))
    A("v_xor_b32 v%d, 16, v%d" % (vT1, vT1))
    A("v_add_u32 v%d, v%d, v%d" % (vT3, vT3, vT1))
    A("s_mov_b32 s%d, 0" % sCnt)
    A("s_mov_b64 exec, 0xff")
    A.label("K_POLLO")
    A("s_waitcnt vmcnt(0)")
    A("v_cmp_eq_u64 vcc, %s, %s" % (vr(vOG + 2, 2), vr(vNon, 2)))
    A("s_cmp_eq_u64 vcc, exec")
    A("s_cbranch_scc1 K_POLLO_OK")
    A("buffer_load_dwordx4 %s, v%d, %s, s%d offen sc1" % (vr(vOG, 4), vT0, sr(sWS, 4), sd))
    spin_tail("K_POLLO", sCnt)
    A.label("K_POLLO_OK")
    A("s_mov_b64 exec, -1")
    stamp(9)
    A.label("K_OLOAD")
    for s in range(8):
        A("buffer_load_dwordx4 %s, v%d, %s, s%d offen offset:%d sc1" % (vr(vOF + 4 * s, 4), vL16, sr(sWS, 4), sa if s < 4 else sb, (s & 3) * 1024))
    A("v_sub_u32 v%d, 0, v%d" % (vChk, vOG))
    A("s_waitcnt lgkmcnt(0)")
    for s in range(8):
        A("s_waitcnt vmcnt(%d)" % (7 - s))
        A("%s %s, %s, %s, %s" % (MFMA, vr(vH0, 16), vr(vAW + (s * 2) * 4, 4), vr(vOF + 4 * s, 4), "0" if s == 0 else vr(vH0, 16)))
        A("v_add3_u32 v%d, v%d, v%d, v%d" % (vChk, vOF + 4 * s, vOF + 4 * s + 1, vChk))
        A("%s %s, %s, %s, %s" % (MFMA, vr(vH1, 16), vr(vAW + (s * 2 + 1) * 4, 4), vr(vOF + 4 * s, 4), "0" if s == 0 else vr(vH1, 16)))
        A("v_add3_u32 v%d, v%d, v%d, v%d" % (vChk, vOF + 4 * s + 2, vOF + 4 * s + 3, vChk))
    wave_sumu(vChk, vT1)
    A.nop(1)
    A("v_readfirstlane_b32 s68, v%d" % vChk)
    A("s_cmp_eq_u32 s68, 0")
    A("s_cbranch_scc1 K_OOK")
    spin_tail("K_OLOAD", sCnt)
    A.label("K_OOK")
    A("s_barrier")
    stamp(10)
    A("v_and_b32 v%d, 7, v%d" % (vT0, vL))
    A("v_lshlrev_b32 v%d, 4, v%d" % (vT1, vT0))
    A("v_lshl_add_u32 v%d, v%d, 10, v%d" % (vT1, vTok, vT1))
    A("s_lshl_b32 s%d, s%d, 7" % (sd, sCG))
    A("s_add_u32 s%d, s%d, 0x%x" % (sa, sd, WS_H))
    A.nop(2)
    for u in range(8):
        A("ds_write_b128 v%d, %s" % (vRa + u, vr(vH0 + 4 * u, 4)))
    A("v_lshrrev_b32 v%d, 3, v%d" % (vPa, vL))
    A("v_lshlrev_b32 v%d, 4, v%d" % (vChk, vPa))
    A("v_lshl_add_u32 v%d, v%d, 10, v%d" % (vPa, vT0, vChk))
    A("s_lshl_b32 s%d, s%d, 13" % (sb, sG3))
    A("s_lshl_b32 s%d, s%d, 7" % (sc, sWv))
    A("s_add_u32 s%d, s%d, s%d" % (sb, sb, sc))
    A("s_add_u32 s%d, s%d, 0x%x" % (sb, sb, WS_P))
    A("s_lshl_b32 s%d, s%d, 10" % (sc, sCG))
    A("s_add_u32 s%d, s%d, s%d" % (sc, sc, sb))
    A("s_waitcnt lgkmcnt(0)")
    A("s_barrier")
    for q in range(4):
        A("ds_read_b128 %s, v%d offset:%d" % (vr(vOF + 8 * q, 4), vT2, q * 8192))
        A("ds_read_b128 %s, v%d offset:%d" % (vr(vOF + 8 * q + 4, 4), vT3, q * 8192))
    for i in range(4):
        A("v_lshlrev_b32 v%d, 16, v%d" % (vH0 + 2 * i, vXr + i))
        A("v_and_b32 v%d, 0xffff0000, v%d" % (vH0 + 2 * i + 1, vXr + i))
    A("s_waitcnt lgkmcnt(0)")
    for i in range(8):
        A("v_add_f32 v%d, v%d, v%d" % (vOF + i, vOF + i, vOF + 8 + i))
        A("v_add_f32 v%d, v%d, v%d" % (vOF + 16 + i, vOF + 16 + i, vOF + 24 + i))
    for i in range(8):
        A("v_add_f32 v%d, v%d, v%d" % (vOF + i, vOF + i, vOF + 16 + i))
    for i in range(4):
        A("v_cvt_pk_bf16_f32 v%d, v%d, v%d" % (vOF + 8 + i, vOF + 2 * i, vOF + 2 * i + 1))
    for i in range(4):
        A("v_lshlrev_b32 v%d, 16, v%d" % (vOF + 2 * i, vOF + 8 + i))
        A("v_and_b32 v%d, 0xffff0000, v%d" % (vOF + 2 * i + 1, vOF + 8 + i))
    for i in range(8):
        A("v_add_f32 v%d, v%d, v%d" % (vOF + i, vOF + i, vH0 + i))
    for i in range(4):
        A("v_cvt_pk_bf16_f32 v%d, v%d, v%d" % (vHp + i, vOF + 2 * i, vOF + 2 * i + 1))
    s1, s2, s3 = vOF + 16, vOF + 17, vOF + 18
    for i in range(4):
        for (acc, other) in ((s1, None), (s2, "self"), (s3, "w")):
            o = vOnes if other is None else (vHp + i if other == "self" else vWr + i)
            A("v_dot2_f32_bf16 v%d, v%d, v%d, %s" % (acc, vHp + i, o, "0" if i == 0 else "v%d" % acc))
    sumu(s3 + 1, vHp, 4)
    A("buffer_store_dwordx4 %s, v%d, %s, s%d offen sc1" % (vr(vHp, 4), vT1, sr(sWS, 4), sa))
    def red8(regs):
        for dpp in ("quad_perm:[1,0,3,2]", "quad_perm:[2,3,0,1]", "row_half_mirror"):
            for acc in regs:
                A("v_add_f32_dpp v%d, v%d, v%d %s row_mask:0xf bank_mask:0xf" % (acc, acc, acc, dpp))
    for dpp in ("quad_perm:[1,0,3,2]", "quad_perm:[2,3,0,1]", "row_half_mirror"):
        for acc in (s1, s2, s3):
            A("v_add_f32_dpp v%d, v%d, v%d %s row_mask:0xf bank_mask:0xf" % (acc, acc, acc, dpp))
        A("v_add_u32_dpp v%d, v%d, v%d %s row_mask:0xf bank_mask:0xf" % (s3 + 1, s3 + 1, s3 + 1, dpp))
    for acc in (s1, s2, s3, s3 + 1):
        A("v_min_u32 v%d, -2, v%d" % (acc, acc))
    A("s_mov_b32 exec_lo, 0x01010101")
    A("s_mov_b32 exec_hi, 0x01010101")
    A("s_add_u32 s68, s%d, 0x%x" % (sc, WS_P2 - WS_P))
    A("buffer_store_dwordx4 %s, v%d, %s, s68 offen" % (vr(s1, 4), vChk, sr(sWS, 4)))
    A("buffer_store_dwordx4 %s, v%d, %s, s%d offen sc1" % (vr(s1, 4), vChk, sr(sWS, 4), sc))
    A("s_mov_b64 exec, -1")
    A("s_add_u32 s%d, s%d, 0x%x" % (sc, sb, WS_P2 - WS_P))
    for i in range(3):
        A("v_mov_b32 v%d, v%d" % (vS + i, s1 + i))
    A("s_lshl_b32 s%d, 0x01010101, s%d" % (sMaskV, sCG))
    A("s_not_b32 s%d, s%d" % (sMaskV, sMaskV))
    A("s_mov_b32 s%d, s%d" % (sMaskV + 1, sMaskV))
    stamp(11)
    srd(sW, pOUT, 0x200000)
    for i in range(4):
        A("v_dot2_f32_bf16 v%d, v%d, v%d, %s" % (vW1, vWR4 + i, vOnes, "0" if i == 0 else "v%d" % vW1))
    A.nop(3)
    for dpp in ("quad_perm:[1,0,3,2]", "quad_perm:[2,3,0,1]", "row_half_mirror", "row_mirror"):
        A("v_add_f32_dpp v%d, v%d, v%d %s row_mask:0xf bank_mask:0xf" % (vW1, vW1, vW1, dpp))
        A.nop(2)
    for sw in ("v_permlane16_swap_b32", "v_permlane32_swap_b32"):
        A("v_mov_b32 v%d, v%d" % (vT0, vW1))
        A.nop(2)
        A("%s v%d, v%d" % (sw, vW1, vT0))
        A.nop(1)
        A("v_add_f32 v%d, v%d, v%d" % (vW1, vW1, vT0))
    A("s_cmp_eq_u32 s%d, 0" % sRole)
    A("s_cbranch_scc1 K_NOFA")
    for i in range(24):
        A("v_mov_b32 v%d, v%d" % (vBF + i, vOnes))
    A.label("K_NOFA")
    for i in range(4):
        A("v_lshlrev_b32 v%d, 16, v%d" % (vX + 2 * i, vHp + i))
        A("v_and_b32 v%d, 0xffff0000, v%d" % (vX + 2 * i + 1, vHp + i))
    A("v_sub_u32 v%d, 2047, v%d" % (vT0, vTok))
    A("s_lshl_b32 s68, s%d, 3" % sWv)
    A("s_add_u32 s68, s68, %d" % L_TOP)
    A("v_mov_b32 v%d, s68" % vT3)
    A("s_mov_b32 s%d, 0xfffff800" % sI2)
    A("v_mov_b32 v%d, 0" % vK2)
    A("s_mov_b32 s%d, 0" % sCnt)
    A("s_mov_b64 exec, %s" % sr(sMaskV, 2))
    A.label("K_POLL1")
    A("s_and_b32 s68, s%d, 3" % sCnt)
    A("s_cmp_eq_u32 s68, 3")
    A("s_cselect_b32 s68, s%d, s%d" % (sb, sc))
    A("buffer_load_dwordx4 %s, v%d, %s, s68 offen sc1" % (vr(vS, 4), vPa, sr(sWS, 4)))
    A("s_waitcnt vmcnt(0)")
    maxu(vT2, vS, 4)
    A("v_cmp_eq_u32 vcc, -1, v%d" % vT2)
    A("s_cmp_eq_u64 vcc, 0")
    A("s_cbranch_scc1 K_POLL1_OK")
    A("s_mov_b64 exec, vcc")
    spin_tail("K_POLL1", sCnt)
    A.label("K_POLL1_OK")
    A("s_mov_b64 exec, -1")
    stamp(12)
    red8((vS, vS + 1, vS + 2))
    ln_stats(vS, vS + 1)
    A("v_fma_f32 v%d, -v%d, v%d, v%d" % (vS + 2, vS, vW1, vS + 2))
    A("v_mul_f32 v%d, v%d, v%d" % (vS + 2, vS + 2, vS + 1))
    A("v_ashrrev_i32 v%d, 31, v%d" % (vK1, vS + 2))
    A("v_or_b32 v%d, 0x80000000, v%d" % (vK1, vK1))
    A("v_xor_b32 v%d, v%d, v%d" % (vK1, vK1, vS + 2))
    A("v_and_or_b32 v%d, v%d, s%d, v%d" % (vK1, vK1, sI2, vT0))
    def merge(p1=vP1, p2=vP2):
        A("v_max_u32 v%d, v%d, v%d" % (vK2, vK2, p2))
        A("v_med3_u32 v%d, v%d, v%d, v%d" % (vK2, vK1, p1, vK2))
        A("v_max_u32 v%d, v%d, v%d" % (vK1, vK1, p1))
    def merge_dpp(dpp):
        A.nop(2)
        A("v_mov_b32_dpp v%d, v%d %s row_mask:0xf bank_mask:0xf" % (vP1, vK1, dpp))
        A("v_mov_b32_dpp v%d, v%d %s row_mask:0xf bank_mask:0xf" % (vP2, vK2, dpp))
        merge()
    def merge_swap(sw):
        A("v_mov_b32 v%d, v%d" % (vP1, vK1))
        A("v_mov_b32 v%d, v%d" % (vP2, vK2))
        A.nop(2)
        A("%s v%d, v%d" % (sw, vK1, vP1))
        A("%s v%d, v%d" % (sw, vK2, vP2))
        A.nop(1)
        merge()
    merge_dpp("row_ror:8")
    merge_swap("v_permlane16_swap_b32")
    merge_swap("v_permlane32_swap_b32")
    A("ds_write_b64 v%d, %s" % (vT3, vr(vK1, 2)))
    A("s_waitcnt lgkmcnt(0)")
    A("s_barrier")
    A("s_cmp_eq_u32 s%d, 0" % sWv)
    A("s_cbranch_scc1 K_W0")
    A("s_cmp_eq_u32 s%d, 0" % sC)
    A("s_cbranch_scc1 K_STG_DONE")
    A("s_cmp_eq_u32 s%d, 0" % sRole)
    A("s_cbranch_scc1 K_STG_DONE")
    A("s_mov_b32 s%d, s%d" % (sc, sT))
    A("v_lshrrev_b32 v%d, 1, v%d" % (vT0, vL))
    A("v_and_b32 v%d, 1, v%d" % (vT2, vL))
    A("v_lshlrev_b32 v%d, 4, v%d" % (vT2, vT2))
    A("s_lshl_b32 s%d, s%d, 5" % (sa, sJ))
    A("s_cmp_eq_u32 s%d, 1" % sRole)
    A("s_cbranch_scc0 K_FFN_D")
    srd(sGA, pWG, 512 * 2752)
    srd(sGB, pWU, 512 * 2752)
    A("v_mul_u32_u24 v%d, 2752, v%d" % (vT0, vT0))
    A("v_add_u32 v%d, v%d, v%d" % (vT0, vT0, vT2))
    A("s_mul_i32 s%d, s%d, %d" % (sb, sc, 128 * 2752))
    A("s_add_u32 s%d, s%d, s%d" % (sa, sa, sb))
    A("s_lshl_b32 s%d, s%d, 12" % (sb, sc))
    for q in range(4):
        A("s_add_u32 s%d, s%d, %d" % (sc, sb, L_F + q * 1024))
        A("s_mov_b32 m0, s%d" % sc)
        A("s_add_u32 s%d, s%d, %d" % (sc, sb, L_FU + q * 1024))
        A("buffer_load_dwordx4 v%d, %s, s%d offen lds" % (vT0, sr(sGA, 4), sa))
        A("s_mov_b32 m0, s%d" % sc)
        A("s_nop 0")
        A("buffer_load_dwordx4 v%d, %s, s%d offen lds" % (vT0, sr(sGB, 4), sa))
        A("s_add_u32 s%d, s%d, %d" % (sa, sa, 32 * 2752))
    A("s_branch K_STG_DONE")
    A.label("K_FFN_D")
    srd(sGA, pWD, 1376 * 1024)
    A("v_lshl_add_u32 v%d, v%d, 10, v%d" % (vT0, vT0, vT2))
    A("s_lshl_b32 s%d, s%d, 15" % (sb, sc))
    A("s_add_u32 s%d, s%d, s%d" % (sa, sa, sb))
    A("s_lshl_b32 s%d, s%d, 10" % (sb, sc))
    A("s_add_u32 s%d, s%d, %d" % (sb, sb, L_F))
    A.label("K_FFN_DL")
    A("s_mov_b32 m0, s%d" % sb)
    A("s_add_u32 s%d, s%d, 4096" % (sb, sb))
    A("buffer_load_dwordx4 v%d, %s, s%d offen lds" % (vT0, sr(sGA, 4), sa))
    A("s_add_u32 s%d, s%d, 0x20000" % (sa, sa))
    A("s_cmp_lt_u32 s%d, %d" % (sb, L_F + 43 * 1024))
    A("s_cbranch_scc1 K_FFN_DL")
    A.label("K_STG_DONE")
    A("s_waitcnt vmcnt(0)")
    A("s_branch K_L2WAIT")
    A.label("K_W0")
    A("v_and_b32 v%d, 7, v%d" % (vT2, vL))
    A("v_lshlrev_b32 v%d, 3, v%d" % (vT2, vT2))
    A("v_add_u32 v%d, %d, v%d" % (vT2, L_TOP, vT2))
    A("ds_read_b64 %s, v%d" % (vr(vK1, 2), vT2))
    A("v_lshlrev_b32 v%d, 6, v%d" % (vT2, vN))
    A("s_mov_b32 s%d, 0x%x" % (sa, WS_E))
    A("s_lshl_b32 s%d, s%d, 6" % (sc, sG3))
    A("s_add_u32 s%d, s%d, s%d" % (sc, sc, sa))
    A("s_and_b32 s68, s%d, 7" % sG3)
    A("s_cmp_eq_u32 s68, s%d" % sCG)
    A("s_cbranch_scc0 K_NOPUB2")
    A("s_waitcnt lgkmcnt(0)")
    for dpp in ("quad_perm:[1,0,3,2]", "quad_perm:[2,3,0,1]", "row_half_mirror"):
        merge_dpp(dpp)
    A("v_mov_b32 v%d, v%d" % (vAcc, vK1))
    A("v_mov_b32 v%d, v%d" % (vAcc + 1, vK2))
    A("v_mov_b32 v%d, v%d" % (vAcc + 2, vNon))
    A("v_mov_b32 v%d, v%d" % (vAcc + 3, vNon + 1))
    A("s_mov_b64 exec, 1")
    A("buffer_store_dwordx4 %s, v%d, %s, s%d offen sc1" % (vr(vAcc, 4), vT2, sr(sWS, 4), sc))
    A("s_mov_b64 exec, -1")
    A.label("K_NOPUB2")
    A("s_mov_b32 s%d, 0" % sCnt)
    A("s_mov_b32 exec_hi, 0")
    A.label("K_POLL2")
    A("buffer_load_dwordx4 %s, v%d, %s, s%d offen sc1" % (vr(vAcc + 4, 4), vT2, sr(sWS, 4), sa))
    A("s_waitcnt vmcnt(0)")
    A("v_cmp_eq_u64 vcc, %s, %s" % (vr(vAcc + 6, 2), vr(vNon, 2)))
    A("s_cmp_eq_u64 vcc, exec")
    A("s_cbranch_scc1 K_POLL2_OK")
    spin_tail("K_POLL2", sCnt)
    A.label("K_POLL2_OK")
    A("s_mov_b64 exec, -1")
    A("s_waitcnt lgkmcnt(0)")
    A("v_mov_b32 v%d, v%d" % (vK1, vAcc + 4))
    A("v_mov_b32 v%d, v%d" % (vK2, vAcc + 5))
    for dpp in ("quad_perm:[1,0,3,2]", "quad_perm:[2,3,0,1]", "row_half_mirror", "row_mirror"):
        merge_dpp(dpp)
    merge_swap("v_permlane16_swap_b32")
    A("s_mov_b64 exec, 1")
    A("ds_write_b64 v%d, %s offset:64" % (vT3, vr(vK1, 2)))
    A("s_mov_b64 exec, -1")
    A("s_waitcnt lgkmcnt(0)")
    A.label("K_L2WAIT")
    for i in range(8):
        A("v_sub_f32 v%d, v%d, v%d" % (vX + 8 + i, vX + i, vS))
        A("v_fmac_f32 v%d, v%d, v%d" % (vX + i, vX + 8 + i, vS + 1))
    for i in range(4):
        A("v_cvt_pk_bf16_f32 v%d, v%d, v%d" % (vHp + i, vX + 2 * i, vX + 2 * i + 1))
    A("v_mov_b32 v%d, %d" % (vT3, L_TOP + 64))
    A("v_mov_b32 v%d, 0" % (vSel + 1))
    A("s_barrier")
    A("ds_read_b64 %s, v%d" % (vr(vK1, 2), vT3))
    A("s_waitcnt lgkmcnt(0)")
    A("v_readfirstlane_b32 s%d, v%d" % (sI1, vK1))
    A("v_readfirstlane_b32 s%d, v%d" % (sI2, vK2))
    A("s_and_b32 s%d, s%d, 0x7ff" % (sI1, sI1))
    A("s_sub_u32 s%d, 2047, s%d" % (sI1, sI1))
    A("s_and_b32 s%d, s%d, 0x7ff" % (sI2, sI2))
    A("s_sub_u32 s%d, 2047, s%d" % (sI2, sI2))
    stamp(13)
    A("s_cmp_eq_u32 s%d, 0" % sRole)
    A("s_cbranch_scc1 K_OWN")
    A("s_lshr_b32 s%d, s%d, 2" % (sI, sJ))
    A("s_and_b32 s%d, s%d, 3" % (sN, sJ))
    A("s_cmp_eq_u32 s%d, 1" % sRole)
    A("s_cselect_b32 s%d, s%d, s%d" % (sI, sWv, sI))
    A("s_cselect_b32 s%d, 0, s%d" % (sN, sN))
    A("s_cbranch_scc1 K_SEL")
    A("s_cmp_eq_u32 s%d, 0" % sWv)
    A("s_cbranch_scc0 K_OWN")
    A.label("K_SEL")
    A("v_mov_b32 v%d, s%d" % (vT0, sI1))
    A("v_mov_b32 v%d, s%d" % (vT2, sI2))
    A("s_mov_b32 vcc_lo, 0xaaaaaaaa")
    A("s_mov_b32 vcc_hi, 0xaaaaaaaa")
    A("v_cndmask_b32 v%d, v%d, v%d, vcc" % (vPa, vT0, vT2))
    A("v_lshlrev_b32 v%d, 10, v%d" % (vPa, vPa))
    A("v_lshl_add_u32 v%d, v%d, 4, v%d" % (vPa, vG, vPa))
    A("s_lshl_b32 s%d, s%d, 7" % (sc, sI))
    A("s_add_u32 s%d, s%d, 0x%x" % (sc, sc, WS_H))
    def h_loads():
        A("s_mov_b32 exec_lo, 3")
        A("s_mov_b32 exec_hi, 3")
        for s in range(4):
            A("s_add_u32 s68, s%d, %d" % (sN, s))
            A("s_and_b32 s68, s68, 3")
            A("s_lshl_b32 s68, s68, 5")
            A("s_add_u32 s68, s68, s%d" % sc)
            A("buffer_load_dwordx4 %s, v%d, %s, s68 offen sc1" % (vr(vBF + 4 * s, 4), vPa, sr(sWS, 4)))
        A("s_mov_b64 exec, -1")
    h_loads()
    A("s_mov_b32 vcc_lo, 0xffff0000")
    A("s_mov_b32 vcc_hi, 0xffff0000")
    A("v_cndmask_b32 v%d, v%d, v%d, vcc" % (vT0, vT0, vT2))
    A("v_lshrrev_b32 v%d, 6, v%d" % (vT2, vT0))
    A("v_lshlrev_b32 v%d, 13, v%d" % (vT2, vT2))
    A("v_bfe_u32 v%d, v%d, 4, 2" % (vT3, vT0))
    A("v_lshl_add_u32 v%d, v%d, 8, v%d" % (vT2, vT3, vT2))
    A("v_bfe_u32 v%d, v%d, 2, 1" % (vT3, vT0))
    A("v_lshl_add_u32 v%d, v%d, 7, v%d" % (vT2, vT3, vT2))
    A("v_bfe_u32 v%d, v%d, 3, 1" % (vT3, vT0))
    A("v_lshl_add_u32 v%d, v%d, 6, v%d" % (vT2, vT3, vT2))
    A("v_and_b32 v%d, 3, v%d" % (vT3, vT0))
    A("v_lshl_add_u32 v%d, v%d, 4, v%d" % (vT2, vT3, vT2))
    A("v_and_b32 v%d, 7, v%d" % (vT3, vL))
    A("v_lshl_add_u32 v%d, v%d, 10, v%d" % (vU0, vT3, vT2))
    def ss_load():
        A("s_mov_b32 s68, 0x%x" % WS_P)
        A("buffer_load_dwordx4 %s, v%d, %s, s68 offen sc1" % (vr(vSs, 4), vU0, sr(sWS, 4)))
    ss_load()
    A("v_and_b32 v%d, 14, v%d" % (vT2, vL))
    A("v_lshlrev_b32 v%d, 1, v%d" % (vT2, vT2))
    A("v_lshl_add_u32 v%d, v%d, 10, v%d" % (vSel + 1, vT0, vT2))
    def h_check(retry, ok):
        sumu(vT2, vBF, 16)
        maxu(vT3, vSs, 4)
        A("s_add_u32 s%d, s%d, 16" % (sb, sI))
        A("v_cmp_eq_u32 vcc, -1, v%d" % vT3)
        A("v_readlane_b32 s68, v%d, s%d" % (vSs + 3, sI))
        A("v_readlane_b32 s69, v%d, s%d" % (vSs + 3, sb))
        A("v_readlane_b32 s%d, v%d, 0" % (sa, vT2))
        A("v_readlane_b32 s%d, v%d, 32" % (sb, vT2))
        A("s_add_u32 s%d, s%d, s%d" % (sa, sa, sb))
        A("s_min_u32 s%d, s%d, -2" % (sa, sa))
        A("s_xor_b32 s68, s68, s%d" % sa)
        A("v_readlane_b32 s%d, v%d, 1" % (sa, vT2))
        A("v_readlane_b32 s%d, v%d, 33" % (sb, vT2))
        A("s_add_u32 s%d, s%d, s%d" % (sa, sa, sb))
        A("s_min_u32 s%d, s%d, -2" % (sa, sa))
        A("s_xor_b32 s69, s69, s%d" % sa)
        A("s_or_b32 s68, s68, s69")
        A("s_or_b32 s68, s68, vcc_lo")
        A("s_or_b32 s68, s68, vcc_hi")
        A("s_cbranch_scc0 %s" % ok)
        h_loads()
        ss_load()
        A("s_waitcnt vmcnt(0)")
        spin_tail(retry, sCnt)
    A.label("K_OWN")
    A("v_cmp_ne_u32 vcc, s%d, v%d" % (sI1, vTok))
    A("v_cmp_ne_u32 s[68:69], s%d, v%d" % (sI2, vTok))
    A("s_and_b64 exec, vcc, s[68:69]")
    A("buffer_store_dwordx4 %s, v%d, %s, s%d offen %s" % (vr(vHp, 4), vT1, sr(sW, 4), sd, {0: "", 1: "sc1", 2: "nt", 3: "sc0 sc1"}[opt.get("outf", 0)]))
    A("s_mov_b64 exec, -1")
    A("s_cmp_eq_u32 s%d, 0" % sRole)
    A("s_cbranch_scc1 K_FIN")
    A("v_bfe_u32 v%d, v%d, 2, 2" % (vT0, vL))
    A("v_and_b32 v%d, 3, v%d" % (vT2, vL))
    A("s_cmp_eq_u32 s%d, 1" % sRole)
    A("s_cbranch_scc0 K_FA_D")
    A("v_lshl_add_u32 v%d, v%d, 3, v%d" % (vT0, vG, vT0))
    A("s_lshl_b32 s68, s%d, 11" % sWv)
    A("s_add_u32 s68, s68, %d" % L_F)
    A("v_lshl_add_u32 v%d, v%d, 5, s68" % (vT0, vT0))
    A("v_lshl_add_u32 v%d, v%d, 3, v%d" % (vT0, vT2, vT0))
    A("v_bfe_u32 v%d, v%d, 4, 1" % (vT2, vL))
    A("v_mul_u32_u24 v%d, %d, v%d" % (vT2, L_FU - L_F, vT2))
    A("v_add_u32 v%d, v%d, v%d" % (vT0, vT0, vT2))
    for s in range(4):
        for half in range(2):
            A("ds_read_b64_tr_b16 %s, v%d offset:%d" % (vr(vFA + 4 * s + 2 * half, 2), vT0, (16 * s + 4 * half) * 32))
    A("s_branch K_FA_DONE")
    A.label("K_FA_D")
    A("v_lshrrev_b32 v%d, 4, v%d" % (vT3, vL))
    A("v_lshl_add_u32 v%d, v%d, 3, v%d" % (vT0, vT3, vT0))
    A("s_lshl_b32 s68, s%d, 10" % sWv)
    A("s_add_u32 s68, s68, %d" % L_F)
    A("v_lshl_add_u32 v%d, v%d, 5, s68" % (vT0, vT0))
    A("v_lshl_add_u32 v%d, v%d, 3, v%d" % (vT0, vT2, vT0))
    for i in range(6):
        if i == 5:
            A("s_cmp_lt_u32 s%d, 3" % sWv)
            A("s_cbranch_scc0 K_FA_DONE")
        for half in range(2):
            A("ds_read_b64_tr_b16 %s, v%d offset:%d" % (vr(vFA + 4 * i + 2 * half, 2), vT0, i * 8192 + 4 * half * 32))
    A.label("K_FA_DONE")
    A("s_cmp_eq_u32 s%d, 1" % sRole)
    A("s_cbranch_scc0 K_DOWN")
    A("v_lshlrev_b32 v%d, 7, v%d" % (vT0, vN))
    A("v_lshl_add_u32 v%d, v%d, 4, v%d" % (vT0, vG, vT0))
    A("s_mul_i32 s%d, s%d, 384" % (sa, sWv))
    A("s_add_u32 s%d, s%d, %d" % (sa, sa, L_R2))
    A("v_add_u32 v%d, s%d, v%d" % (vT0, sa, vT0))
    A("s_mov_b32 s%d, 0" % sCnt)
    A("s_waitcnt vmcnt(1) lgkmcnt(0)")
    A.label("K_HCHK")
    for s in range(4):
        A("%s %s, %s, %s, %s" % (MFMA, vr(vAcc, 16), vr(vFA + 4 * s, 4), vr(vBF + 4 * s, 4), "0" if s == 0 else vr(vAcc, 16)))
    h_check("K_HCHK", "K_HOK")
    A.label("K_HOK")
    A("s_mov_b32 exec_lo, 7")
    A("s_mov_b32 exec_hi, 7")
    for a_ in range(4):
        A("ds_write_b128 v%d, %s offset:%d" % (vT0, vr(vAcc + 4 * a_, 4), a_ * 32))
    A("s_mov_b64 exec, -1")
    A("s_cmp_eq_u32 s%d, 0" % sWv)
    A("s_cbranch_scc1 K_GU_W0")
    A("s_waitcnt lgkmcnt(0)")
    A("s_barrier")
    A("s_branch K_FIN")
    A.label("K_GU_W0")
    red8((vSs, vSs + 1, vSs + 2))
    ln_stats(vSs, vSs + 1)
    A("v_bfe_u32 v%d, v%d, 4, 1" % (vT0, vL))
    A("v_and_b32 v%d, 15, v%d" % (vT2, vL))
    A("v_lshlrev_b32 v%d, 2, v%d" % (vT3, vT2))
    A("v_mul_u32_u24 v%d, 1536, v%d" % (vT2, vG))
    A("v_add_u32 v%d, v%d, v%d" % (vT3, vT3, vT2))
    A("v_add_u32 v%d, %d, v%d" % (vT3, L_R2, vT3))
    A("v_lshl_add_u32 v%d, v%d, 7, v%d" % (vT2, vT0, vT3))
    A("v_add_u32 v%d, 768, v%d" % (vP1, vT2))
    A("v_add_u32 v%d, 768, v%d" % (vP2, vT3))
    A("v_lshlrev_b32 v%d, 1, v%d" % (vT0, vL))
    A("s_lshl_b32 s%d, s%d, 6" % (sa, sJ))
    A("s_add_u32 s%d, s%d, 0x%x" % (sa, sa, WS_A))
    A("s_waitcnt lgkmcnt(0)")
    A("s_barrier")
    stamp(14)
    for hh, (ra, rb) in enumerate(((vT2, vT3), (vP1, vP2))):
        for w_ in range(2):
            A("ds_read2_b32 %s, v%d offset0:%d offset1:%d" % (vr(vX + 8 * hh + 4 * w_, 2), ra, w_ * 96, w_ * 96 + 16))
            A("ds_read2_b32 %s, v%d offset0:%d offset1:%d" % (vr(vX + 8 * hh + 4 * w_ + 2, 2), rb, w_ * 96 + 64, w_ * 96 + 80))
    A("s_waitcnt lgkmcnt(0)")
    for i in range(4):
        A("v_add_f32 v%d, v%d, v%d" % (vX + i, vX + i, vX + 4 + i))
        A("v_add_f32 v%d, v%d, v%d" % (vX + 8 + i, vX + 8 + i, vX + 12 + i))
    for i in range(4):
        A("v_add_f32 v%d, v%d, v%d" % (vX + i, vX + i, vX + 8 + i))
    for i in range(4):
        A("v_mov_b32 v%d, v%d" % (vX + 4 + i, vX + i))
    A.nop(1)
    for i in range(4):
        A("v_permlane32_swap_b32 v%d, v%d" % (vX + i, vX + 4 + i))
    for i in range(4):
        A("v_add_f32 v%d, v%d, v%d" % (vX + i, vX + i, vX + 4 + i))
    A("v_fma_f32 v%d, -v%d, v%d, v%d" % (vX, vSs, vX + 2, vX))
    A("v_fma_f32 v%d, -v%d, v%d, v%d" % (vX + 1, vSs, vX + 3, vX + 1))
    A("v_mul_f32 v%d, v%d, v%d" % (vX, vX, vSs + 1))
    A("v_mul_f32 v%d, v%d, v%d" % (vX + 1, vX + 1, vSs + 1))
    A("v_mul_f32 v%d, %s, v%d" % (vX + 2, f32(-LOG2E), vX))
    A("v_exp_f32 v%d, v%d" % (vX + 2, vX + 2))
    A("v_mul_f32 v%d, v%d, v%d" % (vX, vX, vX + 1))
    A("v_add_f32 v%d, 1.0, v%d" % (vX + 2, vX + 2))
    A("v_rcp_f32 v%d, v%d" % (vX + 2, vX + 2))
    A.nop(1)
    A("v_mul_f32 v%d, v%d, v%d" % (vX, vX, vX + 2))
    A.nop(2)
    A("v_mov_b32_dpp v%d, v%d quad_perm:[1,0,3,2] row_mask:0xf bank_mask:0xf" % (vX + 1, vX))
    A("v_cvt_pk_bf16_f32 v%d, v%d, v%d" % (vX + 2, vX, vX + 1))
    A("v_min_u32 v%d, -2, v%d" % (vX + 2, vX + 2))
    A("s_mov_b32 exec_lo, 0x55555555")
    A("s_mov_b32 exec_hi, 0")
    A("buffer_store_dword v%d, v%d, %s, s%d offen sc1" % (vX + 2, vT0, sr(sWS, 4), sa))
    A("s_mov_b64 exec, -1")
    A("s_branch K_FIN")
    A.label("K_DOWN")
    A("s_cmp_eq_u32 s%d, 0" % sWv)
    A("s_cbranch_scc0 K_D_POLL")
    A("s_mov_b32 s%d, 0" % sCnt)
    A("s_waitcnt vmcnt(0)")
    A.label("K_DH")
    h_check("K_DH", "K_DH_OK")
    A.label("K_DH_OK")
    A("v_lshlrev_b32 v%d, 5, v%d" % (vT0, vN))
    A("v_lshl_add_u32 v%d, v%d, 4, v%d" % (vT0, vG, vT0))
    A("v_add_u32 v%d, %d, v%d" % (vT0, L_TOP + 128, vT0))
    A("s_mov_b32 exec_lo, 3")
    A("s_mov_b32 exec_hi, 3")
    A("ds_write_b128 v%d, %s" % (vT0, vr(vBF, 4)))
    A("s_mov_b64 exec, -1")
    A("v_and_b32 v%d, 30, v%d" % (vT0, vL))
    A("v_lshlrev_b32 v%d, 1, v%d" % (vT0, vT0))
    A("v_add_u32 v%d, %d, v%d" % (vT0, L_TOP + 128, vT0))
    A("s_waitcnt lgkmcnt(0)")
    A("ds_read_b32 v%d, v%d" % (vSel, vT0))
    A("s_waitcnt lgkmcnt(0)")
    red8((vSs, vSs + 1, vSs + 2))
    ln_stats(vSs, vSs + 1)
    A("v_lshlrev_b32 v%d, 16, v%d" % (vX, vSel))
    A("v_and_b32 v%d, 0xffff0000, v%d" % (vSel, vSel))
    A("v_fma_f32 v%d, -v%d, v%d, v%d" % (vSs + 2, vSs, vW1, vSs + 2))
    A("v_mul_f32 v%d, v%d, v%d" % (vSs + 2, vSs + 2, vSs + 1))
    A("v_mul_f32 v%d, %s, v%d" % (vSs + 2, f32(-LOG2E), vSs + 2))
    A("v_exp_f32 v%d, v%d" % (vSs + 2, vSs + 2))
    A("s_mov_b32 vcc_lo, 0x55555555")
    A("s_mov_b32 vcc_hi, 0x55555555")
    A("v_cndmask_b32 v%d, v%d, v%d, vcc" % (vSel, vSel, vX))
    A("v_add_f32 v%d, 1.0, v%d" % (vSs + 2, vSs + 2))
    A("v_rcp_f32 v%d, v%d" % (vSs + 2, vSs + 2))
    A("v_sub_f32 v%d, v%d, v%d" % (vX + 1, vSel, vSs))
    A("v_fmac_f32 v%d, v%d, v%d" % (vSel, vX + 1, vSs + 1))
    A.label("K_D_POLL")
    A("v_and_b32 v%d, 1, v%d" % (vT0, vL))
    A("v_lshlrev_b32 v%d, 5, v%d" % (vT0, vT0))
    A("v_lshl_add_u32 v%d, v%d, 6, v%d" % (vT0, vG, vT0))
    A("v_bfe_u32 v%d, v%d, 4, 1" % (vT2, vL))
    A("v_lshl_add_u32 v%d, v%d, 4, v%d" % (vT0, vT2, vT0))
    A("v_lshrrev_b32 v%d, 4, v%d" % (vT2, vL))
    A("s_lshl_b32 s68, s%d, 7" % sWv)
    A("s_add_u32 s%d, s68, 0x%x" % (sa, WS_A))
    A("s_add_u32 s%d, s%d, 4096" % (sc, sa))
    A("v_and_b32 v%d, 15, v%d" % (vT3, vL))
    A("v_lshlrev_b32 v%d, 6, v%d" % (vT3, vT3))
    A("v_lshl_add_u32 v%d, v%d, 4, v%d" % (vT3, vT2, vT3))
    A("s_add_u32 s68, s68, %d" % L_R2)
    A("v_add_u32 v%d, s68, v%d" % (vT3, vT3))
    A("s_mov_b32 exec_lo, 0x00030003")
    A("s_mov_b32 exec_hi, 0x00030003")
    A("s_mov_b32 s%d, 0" % sCnt)
    A.label("K_POLLA")
    for i in range(5):
        if i < 4:
            A("buffer_load_dwordx4 %s, v%d, %s, s%d offen offset:%d sc1" % (vr(vBF + 4 * i, 4), vT0, sr(sWS, 4), sa, i * 1024))
        else:
            A("buffer_load_dwordx4 %s, v%d, %s, s%d offen sc1" % (vr(vBF + 4 * i, 4), vT0, sr(sWS, 4), sc))
    A("s_cmp_lt_u32 s%d, 3" % sWv)
    A("s_cbranch_scc0 K_POLLA5")
    A("buffer_load_dwordx4 %s, v%d, %s, s%d offen offset:1024 sc1" % (vr(vBF + 20, 4), vT0, sr(sWS, 4), sc))
    A.label("K_POLLA5")
    A("s_waitcnt vmcnt(0) lgkmcnt(0)")
    maxu(vT2, vBF, 24)
    A("v_cmp_eq_u32 vcc, -1, v%d" % vT2)
    A("s_cmp_eq_u64 vcc, 0")
    A("s_cbranch_scc1 K_POLLA_OK")
    spin_tail("K_POLLA", sCnt)
    A.label("K_POLLA_OK")
    A("s_mov_b64 exec, -1")
    stamp(14)
    for i in range(5):
        A("%s %s, %s, %s, %s" % (MFMA16, vr(vAcc, 4), vr(vFA + 4 * i, 4), vr(vBF + 4 * i, 4), "0" if i == 0 else vr(vAcc, 4)))
    A("s_cmp_lt_u32 s%d, 3" % sWv)
    A("s_cbranch_scc0 K_D5")
    A("%s %s, %s, %s, %s" % (MFMA16, vr(vAcc, 4), vr(vFA + 20, 4), vr(vBF + 20, 4), vr(vAcc, 4)))
    A.label("K_D5")
    A("v_lshlrev_b32 v%d, 2, v%d" % (vT0, vN))
    A("v_lshl_add_u32 v%d, v%d, 9, v%d" % (vT0, vG, vT0))
    A("v_add_u32 v%d, %d, v%d" % (vT0, L_R2, vT0))
    A("s_mov_b32 exec_lo, 0x00030003")
    A("s_mov_b32 exec_hi, 0x00030003")
    A.nop(3)
    A("ds_write_b128 v%d, %s" % (vT3, vr(vAcc, 4)))
    A("s_mov_b64 exec, -1")
    A("s_waitcnt lgkmcnt(0)")
    A("s_barrier")
    A("s_cmp_eq_u32 s%d, 0" % sWv)
    A("s_cbranch_scc0 K_FIN")
    A("ds_read2_b32 %s, v%d offset0:0 offset1:32" % (vr(vX + 2, 2), vT0))
    A("ds_read2_b32 %s, v%d offset0:64 offset1:96" % (vr(vX + 4, 2), vT0))
    A("s_lshl_b32 s%d, s%d, 5" % (sa, sJ))
    A("s_waitcnt lgkmcnt(0)")
    A("v_add_f32 v%d, v%d, v%d" % (vX + 2, vX + 2, vX + 3))
    A("v_add_f32 v%d, v%d, v%d" % (vX + 4, vX + 4, vX + 5))
    A("v_add_f32 v%d, v%d, v%d" % (vX, vX + 2, vX + 4))
    A("v_mov_b32 v%d, v%d" % (vX + 2, vX))
    A.nop(2)
    A("v_permlane32_swap_b32 v%d, v%d" % (vX, vX + 2))
    A.nop(1)
    A("v_add_f32 v%d, v%d, v%d" % (vX, vX, vX + 2))
    A("v_fmac_f32 v%d, v%d, v%d" % (vSel, vX, vSs + 2))
    A.nop(2)
    A("v_mov_b32_dpp v%d, v%d quad_perm:[1,0,3,2] row_mask:0xf bank_mask:0xf" % (vX, vSel))
    A("v_cvt_pk_bf16_f32 v%d, v%d, v%d" % (vSel, vSel, vX))
    A("s_mov_b32 exec_lo, 0x55555555")
    A("s_mov_b32 exec_hi, 0")
    A("buffer_store_dword v%d, v%d, %s, s%d offen" % (vSel, vSel + 1, sr(sW, 4), sa))
    A("s_mov_b64 exec, -1")
    A.label("K_FIN")
    if STAMPS:
        A("s_waitcnt vmcnt(0)")
        stamp(15)
        A("s_waitcnt lgkmcnt(0)")
        if opt.get("dbgout"):
            A("s_cmp_eq_u32 s2, %d" % opt["dbgout"])
            A("s_cbranch_scc0 K_END")
            A("s_cmp_eq_u32 s%d, 0" % sWv)
            A("s_cbranch_scc0 K_END")
            srd(sGA, pDBG, 256)
            A("v_mov_b32 v%d, 0" % vT0)
            A("s_mov_b64 exec, 1")
            for i, st in enumerate((0, 2, 3, 4, 5, 6, 7, 9, 10, 11, 12, 13, 14, 15)):
                A("v_mov_b32 v%d, s%d" % (vT2, 70 + 2 * st))
                A("v_sub_u32 v%d, v%d, v%d" % (vT2, vT2, vNon))
                A("buffer_store_dword v%d, v%d, %s, 0 offen offset:%d" % (vT2, vT0, sr(sGA, 4), 8 + 4 * i))
                A.nop(2)
            A("s_branch K_END")
        A("s_lshl_b32 s%d, s2, 3" % sa)
        A("s_add_u32 s%d, s%d, s%d" % (sa, sa, sWv))
        A("s_mul_i32 s%d, s%d, %d" % (sa, sa, NSTAMP_SLOTS * 8))
        A("s_add_u32 s%d, s%d, 0x%x" % (sa, sa, WS_STAMP))
        A("v_mov_b32 v%d, 0" % vT0)
        A("s_mov_b64 exec, 1")
        for i in range(16):
            A("v_mov_b32 v%d, s%d" % (vT2, 70 + 2 * i))
            A("v_mov_b32 v%d, s%d" % (vT3, 71 + 2 * i))
            A("buffer_store_dwordx2 %s, v%d, %s, s%d offen offset:%d" % (vr(vT2, 2), vT0, sr(sWS, 4), sa, i * 8))
            A.nop(2)
    A.label("K_END")
    A("s_endpgm")
    return A.text(), 256, LDS

HEADER = open("sequential_preLN__sliding_block__moe_arch_mod__prompt.s.ref").read().split("; Override launch")[0]

def build(opt):
    k, nv, lds = gen(opt)
    s = HEADER
    s += "; @launch grid=(256,1,1) block=(512,1,1) lds=%d\n" % lds
    s += '.amdgcn_target "amdgcn-amd-amdhsa--gfx950"\n.text\n'
    s += ".globl %s\n.p2align 8\n.type %s,@function\n%s:\n%s" % (KNAME, KNAME, KNAME, k)
    s += '.section .rodata,"a"\n'
    s += """.p2align 6
.amdhsa_kernel %s
  .amdhsa_next_free_vgpr %d
  .amdhsa_next_free_sgpr 102
  .amdhsa_accum_offset %d
  .amdhsa_group_segment_fixed_size 0
  .amdhsa_kernarg_size 88
  .amdhsa_user_sgpr_count 2
  .amdhsa_user_sgpr_kernarg_segment_ptr 1
  .amdhsa_system_sgpr_workgroup_id_x 1
.end_amdhsa_kernel
""" % (KNAME, nv, (nv + 3) // 4 * 4)
    return s

if __name__ == "__main__":
    out = sys.argv[1] if len(sys.argv) > 1 else "k.s"
    opt = {}
    for a in sys.argv[2:]:
        k, v = a.split("=")
        opt[k] = int(v)
    open(out, "w").write(build(opt))
```

```python
import sys, struct

def f32(x):
    return "0x%08x" % struct.unpack("<I", struct.pack("<f", x))[0]

WS_KV = 0x000000
WS_O = 0x400000
WS_H = 0x600000
WS_P = 0x800000
WS_A = 0x840000
WS_LS = 0x850000
WS_E = 0x860000
WS_FKV = 0x880000
WS_FO = 0x8a0000
WS_P2 = 0x8c0000
WS_SIZE = 0x10000000
WS_STAMP = 0x8000000
NSTAMP_SLOTS = 24

LOG2E = 1.4426950408889634
BIG = 1.0e30
SPIN_LIMIT = 100000
MFMA = "v_mfma_f32_32x32x16_bf16"
MFMA16 = "v_mfma_f32_16x16x32_bf16"
MFMA4 = "v_mfma_f32_4x4x4_16b_bf16"
KNAME = "sequential_preLN__sliding_block__moe_arch_mod__prompt_kernel"

class Asm:
    def __init__(self):
        self.L = []
    def __call__(self, s):
        self.L.append("    " + s.strip())
    def label(self, s):
        self.L.append(s + ":")
    def nop(self, n):
        while n > 0:
            k = min(n, 16)
            self.L.append("    s_nop %d" % (k - 1))
            n -= k
    def text(self):
        return "\n".join(self.L) + "\n"

def vr(b, n):
    assert b % 2 == 0, "unaligned vgpr tuple %d" % b
    return "v[%d:%d]" % (b, b + n - 1)
def sr(b, n):
    return "s[%d:%d]" % (b, b + n - 1)

def gen(opt):
    A = Asm()
    STAMPS = opt.get("stamps", 0)
    def stamp(i):
        if STAMPS:
            A("s_memrealtime %s" % sr(70 + 2 * i, 2))
    def srd(d, base, size):
        A("s_mov_b32 s%d, s%d" % (d, base))
        A("s_mov_b32 s%d, s%d" % (d + 1, base + 1))
        A("s_mov_b32 s%d, 0x%x" % (d + 2, size))
        A("s_mov_b32 s%d, 0x20000" % (d + 3))
    def cap(fn):
        keep = A.L; A.L = []; fn(); out = A.L; A.L = keep; return out
    pX, pW, pWO, pBX, pWR, pWG, pWU, pWD, pOUT, pDBG, pWS = 8, 10, 12, 14, 16, 18, 20, 22, 24, 26, 28
    sCG, sG3 = 14, 15
    sX, sW, sWS, sGA, sGB = 32, 36, 40, 44, 48
    sWv, sT, sC, sB, sHP, sTq, sWGL, sRole, sJ = 52, 53, 54, 55, 56, 57, 58, 59, 60
    sa, sb, sc, sd = 61, 62, 63, 64
    sKC, sXo, sWo, sSlotX, sDW = 3, 4, 5, 6, 7
    sXbase, sWbase = 30, 31
    sRd, sPub, sS = 65, 66, 67
    sN, sI, sChunk, sCnt = 3, 4, 5, 6
    sMaskV = 30
    sFa, sFg, sFon = 1, 10, 11
    sN1 = 0
    sKu, sKm = 68, 69
    sI1, sI2 = 65, 66
    sWoG, sWoL, sWoR, sWoN = 65, 66, 67, 7
    vWoA, vWoB = 41, 40
    XS, WSL = 16384, 12288
    NSL = 5
    SLOT = XS + WSL
    L_WO = 86016
    L_K = 0
    L_V = 24576
    L_Q = 49152
    L_VX = 90112
    L_STR = 151552
    L_STM = 152064
    L_CS = 152576
    L_PAY = 153088
    L_NON = 153152
    L_CSP = 153600
    L_TOP = 155648
    L_R2 = 155904
    L_RED = L_WO
    L_F = 0
    L_FU = L_F + 16384 + 128
    LDS = 163840
    vL, vN, vG, vKap, vL16, vOnes, vTok = 1, 2, 3, 4, 5, 6, 7
    vT0, vT1, vT2, vT3 = 8, 9, 10, 11
    vNon = 12
    vXr = 14
    vWr = 18
    vFA = 200
    vWR4 = 248
    vW1 = 252
    vKb, vVb, vIG = 253, 254, 255
    vXg = 22
    vWg = 14
    vXa, vXc, vWa, vWc = 26, 30, 34, 38
    vU0, vU1 = 42, 43
    vOne2 = 44
    vB = 48
    vAcV, vAc0, vAc1 = 128, 144, 160
    vRow = 176
    vLSa, vLSb, vLSc = 184, 185, 186
    vCq, vCk, vCv = 188, 192, 196
    vGc = 112
    vE = 48
    vPk = 80
    vQ = 22
    vKad, vVad, vM, vMold = 26, 27, 30, 31
    vKa, vKbf = 32, 36
    vSa, vSb = 44, 60
    vCn = 76
    vP = 96
    vKV = 104
    vCm = 200
    vVa, vVbf = 216, 224
    vO = 232
    vWOa = 26
    vRa = 28
    vOF = 44
    vH0, vH1 = 76, 92
    vAW = 108
    vChk = 40
    vOG = 172
    vHp = 36
    vPa = 41
    vS = 44
    vK1, vK2, vP1, vP2 = 58, 59, 60, 61
    vX = 64
    vBF = 80
    vAcc = 104
    vSs = 120
    vSel = 124

    def spin_tail(lab, cnt):
        A("s_add_u32 s%d, s%d, 1" % (cnt, cnt))
        A("s_cmp_lt_u32 s%d, %d" % (cnt, SPIN_LIMIT))
        A("s_cbranch_scc1 %s" % lab)
    def maxu(dst, base, n):
        A("v_max_u32 v%d, v%d, v%d" % (dst, base, base + 1))
        for i in range(2, n, 2):
            A("v_max3_u32 v%d, v%d, v%d, v%d" % (dst, base + i, base + i + 1, dst))
    def sumu(dst, base, n, init=None):
        regs = [base + i for i in range(n)]
        if init is None:
            A("v_add_u32 v%d, v%d, v%d" % (dst, regs[0], regs[1])); regs = regs[2:]
        else:
            A("v_add3_u32 v%d, v%d, v%d, v%d" % (dst, regs[0], regs[1], init)); regs = regs[2:]
        for i in range(0, len(regs), 2):
            A("v_add3_u32 v%d, v%d, v%d, v%d" % (dst, regs[i], regs[i + 1], dst))
    def wave_sumu(v, tmp):
        for dpp in ("quad_perm:[1,0,3,2]", "quad_perm:[2,3,0,1]", "row_half_mirror", "row_mirror"):
            A.nop(2)
            A("v_add_u32_dpp v%d, v%d, v%d %s row_mask:0xf bank_mask:0xf" % (v, v, v, dpp))
        for sw in ("v_permlane16_swap_b32", "v_permlane32_swap_b32"):
            A("v_mov_b32 v%d, v%d" % (tmp, v))
            A.nop(2)
            A("%s v%d, v%d" % (sw, v, tmp))
            A.nop(1)
            A("v_add_u32 v%d, v%d, v%d" % (v, v, tmp))
    def ln_stats(s1, s2):
        A("v_mul_f32 v%d, %s, v%d" % (s1, f32(1.0 / 512), s1))
        A("v_mul_f32 v%d, %s, v%d" % (s2, f32(1.0 / 512), s2))
        A("v_fma_f32 v%d, -v%d, v%d, v%d" % (s2, s1, s1, s2))
        A("v_max_f32 v%d, 0, v%d" % (s2, s2))
        A("v_add_f32 v%d, %s, v%d" % (s2, f32(1e-5), s2))
        A("v_rsq_f32 v%d, v%d" % (s2, s2))

    A("s_cmp_ge_u32 s2, 256")
    A("s_cbranch_scc1 K_END")
    stamp(0)
    A("s_load_dwordx16 s[8:23], s[0:1], 0")
    A("s_load_dwordx4 s[24:27], s[0:1], 64")
    A("s_load_dwordx2 s[28:29], s[0:1], 80")
    A("v_and_b32 v%d, 63, v0" % vL)
    A("v_lshrrev_b32 v%d, 6, v0" % vT0)
    A("v_lshlrev_b32 v%d, 4, v%d" % (vL16, vL))
    A("v_readfirstlane_b32 s%d, v%d" % (sWv, vT0))
    A("s_and_b32 s%d, s2, 7" % sa)
    A("s_lshr_b32 s%d, s2, 3" % sb)
    if opt.get("map", 2) == 2:
        A("s_lshr_b32 s%d, s%d, 1" % (sB, sa))
        A("s_lshr_b32 s%d, s%d, 3" % (sc, sb))
        A("s_lshl_b32 s%d, s%d, 2" % (sd, sc))
        A("s_add_u32 s%d, s%d, s%d" % (sB, sB, sd))
        A("s_and_b32 s%d, s%d, 1" % (sHP, sa))
        A("s_lshl_b32 s%d, s%d, 3" % (sHP, sHP))
        A("s_and_b32 s%d, s%d, 7" % (sKC, sb))
        A("s_add_u32 s%d, s%d, s%d" % (sHP, sHP, sKC))
        A("s_lshl_b32 s%d, s%d, 1" % (sc, sc))
        A("s_add_u32 s%d, s%d, s%d" % (sKC, sKC, sc))
        if opt.get("rotx2"):
            A("s_add_u32 s%d, s%d, s%d" % (sKC, sKC, sa))
        A("s_and_b32 s%d, s%d, 7" % (sKC, sKC))
    else:
        A("s_lshr_b32 s%d, s%d, 4" % (sc, sb))
        A("s_lshl_b32 s%d, s%d, 3" % (sd, sc))
        A("s_add_u32 s%d, s%d, s%d" % (sB, sa, sd))
        A("s_and_b32 s%d, s%d, 15" % (sHP, sb))
        A("s_lshl_b32 s%d, s%d, 2" % (sc, sc))
        A("s_add_u32 s%d, s%d, s%d" % (sKC, sHP, sc))
        A("s_add_u32 s%d, s%d, s%d" % (sKC, sKC, sa))
        A("s_and_b32 s%d, s%d, 7" % (sKC, sKC))
    A("s_and_b32 s%d, s%d, 3" % (sT, sWv))
    A("s_lshr_b32 s%d, s%d, 2" % (sC, sWv))
    A("s_lshl_b32 s%d, s%d, 4" % (sWGL, sB))
    A("s_add_u32 s%d, s%d, s%d" % (sWGL, sWGL, sHP))
    A("s_cmp_eq_u32 s%d, 0" % sC)
    A("s_cbranch_scc0 K_PRO_LD")
    A("s_lshl_b32 s%d, s%d, 2" % (sa, sWGL))
    A("s_add_u32 s%d, s%d, s%d" % (sa, sa, sT))
    A("s_lshl_b32 s%d, s%d, 11" % (sb, sa))
    for i in range(4):
        A("v_mov_b32 v%d, -1" % (vT0 + i))
    A("s_waitcnt lgkmcnt(0)")
    srd(sX, pX, 0x200000)
    A("buffer_load_dwordx4 %s, v%d, %s, s%d offen" % (vr(vRow, 4), vL16, sr(sX, 4), sb))
    A("buffer_load_dwordx4 %s, v%d, %s, s%d offen offset:1024" % (vr(vRow + 4, 4), vL16, sr(sX, 4), sb))
    srd(sWS, pWS, WS_SIZE)
    A("s_or_b32 s%d, s2, s%d" % (sa, sWv))
    A("s_cmp_lg_u32 s%d, 0" % sa)
    A("s_cbranch_scc1 K_NONONCE")
    srd(sGA, pDBG, 256)
    A("s_memrealtime s[68:69]")
    A("s_waitcnt lgkmcnt(0)")
    A("s_or_b32 s69, s69, 0x80000000")
    A("v_mov_b32 v%d, s68" % vNon)
    A("v_mov_b32 v%d, s69" % (vNon + 1))
    A("s_mov_b64 exec, 1")
    A("buffer_store_dwordx2 %s, v%d, %s, 0 offen sc1" % (vr(vNon, 2), vL16, sr(sGA, 4)))
    A("s_mov_b64 exec, -1")
    A.label("K_NONONCE")
    def clr(soff, off=0):
        A("buffer_store_dwordx4 %s, v%d, %s, s%d offen offset:%d sc1" % (vr(vT0, 4), vL16, sr(sWS, 4), soff, off))
    A("s_cmp_lg_u32 s%d, 0" % sT)
    A("s_cbranch_scc1 K_NOCLRP")
    A("s_lshl_b32 s%d, s%d, 10" % (sa, sWGL))
    A("s_add_u32 s%d, s%d, 0x%x" % (sa, sa, WS_P))
    clr(sa)
    A("s_add_u32 s%d, s%d, 0x%x" % (sa, sa, WS_P2 - WS_P))
    clr(sa)
    A.label("K_NOCLRP")
    if opt.get("tlb"):
        A("s_cmp_lg_u32 s%d, 1" % sT)
        A("s_cbranch_scc1 K_NOTLB")
        A("v_lshlrev_b32 v%d, 18, v%d" % (vE, vL))
        A("s_mov_b32 exec_hi, 0xf")
        A("buffer_load_dword v%d, v%d, %s, 0 offen sc1" % (vE + 1, vE, sr(sWS, 4)))
        A("s_mov_b64 exec, 0xff")
        srd(sGA, pOUT, 0x200000)
        A("buffer_load_dword v%d, v%d, %s, 0 offen sc1" % (vE + 2, vE, sr(sGA, 4)))
        A("s_mov_b64 exec, -1")
        A.label("K_NOTLB")
    A("s_cmp_lg_u32 s2, 1")
    A("s_cbranch_scc1 K_PRO_DONE")
    A("s_lshl_b32 s%d, s%d, 11" % (sa, sT))
    A("s_add_u32 s%d, s%d, 0x%x" % (sa, sa, WS_A))
    clr(sa); clr(sa, 1024)
    A("s_branch K_PRO_DONE")
    A.label("K_PRO_LD")
    A("v_lshrrev_b32 v%d, 3, v%d" % (vT0, vL))
    A("v_lshrrev_b32 v%d, 1, v%d" % (vT1, vT0))
    A("v_and_b32 v%d, 7, v%d" % (vT2, vL))
    A("v_xor_b32 v%d, v%d, v%d" % (vT2, vT2, vT1))
    A("v_lshlrev_b32 v%d, 4, v%d" % (vT2, vT2))
    A("v_lshl_add_u32 v%d, v%d, 10, v%d" % (vXg, vT0, vT2))
    A("v_xor_b32 v%d, 64, v%d" % (vXg + 1, vXg))
    A("v_add_u32 v%d, %d, v%d" % (vXg + 1, 8192 - 1024, vXg + 1))
    A("v_add_u32 v%d, %d, v%d" % (vXg + 2, 2 * (8192 - 1024), vXg))
    A("v_add_u32 v%d, %d, v%d" % (vXg + 3, 2 * (8192 - 1024), vXg + 1))
    A("s_lshl_b32 s%d, s%d, 17" % (sXbase, sB))
    A("s_lshl_b32 s%d, s%d, 15" % (sa, sT))
    A("s_add_u32 s%d, s%d, s%d" % (sXbase, sXbase, sa))
    A("s_movk_i32 s%d, 0x1556" % sb)
    for q in range(3):
        src = vL
        if q:
            A("v_add_u32 v%d, %d, v%d" % (vT0, 64 * q, vL))
            src = vT0
        A("v_mul_u32_u24 v%d, s%d, v%d" % (vT1, sb, src))
        A("v_lshrrev_b32 v%d, 16, v%d" % (vT1, vT1))
        A("v_mul_u32_u24 v%d, 12, v%d" % (vT2, vT1))
        A("v_sub_u32 v%d, v%d, v%d" % (vT2, src, vT2))
        A("v_lshrrev_b32 v%d, 2, v%d" % (vT3, vT2))
        A("v_and_b32 v%d, 3, v%d" % (vT2, vT2))
        A("v_lshlrev_b32 v%d, 4, v%d" % (vT2, vT2))
        A("v_lshl_add_u32 v%d, v%d, 10, v%d" % (vT2, vT3, vT2))
        A("v_mul_u32_u24 v%d, 0xc00, v%d" % (vT1, vT1))
        A("v_add_u32 v%d, v%d, v%d" % (vWg + q, vT1, vT2))
        if q:
            A("v_subrev_u32 v%d, %d, v%d" % (vWg + q, 1024 * q, vWg + q))
    A("s_lshl_b32 s%d, s%d, 6" % (sWbase, sHP))
    A("s_mul_i32 s%d, s%d, 49152" % (sa, sT))
    A("s_add_u32 s%d, s%d, s%d" % (sWbase, sWbase, sa))
    A("s_lshl_b32 s%d, s%d, 12" % (sSlotX, sT))
    A("s_lshl_b32 s%d, s%d, 10" % (sDW, sT))
    A("s_sub_u32 s%d, %d, s%d" % (sDW, XS, sDW))
    A("s_waitcnt lgkmcnt(0)")
    srd(sX, pX, 0x200000)
    srd(sW, pW, 0x180000)
    stamp(1)

    def dma_stage():
        A("s_lshl_b32 s%d, s%d, 7" % (sXo, sKC))
        A("s_mov_b32 m0, s%d" % sSlotX)
        A("s_add_u32 s%d, s%d, s%d" % (sXo, sXo, sXbase))
        for i in range(4):
            A("buffer_load_dwordx4 v%d, %s, s%d offen offset:%d lds" % (vXg + i, sr(sX, 4), sXo, i * 1024))
            if i == 0:
                A("s_mul_i32 s%d, s%d, 196608" % (sWo, sKC))
                A("s_add_u32 s%d, s%d, s%d" % (sa, sSlotX, sDW))
            if i == 1:
                A("s_add_u32 s%d, s%d, s%d" % (sWo, sWo, sWbase))
                A("s_add_u32 s%d, s%d, 1" % (sKC, sKC))
            if i == 2:
                A("s_and_b32 s%d, s%d, 7" % (sKC, sKC))
                A("s_add_u32 s%d, s%d, %d" % (sSlotX, sSlotX, SLOT))
        A("s_mov_b32 m0, s%d" % sa)
        A("s_nop 0")
        for i in range(3):
            A("buffer_load_dwordx4 v%d, %s, s%d offen offset:%d lds" % (vWg + i, sr(sW, 4), sWo, i * 1024))
            if i == 0:
                A("s_cmp_ge_u32 s%d, %d" % (sSlotX, NSL * SLOT))
                A("s_cselect_b32 s%d, %d, 0" % (sa, NSL * SLOT))
                A("s_sub_u32 s%d, s%d, s%d" % (sSlotX, sSlotX, sa))
    def build_mask(first):
        for r in range(0, 16, 2):
            for k in range(2):
                jr = ((r + k) >> 3) * 16 + ((r + k) & 7)
                A("v_cmp_%s_i32 %s, %d, v%d" % ("gt" if first else "le", "vcc" if k == 0 else sr(sKu, 2), jr, vIG))
            A.nop(1)
            A("v_cndmask_b32 v%d, v%d, v%d, vcc" % (vCm + r, vU0, vU1))
            A("v_cndmask_b32 v%d, v%d, v%d, %s" % (vCm + r + 1, vU0, vU1, sr(sKu, 2)))
    def common_setup(loader, ta, tb, tc):
        t0, t1, t2, t3 = vE, vE + 1, vE + 2, vE + 3
        A("v_and_b32 v%d, 31, v%d" % (vN, vL))
        A("v_lshrrev_b32 v%d, 5, v%d" % (vG, vL))
        A("v_and_b32 v%d, 0x13, v%d" % (vKap, vN))
        A("v_and_b32 v%d, 4, v%d" % (t0, vN))
        A("v_lshl_or_b32 v%d, v%d, 1, v%d" % (vKap, t0, vKap))
        A("v_and_b32 v%d, 8, v%d" % (t0, vN))
        A("v_lshrrev_b32 v%d, 1, v%d" % (t0, t0))
        A("v_or_b32 v%d, v%d, v%d" % (vKap, vKap, t0))
        A("v_mov_b32 v%d, 0x3f803f80" % vOnes)
        M3 = opt.get("m3", 1)
        if M3 == 0:
            A("s_lshr_b32 s%d, s2, 6" % ta)
            A("s_and_b32 s%d, s2, 7" % sCG)
            A("s_cmp_lt_u32 s%d, 3" % ta)
            A("s_cselect_b32 s%d, 0, 6" % tb)
            A("s_min_u32 s%d, s%d, 2" % (ta, ta))
            A("s_lshr_b32 s%d, s%d, 1" % (tc, sCG))
            A("s_add_u32 s%d, s%d, s%d" % (ta, ta, tc))
            A("s_add_u32 s%d, s%d, 1" % (ta, ta))
            A("s_and_b32 s%d, s%d, 3" % (ta, ta))
            A("s_add_u32 s%d, s%d, s%d" % (sCG, sCG, tb))
            A("s_and_b32 s%d, s%d, 7" % (sCG, sCG))
            A("s_bfe_u32 s%d, s2, 0x20004" % tb)
            A("s_lshl_b32 s%d, s%d, 2" % (tb, tb))
            A("s_add_u32 s%d, s%d, s%d" % (ta, ta, tb))
            A("s_lshl_b32 s%d, s%d, 1" % (sG3, ta))
            A("s_bfe_u32 s%d, s2, 0x10003" % tb)
            A("s_add_u32 s%d, s%d, s%d" % (sG3, sG3, tb))
        elif M3 == 1:
            A("s_add_u32 s%d, s%d, 1" % (ta, sB))
            A("s_and_b32 s%d, s%d, 15" % (ta, ta))
            A("s_lshl_b32 s%d, s%d, 1" % (sG3, ta))
            A("s_lshr_b32 s%d, s%d, 3" % (tb, sHP))
            A("s_add_u32 s%d, s%d, s%d" % (sG3, sG3, tb))
            A("s_and_b32 s%d, s%d, 7" % (sCG, sHP))
        else:
            A("s_add_u32 s%d, s%d, 1" % (ta, sB))
            A("s_and_b32 s%d, s%d, 15" % (ta, ta))
            A("s_lshl_b32 s%d, s%d, 1" % (sG3, ta))
            A("s_bfe_u32 s%d, s%d, 0x10002" % (tb, sHP))
            A("s_add_u32 s%d, s%d, s%d" % (sG3, sG3, tb))
            A("s_lshr_b32 s%d, s%d, 3" % (tb, sHP))
            A("s_lshl_b32 s%d, s%d, 2" % (tb, tb))
            A("s_and_b32 s%d, s%d, 3" % (sCG, sHP))
            A("s_add_u32 s%d, s%d, s%d" % (sCG, sCG, tb))
        A("v_lshrrev_b32 v%d, 3, v%d" % (t0, vL))
        A("v_and_b32 v%d, 3, v%d" % (t1, t0))
        A("v_lshrrev_b32 v%d, 2, v%d" % (t0, t0))
        A("v_lshl_add_u32 v%d, v%d, 3, v%d" % (t1, t0, t1))
        A("s_lshr_b32 s%d, s%d, 1" % (ta, sT))
        A("s_lshl_b32 s%d, s%d, 4" % (ta, ta))
        A("s_and_b32 s%d, s%d, 1" % (tb, sT))
        A("s_lshl_b32 s%d, s%d, 2" % (tb, tb))
        A("s_add_u32 s%d, s%d, s%d" % (ta, ta, tb))
        A("s_lshl_b32 s%d, s%d, 6" % (tb, sG3))
        A("s_add_u32 s%d, s%d, s%d" % (ta, ta, tb))
        if loader:
            A("s_add_u32 s%d, s%d, 32" % (ta, ta))
        A("v_add_u32 v%d, s%d, v%d" % (vTok, ta, t1))
        A("s_and_b32 s%d, s2, 7" % ta)
        A("s_lshr_b32 s%d, s2, 3" % tb)
        A("s_mul_i32 s%d, s%d, 11" % (sJ, ta))
        A("s_add_u32 s%d, s%d, s%d" % (sJ, sJ, tb))
        A("s_cmp_lt_u32 s%d, 11" % tb)
        A("s_cselect_b32 s%d, 1, 0" % sRole)
        A("s_cmp_lt_u32 s%d, 86" % sJ)
        A("s_cselect_b32 s%d, s%d, 0" % (sRole, sRole))
        A("s_sub_u32 s%d, s%d, 11" % (tb, tb))
        A("s_lshl_b32 s%d, s%d, 2" % (ta, ta))
        A("s_add_u32 s%d, s%d, s%d" % (ta, ta, tb))
        A("s_cmp_lt_u32 s%d, 4" % tb)
        A("s_cselect_b32 s%d, 2, s%d" % (sRole, sRole))
        A("s_cmp_lt_u32 s%d, 4" % tb)
        A("s_cselect_b32 s%d, s%d, s%d" % (sJ, ta, sJ))
        if not loader:
            A("v_bfe_u32 v%d, v%d, 2, 2" % (t2, vL))
            A("v_lshl_add_u32 v%d, v%d, 3, v%d" % (t2, vG, t2))
            A("v_mul_u32_u24 v%d, 192, v%d" % (t3, t2))
            A("v_bfe_u32 v%d, v%d, 4, 1" % (t2, vL))
            A("v_lshl_add_u32 v%d, v%d, 5, v%d" % (t3, t2, t3))
            A("v_and_b32 v%d, 1, v%d" % (t2, vL))
            A("v_lshl_add_u32 v%d, v%d, 4, v%d" % (t3, t2, t3))
            A("v_bfe_u32 v%d, v%d, 1, 1" % (t2, vL))
            A("v_lshl_add_u32 v%d, v%d, 3, v%d" % (t3, t2, t3))
            A("v_bfe_u32 v%d, v%d, 1, 3" % (t0, vKap))
            A("v_xor_b32 v%d, v%d, v%d" % (t0, t0, vG))
            A("v_lshlrev_b32 v%d, 4, v%d" % (t0, t0))
            A("s_lshl_b32 s%d, s%d, 12" % (ta, sT))
            A("v_lshl_add_u32 v%d, v%d, 7, s%d" % (t1, vKap, ta))
            for i in range(4):
                A("s_add_u32 s%d, s%d, %d" % (ta, sT, i))
                A("s_and_b32 s%d, s%d, 3" % (ta, ta))
                A("s_lshl_b32 s%d, s%d, 5" % (tb, ta))
                A("s_mul_i32 s%d, s%d, 3072" % (ta, ta))
                A("s_add_u32 s%d, s%d, %d" % (ta, ta, XS))
                A("v_xor_b32 v%d, s%d, v%d" % (t2, tb, t0))
                A("v_add_u32 v%d, v%d, v%d" % (vXa + i, t1, t2))
                A("v_add_u32 v%d, s%d, v%d" % (vWa + i, ta, t3))
                A("v_mov_b32 v%d, v%d" % (vXc + i, vXa + i))
                A("v_mov_b32 v%d, v%d" % (vWc + i, vWa + i))
            A("v_mov_b32 v%d, 0x3f803f80" % vOne2)
            A("v_mov_b32 v%d, 0x3f803f80" % (vOne2 + 1))
            for i in range(12):
                A("v_mov_b32 v%d, 0" % (vCq + i))
            A("s_lshl_b32 s%d, s%d, 2" % (ta, sT))
            A("s_add_u32 s%d, s%d, %d" % (ta, ta, L_CSP))
            A("v_lshl_add_u32 v%d, v%d, 4, s%d" % (vLSa, vN, ta))
            for i in range(48):
                A("v_mov_b32 v%d, 0" % (vAcV + i))
            for i in range(32):
                A("v_mov_b32 v%d, 0" % (vB + 32 + i))
            A("s_mov_b32 s%d, 0" % sRd)
            A("s_mov_b32 s%d, s%d" % (sTq, sT))
        else:
            A("s_lshl_b32 s%d, s%d, 2" % (ta, sWGL))
            A("s_add_u32 s%d, s%d, s%d" % (ta, ta, sT))
            A("s_lshl_b32 s%d, s%d, 6" % (ta, ta))
            A("v_lshl_add_u32 v%d, v%d, 4, s%d" % (vLSa, vG, ta))
            A("s_lshl_b32 s%d, s%d, 2" % (ta, sB))
            A("s_add_u32 s%d, s%d, s%d" % (ta, ta, sT))
            A("s_lshl_b32 s%d, s%d, 10" % (ta, ta))
            A("v_lshrrev_b32 v%d, 1, v%d" % (t0, vKap))
            A("v_lshl_add_u32 v%d, v%d, 6, s%d" % (vLSb, t0, ta))
            A("v_and_b32 v%d, 1, v%d" % (t0, vKap))
            A("v_lshl_add_u32 v%d, v%d, 4, v%d" % (vLSb, t0, vLSb))
            A("s_lshr_b32 s%d, s%d, 1" % (ta, sG3))
            A("s_lshl_b32 s%d, s%d, 12" % (ta, ta))
            A("v_and_b32 v%d, 15, v%d" % (t0, vL))
            A("v_lshl_add_u32 v%d, v%d, 8, s%d" % (vLSc, t0, ta))
            A("s_mov_b32 s%d, 0" % sPub)
            A("s_sub_u32 s%d, 3, s%d" % (sTq, sT))
            srd(sWS, pWS, WS_SIZE)
            srd(sGA, pDBG, 256)
        A("v_lshlrev_b32 v%d, 3, v%d" % (vIG, vG))
        A("v_sub_u32 v%d, v%d, v%d" % (vIG, vKap, vIG))
        A("v_mov_b32 v%d, %s" % (vU0, f32(-BIG)))
        A("v_mov_b32 v%d, 0" % vU1)
        build_mask(False)
        A("v_add_u32 v%d, %d, v%d" % (vKb, L_K + (1024 if loader else 0), vL16))
        A("v_add_u32 v%d, %d, v%d" % (vVb, L_V + (256 if loader else 0), vL16))
        for i in range(16):
            A("v_mov_b32 v%d, v%d" % (vVa + i, vOnes))
        for i in range(16):
            A("v_mov_b32 v%d, 0" % (vO + i))
        A("s_lshl_b32 s%d, s%d, 4" % (ta, sT))
        A("s_add_u32 s%d, s%d, %d" % (ta, ta, L_PAY))
        A("v_lshl_add_u32 v%d, v%d, 3, s%d" % (vU1, vG, ta))
        A("s_mov_b32 s%d, 0" % sS)

    setupL = cap(lambda: common_setup(True, sd, sb, sc))
    dmaL = cap(lambda: (dma_stage(), dma_stage()))
    nld = sum(1 for l in dmaL if "buffer_load" in l)
    per = (len(setupL) + nld - 1) // nld
    pos = 0
    for l in dmaL:
        A.L.append(l)
        if "buffer_load" in l:
            end = min(len(setupL), pos + per)
            while end < len(setupL) and (any(k in setupL[end - 1] for k in ("s_cmp", "v_cmp", "s_nop", "vcc_")) or "v_cndmask" in setupL[end]):
                end += 1
            A.L.extend(setupL[pos:end])
            pos = end
    A.L.extend(setupL[pos:])
    A("s_branch K_LOOP1")
    A.label("K_PRO_DONE")
    common_setup(False, sa, sb, sc)

    stamp(1)
    A("s_waitcnt vmcnt(0)")
    a0, b0, a1, b1 = vE, vE + 1, vE + 2, vE + 3
    for i in range(4):
        z = "0" if i == 0 else None
        A("v_dot2_f32_bf16 v%d, v%d, v%d, %s" % (a0, vRow + i, vOnes, z or "v%d" % a0))
        A("v_dot2_f32_bf16 v%d, v%d, v%d, %s" % (b0, vRow + i, vRow + i, z or "v%d" % b0))
        A("v_dot2_f32_bf16 v%d, v%d, v%d, %s" % (a1, vRow + 4 + i, vOnes, z or "v%d" % a1))
        A("v_dot2_f32_bf16 v%d, v%d, v%d, %s" % (b1, vRow + 4 + i, vRow + 4 + i, z or "v%d" % b1))
    A.nop(3)
    A("v_permlane32_swap_b32 v%d, v%d" % (a0, a1))
    A("v_permlane32_swap_b32 v%d, v%d" % (b0, b1))
    A.nop(1)
    A("v_add_f32 v%d, v%d, v%d" % (a0, a0, a1))
    A("v_add_f32 v%d, v%d, v%d" % (b0, b0, b1))
    A.nop(2)
    A("v_permlane16_swap_b32 v%d, v%d" % (a0, b0))
    A.nop(1)
    A("v_add_f32 v%d, v%d, v%d" % (a0, a0, b0))
    for dpp in ("quad_perm:[1,0,3,2]", "quad_perm:[2,3,0,1]", "row_half_mirror", "row_mirror"):
        A.nop(2)
        A("v_add_f32_dpp v%d, v%d, v%d %s row_mask:0xf bank_mask:0xf" % (a0, a0, a0, dpp))
    A("v_mov_b32 v%d, v%d" % (b0, a0))
    A.nop(2)
    A("v_permlane16_swap_b32 v%d, v%d" % (a0, b0))
    A.nop(1)
    ln_stats(a0, b0)
    A.nop(1)
    A("v_mov_b32 v%d, v%d" % (vRow, b0))
    A("v_mul_f32_e64 v%d, -v%d, v%d" % (vRow + 1, a0, b0))
    A("ds_write_b64 v%d, %s" % (vU1, vr(vRow, 2)))
    stamp(2)
    def rd_advance():
        A("s_add_u32 s%d, s%d, %d" % (sRd, sRd, SLOT))
        A("s_cmp_eq_u32 s%d, %d" % (sRd, NSL * SLOT))
        A("s_cselect_b32 s%d, 0, s%d" % (sRd, sRd))
        A("s_add_u32 s%d, s%d, 1" % (sS, sS))
    def rd0(k):
        B = vB + 16 * k
        A("ds_read_b128 %s, v%d" % (vr(B, 4), vXc + k))
        for seg in (1, 2, 0):
            for half in range(2):
                A("ds_read_b64_tr_b16 %s, v%d offset:%d" % (vr(B + 4 + 4 * seg + 2 * half, 2), vWc + k, 4 * half * 192 + seg * 64))
    def mm(k, which):
        B = vB + 16 * k
        X = vr(B, 4)
        if which == "K":
            A("%s %s, %s, %s, %s" % (MFMA, vr(vAc1, 16), vr(B + 8, 4), X, vr(vAc1, 16)))
        elif which == "V":
            A("%s %s, %s, %s, %s" % (MFMA, vr(vAcV, 16), X, vr(B + 12, 4), vr(vAcV, 16)))
        else:
            A("%s %s, %s, %s, %s" % (MFMA, vr(vAc0, 16), vr(B + 4, 4), X, vr(vAc0, 16)))
    def weave(fill, k):
        n = (len(fill) + 2) // 3
        for gi, w in enumerate("KVQ"):
            mm(k, w)
            A.L.extend(fill[gi * n:(gi + 1) * n])
    def adv(k):
        A("v_add_u32 v%d, s%d, v%d" % (vXc + k, sRd, vXa + k))
        A("v_add_u32 v%d, s%d, v%d" % (vWc + k, sRd, vWa + k))
    def cs4(h):
        for acc, off in ((vCq, 4), (vCk, 8), (vCv, 12)):
            A("%s %s, %s, %s, %s" % (MFMA4, vr(acc, 4), vr(vOne2, 2), vr(vB + off + 2 * h, 2), vr(acc, 4)))
    A("s_waitcnt lgkmcnt(0)")
    A.label("K_LOOP0")
    A("s_barrier")
    A("s_waitcnt lgkmcnt(7)")
    weave(cap(lambda: (rd0(0), rd_advance())), 2)
    A("s_waitcnt lgkmcnt(7)")
    weave(cap(lambda: (rd0(1), adv(0), adv(1))), 3)
    A("s_waitcnt lgkmcnt(7)")
    weave(cap(lambda: (rd0(2), rd0(3))), 0)
    cs4(0)
    cs4(1)
    A("s_waitcnt lgkmcnt(14)")
    mm(1, "K")
    adv(2)
    adv(3)
    mm(1, "V")
    A("s_cmp_lt_u32 s%d, 8" % sS)
    mm(1, "Q")
    A("s_cbranch_scc1 K_LOOP0")
    for acc in (vCq, vCk, vCv):
        A("v_mov_b32 v%d, v%d" % (acc + 1, acc))
    A("s_waitcnt lgkmcnt(0)")
    mm(2, "V")
    for acc in (vCq, vCk, vCv):
        A("v_permlane32_swap_b32 v%d, v%d" % (acc, acc + 1))
    for acc in (vCq, vCk, vCv):
        A("v_add_f32 v%d, v%d, v%d" % (acc, acc, acc + 1))
    for seg, acc in enumerate((vCq, vCk, vCv)):
        A("ds_write_b32 v%d, v%d offset:%d" % (vLSa, acc, seg * 512))
    mm(3, "V")
    A("s_waitcnt lgkmcnt(0)")
    A("s_barrier")
    mm(2, "K")
    A("s_lshl_b32 s%d, s%d, 7" % (sa, sT))
    A("s_add_u32 s%d, s%d, %d" % (sa, sa, L_STR))
    A("v_lshl_add_u32 v%d, v%d, 2, s%d" % (vU0, vKap, sa))
    A("v_lshlrev_b32 v%d, 4, v%d" % (vT1, vG))
    mm(3, "K")
    A("v_add_u32 v%d, %d, v%d" % (vT1, L_CS, vT1))
    A("s_lshl_b32 s%d, s%d, 12" % (sa, sT))
    A("s_add_u32 s%d, s%d, %d" % (sa, sa, L_VX))
    A("v_add_u32 v%d, s%d, v%d" % (vT0, sa, vL16))
    mm(2, "Q")
    A("v_mov_b32 v%d, %d" % (vU1, L_NON))
    for q in range(4):
        A("ds_write_b128 v%d, %s offset:%d" % (vT0, vr(vAcV + 4 * q, 4), q * 1024))
    mm(3, "Q")
    stamp(3)
    A("s_lshl_b32 s%d, s%d, 11" % (sa, sT))
    A("s_add_u32 s%d, s%d, %d" % (sb, sa, L_K + 8 * 2048))
    A("v_add_u32 v%d, s%d, v%d" % (vT0, sb, vL16))
    A("s_lshl_b32 s%d, s%d, 14" % (sd, sWGL))
    A("s_add_u32 s%d, s%d, s%d" % (sd, sd, sa))
    A("s_waitcnt lgkmcnt(0)")
    A("s_barrier")
    A("ds_read_b32 v%d, v%d" % (vT2, vU0))
    A("ds_read_b32 v%d, v%d offset:%d" % (vT3, vU0, L_STM - L_STR))
    for tile in (1, 0):
        for a in range(4):
            A("ds_read_b128 %s, v%d offset:%d" % (vr(vE + 16 * tile + 4 * a, 4), vT1, tile * 128 + a * 32))
    A("ds_read_b64 %s, v%d" % (vr(vNon, 2), vU1))
    A("s_waitcnt lgkmcnt(9)")
    for r in range(16):
        A("v_mul_f32 v%d, v%d, v%d" % (vAc1 + r, vAc1 + r, vT2))
    A("s_waitcnt lgkmcnt(5)")
    for r in range(16):
        A("v_fmac_f32 v%d, v%d, v%d" % (vAc1 + r, vE + 16 + r, vT3))
    def pack_store(acc, soff):
        for i in range(8):
            A("v_cvt_pk_bf16_f32 v%d, v%d, v%d" % (vPk + i, acc + 2 * i, acc + 2 * i + 1))
        A("buffer_store_dwordx4 %s, v%d, %s, s%d offen sc1" % (vr(vPk, 4), vL16, sr(sWS, 4), soff))
        A("buffer_store_dwordx4 %s, v%d, %s, s%d offen offset:1024 sc1" % (vr(vPk + 4, 4), vL16, sr(sWS, 4), soff))
        sumu(vGc, vPk, 8)
        A("ds_write_b128 v%d, %s" % (vT0, vr(vPk, 4)))
        A("ds_write_b128 v%d, %s offset:1024" % (vT0, vr(vPk + 4, 4)))
        wave_sumu(vGc, vGc + 1)
        A("s_lshl_b32 s%d, s%d, 3" % (sb, sWGL))
        A("s_add_u32 s%d, s%d, s%d" % (sb, sb, sWv))
        A("s_lshl_b32 s%d, s%d, 6" % (sb, sb))
        A("s_add_u32 s%d, s%d, 0x%x" % (sb, sb, WS_FKV))
        A("s_waitcnt lgkmcnt(2)")
        A("v_mov_b32 v%d, v%d" % (vGc + 2, vNon))
        A("v_mov_b32 v%d, v%d" % (vGc + 3, vNon + 1))
        A("s_mov_b64 exec, 1")
        A("buffer_store_dwordx4 %s, v%d, %s, s%d offen sc1" % (vr(vGc, 4), vL16, sr(sWS, 4), sb))
        A("s_mov_b64 exec, -1")
    pack_store(vAc1, sd)
    A("v_mul_f32 v%d, %s, v%d" % (vT2, f32(0.25 * LOG2E), vT2))
    A("v_mul_f32 v%d, %s, v%d" % (vT3, f32(0.25 * LOG2E), vT3))
    A("s_waitcnt lgkmcnt(2)")
    for r in range(8, 16):
        A("v_mul_f32 v%d, v%d, v%d" % (vAc0 + r, vAc0 + r, vT2))
        A("v_fmac_f32 v%d, v%d, v%d" % (vAc0 + r, vE + r, vT3))
    for i in range(4):
        A("v_cvt_pk_bf16_f32 v%d, v%d, v%d" % (vPk + 8 + i, vAc0 + 8 + 2 * i, vAc0 + 8 + 2 * i + 1))
    A("s_lshl_b32 s%d, s%d, 10" % (sa, sT))
    A("s_add_u32 s%d, s%d, %d" % (sa, sa, L_Q))
    A("v_add_u32 v%d, s%d, v%d" % (vT0, sa, vL16))
    A("ds_write_b128 v%d, %s" % (vT0, vr(vPk + 8, 4)))
    for r in range(8):
        A("v_mul_f32 v%d, v%d, v%d" % (vAc0 + r, vAc0 + r, vT2))
        A("v_fmac_f32 v%d, v%d, v%d" % (vAc0 + r, vE + r, vT3))
    for i in range(4):
        A("v_cvt_pk_bf16_f32 v%d, v%d, v%d" % (vQ + i, vAc0 + 2 * i, vAc0 + 2 * i + 1))
    A("s_branch K_PUB")

    A.label("K_LOOP1")
    A("v_mov_b32 v%d, 0" % vT0)
    A("buffer_load_dwordx2 %s, v%d, %s, 0 offen sc1" % (vr(vNon, 2), vT0, sr(sGA, 4)))
    stamp(2)
    def try_publish(lab, blocking=False):
        A.label(lab + "_r")
        A("s_cmp_lg_u32 s%d, 0" % sPub)
        A("s_cbranch_scc1 %s" % lab)
        if blocking:
            A("s_waitcnt vmcnt(0)")
        A("v_readfirstlane_b32 s%d, v%d" % (sPub, vNon + 1))
        A("ds_read_b64 %s, v%d" % (vr(vRow, 2), vU1))
        A("s_cmp_lg_u32 s%d, 0" % sPub)
        A("s_cbranch_scc1 %s_ok" % lab)
        A("buffer_load_dwordx2 %s, v%d, %s, 0 offen sc1" % (vr(vNon, 2), vT0, sr(sGA, 4)))
        if blocking:
            spin_tail(lab + "_r", sS)
        A("s_branch %s" % lab)
        A.label(lab + "_ok")
        A("v_mov_b32 v%d, v%d" % (vRow + 2, vNon))
        A("v_mov_b32 v%d, v%d" % (vRow + 3, vNon + 1))
        A("s_mov_b32 s%d, 0x%x" % (sb, WS_LS))
        A("s_mov_b32 exec_lo, 1")
        A("s_mov_b32 exec_hi, 1")
        A("s_waitcnt lgkmcnt(0)")
        A("buffer_store_dwordx4 %s, v%d, %s, s%d offen sc1" % (vr(vRow, 4), vLSa, sr(sWS, 4), sb))
        A("s_mov_b64 exec, -1")
        A.label(lab)
    A.label("K_LOOP1T")
    A("s_sub_u32 s%d, s%d, 3" % (sb, sS))
    A("s_cmp_lt_u32 s%d, 2" % sb)
    A("s_cbranch_scc1 K_L1_W8")
    A("s_waitcnt vmcnt(7)")
    A.label("K_L1_W8")
    A("s_waitcnt vmcnt(8)")
    if opt.get("p1st"):
        for k in range(0, 6, 2 if opt["p1st"] == 2 else 1):
            A("s_cmp_eq_u32 s%d, %d" % (sS, k))
            A("s_cbranch_scc0 K_DST%d" % k)
            stamp(4 + k)
            A.label("K_DST%d" % k)
    A("s_barrier")
    if opt.get("p1st") == 2:
        for k in range(0, 6, 2):
            A("s_cmp_eq_u32 s%d, %d" % (sS, k))
            A("s_cbranch_scc0 K_DSU%d" % k)
            stamp(5 + k)
            A.label("K_DSU%d" % k)
    dma_stage()
    A("s_cmp_lg_u32 s%d, 2" % sS)
    A("s_cbranch_scc1 K_L1_PUB")
    try_publish("K_L1_PUB")
    A("s_add_u32 s%d, s%d, 1" % (sS, sS))
    A("s_cmp_lt_u32 s%d, 6" % sS)
    A("s_cbranch_scc1 K_LOOP1T")
    A("s_waitcnt vmcnt(7)")
    if opt.get("p1st"): stamp(10)
    A("s_barrier")
    try_publish("K_L1_PUB2", blocking=True)
    A("s_mov_b32 s%d, 0x%x" % (sb, WS_LS))
    A("buffer_load_dwordx4 %s, v%d, %s, s%d offen sc1" % (vr(vRow + 4, 4), vLSb, sr(sWS, 4), sb))
    A("buffer_load_dwordx4 %s, v%d, %s, s%d offen sc1" % (vr(vGc, 4), vLSc, sr(sWS, 4), sb))
    A("s_lshl_b32 s%d, s%d, 7" % (sc, sT))
    A("s_add_u32 s%d, s%d, %d" % (sc, sc, L_STR))
    A("v_lshl_add_u32 v%d, v%d, 5, s%d" % (vT1, vG, sc))
    A("v_lshl_add_u32 v%d, v%d, 2, s%d" % (vU0, vKap, sc))
    A("v_mov_b32 v%d, %d" % (vT3, L_NON))
    A("ds_write_b64 v%d, %s" % (vT3, vr(vNon, 2)))
    A("s_lshl_b32 s%d, s%d, 12" % (sc, sT))
    A("s_add_u32 s%d, s%d, %d" % (sc, sc, L_VX))
    A("v_add_u32 v%d, s%d, v%d" % (vT3, sc, vL16))
    A("v_lshlrev_b32 v%d, 4, v%d" % (vT2, vN))
    A("v_add_u32 v%d, %d, v%d" % (vT2, L_CSP, vT2))
    A("s_mov_b32 s%d, 0" % sCnt)
    A("s_waitcnt vmcnt(2)")
    if opt.get("p1st"): stamp(11)
    A("s_barrier")
    if opt.get("p1st"): stamp(12)
    A.label("K_LS_CHK")
    A("s_waitcnt vmcnt(0)")
    A("v_cmp_eq_u64 vcc, %s, %s" % (vr(vRow + 6, 2), vr(vNon, 2)))
    A("v_cmp_eq_u64 s[68:69], %s, %s" % (vr(vGc + 2, 2), vr(vNon, 2)))
    A("s_and_b64 vcc, vcc, s[68:69]")
    A("s_cmp_eq_u64 vcc, exec")
    A("s_cbranch_scc1 K_LS_OK")
    A("buffer_load_dwordx4 %s, v%d, %s, s%d offen sc1" % (vr(vRow + 4, 4), vLSb, sr(sWS, 4), sb))
    A("buffer_load_dwordx4 %s, v%d, %s, s%d offen sc1" % (vr(vGc, 4), vLSc, sr(sWS, 4), sb))
    spin_tail("K_LS_CHK", sCnt)
    A.label("K_LS_OK")
    A("ds_write_b32 v%d, v%d" % (vU0, vRow + 4))
    A("ds_write_b32 v%d, v%d offset:%d" % (vU0, vRow + 5, L_STM - L_STR))
    A("s_waitcnt lgkmcnt(0)")
    for q in range(4):
        off = (q & 1) * 16 + (q >> 1) * 64
        A("ds_read_b128 %s, v%d offset:%d" % (vr(vE + 4 * q, 4), vT1, off))
        A("ds_read_b128 %s, v%d offset:%d" % (vr(vE + 16 + 4 * q, 4), vT1, off + L_STM - L_STR))
    if opt.get("p1st"): stamp(13)
    A("s_barrier")
    if opt.get("p1st"): stamp(14)
    for seg, acc in enumerate((vCq, vCk, vCv)):
        A("ds_read_b128 %s, v%d offset:%d" % (vr(acc, 4), vT2, seg * 512))
    A("v_lshlrev_b32 v%d, 2, v%d" % (vT2, vN))
    A("v_add_u32 v%d, %d, v%d" % (vT2, L_CS, vT2))
    A("s_lshl_b32 s%d, s%d, 11" % (sb, sT))
    A("s_add_u32 s%d, s%d, %d" % (sc, sb, L_V + 8 * 2048))
    A("v_add_u32 v%d, s%d, v%d" % (vT0, sc, vL16))
    A("s_lshl_b32 s%d, s%d, 14" % (sc, sWGL))
    A("s_add_u32 s%d, s%d, s%d" % (sc, sc, sb))
    A("s_add_u32 s%d, s%d, 8192" % (sc, sc))
    A("s_waitcnt lgkmcnt(0)")
    for acc in (vCq, vCk, vCv):
        A("v_add_f32 v%d, v%d, v%d" % (acc, acc, acc + 1))
        A("v_add_f32 v%d, v%d, v%d" % (acc + 2, acc + 2, acc + 3))
    for acc in (vCq, vCk, vCv):
        A("v_add_f32 v%d, v%d, v%d" % (acc, acc, acc + 2))
    A("ds_write_b32 v%d, v%d" % (vT2, vCq))
    A("ds_write_b32 v%d, v%d offset:128" % (vT2, vCk))
    stamp(3)
    for r in range(16):
        A("v_mul_f32 v%d, v%d, v%d" % (vE + 16 + r, vE + 16 + r, vCv))
    A("s_waitcnt lgkmcnt(0)")
    A("s_barrier")
    for q in range(4):
        A("ds_read_b128 %s, v%d offset:%d" % (vr(vAc0 + 4 * q, 4), vT3, q * 1024))
    for q in range(4):
        A("s_waitcnt lgkmcnt(%d)" % (3 - q))
        for r in range(4 * q, 4 * q + 4):
            A("v_fma_f32 v%d, v%d, v%d, v%d" % (vAc0 + r, vAc0 + r, vE + r, vE + 16 + r))
    pack_store(vAc0, sc)

    A.label("K_PUB")
    A("s_mov_b32 s%d, 0" % sWoN)
    A("s_mov_b32 s%d, 0x0000ffff" % sMaskV)
    A("s_mov_b32 s%d, 0x0000ffff" % (sMaskV + 1))
    A("v_mov_b32 v%d, %s" % (vMold, f32(-BIG)))
    A("s_lshl_b32 s%d, s%d, 10" % (sa, sTq))
    A("s_add_u32 s%d, s%d, %d" % (sa, sa, L_Q))
    A("v_add_u32 v%d, s%d, v%d" % (vT0, sa, vL16))
    A("s_waitcnt lgkmcnt(0)")
    A("s_barrier")
    if opt.get("p1st"):
        A("s_branch K_FIN")
    stamp(4)
    A("s_cmp_eq_u32 s%d, 0" % sC)
    A("s_cbranch_scc1 K_HAVEQ")
    A("ds_read_b128 %s, v%d" % (vr(vQ, 4), vT0))
    A.label("K_HAVEQ")
    A("s_cmp_ge_u32 s%d, 2" % sTq)
    A("s_cbranch_scc1 K_NOP0")
    A("s_setprio 2")
    A.label("K_NOP0")
    A("s_mov_b32 s%d, 0" % sChunk)
    A("s_mov_b32 s%d, 0" % sN1)
    A.label("K_CHUNK0")
    A("s_add_u32 s%d, s%d, 8" % (sa, sTq))
    A("s_mov_b32 s%d, 8" % sb)
    A("s_mov_b32 s%d, s%d" % (sN, sTq))
    A.label("K_CHUNK")
    A("s_lshl_b32 s%d, s%d, 11" % (sKm, sa))
    A("s_lshl_b32 s%d, s%d, 11" % (sKu, sb))
    A("v_add_u32 v%d, s%d, v%d" % (vKad, sKm, vKb))
    A("ds_read_b128 %s, v%d" % (vr(vKbf, 4), vKad))
    A("v_add_u32 v%d, s%d, v%d" % (vKad, sKu, vKb))
    A("ds_read_b128 %s, v%d" % (vr(vKa, 4), vKad))
    A("v_add_u32 v%d, s%d, v%d" % (vVad, sKm, vVb))
    A("s_mov_b64 exec, %s" % sr(sMaskV, 2))
    A("ds_read_b128 %s, v%d" % (vr(vVbf, 4), vVad))
    A("ds_read_b128 %s, v%d offset:1024" % (vr(vVbf + 4, 4), vVad))
    A("s_mov_b64 exec, -1")
    A("v_add_u32 v%d, s%d, v%d" % (vVad, sKu, vVb))
    A("v_mov_b32 v%d, v%d" % (vM, vMold))
    A("s_mov_b32 s%d, 0" % sI)
    A("s_waitcnt lgkmcnt(3)")
    A("%s %s, %s, %s, %s" % (MFMA, vr(vSb, 16), vr(vKbf, 4), vr(vQ, 4), vr(vCm, 16)))
    def wo_piece(lab, gate=False):
        if gate:
            A("s_cmp_lt_u32 s%d, %d" % (sI, opt.get("wost", 0)))
            A("s_cbranch_scc1 %s" % lab)
        A("s_cmp_eq_u32 s%d, 0" % sWoN)
        A("s_cbranch_scc1 %s" % lab)
        A("s_add_u32 s%d, s%d, s%d" % (sa, sWoL, sWoR))
        A("s_mov_b32 m0, s%d" % sa)
        A("s_lshl_b32 s%d, s%d, 3" % (sa, sWoR))
        A("s_add_u32 s%d, s%d, s%d" % (sa, sa, sWoG))
        A("buffer_load_dwordx4 v%d, %s, s%d offen lds" % (vWoA, sr(sW, 4), sa))
        A("s_add_u32 s%d, s%d, 2048" % (sWoR, sWoR))
        A("buffer_load_dwordx4 v%d, %s, s%d offen offset:1024 lds" % (vWoB, sr(sW, 4), sa))
        A("s_sub_u32 s%d, s%d, 1" % (sWoN, sWoN))
        A.label(lab)
    def max16(S):
        for i in range(8):
            A("v_max3_f32 v%d, v%d, v%d, v%d" % (vM, S + 2 * i, S + 2 * i + 1, vM))
    A.nop(6)
    A.label("K_P1")
    A("s_waitcnt lgkmcnt(0)")
    A("%s %s, %s, %s, 0" % (MFMA, vr(vSa, 16), vr(vKa, 4), vr(vQ, 4)))
    A("ds_read_b128 %s, v%d offset:2048" % (vr(vKbf, 4), vKad))
    A.nop(3)
    max16(vSb)
    A("s_cmp_ge_u32 s%d, s%d" % (sI, sN1))
    A("s_cbranch_scc1 K_P1_DONE")
    A("s_add_u32 s%d, s%d, 1" % (sI, sI))
    A("s_waitcnt lgkmcnt(0)")
    A("%s %s, %s, %s, 0" % (MFMA, vr(vSb, 16), vr(vKbf, 4), vr(vQ, 4)))
    A("v_add_u32 v%d, 4096, v%d" % (vKad, vKad))
    A("ds_read_b128 %s, v%d" % (vr(vKa, 4), vKad))
    max16(vSa)
    A("s_cmp_ge_u32 s%d, s%d" % (sI, sN1))
    A("s_cbranch_scc1 K_P1_DONE")
    A("s_add_u32 s%d, s%d, 1" % (sI, sI))
    A("s_branch K_P1")
    A.label("K_P1_DONE")
    A("v_mov_b32 v%d, v%d" % (vT0, vM))
    A("s_waitcnt lgkmcnt(0)")
    A("v_add_u32 v%d, s%d, v%d" % (vKad, sKm, vKb))
    A("ds_read_b128 %s, v%d" % (vr(vKbf, 4), vKad))
    A("v_permlane32_swap_b32 v%d, v%d" % (vM, vT0))
    A("v_add_u32 v%d, s%d, v%d" % (vKad, sKu, vKb))
    A("ds_read_b128 %s, v%d" % (vr(vKa, 4), vKad))
    A("v_max_f32 v%d, v%d, v%d" % (vM, vM, vT0))
    A("v_sub_f32 v%d, v%d, v%d" % (vT0, vMold, vM))
    A("v_exp_f32 v%d, v%d" % (vT0, vT0))
    A("v_mov_b32 v%d, v%d" % (vMold, vM))
    for r in range(16):
        A("v_sub_f32 v%d, v%d, v%d" % (vCm + r, vCm + r, vM))
    A("s_waitcnt lgkmcnt(1)")
    A("v_sub_f32 v%d, 0, v%d" % (vCn, vM))
    A("%s %s, %s, %s, %s" % (MFMA, vr(vSb, 16), vr(vKbf, 4), vr(vQ, 4), vr(vCm, 16)))
    for r in range(1, 16):
        A("v_mov_b32 v%d, v%d" % (vCn + r, vCn))
    for r in range(9):
        A("v_mul_f32 v%d, v%d, v%d" % (vO + r, vO + r, vT0))
    A("s_mov_b32 s%d, 0" % sI)
    def softmax_pv(S, V):
        for r in range(16):
            A("v_exp_f32 v%d, v%d" % (S + r, S + r))
            if r == 3 and opt.get("wost", 0):
                wo_piece("K_WOP%d" % S, True)
            if r == 11 and opt.get("wost", 0):
                wo_piece("K_WOQ%d" % S, True)
        for i in range(8):
            A("v_cvt_pk_bf16_f32 v%d, v%d, v%d" % (vP + i, S + 2 * i, S + 2 * i + 1))
        A.nop(1)
        A("%s %s, %s, %s, %s" % (MFMA, vr(vO, 16), vr(V, 4), vr(vP, 4), vr(vO, 16)))
        A("%s %s, %s, %s, %s" % (MFMA, vr(vO, 16), vr(V + 4, 4), vr(vP + 4, 4), vr(vO, 16)))
    A.label("K_P2")
    A("s_waitcnt lgkmcnt(0)")
    A("%s %s, %s, %s, %s" % (MFMA, vr(vSa, 16), vr(vKa, 4), vr(vQ, 4), vr(vCn, 16)))
    A("ds_read_b128 %s, v%d offset:2048" % (vr(vKbf, 4), vKad))
    A("s_mov_b64 exec, %s" % sr(sMaskV, 2))
    A("ds_read_b128 %s, v%d" % (vr(vVa, 4), vVad))
    A("ds_read_b128 %s, v%d offset:1024" % (vr(vVa + 4, 4), vVad))
    A("s_mov_b64 exec, -1")
    softmax_pv(vSb, vVbf)
    A("s_cmp_ge_u32 s%d, s%d" % (sI, sN))
    A("s_cbranch_scc1 K_P2_DONE")
    A("s_add_u32 s%d, s%d, 1" % (sI, sI))
    A("s_waitcnt lgkmcnt(0)")
    A("%s %s, %s, %s, %s" % (MFMA, vr(vSb, 16), vr(vKbf, 4), vr(vQ, 4), vr(vCn, 16)))
    A("v_add_u32 v%d, 4096, v%d" % (vKad, vKad))
    A("ds_read_b128 %s, v%d" % (vr(vKa, 4), vKad))
    A("s_mov_b64 exec, %s" % sr(sMaskV, 2))
    A("ds_read_b128 %s, v%d offset:2048" % (vr(vVbf, 4), vVad))
    A("ds_read_b128 %s, v%d offset:3072" % (vr(vVbf + 4, 4), vVad))
    A("s_mov_b64 exec, -1")
    A("v_add_u32 v%d, 4096, v%d" % (vVad, vVad))
    softmax_pv(vSa, vVa)
    A("s_cmp_ge_u32 s%d, s%d" % (sI, sN))
    A("s_cbranch_scc1 K_P2_DONE")
    A("s_add_u32 s%d, s%d, 1" % (sI, sI))
    A("s_branch K_P2")
    A.label("K_P2_DONE")
    A("s_waitcnt lgkmcnt(0)")
    A("s_cmp_eq_u32 s%d, 1" % sChunk)
    A("s_cbranch_scc1 K_ATT_CHECK")
    A("s_cmp_eq_u32 s%d, 2" % sChunk)
    A("s_cbranch_scc1 K_SLOW1")
    A("s_cmp_eq_u32 s%d, 3" % sChunk)
    A("s_cbranch_scc1 K_ATT_DONE")
    stamp(5)
    A("s_mov_b32 s%d, 0" % sFon)
    A("v_lshlrev_b32 v%d, 6, v%d" % (vKV + 36, vL))
    A("v_mov_b32 v%d, 0" % (vKV + 32))
    A("s_cmp_ge_u32 s%d, 2" % sTq)
    A("s_cbranch_scc1 K_FETCH_ISSUED")
    A("s_cmp_le_u32 s%d, s%d" % (sB, sTq))
    A("s_cbranch_scc1 K_FETCH_ISSUED")
    A("s_mov_b32 s%d, 1" % sFon)
    A("s_add_u32 s%d, s%d, 1" % (sa, sTq))
    A("s_lshl_b32 s%d, s%d, 4" % (sa, sa))
    A("s_sub_u32 s%d, s%d, s%d" % (sa, sWGL, sa))
    A("s_lshl_b32 s%d, s%d, 1" % (sa, sa))
    A("s_add_u32 s%d, s%d, s%d" % (sa, sa, sC))
    A("s_lshl_b32 s%d, s%d, 13" % (sFa, sa))
    A("s_lshl_b32 s%d, s%d, 8" % (sFg, sa))
    A("s_add_u32 s%d, s%d, 0x%x" % (sFg, sFg, WS_FKV))
    def kv_loads():
        A("s_add_u32 s%d, s%d, 4096" % (sb, sFa))
        for q in range(8):
            A("buffer_load_dwordx4 %s, v%d, %s, s%d offen offset:%d sc1" % (vr(vKV + 4 * q, 4), vL16, sr(sWS, 4), sFa if q < 4 else sb, (q & 3) * 1024))
        A("s_mov_b64 exec, 0xf")
        A("buffer_load_dwordx4 %s, v%d, %s, s%d offen sc1" % (vr(vKV + 32, 4), vKV + 36, sr(sWS, 4), sFg))
        A("s_mov_b64 exec, -1")
    kv_loads()
    A.label("K_FETCH_ISSUED")
    A("v_mov_b32 v%d, %s" % (vU0, f32(-BIG)))
    A("s_cmp_eq_u32 s%d, 1" % sB)
    A("s_cselect_b32 s%d, %s, 0" % (sCnt, f32(-BIG)))
    A("v_add_f32 v%d, s%d, v%d" % (vU1, sCnt, vCn))
    build_mask(True)
    srd(sGB, pWR, 1024)
    srd(sW, pWO, 0x80000)
    A("v_lshrrev_b32 v%d, 3, v%d" % (vT0, vL))
    A("v_bfe_u32 v%d, v%d, 4, 1" % (vT1, vL))
    A("v_lshlrev_b32 v%d, 2, v%d" % (vT1, vT1))
    A("v_and_b32 v%d, 7, v%d" % (vT2, vL))
    A("v_xor_b32 v%d, v%d, v%d" % (vT2, vT2, vT1))
    A("v_lshlrev_b32 v%d, 4, v%d" % (vT2, vT2))
    A("v_lshl_add_u32 v%d, v%d, 10, v%d" % (vWoA, vT0, vT2))
    A("v_add_u32 v%d, %d, v%d" % (vWoB, 8192 - 1024, vWoA))
    A("s_lshl_b32 s%d, s%d, 7" % (sd, sCG))
    A("s_lshl_b32 s%d, s%d, 1" % (sWoL, sC))
    A("s_add_u32 s%d, s%d, s%d" % (sWoL, sWoL, sTq))
    A("s_lshl_b32 s%d, s%d, 17" % (sWoG, sWoL))
    A("s_add_u32 s%d, s%d, s%d" % (sWoG, sWoG, sd))
    A("s_lshl_b32 s%d, s%d, 14" % (sWoL, sWoL))
    A("s_add_u32 s%d, s%d, %d" % (sWoL, sWoL, L_WO))
    A("s_mov_b32 s%d, 0" % sWoR)
    A("s_cmp_lt_u32 s%d, 2" % sTq)
    A("s_cselect_b32 s%d, 8, 0" % sWoN)
    def chunk1_params():
        A("s_add_u32 s%d, s%d, 1" % (sb, sTq))
        A("s_mov_b32 s%d, s%d" % (sa, sTq))
        A("s_cmp_eq_u32 s%d, 1" % sB)
        A("s_cselect_b32 s%d, 4, s%d" % (sb, sb))
        A("s_cselect_b32 s%d, 4, s%d" % (sa, sa))
        A("s_sub_u32 s%d, 8, s%d" % (sN, sb))
    chunk1_params()
    A("s_lshl_b32 s%d, s%d, 11" % (sa, sa))
    A("s_lshl_b32 s%d, s%d, 11" % (sb, sb))
    A("v_add_u32 v%d, s%d, v%d" % (vKV + 40, sa, vKb))
    A("v_add_u32 v%d, s%d, v%d" % (vKad, sb, vKb))
    A("v_add_u32 v%d, s%d, v%d" % (vKV + 41, sa, vVb))
    A("v_add_u32 v%d, s%d, v%d" % (vVad, sb, vVb))
    A("s_mov_b32 s%d, 0" % sI)
    A("s_mov_b32 s%d, 1" % sChunk)
    A("v_and_b32 v%d, 7, v%d" % (vKV + 42, vL))
    A("v_lshlrev_b32 v%d, 4, v%d" % (vKV + 42, vKV + 42))
    A("v_lshl_add_u32 v%d, v%d, 10, v%d" % (vKV + 43, vTok, vKV + 42))
    A("s_cmp_eq_u32 s%d, 0" % sFon)
    A("s_cbranch_scc1 K_B3")
    A("s_mul_i32 s68, s%d, %d" % (sC, L_V - L_K))
    A("s_lshl_b32 s69, s%d, 13" % sTq)
    A("s_sub_u32 s68, s68, s69")
    A("s_add_u32 s68, s68, %d" % (L_K + 8192))
    A("v_add_u32 v%d, s68, v%d" % (vT1, vL16))
    A("s_mov_b32 s%d, 0" % sCnt)
    A.label("K_KVCHK")
    A("s_waitcnt vmcnt(0)")
    A("v_cmp_eq_u64 vcc, %s, %s" % (vr(vKV + 34, 2), vr(vNon, 2)))
    A("s_and_b32 s68, vcc_lo, 0xf")
    A("s_cmp_eq_u32 s68, 0xf")
    A("s_cbranch_scc0 K_KVRETRY")
    for i in range(8):
        A("ds_write_b128 v%d, %s offset:%d" % (vT1, vr(vKV + 4 * i, 4), i * 1024))
    A("v_sub_u32 v%d, 0, v%d" % (vT0, vKV + 32))
    sumu(vT0, vKV, 32, init=vT0)
    wave_sumu(vT0, vT3)
    A.nop(1)
    A("v_readfirstlane_b32 s68, v%d" % vT0)
    A("s_cmp_eq_u32 s68, 0")
    A("s_cbranch_scc1 K_B3W")
    A("s_waitcnt lgkmcnt(0)")
    A.label("K_KVRETRY")
    kv_loads()
    spin_tail("K_KVCHK", sCnt)
    A.label("K_B3W")
    A("s_waitcnt lgkmcnt(0)")
    A.label("K_B3")
    A("s_barrier")
    stamp(6)
    A("ds_read_b128 %s, v%d" % (vr(vKbf, 4), vKV + 40))
    A("ds_read_b128 %s, v%d" % (vr(vKa, 4), vKad))
    A("s_mov_b64 exec, %s" % sr(sMaskV, 2))
    A("ds_read_b128 %s, v%d" % (vr(vVbf, 4), vKV + 41))
    A("ds_read_b128 %s, v%d offset:1024" % (vr(vVbf + 4, 4), vKV + 41))
    A("s_mov_b64 exec, -1")
    A("buffer_load_dwordx4 %s, v%d, %s, s%d offen" % (vr(vXr, 4), vKV + 43, sr(sX, 4), sd))
    A("buffer_load_dwordx4 %s, v%d, %s, s%d offen" % (vr(vWr, 4), vKV + 42, sr(sGB, 4), sd))
    A("buffer_load_dwordx4 %s, v%d, %s, 0 offen" % (vr(vWR4, 4), vL16, sr(sGB, 4)))
    A("s_waitcnt lgkmcnt(3)")
    A("%s %s, %s, %s, %s" % (MFMA, vr(vSb, 16), vr(vKbf, 4), vr(vQ, 4), vr(vCm, 16)))
    A("s_cmp_lt_u32 s%d, %d" % (sTq, 9 if opt.get("notouch") else 2))
    A("s_cbranch_scc1 K_TOUCHED")
    A("s_lshl_b32 s%d, s%d, 1" % (sc, sC))
    A("s_add_u32 s%d, s%d, s%d" % (sc, sc, sTq))
    A("s_and_b32 s%d, s2, 7" % sa)
    A("s_lshr_b32 s%d, s2, 3" % sb)
    A("s_mul_i32 s%d, s%d, 44032" % (sb, sb))
    A("s_cmp_eq_u32 s%d, 5" % sc)
    A("s_cbranch_scc0 K_TOUCH_F")
    A("v_lshlrev_b32 v%d, 7, v%d" % (vT0, vL))
    A("s_lshr_b32 s%d, s2, 3" % sb)
    A("s_lshl_b32 s%d, s%d, 14" % (sb, sb))
    A("buffer_load_dword v%d, v%d, %s, s%d offen" % (vU0, vT0, sr(sW, 4), sb))
    A("s_add_u32 s%d, s%d, 8192" % (sb, sb))
    A("buffer_load_dword v%d, v%d, %s, s%d offen" % (vU1, vT0, sr(sW, 4), sb))
    A("s_branch K_TOUCHED")
    A.label("K_TOUCH_F")
    A("s_cmp_eq_u32 s%d, 4" % sc)
    A("s_cbranch_scc1 K_TOUCH_D")
    A("s_cmp_eq_u32 s%d, 2" % sc)
    A("s_cselect_b32 s%d, s%d, s%d" % (sGA, pWG, pWU))
    A("s_cselect_b32 s%d, s%d, s%d" % (sGA + 1, pWG + 1, pWU + 1))
    A("s_mov_b32 s%d, %d" % (sGA + 2, 512 * 2752))
    A("s_mov_b32 s%d, 0x20000" % (sGA + 3))
    A("v_lshrrev_b32 v%d, 2, v%d" % (vT0, vL))
    A("v_mul_u32_u24 v%d, 2752, v%d" % (vT0, vT0))
    A("v_and_b32 v%d, 3, v%d" % (vT1, vL))
    if opt.get("t128", 1):
        A("v_lshlrev_b32 v%d, 7, v%d" % (vT1, vT1))
        A("v_min_u32 v%d, 348, v%d" % (vT1, vT1))
        A("v_add_u32 v%d, v%d, v%d" % (vT2, vT1, vT0))
    else:
        A("v_lshl_add_u32 v%d, v%d, 6, v%d" % (vT2, vT1, vT0))
        A("v_lshlrev_b32 v%d, 6, v%d" % (vT1, vT1))
        A("v_min_u32 v%d, 92, v%d" % (vT1, vT1))
        A("v_add_u32 v%d, v%d, v%d" % (vT3, vT1, vT0))
    A("s_mul_i32 s%d, s%d, 352" % (sa, sa))
    A("s_add_u32 s%d, s%d, s%d" % (sa, sa, sb))
    A("buffer_load_dword v%d, v%d, %s, s%d offen" % (vU0, vT2, sr(sGA, 4), sa))
    if not opt.get("t128", 1):
        A("buffer_load_dword v%d, v%d, %s, s%d offen offset:256" % (vU1, vT3, sr(sGA, 4), sa))
    A("s_branch K_TOUCHED")
    A.label("K_TOUCH_D")
    srd(sGA, pWD, 1376 * 1024)
    A("v_min_u32 v%d, 42, v%d" % (vT0, vL))
    A("v_lshlrev_b32 v%d, 10, v%d" % (vT0, vT0))
    A("s_lshl_b32 s%d, s%d, 7" % (sa, sa))
    A("s_add_u32 s%d, s%d, s%d" % (sa, sa, sb))
    A("buffer_load_dword v%d, v%d, %s, s%d offen" % (vU0, vT0, sr(sGA, 4), sa))
    if not opt.get("t128", 1):
        A("buffer_load_dword v%d, v%d, %s, s%d offen offset:64" % (vU1, vT0, sr(sGA, 4), sa))
    A.label("K_TOUCHED")
    A("s_cmp_eq_u32 s%d, 0" % sB)
    A("s_cbranch_scc1 K_ATT_CHECK")
    A.nop(1)
    A("s_branch K_P2")
    A.label("K_SLOW1")
    A("s_cmp_eq_u32 s%d, 0" % sB)
    A("s_cbranch_scc1 K_ATT_DONE")
    A("v_mov_b32 v%d, %s" % (vU0, f32(-BIG)))
    A("s_cmp_eq_u32 s%d, 1" % sB)
    A("s_cselect_b32 s%d, %s, 0" % (sCnt, f32(-BIG)))
    A("v_mov_b32 v%d, s%d" % (vU1, sCnt))
    build_mask(True)
    A("s_mov_b32 s%d, 3" % sChunk)
    chunk1_params()
    A("s_mov_b32 s%d, s%d" % (sN1, sN))
    A("s_branch K_CHUNK")
    A.label("K_ATT_CHECK")
    A("s_waitcnt lgkmcnt(0)")
    A.nop(10)
    A("v_cmp_gt_f32 vcc, %s, v%d" % (f32(2.0 ** 60), vO + 8))
    A("s_cmp_eq_u64 vcc, exec")
    A("s_cbranch_scc%d K_ATT_DONE" % (0 if opt.get("forceslow") else 1))
    A("s_waitcnt vmcnt(0)")
    A("v_mov_b32 v%d, %s" % (vU0, f32(-BIG)))
    A("v_mov_b32 v%d, 0" % vU1)
    build_mask(False)
    for i in range(16):
        A("v_mov_b32 v%d, 0" % (vO + i))
    A("v_mov_b32 v%d, %s" % (vMold, f32(-BIG)))
    A("s_mov_b32 s%d, 2" % sChunk)
    A("s_mov_b32 s%d, s%d" % (sN1, sTq))
    A("s_branch K_CHUNK0")
    A.label("K_ATT_DONE")
    stamp(7)
    A("s_lshl_b32 s%d, s%d, 2" % (sa, sB))
    A("s_add_u32 s%d, s%d, s%d" % (sa, sa, sTq))
    A("s_lshl_b32 s%d, s%d, 5" % (sa, sa))
    A("s_lshl_b32 s%d, s%d, 1" % (sb, sHP))
    A("s_add_u32 s%d, s%d, s%d" % (sa, sa, sb))
    A("s_add_u32 s%d, s%d, s%d" % (sa, sa, sC))
    A("s_lshl_b32 s%d, s%d, 10" % (sb, sa))
    A("s_add_u32 s%d, s%d, 0x%x" % (sb, sb, WS_O))
    A("s_lshl_b32 s%d, s%d, 6" % (sa, sa))
    A("s_add_u32 s%d, s%d, 0x%x" % (sa, sa, WS_FO))
    A.nop(2)
    A("v_rcp_f32 v%d, v%d" % (vT0, vO + 8))
    A.nop(1)
    for r in range(8):
        A("v_mul_f32 v%d, v%d, v%d" % (vO + r, vO + r, vT0))
    for i in range(4):
        A("v_cvt_pk_bf16_f32 v%d, v%d, v%d" % (vP + i, vO + 2 * i, vO + 2 * i + 1))
    A("buffer_store_dwordx4 %s, v%d, %s, s%d offen sc1" % (vr(vP, 4), vL16, sr(sWS, 4), sb))
    sumu(vP + 4, vP, 4)
    wave_sumu(vP + 4, vP + 5)
    A("v_mov_b32 v%d, v%d" % (vP + 6, vNon))
    A("v_mov_b32 v%d, v%d" % (vP + 7, vNon + 1))
    A("s_mov_b64 exec, 1")
    A("buffer_store_dwordx4 %s, v%d, %s, s%d offen sc1" % (vr(vP + 4, 4), vL16, sr(sWS, 4), sa))
    A("s_mov_b64 exec, -1")
    A("s_setprio 0")
    stamp(8)
    A("s_cmp_eq_u32 s%d, 0" % sWoN)
    A("s_cbranch_scc1 K_WOW1")
    A.label("K_WOREST")
    wo_piece("K_WODONE")
    A("s_cmp_lg_u32 s%d, 0" % sWoN)
    A("s_cbranch_scc1 K_WOREST")
    A("s_waitcnt vmcnt(0)")
    A.label("K_WOW1")
    A("s_barrier")
    A("s_lshl_b32 s%d, s%d, 1" % (sa, sG3))
    A("s_add_u32 s%d, s%d, s%d" % (sa, sa, sC))
    A("s_lshl_b32 s%d, s%d, 2" % (sa, sa))
    A("s_add_u32 s%d, s%d, s%d" % (sa, sa, sT))
    A("s_lshl_b32 s%d, s%d, 9" % (sd, sa))
    A("s_add_u32 s%d, s%d, 0x%x" % (sd, sd, WS_FO))
    A("s_lshl_b32 s%d, s%d, 13" % (sa, sa))
    A("s_add_u32 s%d, s%d, 0x%x" % (sa, sa, WS_O))
    A("s_add_u32 s%d, s%d, 4096" % (sb, sa))
    A("v_lshlrev_b32 v%d, 6, v%d" % (vT0, vL))
    A("v_mov_b32 v%d, 0" % vOG)
    A("s_mov_b64 exec, 0xff")
    A("buffer_load_dwordx4 %s, v%d, %s, s%d offen sc1" % (vr(vOG, 4), vT0, sr(sWS, 4), sd))
    A("s_mov_b64 exec, -1")
    A("v_bfe_u32 v%d, v%d, 2, 2" % (vT1, vL))
    A("v_lshl_add_u32 v%d, v%d, 3, v%d" % (vT2, vG, vT1))
    A("s_lshl_b32 s%d, s%d, 14" % (sc, sT))
    A("s_add_u32 s%d, s%d, %d" % (sc, sc, L_WO))
    A("v_lshl_add_u32 v%d, v%d, 7, s%d" % (vWOa, vT2, sc))
    A("v_lshrrev_b32 v%d, 1, v%d" % (vT1, vT1))
    A("v_lshl_add_u32 v%d, v%d, 6, v%d" % (vWOa, vT1, vWOa))
    A("v_bfe_u32 v%d, v%d, 4, 1" % (vT1, vL))
    A("v_lshl_add_u32 v%d, v%d, 5, v%d" % (vWOa, vT1, vWOa))
    A("v_and_b32 v%d, 3, v%d" % (vT1, vL))
    A("v_lshl_add_u32 v%d, v%d, 3, v%d" % (vWOa, vT1, vWOa))
    A("v_xor_b32 v%d, 64, v%d" % (vWOa + 1, vWOa))
    for s in range(8):
        for C in range(2):
            for half in range(2):
                A("ds_read_b64_tr_b16 %s, v%d offset:%d" % (vr(vAW + (s * 2 + C) * 4 + 2 * half, 2), vWOa + C, (16 * s + 4 * half) * 128))
    A("v_and_b32 v%d, 15, v%d" % (vT2, vN))
    A("v_xor_b32 v%d, v%d, v%d" % (vT2, vT2, vG))
    A("v_lshlrev_b32 v%d, 4, v%d" % (vT2, vT2))
    A("s_lshl_b32 s%d, s%d, 13" % (sc, sWv))
    A("s_add_u32 s%d, s%d, %d" % (sc, sc, L_RED))
    A("v_lshl_add_u32 v%d, v%d, 8, s%d" % (vT1, vN, sc))
    for u in range(8):
        A("v_xor_b32 v%d, %d, v%d" % (vRa + u, (2 * u) << 4, vT2))
        A("v_add_u32 v%d, v%d, v%d" % (vRa + u, vRa + u, vT1))
    A("v_lshrrev_b32 v%d, 3, v%d" % (vT3, vL))
    A("s_lshl_b32 s%d, s%d, 3" % (sc, sT))
    A("v_add_u32 v%d, s%d, v%d" % (vT3, sc, vT3))
    A("v_and_b32 v%d, 7, v%d" % (vT1, vL))
    A("v_lshlrev_b32 v%d, 1, v%d" % (vT1, vT1))
    A("v_and_b32 v%d, 15, v%d" % (vT2, vT3))
    A("v_xor_b32 v%d, v%d, v%d" % (vT1, vT1, vT2))
    A("v_lshlrev_b32 v%d, 4, v%d" % (vT1, vT1))
    A("s_lshl_b32 s%d, s%d, 15" % (sc, sC))
    A("s_add_u32 s%d, s%d, %d" % (sc, sc, L_RED))
    A("v_lshl_add_u32 v%d, v%d, 8, s%d" % (vT3, vT3, sc))
    A("v_add_u32 v%d, v%d, v%d" % (vT2, vT3, vT1))
    A("v_xor_b32 v%d, 16, v%d" % (vT1, vT1))
    A("v_add_u32 v%d, v%d, v%d" % (vT3, vT3, vT1))
    A("s_mov_b32 s%d, 0" % sCnt)
    A("s_mov_b64 exec, 0xff")
    A.label("K_POLLO")
    A("s_waitcnt vmcnt(0)")
    A("v_cmp_eq_u64 vcc, %s, %s" % (vr(vOG + 2, 2), vr(vNon, 2)))
    A("s_cmp_eq_u64 vcc, exec")
    A("s_cbranch_scc1 K_POLLO_OK")
    A("buffer_load_dwordx4 %s, v%d, %s, s%d offen sc1" % (vr(vOG, 4), vT0, sr(sWS, 4), sd))
    spin_tail("K_POLLO", sCnt)
    A.label("K_POLLO_OK")
    A("s_mov_b64 exec, -1")
    stamp(9)
    A.label("K_OLOAD")
    for s in range(8):
        A("buffer_load_dwordx4 %s, v%d, %s, s%d offen offset:%d sc1" % (vr(vOF + 4 * s, 4), vL16, sr(sWS, 4), sa if s < 4 else sb, (s & 3) * 1024))
    A("v_sub_u32 v%d, 0, v%d" % (vChk, vOG))
    A("s_waitcnt lgkmcnt(0)")
    for s in range(8):
        A("s_waitcnt vmcnt(%d)" % (7 - s))
        A("%s %s, %s, %s, %s" % (MFMA, vr(vH0, 16), vr(vAW + (s * 2) * 4, 4), vr(vOF + 4 * s, 4), "0" if s == 0 else vr(vH0, 16)))
        A("v_add3_u32 v%d, v%d, v%d, v%d" % (vChk, vOF + 4 * s, vOF + 4 * s + 1, vChk))
        A("%s %s, %s, %s, %s" % (MFMA, vr(vH1, 16), vr(vAW + (s * 2 + 1) * 4, 4), vr(vOF + 4 * s, 4), "0" if s == 0 else vr(vH1, 16)))
        A("v_add3_u32 v%d, v%d, v%d, v%d" % (vChk, vOF + 4 * s + 2, vOF + 4 * s + 3, vChk))
    wave_sumu(vChk, vT1)
    A.nop(1)
    A("v_readfirstlane_b32 s68, v%d" % vChk)
    A("s_cmp_eq_u32 s68, 0")
    A("s_cbranch_scc1 K_OOK")
    spin_tail("K_OLOAD", sCnt)
    A.label("K_OOK")
    A("s_barrier")
    stamp(10)
    A("v_and_b32 v%d, 7, v%d" % (vT0, vL))
    A("v_lshlrev_b32 v%d, 4, v%d" % (vT1, vT0))
    A("v_lshl_add_u32 v%d, v%d, 10, v%d" % (vT1, vTok, vT1))
    A("s_lshl_b32 s%d, s%d, 7" % (sd, sCG))
    A("s_add_u32 s%d, s%d, 0x%x" % (sa, sd, WS_H))
    A.nop(2)
    for u in range(8):
        A("ds_write_b128 v%d, %s" % (vRa + u, vr(vH0 + 4 * u, 4)))
    A("v_lshrrev_b32 v%d, 3, v%d" % (vPa, vL))
    A("v_lshlrev_b32 v%d, 4, v%d" % (vChk, vPa))
    A("v_lshl_add_u32 v%d, v%d, 10, v%d" % (vPa, vT0, vChk))
    A("s_lshl_b32 s%d, s%d, 13" % (sb, sG3))
    A("s_lshl_b32 s%d, s%d, 7" % (sc, sWv))
    A("s_add_u32 s%d, s%d, s%d" % (sb, sb, sc))
    A("s_add_u32 s%d, s%d, 0x%x" % (sb, sb, WS_P))
    A("s_lshl_b32 s%d, s%d, 10" % (sc, sCG))
    A("s_add_u32 s%d, s%d, s%d" % (sc, sc, sb))
    A("s_waitcnt lgkmcnt(0)")
    A("s_barrier")
    for q in range(4):
        A("ds_read_b128 %s, v%d offset:%d" % (vr(vOF + 8 * q, 4), vT2, q * 8192))
        A("ds_read_b128 %s, v%d offset:%d" % (vr(vOF + 8 * q + 4, 4), vT3, q * 8192))
    for i in range(4):
        A("v_lshlrev_b32 v%d, 16, v%d" % (vH0 + 2 * i, vXr + i))
        A("v_and_b32 v%d, 0xffff0000, v%d" % (vH0 + 2 * i + 1, vXr + i))
    A("s_waitcnt lgkmcnt(0)")
    for i in range(8):
        A("v_add_f32 v%d, v%d, v%d" % (vOF + i, vOF + i, vOF + 8 + i))
        A("v_add_f32 v%d, v%d, v%d" % (vOF + 16 + i, vOF + 16 + i, vOF + 24 + i))
    for i in range(8):
        A("v_add_f32 v%d, v%d, v%d" % (vOF + i, vOF + i, vOF + 16 + i))
    for i in range(4):
        A("v_cvt_pk_bf16_f32 v%d, v%d, v%d" % (vOF + 8 + i, vOF + 2 * i, vOF + 2 * i + 1))
    for i in range(4):
        A("v_lshlrev_b32 v%d, 16, v%d" % (vOF + 2 * i, vOF + 8 + i))
        A("v_and_b32 v%d, 0xffff0000, v%d" % (vOF + 2 * i + 1, vOF + 8 + i))
    for i in range(8):
        A("v_add_f32 v%d, v%d, v%d" % (vOF + i, vOF + i, vH0 + i))
    for i in range(4):
        A("v_cvt_pk_bf16_f32 v%d, v%d, v%d" % (vHp + i, vOF + 2 * i, vOF + 2 * i + 1))
    s1, s2, s3 = vOF + 16, vOF + 17, vOF + 18
    for i in range(4):
        for (acc, other) in ((s1, None), (s2, "self"), (s3, "w")):
            o = vOnes if other is None else (vHp + i if other == "self" else vWr + i)
            A("v_dot2_f32_bf16 v%d, v%d, v%d, %s" % (acc, vHp + i, o, "0" if i == 0 else "v%d" % acc))
    sumu(s3 + 1, vHp, 4)
    A("buffer_store_dwordx4 %s, v%d, %s, s%d offen sc1" % (vr(vHp, 4), vT1, sr(sWS, 4), sa))
    def red8(regs):
        for dpp in ("quad_perm:[1,0,3,2]", "quad_perm:[2,3,0,1]", "row_half_mirror"):
            for acc in regs:
                A("v_add_f32_dpp v%d, v%d, v%d %s row_mask:0xf bank_mask:0xf" % (acc, acc, acc, dpp))
    for dpp in ("quad_perm:[1,0,3,2]", "quad_perm:[2,3,0,1]", "row_half_mirror"):
        for acc in (s1, s2, s3):
            A("v_add_f32_dpp v%d, v%d, v%d %s row_mask:0xf bank_mask:0xf" % (acc, acc, acc, dpp))
        A("v_add_u32_dpp v%d, v%d, v%d %s row_mask:0xf bank_mask:0xf" % (s3 + 1, s3 + 1, s3 + 1, dpp))
    for acc in (s1, s2, s3, s3 + 1):
        A("v_min_u32 v%d, -2, v%d" % (acc, acc))
    A("s_mov_b32 exec_lo, 0x01010101")
    A("s_mov_b32 exec_hi, 0x01010101")
    A("s_add_u32 s68, s%d, 0x%x" % (sc, WS_P2 - WS_P))
    A("buffer_store_dwordx4 %s, v%d, %s, s68 offen" % (vr(s1, 4), vChk, sr(sWS, 4)))
    A("buffer_store_dwordx4 %s, v%d, %s, s%d offen sc1" % (vr(s1, 4), vChk, sr(sWS, 4), sc))
    A("s_mov_b64 exec, -1")
    A("s_add_u32 s%d, s%d, 0x%x" % (sc, sb, WS_P2 - WS_P))
    for i in range(3):
        A("v_mov_b32 v%d, v%d" % (vS + i, s1 + i))
    A("s_lshl_b32 s%d, 0x01010101, s%d" % (sMaskV, sCG))
    A("s_not_b32 s%d, s%d" % (sMaskV, sMaskV))
    A("s_mov_b32 s%d, s%d" % (sMaskV + 1, sMaskV))
    stamp(11)
    srd(sW, pOUT, 0x200000)
    for i in range(4):
        A("v_dot2_f32_bf16 v%d, v%d, v%d, %s" % (vW1, vWR4 + i, vOnes, "0" if i == 0 else "v%d" % vW1))
    A.nop(3)
    for dpp in ("quad_perm:[1,0,3,2]", "quad_perm:[2,3,0,1]", "row_half_mirror", "row_mirror"):
        A("v_add_f32_dpp v%d, v%d, v%d %s row_mask:0xf bank_mask:0xf" % (vW1, vW1, vW1, dpp))
        A.nop(2)
    for sw in ("v_permlane16_swap_b32", "v_permlane32_swap_b32"):
        A("v_mov_b32 v%d, v%d" % (vT0, vW1))
        A.nop(2)
        A("%s v%d, v%d" % (sw, vW1, vT0))
        A.nop(1)
        A("v_add_f32 v%d, v%d, v%d" % (vW1, vW1, vT0))
    A("s_cmp_eq_u32 s%d, 0" % sRole)
    A("s_cbranch_scc1 K_NOFA")
    for i in range(24):
        A("v_mov_b32 v%d, v%d" % (vBF + i, vOnes))
    A.label("K_NOFA")
    for i in range(4):
        A("v_lshlrev_b32 v%d, 16, v%d" % (vX + 2 * i, vHp + i))
        A("v_and_b32 v%d, 0xffff0000, v%d" % (vX + 2 * i + 1, vHp + i))
    A("v_sub_u32 v%d, 2047, v%d" % (vT0, vTok))
    A("s_lshl_b32 s68, s%d, 3" % sWv)
    A("s_add_u32 s68, s68, %d" % L_TOP)
    A("v_mov_b32 v%d, s68" % vT3)
    A("s_mov_b32 s%d, 0xfffff800" % sI2)
    A("v_mov_b32 v%d, 0" % vK2)
    A("s_mov_b32 s%d, 0" % sCnt)
    A("s_mov_b64 exec, %s" % sr(sMaskV, 2))
    A.label("K_POLL1")
    A("s_and_b32 s68, s%d, 3" % sCnt)
    A("s_cmp_eq_u32 s68, 3")
    A("s_cselect_b32 s68, s%d, s%d" % (sb, sc))
    A("buffer_load_dwordx4 %s, v%d, %s, s68 offen sc1" % (vr(vS, 4), vPa, sr(sWS, 4)))
    A("s_waitcnt vmcnt(0)")
    maxu(vT2, vS, 4)
    A("v_cmp_eq_u32 vcc, -1, v%d" % vT2)
    A("s_cmp_eq_u64 vcc, 0")
    A("s_cbranch_scc1 K_POLL1_OK")
    A("s_mov_b64 exec, vcc")
    spin_tail("K_POLL1", sCnt)
    A.label("K_POLL1_OK")
    A("s_mov_b64 exec, -1")
    stamp(12)
    red8((vS, vS + 1, vS + 2))
    ln_stats(vS, vS + 1)
    A("v_fma_f32 v%d, -v%d, v%d, v%d" % (vS + 2, vS, vW1, vS + 2))
    A("v_mul_f32 v%d, v%d, v%d" % (vS + 2, vS + 2, vS + 1))
    A("v_ashrrev_i32 v%d, 31, v%d" % (vK1, vS + 2))
    A("v_or_b32 v%d, 0x80000000, v%d" % (vK1, vK1))
    A("v_xor_b32 v%d, v%d, v%d" % (vK1, vK1, vS + 2))
    A("v_and_or_b32 v%d, v%d, s%d, v%d" % (vK1, vK1, sI2, vT0))
    def merge(p1=vP1, p2=vP2):
        A("v_max_u32 v%d, v%d, v%d" % (vK2, vK2, p2))
        A("v_med3_u32 v%d, v%d, v%d, v%d" % (vK2, vK1, p1, vK2))
        A("v_max_u32 v%d, v%d, v%d" % (vK1, vK1, p1))
    def merge_dpp(dpp):
        A.nop(2)
        A("v_mov_b32_dpp v%d, v%d %s row_mask:0xf bank_mask:0xf" % (vP1, vK1, dpp))
        A("v_mov_b32_dpp v%d, v%d %s row_mask:0xf bank_mask:0xf" % (vP2, vK2, dpp))
        merge()
    def merge_swap(sw):
        A("v_mov_b32 v%d, v%d" % (vP1, vK1))
        A("v_mov_b32 v%d, v%d" % (vP2, vK2))
        A.nop(2)
        A("%s v%d, v%d" % (sw, vK1, vP1))
        A("%s v%d, v%d" % (sw, vK2, vP2))
        A.nop(1)
        merge()
    merge_dpp("row_ror:8")
    merge_swap("v_permlane16_swap_b32")
    merge_swap("v_permlane32_swap_b32")
    A("ds_write_b64 v%d, %s" % (vT3, vr(vK1, 2)))
    A("s_waitcnt lgkmcnt(0)")
    A("s_barrier")
    A("s_cmp_eq_u32 s%d, 0" % sWv)
    A("s_cbranch_scc1 K_W0")
    A("s_cmp_eq_u32 s%d, 0" % sC)
    A("s_cbranch_scc1 K_STG_DONE")
    A("s_cmp_eq_u32 s%d, 0" % sRole)
    A("s_cbranch_scc1 K_STG_DONE")
    A("s_mov_b32 s%d, s%d" % (sc, sT))
    A("v_lshrrev_b32 v%d, 1, v%d" % (vT0, vL))
    A("v_and_b32 v%d, 1, v%d" % (vT2, vL))
    A("v_lshlrev_b32 v%d, 4, v%d" % (vT2, vT2))
    A("s_lshl_b32 s%d, s%d, 5" % (sa, sJ))
    A("s_cmp_eq_u32 s%d, 1" % sRole)
    A("s_cbranch_scc0 K_FFN_D")
    srd(sGA, pWG, 512 * 2752)
    srd(sGB, pWU, 512 * 2752)
    A("v_mul_u32_u24 v%d, 2752, v%d" % (vT0, vT0))
    A("v_add_u32 v%d, v%d, v%d" % (vT0, vT0, vT2))
    A("s_mul_i32 s%d, s%d, %d" % (sb, sc, 128 * 2752))
    A("s_add_u32 s%d, s%d, s%d" % (sa, sa, sb))
    A("s_lshl_b32 s%d, s%d, 12" % (sb, sc))
    for q in range(4):
        A("s_add_u32 s%d, s%d, %d" % (sc, sb, L_F + q * 1024))
        A("s_mov_b32 m0, s%d" % sc)
        A("s_add_u32 s%d, s%d, %d" % (sc, sb, L_FU + q * 1024))
        A("buffer_load_dwordx4 v%d, %s, s%d offen lds" % (vT0, sr(sGA, 4), sa))
        A("s_mov_b32 m0, s%d" % sc)
        A("s_nop 0")
        A("buffer_load_dwordx4 v%d, %s, s%d offen lds" % (vT0, sr(sGB, 4), sa))
        A("s_add_u32 s%d, s%d, %d" % (sa, sa, 32 * 2752))
    A("s_branch K_STG_DONE")
    A.label("K_FFN_D")
    srd(sGA, pWD, 1376 * 1024)
    A("v_lshl_add_u32 v%d, v%d, 10, v%d" % (vT0, vT0, vT2))
    A("s_lshl_b32 s%d, s%d, 15" % (sb, sc))
    A("s_add_u32 s%d, s%d, s%d" % (sa, sa, sb))
    A("s_lshl_b32 s%d, s%d, 10" % (sb, sc))
    A("s_add_u32 s%d, s%d, %d" % (sb, sb, L_F))
    A.label("K_FFN_DL")
    A("s_mov_b32 m0, s%d" % sb)
    A("s_add_u32 s%d, s%d, 4096" % (sb, sb))
    A("buffer_load_dwordx4 v%d, %s, s%d offen lds" % (vT0, sr(sGA, 4), sa))
    A("s_add_u32 s%d, s%d, 0x20000" % (sa, sa))
    A("s_cmp_lt_u32 s%d, %d" % (sb, L_F + 43 * 1024))
    A("s_cbranch_scc1 K_FFN_DL")
    A.label("K_STG_DONE")
    A("s_waitcnt vmcnt(0)")
    A("s_branch K_L2WAIT")
    A.label("K_W0")
    A("v_and_b32 v%d, 7, v%d" % (vT2, vL))
    A("v_lshlrev_b32 v%d, 3, v%d" % (vT2, vT2))
    A("v_add_u32 v%d, %d, v%d" % (vT2, L_TOP, vT2))
    A("ds_read_b64 %s, v%d" % (vr(vK1, 2), vT2))
    A("v_lshlrev_b32 v%d, 6, v%d" % (vT2, vN))
    A("s_mov_b32 s%d, 0x%x" % (sa, WS_E))
    A("s_lshl_b32 s%d, s%d, 6" % (sc, sG3))
    A("s_add_u32 s%d, s%d, s%d" % (sc, sc, sa))
    A("s_and_b32 s68, s%d, 7" % sG3)
    A("s_cmp_eq_u32 s68, s%d" % sCG)
    A("s_cbranch_scc0 K_NOPUB2")
    A("s_waitcnt lgkmcnt(0)")
    for dpp in ("quad_perm:[1,0,3,2]", "quad_perm:[2,3,0,1]", "row_half_mirror"):
        merge_dpp(dpp)
    A("v_mov_b32 v%d, v%d" % (vAcc, vK1))
    A("v_mov_b32 v%d, v%d" % (vAcc + 1, vK2))
    A("v_mov_b32 v%d, v%d" % (vAcc + 2, vNon))
    A("v_mov_b32 v%d, v%d" % (vAcc + 3, vNon + 1))
    A("s_mov_b64 exec, 1")
    A("buffer_store_dwordx4 %s, v%d, %s, s%d offen sc1" % (vr(vAcc, 4), vT2, sr(sWS, 4), sc))
    A("s_mov_b64 exec, -1")
    A.label("K_NOPUB2")
    A("s_mov_b32 s%d, 0" % sCnt)
    A("s_mov_b32 exec_hi, 0")
    A.label("K_POLL2")
    A("buffer_load_dwordx4 %s, v%d, %s, s%d offen sc1" % (vr(vAcc + 4, 4), vT2, sr(sWS, 4), sa))
    A("s_waitcnt vmcnt(0)")
    A("v_cmp_eq_u64 vcc, %s, %s" % (vr(vAcc + 6, 2), vr(vNon, 2)))
    A("s_cmp_eq_u64 vcc, exec")
    A("s_cbranch_scc1 K_POLL2_OK")
    spin_tail("K_POLL2", sCnt)
    A.label("K_POLL2_OK")
    A("s_mov_b64 exec, -1")
    A("s_waitcnt lgkmcnt(0)")
    A("v_mov_b32 v%d, v%d" % (vK1, vAcc + 4))
    A("v_mov_b32 v%d, v%d" % (vK2, vAcc + 5))
    for dpp in ("quad_perm:[1,0,3,2]", "quad_perm:[2,3,0,1]", "row_half_mirror", "row_mirror"):
        merge_dpp(dpp)
    merge_swap("v_permlane16_swap_b32")
    A("s_mov_b64 exec, 1")
    A("ds_write_b64 v%d, %s offset:64" % (vT3, vr(vK1, 2)))
    A("s_mov_b64 exec, -1")
    A("s_waitcnt lgkmcnt(0)")
    A.label("K_L2WAIT")
    for i in range(8):
        A("v_sub_f32 v%d, v%d, v%d" % (vX + 8 + i, vX + i, vS))
        A("v_fmac_f32 v%d, v%d, v%d" % (vX + i, vX + 8 + i, vS + 1))
    for i in range(4):
        A("v_cvt_pk_bf16_f32 v%d, v%d, v%d" % (vHp + i, vX + 2 * i, vX + 2 * i + 1))
    A("v_mov_b32 v%d, %d" % (vT3, L_TOP + 64))
    A("v_mov_b32 v%d, 0" % (vSel + 1))
    A("s_barrier")
    A("ds_read_b64 %s, v%d" % (vr(vK1, 2), vT3))
    A("s_waitcnt lgkmcnt(0)")
    A("v_readfirstlane_b32 s%d, v%d" % (sI1, vK1))
    A("v_readfirstlane_b32 s%d, v%d" % (sI2, vK2))
    A("s_and_b32 s%d, s%d, 0x7ff" % (sI1, sI1))
    A("s_sub_u32 s%d, 2047, s%d" % (sI1, sI1))
    A("s_and_b32 s%d, s%d, 0x7ff" % (sI2, sI2))
    A("s_sub_u32 s%d, 2047, s%d" % (sI2, sI2))
    stamp(13)
    A("s_cmp_eq_u32 s%d, 0" % sRole)
    A("s_cbranch_scc1 K_OWN")
    A("s_lshr_b32 s%d, s%d, 2" % (sI, sJ))
    A("s_and_b32 s%d, s%d, 3" % (sN, sJ))
    A("s_cmp_eq_u32 s%d, 1" % sRole)
    A("s_cselect_b32 s%d, s%d, s%d" % (sI, sWv, sI))
    A("s_cselect_b32 s%d, 0, s%d" % (sN, sN))
    A("s_cbranch_scc1 K_SEL")
    A("s_cmp_eq_u32 s%d, 0" % sWv)
    A("s_cbranch_scc0 K_OWN")
    A.label("K_SEL")
    A("v_mov_b32 v%d, s%d" % (vT0, sI1))
    A("v_mov_b32 v%d, s%d" % (vT2, sI2))
    A("s_mov_b32 vcc_lo, 0xaaaaaaaa")
    A("s_mov_b32 vcc_hi, 0xaaaaaaaa")
    A("v_cndmask_b32 v%d, v%d, v%d, vcc" % (vPa, vT0, vT2))
    A("v_lshlrev_b32 v%d, 10, v%d" % (vPa, vPa))
    A("v_lshl_add_u32 v%d, v%d, 4, v%d" % (vPa, vG, vPa))
    A("s_lshl_b32 s%d, s%d, 7" % (sc, sI))
    A("s_add_u32 s%d, s%d, 0x%x" % (sc, sc, WS_H))
    def h_loads():
        A("s_mov_b32 exec_lo, 3")
        A("s_mov_b32 exec_hi, 3")
        for s in range(4):
            A("s_add_u32 s68, s%d, %d" % (sN, s))
            A("s_and_b32 s68, s68, 3")
            A("s_lshl_b32 s68, s68, 5")
            A("s_add_u32 s68, s68, s%d" % sc)
            A("buffer_load_dwordx4 %s, v%d, %s, s68 offen sc1" % (vr(vBF + 4 * s, 4), vPa, sr(sWS, 4)))
        A("s_mov_b64 exec, -1")
    h_loads()
    A("s_mov_b32 vcc_lo, 0xffff0000")
    A("s_mov_b32 vcc_hi, 0xffff0000")
    A("v_cndmask_b32 v%d, v%d, v%d, vcc" % (vT0, vT0, vT2))
    A("v_lshrrev_b32 v%d, 6, v%d" % (vT2, vT0))
    A("v_lshlrev_b32 v%d, 13, v%d" % (vT2, vT2))
    A("v_bfe_u32 v%d, v%d, 4, 2" % (vT3, vT0))
    A("v_lshl_add_u32 v%d, v%d, 8, v%d" % (vT2, vT3, vT2))
    A("v_bfe_u32 v%d, v%d, 2, 1" % (vT3, vT0))
    A("v_lshl_add_u32 v%d, v%d, 7, v%d" % (vT2, vT3, vT2))
    A("v_bfe_u32 v%d, v%d, 3, 1" % (vT3, vT0))
    A("v_lshl_add_u32 v%d, v%d, 6, v%d" % (vT2, vT3, vT2))
    A("v_and_b32 v%d, 3, v%d" % (vT3, vT0))
    A("v_lshl_add_u32 v%d, v%d, 4, v%d" % (vT2, vT3, vT2))
    A("v_and_b32 v%d, 7, v%d" % (vT3, vL))
    A("v_lshl_add_u32 v%d, v%d, 10, v%d" % (vU0, vT3, vT2))
    def ss_load():
        A("s_mov_b32 s68, 0x%x" % WS_P)
        A("buffer_load_dwordx4 %s, v%d, %s, s68 offen sc1" % (vr(vSs, 4), vU0, sr(sWS, 4)))
    ss_load()
    A("v_and_b32 v%d, 14, v%d" % (vT2, vL))
    A("v_lshlrev_b32 v%d, 1, v%d" % (vT2, vT2))
    A("v_lshl_add_u32 v%d, v%d, 10, v%d" % (vSel + 1, vT0, vT2))
    def h_check(retry, ok):
        sumu(vT2, vBF, 16)
        maxu(vT3, vSs, 4)
        A("s_add_u32 s%d, s%d, 16" % (sb, sI))
        A("v_cmp_eq_u32 vcc, -1, v%d" % vT3)
        A("v_readlane_b32 s68, v%d, s%d" % (vSs + 3, sI))
        A("v_readlane_b32 s69, v%d, s%d" % (vSs + 3, sb))
        A("v_readlane_b32 s%d, v%d, 0" % (sa, vT2))
        A("v_readlane_b32 s%d, v%d, 32" % (sb, vT2))
        A("s_add_u32 s%d, s%d, s%d" % (sa, sa, sb))
        A("s_min_u32 s%d, s%d, -2" % (sa, sa))
        A("s_xor_b32 s68, s68, s%d" % sa)
        A("v_readlane_b32 s%d, v%d, 1" % (sa, vT2))
        A("v_readlane_b32 s%d, v%d, 33" % (sb, vT2))
        A("s_add_u32 s%d, s%d, s%d" % (sa, sa, sb))
        A("s_min_u32 s%d, s%d, -2" % (sa, sa))
        A("s_xor_b32 s69, s69, s%d" % sa)
        A("s_or_b32 s68, s68, s69")
        A("s_or_b32 s68, s68, vcc_lo")
        A("s_or_b32 s68, s68, vcc_hi")
        A("s_cbranch_scc0 %s" % ok)
        h_loads()
        ss_load()
        A("s_waitcnt vmcnt(0)")
        spin_tail(retry, sCnt)
    A.label("K_OWN")
    A("v_cmp_ne_u32 vcc, s%d, v%d" % (sI1, vTok))
    A("v_cmp_ne_u32 s[68:69], s%d, v%d" % (sI2, vTok))
    A("s_and_b64 exec, vcc, s[68:69]")
    A("buffer_store_dwordx4 %s, v%d, %s, s%d offen %s" % (vr(vHp, 4), vT1, sr(sW, 4), sd, {0: "", 1: "sc1", 2: "nt", 3: "sc0 sc1"}[opt.get("outf", 0)]))
    A("s_mov_b64 exec, -1")
    A("s_cmp_eq_u32 s%d, 0" % sRole)
    A("s_cbranch_scc1 K_FIN")
    A("v_bfe_u32 v%d, v%d, 2, 2" % (vT0, vL))
    A("v_and_b32 v%d, 3, v%d" % (vT2, vL))
    A("s_cmp_eq_u32 s%d, 1" % sRole)
    A("s_cbranch_scc0 K_FA_D")
    A("v_lshl_add_u32 v%d, v%d, 3, v%d" % (vT0, vG, vT0))
    A("s_lshl_b32 s68, s%d, 11" % sWv)
    A("s_add_u32 s68, s68, %d" % L_F)
    A("v_lshl_add_u32 v%d, v%d, 5, s68" % (vT0, vT0))
    A("v_lshl_add_u32 v%d, v%d, 3, v%d" % (vT0, vT2, vT0))
    A("v_bfe_u32 v%d, v%d, 4, 1" % (vT2, vL))
    A("v_mul_u32_u24 v%d, %d, v%d" % (vT2, L_FU - L_F, vT2))
    A("v_add_u32 v%d, v%d, v%d" % (vT0, vT0, vT2))
    for s in range(4):
        for half in range(2):
            A("ds_read_b64_tr_b16 %s, v%d offset:%d" % (vr(vFA + 4 * s + 2 * half, 2), vT0, (16 * s + 4 * half) * 32))
    A("s_branch K_FA_DONE")
    A.label("K_FA_D")
    A("v_lshrrev_b32 v%d, 4, v%d" % (vT3, vL))
    A("v_lshl_add_u32 v%d, v%d, 3, v%d" % (vT0, vT3, vT0))
    A("s_lshl_b32 s68, s%d, 10" % sWv)
    A("s_add_u32 s68, s68, %d" % L_F)
    A("v_lshl_add_u32 v%d, v%d, 5, s68" % (vT0, vT0))
    A("v_lshl_add_u32 v%d, v%d, 3, v%d" % (vT0, vT2, vT0))
    for i in range(6):
        if i == 5:
            A("s_cmp_lt_u32 s%d, 3" % sWv)
            A("s_cbranch_scc0 K_FA_DONE")
        for half in range(2):
            A("ds_read_b64_tr_b16 %s, v%d offset:%d" % (vr(vFA + 4 * i + 2 * half, 2), vT0, i * 8192 + 4 * half * 32))
    A.label("K_FA_DONE")
    A("s_cmp_eq_u32 s%d, 1" % sRole)
    A("s_cbranch_scc0 K_DOWN")
    A("v_lshlrev_b32 v%d, 7, v%d" % (vT0, vN))
    A("v_lshl_add_u32 v%d, v%d, 4, v%d" % (vT0, vG, vT0))
    A("s_mul_i32 s%d, s%d, 384" % (sa, sWv))
    A("s_add_u32 s%d, s%d, %d" % (sa, sa, L_R2))
    A("v_add_u32 v%d, s%d, v%d" % (vT0, sa, vT0))
    A("s_mov_b32 s%d, 0" % sCnt)
    A("s_waitcnt vmcnt(1) lgkmcnt(0)")
    A.label("K_HCHK")
    for s in range(4):
        A("%s %s, %s, %s, %s" % (MFMA, vr(vAcc, 16), vr(vFA + 4 * s, 4), vr(vBF + 4 * s, 4), "0" if s == 0 else vr(vAcc, 16)))
    h_check("K_HCHK", "K_HOK")
    A.label("K_HOK")
    A("s_mov_b32 exec_lo, 7")
    A("s_mov_b32 exec_hi, 7")
    for a_ in range(4):
        A("ds_write_b128 v%d, %s offset:%d" % (vT0, vr(vAcc + 4 * a_, 4), a_ * 32))
    A("s_mov_b64 exec, -1")
    A("s_cmp_eq_u32 s%d, 0" % sWv)
    A("s_cbranch_scc1 K_GU_W0")
    A("s_waitcnt lgkmcnt(0)")
    A("s_barrier")
    A("s_branch K_FIN")
    A.label("K_GU_W0")
    red8((vSs, vSs + 1, vSs + 2))
    ln_stats(vSs, vSs + 1)
    A("v_bfe_u32 v%d, v%d, 4, 1" % (vT0, vL))
    A("v_and_b32 v%d, 15, v%d" % (vT2, vL))
    A("v_lshlrev_b32 v%d, 2, v%d" % (vT3, vT2))
    A("v_mul_u32_u24 v%d, 1536, v%d" % (vT2, vG))
    A("v_add_u32 v%d, v%d, v%d" % (vT3, vT3, vT2))
    A("v_add_u32 v%d, %d, v%d" % (vT3, L_R2, vT3))
    A("v_lshl_add_u32 v%d, v%d, 7, v%d" % (vT2, vT0, vT3))
    A("v_add_u32 v%d, 768, v%d" % (vP1, vT2))
    A("v_add_u32 v%d, 768, v%d" % (vP2, vT3))
    A("v_lshlrev_b32 v%d, 1, v%d" % (vT0, vL))
    A("s_lshl_b32 s%d, s%d, 6" % (sa, sJ))
    A("s_add_u32 s%d, s%d, 0x%x" % (sa, sa, WS_A))
    A("s_waitcnt lgkmcnt(0)")
    A("s_barrier")
    stamp(14)
    for hh, (ra, rb) in enumerate(((vT2, vT3), (vP1, vP2))):
        for w_ in range(2):
            A("ds_read2_b32 %s, v%d offset0:%d offset1:%d" % (vr(vX + 8 * hh + 4 * w_, 2), ra, w_ * 96, w_ * 96 + 16))
            A("ds_read2_b32 %s, v%d offset0:%d offset1:%d" % (vr(vX + 8 * hh + 4 * w_ + 2, 2), rb, w_ * 96 + 64, w_ * 96 + 80))
    A("s_waitcnt lgkmcnt(0)")
    for i in range(4):
        A("v_add_f32 v%d, v%d, v%d" % (vX + i, vX + i, vX + 4 + i))
        A("v_add_f32 v%d, v%d, v%d" % (vX + 8 + i, vX + 8 + i, vX + 12 + i))
    for i in range(4):
        A("v_add_f32 v%d, v%d, v%d" % (vX + i, vX + i, vX + 8 + i))
    for i in range(4):
        A("v_mov_b32 v%d, v%d" % (vX + 4 + i, vX + i))
    A.nop(1)
    for i in range(4):
        A("v_permlane32_swap_b32 v%d, v%d" % (vX + i, vX + 4 + i))
    for i in range(4):
        A("v_add_f32 v%d, v%d, v%d" % (vX + i, vX + i, vX + 4 + i))
    A("v_fma_f32 v%d, -v%d, v%d, v%d" % (vX, vSs, vX + 2, vX))
    A("v_fma_f32 v%d, -v%d, v%d, v%d" % (vX + 1, vSs, vX + 3, vX + 1))
    A("v_mul_f32 v%d, v%d, v%d" % (vX, vX, vSs + 1))
    A("v_mul_f32 v%d, v%d, v%d" % (vX + 1, vX + 1, vSs + 1))
    A("v_mul_f32 v%d, %s, v%d" % (vX + 2, f32(-LOG2E), vX))
    A("v_exp_f32 v%d, v%d" % (vX + 2, vX + 2))
    A("v_mul_f32 v%d, v%d, v%d" % (vX, vX, vX + 1))
    A("v_add_f32 v%d, 1.0, v%d" % (vX + 2, vX + 2))
    A("v_rcp_f32 v%d, v%d" % (vX + 2, vX + 2))
    A.nop(1)
    A("v_mul_f32 v%d, v%d, v%d" % (vX, vX, vX + 2))
    A.nop(2)
    A("v_mov_b32_dpp v%d, v%d quad_perm:[1,0,3,2] row_mask:0xf bank_mask:0xf" % (vX + 1, vX))
    A("v_cvt_pk_bf16_f32 v%d, v%d, v%d" % (vX + 2, vX, vX + 1))
    A("v_min_u32 v%d, -2, v%d" % (vX + 2, vX + 2))
    A("s_mov_b32 exec_lo, 0x55555555")
    A("s_mov_b32 exec_hi, 0")
    A("buffer_store_dword v%d, v%d, %s, s%d offen sc1" % (vX + 2, vT0, sr(sWS, 4), sa))
    A("s_mov_b64 exec, -1")
    A("s_branch K_FIN")
    A.label("K_DOWN")
    A("s_cmp_eq_u32 s%d, 0" % sWv)
    A("s_cbranch_scc0 K_D_POLL")
    A("s_mov_b32 s%d, 0" % sCnt)
    A("s_waitcnt vmcnt(0)")
    A.label("K_DH")
    h_check("K_DH", "K_DH_OK")
    A.label("K_DH_OK")
    A("v_lshlrev_b32 v%d, 5, v%d" % (vT0, vN))
    A("v_lshl_add_u32 v%d, v%d, 4, v%d" % (vT0, vG, vT0))
    A("v_add_u32 v%d, %d, v%d" % (vT0, L_TOP + 128, vT0))
    A("s_mov_b32 exec_lo, 3")
    A("s_mov_b32 exec_hi, 3")
    A("ds_write_b128 v%d, %s" % (vT0, vr(vBF, 4)))
    A("s_mov_b64 exec, -1")
    A("v_and_b32 v%d, 30, v%d" % (vT0, vL))
    A("v_lshlrev_b32 v%d, 1, v%d" % (vT0, vT0))
    A("v_add_u32 v%d, %d, v%d" % (vT0, L_TOP + 128, vT0))
    A("s_waitcnt lgkmcnt(0)")
    A("ds_read_b32 v%d, v%d" % (vSel, vT0))
    A("s_waitcnt lgkmcnt(0)")
    red8((vSs, vSs + 1, vSs + 2))
    ln_stats(vSs, vSs + 1)
    A("v_lshlrev_b32 v%d, 16, v%d" % (vX, vSel))
    A("v_and_b32 v%d, 0xffff0000, v%d" % (vSel, vSel))
    A("v_fma_f32 v%d, -v%d, v%d, v%d" % (vSs + 2, vSs, vW1, vSs + 2))
    A("v_mul_f32 v%d, v%d, v%d" % (vSs + 2, vSs + 2, vSs + 1))
    A("v_mul_f32 v%d, %s, v%d" % (vSs + 2, f32(-LOG2E), vSs + 2))
    A("v_exp_f32 v%d, v%d" % (vSs + 2, vSs + 2))
    A("s_mov_b32 vcc_lo, 0x55555555")
    A("s_mov_b32 vcc_hi, 0x55555555")
    A("v_cndmask_b32 v%d, v%d, v%d, vcc" % (vSel, vSel, vX))
    A("v_add_f32 v%d, 1.0, v%d" % (vSs + 2, vSs + 2))
    A("v_rcp_f32 v%d, v%d" % (vSs + 2, vSs + 2))
    A("v_sub_f32 v%d, v%d, v%d" % (vX + 1, vSel, vSs))
    A("v_fmac_f32 v%d, v%d, v%d" % (vSel, vX + 1, vSs + 1))
    A.label("K_D_POLL")
    A("v_and_b32 v%d, 1, v%d" % (vT0, vL))
    A("v_lshlrev_b32 v%d, 5, v%d" % (vT0, vT0))
    A("v_lshl_add_u32 v%d, v%d, 6, v%d" % (vT0, vG, vT0))
    A("v_bfe_u32 v%d, v%d, 4, 1" % (vT2, vL))
    A("v_lshl_add_u32 v%d, v%d, 4, v%d" % (vT0, vT2, vT0))
    A("v_lshrrev_b32 v%d, 4, v%d" % (vT2, vL))
    A("s_lshl_b32 s68, s%d, 7" % sWv)
    A("s_add_u32 s%d, s68, 0x%x" % (sa, WS_A))
    A("s_add_u32 s%d, s%d, 4096" % (sc, sa))
    A("v_and_b32 v%d, 15, v%d" % (vT3, vL))
    A("v_lshlrev_b32 v%d, 6, v%d" % (vT3, vT3))
    A("v_lshl_add_u32 v%d, v%d, 4, v%d" % (vT3, vT2, vT3))
    A("s_add_u32 s68, s68, %d" % L_R2)
    A("v_add_u32 v%d, s68, v%d" % (vT3, vT3))
    A("s_mov_b32 exec_lo, 0x00030003")
    A("s_mov_b32 exec_hi, 0x00030003")
    A("s_mov_b32 s%d, 0" % sCnt)
    A.label("K_POLLA")
    for i in range(5):
        if i < 4:
            A("buffer_load_dwordx4 %s, v%d, %s, s%d offen offset:%d sc1" % (vr(vBF + 4 * i, 4), vT0, sr(sWS, 4), sa, i * 1024))
        else:
            A("buffer_load_dwordx4 %s, v%d, %s, s%d offen sc1" % (vr(vBF + 4 * i, 4), vT0, sr(sWS, 4), sc))
    A("s_cmp_lt_u32 s%d, 3" % sWv)
    A("s_cbranch_scc0 K_POLLA5")
    A("buffer_load_dwordx4 %s, v%d, %s, s%d offen offset:1024 sc1" % (vr(vBF + 20, 4), vT0, sr(sWS, 4), sc))
    A.label("K_POLLA5")
    A("s_waitcnt vmcnt(0) lgkmcnt(0)")
    maxu(vT2, vBF, 24)
    A("v_cmp_eq_u32 vcc, -1, v%d" % vT2)
    A("s_cmp_eq_u64 vcc, 0")
    A("s_cbranch_scc1 K_POLLA_OK")
    spin_tail("K_POLLA", sCnt)
    A.label("K_POLLA_OK")
    A("s_mov_b64 exec, -1")
    stamp(14)
    for i in range(5):
        A("%s %s, %s, %s, %s" % (MFMA16, vr(vAcc, 4), vr(vFA + 4 * i, 4), vr(vBF + 4 * i, 4), "0" if i == 0 else vr(vAcc, 4)))
    A("s_cmp_lt_u32 s%d, 3" % sWv)
    A("s_cbranch_scc0 K_D5")
    A("%s %s, %s, %s, %s" % (MFMA16, vr(vAcc, 4), vr(vFA + 20, 4), vr(vBF + 20, 4), vr(vAcc, 4)))
    A.label("K_D5")
    A("v_lshlrev_b32 v%d, 2, v%d" % (vT0, vN))
    A("v_lshl_add_u32 v%d, v%d, 9, v%d" % (vT0, vG, vT0))
    A("v_add_u32 v%d, %d, v%d" % (vT0, L_R2, vT0))
    A("s_mov_b32 exec_lo, 0x00030003")
    A("s_mov_b32 exec_hi, 0x00030003")
    A.nop(3)
    A("ds_write_b128 v%d, %s" % (vT3, vr(vAcc, 4)))
    A("s_mov_b64 exec, -1")
    A("s_waitcnt lgkmcnt(0)")
    A("s_barrier")
    A("s_cmp_eq_u32 s%d, 0" % sWv)
    A("s_cbranch_scc0 K_FIN")
    A("ds_read2_b32 %s, v%d offset0:0 offset1:32" % (vr(vX + 2, 2), vT0))
    A("ds_read2_b32 %s, v%d offset0:64 offset1:96" % (vr(vX + 4, 2), vT0))
    A("s_lshl_b32 s%d, s%d, 5" % (sa, sJ))
    A("s_waitcnt lgkmcnt(0)")
    A("v_add_f32 v%d, v%d, v%d" % (vX + 2, vX + 2, vX + 3))
    A("v_add_f32 v%d, v%d, v%d" % (vX + 4, vX + 4, vX + 5))
    A("v_add_f32 v%d, v%d, v%d" % (vX, vX + 2, vX + 4))
    A("v_mov_b32 v%d, v%d" % (vX + 2, vX))
    A.nop(2)
    A("v_permlane32_swap_b32 v%d, v%d" % (vX, vX + 2))
    A.nop(1)
    A("v_add_f32 v%d, v%d, v%d" % (vX, vX, vX + 2))
    A("v_fmac_f32 v%d, v%d, v%d" % (vSel, vX, vSs + 2))
    A.nop(2)
    A("v_mov_b32_dpp v%d, v%d quad_perm:[1,0,3,2] row_mask:0xf bank_mask:0xf" % (vX, vSel))
    A("v_cvt_pk_bf16_f32 v%d, v%d, v%d" % (vSel, vSel, vX))
    A("s_mov_b32 exec_lo, 0x55555555")
    A("s_mov_b32 exec_hi, 0")
    A("buffer_store_dword v%d, v%d, %s, s%d offen" % (vSel, vSel + 1, sr(sW, 4), sa))
    A("s_mov_b64 exec, -1")
    A.label("K_FIN")
    if STAMPS:
        A("s_waitcnt vmcnt(0)")
        stamp(15)
        A("s_waitcnt lgkmcnt(0)")
        if opt.get("dbgout"):
            A("s_cmp_eq_u32 s2, %d" % opt["dbgout"])
            A("s_cbranch_scc0 K_END")
            A("s_cmp_eq_u32 s%d, 0" % sWv)
            A("s_cbranch_scc0 K_END")
            srd(sGA, pDBG, 256)
            A("v_mov_b32 v%d, 0" % vT0)
            A("s_mov_b64 exec, 1")
            for i, st in enumerate((0, 2, 3, 4, 5, 6, 7, 9, 10, 11, 12, 13, 14, 15)):
                A("v_mov_b32 v%d, s%d" % (vT2, 70 + 2 * st))
                A("v_sub_u32 v%d, v%d, v%d" % (vT2, vT2, vNon))
                A("buffer_store_dword v%d, v%d, %s, 0 offen offset:%d" % (vT2, vT0, sr(sGA, 4), 8 + 4 * i))
                A.nop(2)
            A("s_branch K_END")
        A("s_lshl_b32 s%d, s2, 3" % sa)
        A("s_add_u32 s%d, s%d, s%d" % (sa, sa, sWv))
        A("s_mul_i32 s%d, s%d, %d" % (sa, sa, NSTAMP_SLOTS * 8))
        A("s_add_u32 s%d, s%d, 0x%x" % (sa, sa, WS_STAMP))
        A("v_mov_b32 v%d, 0" % vT0)
        A("s_mov_b64 exec, 1")
        for i in range(16):
            A("v_mov_b32 v%d, s%d" % (vT2, 70 + 2 * i))
            A("v_mov_b32 v%d, s%d" % (vT3, 71 + 2 * i))
            A("buffer_store_dwordx2 %s, v%d, %s, s%d offen offset:%d" % (vr(vT2, 2), vT0, sr(sWS, 4), sa, i * 8))
            A.nop(2)
    A.label("K_END")
    A("s_endpgm")
    return A.text(), 256, LDS

HEADER = open("sequential_preLN__sliding_block__moe_arch_mod__prompt.s.ref").read().split("; Override launch")[0]

def build(opt):
    k, nv, lds = gen(opt)
    s = HEADER
    s += "; @launch grid=(256,1,1) block=(512,1,1) lds=%d\n" % lds
    s += '.amdgcn_target "amdgcn-amd-amdhsa--gfx950"\n.text\n'
    s += ".globl %s\n.p2align 8\n.type %s,@function\n%s:\n%s" % (KNAME, KNAME, KNAME, k)
    s += '.section .rodata,"a"\n'
    s += """.p2align 6
.amdhsa_kernel %s
  .amdhsa_next_free_vgpr %d
  .amdhsa_next_free_sgpr 102
  .amdhsa_accum_offset %d
  .amdhsa_group_segment_fixed_size 0
  .amdhsa_kernarg_size 88
  .amdhsa_user_sgpr_count 2
  .amdhsa_user_sgpr_kernarg_segment_ptr 1
  .amdhsa_system_sgpr_workgroup_id_x 1
.end_amdhsa_kernel
""" % (KNAME, nv, (nv + 3) // 4 * 4)
    return s

if __name__ == "__main__":
    out = sys.argv[1] if len(sys.argv) > 1 else "k.s"
    opt = {}
    for a in sys.argv[2:]:
        k, v = a.split("=")
        opt[k] = int(v)
    open(out, "w").write(build(opt))
```

```python
import sys, struct

def f32(x):
    return "0x%08x" % struct.unpack("<I", struct.pack("<f", x))[0]

WS_KV = 0x000000
WS_O = 0x400000
WS_H = 0x600000
WS_P = 0x800000
WS_A = 0x840000
WS_LS = 0x850000
WS_E = 0x860000
WS_FKV = 0x880000
WS_FO = 0x8a0000
WS_P2 = 0x8c0000
WS_SIZE = 0x10000000
WS_STAMP = 0x8000000
NSTAMP_SLOTS = 24

LOG2E = 1.4426950408889634
BIG = 1.0e30
SPIN_LIMIT = 100000
MFMA = "v_mfma_f32_32x32x16_bf16"
MFMA16 = "v_mfma_f32_16x16x32_bf16"
MFMA4 = "v_mfma_f32_4x4x4_16b_bf16"
KNAME = "sequential_preLN__sliding_block__moe_arch_mod__prompt_kernel"

class Asm:
    def __init__(self):
        self.L = []
    def __call__(self, s):
        self.L.append("    " + s.strip())
    def label(self, s):
        self.L.append(s + ":")
    def nop(self, n):
        while n > 0:
            k = min(n, 16)
            self.L.append("    s_nop %d" % (k - 1))
            n -= k
    def text(self):
        return "\n".join(self.L) + "\n"

def vr(b, n):
    assert b % 2 == 0, "unaligned vgpr tuple %d" % b
    return "v[%d:%d]" % (b, b + n - 1)
def sr(b, n):
    return "s[%d:%d]" % (b, b + n - 1)

def gen(opt):
    A = Asm()
    STAMPS = opt.get("stamps", 0)
    def stamp(i):
        if STAMPS:
            A("s_memrealtime %s" % sr(70 + 2 * i, 2))
    def srd(d, base, size):
        A("s_mov_b32 s%d, s%d" % (d, base))
        A("s_mov_b32 s%d, s%d" % (d + 1, base + 1))
        A("s_mov_b32 s%d, 0x%x" % (d + 2, size))
        A("s_mov_b32 s%d, 0x20000" % (d + 3))
    def cap(fn):
        keep = A.L; A.L = []; fn(); out = A.L; A.L = keep; return out
    pX, pW, pWO, pBX, pWR, pWG, pWU, pWD, pOUT, pDBG, pWS = 8, 10, 12, 14, 16, 18, 20, 22, 24, 26, 28
    sCG, sG3 = 14, 15
    sX, sW, sWS, sGA, sGB = 32, 36, 40, 44, 48
    sWv, sT, sC, sB, sHP, sTq, sWGL, sRole, sJ = 52, 53, 54, 55, 56, 57, 58, 59, 60
    sa, sb, sc, sd = 61, 62, 63, 64
    sKC, sXo, sWo, sSlotX, sDW = 3, 4, 5, 6, 7
    sXbase, sWbase = 30, 31
    sRd, sPub, sS = 65, 66, 67
    sN, sI, sChunk, sCnt = 3, 4, 5, 6
    sMaskV = 30
    sFa, sFg, sFon = 1, 10, 11
    sN1 = 0
    sKu, sKm = 68, 69
    sI1, sI2 = 65, 66
    sWoG, sWoL, sWoR, sWoN = 65, 66, 67, 7
    vWoA, vWoB = 41, 40
    XS, WSL = 16384, 12288
    NSL = 5
    SLOT = XS + WSL
    L_WO = 86016
    L_K = 0
    L_V = 24576
    L_Q = 49152
    L_VX = 90112
    L_STR = 151552
    L_STM = 152064
    L_CS = 152576
    L_PAY = 153088
    L_NON = 153152
    L_CSP = 153600
    L_TOP = 155648
    L_R2 = 155904
    L_RED = L_WO
    L_F = 0
    L_FU = L_F + 16384 + 128
    LDS = 163840
    vL, vN, vG, vKap, vL16, vOnes, vTok = 1, 2, 3, 4, 5, 6, 7
    vT0, vT1, vT2, vT3 = 8, 9, 10, 11
    vNon = 12
    vXr = 14
    vWr = 18
    vFA = 200
    vWR4 = 248
    vW1 = 252
    vKb, vVb, vIG = 253, 254, 255
    vXg = 22
    vWg = 14
    vXa, vXc, vWa, vWc = 26, 30, 34, 38
    vU0, vU1 = 42, 43
    vOne2 = 44
    vB = 48
    vAcV, vAc0, vAc1 = 128, 144, 160
    vRow = 176
    vLSa, vLSb, vLSc = 184, 185, 186
    vCq, vCk, vCv = 188, 192, 196
    vGc = 112
    vE = 48
    vPk = 80
    vQ = 22
    vKad, vVad, vM, vMold = 26, 27, 30, 31
    vKa, vKbf = 32, 36
    vSa, vSb = 44, 60
    vCn = 76
    vP = 96
    vKV = 104
    vCm = 200
    vVa, vVbf = 216, 224
    vO = 232
    vWOa = 26
    vRa = 28
    vOF = 44
    vH0, vH1 = 76, 92
    vAW = 108
    vChk = 40
    vOG = 172
    vHp = 36
    vPa = 41
    vS = 44
    vK1, vK2, vP1, vP2 = 58, 59, 60, 61
    vX = 64
    vBF = 80
    vAcc = 104
    vSs = 120
    vSel = 124

    def spin_tail(lab, cnt):
        A("s_add_u32 s%d, s%d, 1" % (cnt, cnt))
        A("s_cmp_lt_u32 s%d, %d" % (cnt, SPIN_LIMIT))
        A("s_cbranch_scc1 %s" % lab)
    def maxu(dst, base, n):
        A("v_max_u32 v%d, v%d, v%d" % (dst, base, base + 1))
        for i in range(2, n, 2):
            A("v_max3_u32 v%d, v%d, v%d, v%d" % (dst, base + i, base + i + 1, dst))
    def sumu(dst, base, n, init=None):
        regs = [base + i for i in range(n)]
        if init is None:
            A("v_add_u32 v%d, v%d, v%d" % (dst, regs[0], regs[1])); regs = regs[2:]
        else:
            A("v_add3_u32 v%d, v%d, v%d, v%d" % (dst, regs[0], regs[1], init)); regs = regs[2:]
        for i in range(0, len(regs), 2):
            A("v_add3_u32 v%d, v%d, v%d, v%d" % (dst, regs[i], regs[i + 1], dst))
    def wave_sumu(v, tmp):
        for dpp in ("quad_perm:[1,0,3,2]", "quad_perm:[2,3,0,1]", "row_half_mirror", "row_mirror"):
            A.nop(2)
            A("v_add_u32_dpp v%d, v%d, v%d %s row_mask:0xf bank_mask:0xf" % (v, v, v, dpp))
        for sw in ("v_permlane16_swap_b32", "v_permlane32_swap_b32"):
            A("v_mov_b32 v%d, v%d" % (tmp, v))
            A.nop(2)
            A("%s v%d, v%d" % (sw, v, tmp))
            A.nop(1)
            A("v_add_u32 v%d, v%d, v%d" % (v, v, tmp))
    def ln_stats(s1, s2):
        A("v_mul_f32 v%d, %s, v%d" % (s1, f32(1.0 / 512), s1))
        A("v_mul_f32 v%d, %s, v%d" % (s2, f32(1.0 / 512), s2))
        A("v_fma_f32 v%d, -v%d, v%d, v%d" % (s2, s1, s1, s2))
        A("v_max_f32 v%d, 0, v%d" % (s2, s2))
        A("v_add_f32 v%d, %s, v%d" % (s2, f32(1e-5), s2))
        A("v_rsq_f32 v%d, v%d" % (s2, s2))

    A("s_cmp_ge_u32 s2, 256")
    A("s_cbranch_scc1 K_END")
    stamp(0)
    A("s_load_dwordx16 s[8:23], s[0:1], 0")
    A("s_load_dwordx4 s[24:27], s[0:1], 64")
    A("s_load_dwordx2 s[28:29], s[0:1], 80")
    A("v_and_b32 v%d, 63, v0" % vL)
    A("v_lshrrev_b32 v%d, 6, v0" % vT0)
    A("v_lshlrev_b32 v%d, 4, v%d" % (vL16, vL))
    A("v_readfirstlane_b32 s%d, v%d" % (sWv, vT0))
    A("s_and_b32 s%d, s2, 7" % sa)
    A("s_lshr_b32 s%d, s2, 3" % sb)
    if opt.get("map", 2) == 2:
        A("s_lshr_b32 s%d, s%d, 1" % (sB, sa))
        A("s_lshr_b32 s%d, s%d, 3" % (sc, sb))
        A("s_lshl_b32 s%d, s%d, 2" % (sd, sc))
        A("s_add_u32 s%d, s%d, s%d" % (sB, sB, sd))
        A("s_and_b32 s%d, s%d, 1" % (sHP, sa))
        A("s_lshl_b32 s%d, s%d, 3" % (sHP, sHP))
        A("s_and_b32 s%d, s%d, 7" % (sKC, sb))
        A("s_add_u32 s%d, s%d, s%d" % (sHP, sHP, sKC))
        A("s_lshl_b32 s%d, s%d, 1" % (sc, sc))
        A("s_add_u32 s%d, s%d, s%d" % (sKC, sKC, sc))
        if opt.get("rotx2"):
            A("s_add_u32 s%d, s%d, s%d" % (sKC, sKC, sa))
        A("s_and_b32 s%d, s%d, 7" % (sKC, sKC))
    else:
        A("s_lshr_b32 s%d, s%d, 4" % (sc, sb))
        A("s_lshl_b32 s%d, s%d, 3" % (sd, sc))
        A("s_add_u32 s%d, s%d, s%d" % (sB, sa, sd))
        A("s_and_b32 s%d, s%d, 15" % (sHP, sb))
        A("s_lshl_b32 s%d, s%d, 2" % (sc, sc))
        A("s_add_u32 s%d, s%d, s%d" % (sKC, sHP, sc))
        A("s_add_u32 s%d, s%d, s%d" % (sKC, sKC, sa))
        A("s_and_b32 s%d, s%d, 7" % (sKC, sKC))
    A("s_and_b32 s%d, s%d, 3" % (sT, sWv))
    A("s_lshr_b32 s%d, s%d, 2" % (sC, sWv))
    A("s_lshl_b32 s%d, s%d, 4" % (sWGL, sB))
    A("s_add_u32 s%d, s%d, s%d" % (sWGL, sWGL, sHP))
    A("s_cmp_eq_u32 s%d, 0" % sC)
    A("s_cbranch_scc0 K_PRO_LD")
    A("s_lshl_b32 s%d, s%d, 2" % (sa, sWGL))
    A("s_add_u32 s%d, s%d, s%d" % (sa, sa, sT))
    A("s_lshl_b32 s%d, s%d, 11" % (sb, sa))
    for i in range(4):
        A("v_mov_b32 v%d, -1" % (vT0 + i))
    A("s_waitcnt lgkmcnt(0)")
    srd(sX, pX, 0x200000)
    A("buffer_load_dwordx4 %s, v%d, %s, s%d offen" % (vr(vRow, 4), vL16, sr(sX, 4), sb))
    A("buffer_load_dwordx4 %s, v%d, %s, s%d offen offset:1024" % (vr(vRow + 4, 4), vL16, sr(sX, 4), sb))
    srd(sWS, pWS, WS_SIZE)
    A("s_or_b32 s%d, s2, s%d" % (sa, sWv))
    A("s_cmp_lg_u32 s%d, 0" % sa)
    A("s_cbranch_scc1 K_NONONCE")
    srd(sGA, pDBG, 256)
    A("s_memrealtime s[68:69]")
    A("s_waitcnt lgkmcnt(0)")
    A("s_or_b32 s69, s69, 0x80000000")
    A("v_mov_b32 v%d, s68" % vNon)
    A("v_mov_b32 v%d, s69" % (vNon + 1))
    A("s_mov_b64 exec, 1")
    A("buffer_store_dwordx2 %s, v%d, %s, 0 offen sc1" % (vr(vNon, 2), vL16, sr(sGA, 4)))
    A("s_mov_b64 exec, -1")
    A.label("K_NONONCE")
    def clr(soff, off=0):
        A("buffer_store_dwordx4 %s, v%d, %s, s%d offen offset:%d sc1" % (vr(vT0, 4), vL16, sr(sWS, 4), soff, off))
    A("s_cmp_lg_u32 s%d, 0" % sT)
    A("s_cbranch_scc1 K_NOCLRP")
    A("s_lshl_b32 s%d, s%d, 10" % (sa, sWGL))
    A("s_add_u32 s%d, s%d, 0x%x" % (sa, sa, WS_P))
    clr(sa)
    A("s_add_u32 s%d, s%d, 0x%x" % (sa, sa, WS_P2 - WS_P))
    clr(sa)
    A.label("K_NOCLRP")
    if opt.get("tlb"):
        A("s_cmp_lg_u32 s%d, 1" % sT)
        A("s_cbranch_scc1 K_NOTLB")
        A("v_lshlrev_b32 v%d, 18, v%d" % (vE, vL))
        A("s_mov_b32 exec_hi, 0xf")
        A("buffer_load_dword v%d, v%d, %s, 0 offen sc1" % (120, vE, sr(sWS, 4)))
        A("s_mov_b64 exec, 0xff")
        srd(sGA, pOUT, 0x200000)
        A("buffer_load_dword v%d, v%d, %s, 0 offen sc1" % (121, vE, sr(sGA, 4)))
        A("s_mov_b64 exec, -1")
        A.label("K_NOTLB")
    A("s_cmp_lg_u32 s2, 1")
    A("s_cbranch_scc1 K_PRO_DONE")
    A("s_lshl_b32 s%d, s%d, 11" % (sa, sT))
    A("s_add_u32 s%d, s%d, 0x%x" % (sa, sa, WS_A))
    clr(sa); clr(sa, 1024)
    A("s_branch K_PRO_DONE")
    A.label("K_PRO_LD")
    A("v_lshrrev_b32 v%d, 3, v%d" % (vT0, vL))
    A("v_lshrrev_b32 v%d, 1, v%d" % (vT1, vT0))
    A("v_and_b32 v%d, 7, v%d" % (vT2, vL))
    A("v_xor_b32 v%d, v%d, v%d" % (vT2, vT2, vT1))
    A("v_lshlrev_b32 v%d, 4, v%d" % (vT2, vT2))
    A("v_lshl_add_u32 v%d, v%d, 10, v%d" % (vXg, vT0, vT2))
    A("v_xor_b32 v%d, 64, v%d" % (vXg + 1, vXg))
    A("v_add_u32 v%d, %d, v%d" % (vXg + 1, 8192 - 1024, vXg + 1))
    A("v_add_u32 v%d, %d, v%d" % (vXg + 2, 2 * (8192 - 1024), vXg))
    A("v_add_u32 v%d, %d, v%d" % (vXg + 3, 2 * (8192 - 1024), vXg + 1))
    A("s_lshl_b32 s%d, s%d, 17" % (sXbase, sB))
    A("s_lshl_b32 s%d, s%d, 15" % (sa, sT))
    A("s_add_u32 s%d, s%d, s%d" % (sXbase, sXbase, sa))
    A("s_movk_i32 s%d, 0x1556" % sb)
    for q in range(3):
        src = vL
        if q:
            A("v_add_u32 v%d, %d, v%d" % (vT0, 64 * q, vL))
            src = vT0
        A("v_mul_u32_u24 v%d, s%d, v%d" % (vT1, sb, src))
        A("v_lshrrev_b32 v%d, 16, v%d" % (vT1, vT1))
        A("v_mul_u32_u24 v%d, 12, v%d" % (vT2, vT1))
        A("v_sub_u32 v%d, v%d, v%d" % (vT2, src, vT2))
        A("v_lshrrev_b32 v%d, 2, v%d" % (vT3, vT2))
        A("v_and_b32 v%d, 3, v%d" % (vT2, vT2))
        A("v_lshlrev_b32 v%d, 4, v%d" % (vT2, vT2))
        A("v_lshl_add_u32 v%d, v%d, 10, v%d" % (vT2, vT3, vT2))
        A("v_mul_u32_u24 v%d, 0xc00, v%d" % (vT1, vT1))
        A("v_add_u32 v%d, v%d, v%d" % (vWg + q, vT1, vT2))
        if q:
            A("v_subrev_u32 v%d, %d, v%d" % (vWg + q, 1024 * q, vWg + q))
    A("s_lshl_b32 s%d, s%d, 6" % (sWbase, sHP))
    A("s_mul_i32 s%d, s%d, 49152" % (sa, sT))
    A("s_add_u32 s%d, s%d, s%d" % (sWbase, sWbase, sa))
    A("s_lshl_b32 s%d, s%d, 12" % (sSlotX, sT))
    A("s_lshl_b32 s%d, s%d, 10" % (sDW, sT))
    A("s_sub_u32 s%d, %d, s%d" % (sDW, XS, sDW))
    A("s_waitcnt lgkmcnt(0)")
    srd(sX, pX, 0x200000)
    srd(sW, pW, 0x180000)
    stamp(1)

    def dma_stage():
        A("s_lshl_b32 s%d, s%d, 7" % (sXo, sKC))
        A("s_mov_b32 m0, s%d" % sSlotX)
        A("s_add_u32 s%d, s%d, s%d" % (sXo, sXo, sXbase))
        for i in range(4):
            A("buffer_load_dwordx4 v%d, %s, s%d offen offset:%d lds" % (vXg + i, sr(sX, 4), sXo, i * 1024))
            if i == 0:
                A("s_mul_i32 s%d, s%d, 196608" % (sWo, sKC))
                A("s_add_u32 s%d, s%d, s%d" % (sa, sSlotX, sDW))
            if i == 1:
                A("s_add_u32 s%d, s%d, s%d" % (sWo, sWo, sWbase))
                A("s_add_u32 s%d, s%d, 1" % (sKC, sKC))
            if i == 2:
                A("s_and_b32 s%d, s%d, 7" % (sKC, sKC))
                A("s_add_u32 s%d, s%d, %d" % (sSlotX, sSlotX, SLOT))
        A("s_mov_b32 m0, s%d" % sa)
        A("s_nop 0")
        for i in range(3):
            A("buffer_load_dwordx4 v%d, %s, s%d offen offset:%d lds" % (vWg + i, sr(sW, 4), sWo, i * 1024))
            if i == 0:
                A("s_cmp_ge_u32 s%d, %d" % (sSlotX, NSL * SLOT))
                A("s_cselect_b32 s%d, %d, 0" % (sa, NSL * SLOT))
                A("s_sub_u32 s%d, s%d, s%d" % (sSlotX, sSlotX, sa))
    def build_mask(first):
        for r in range(0, 16, 2):
            for k in range(2):
                jr = ((r + k) >> 3) * 16 + ((r + k) & 7)
                A("v_cmp_%s_i32 %s, %d, v%d" % ("gt" if first else "le", "vcc" if k == 0 else sr(sKu, 2), jr, vIG))
            A.nop(1)
            A("v_cndmask_b32 v%d, v%d, v%d, vcc" % (vCm + r, vU0, vU1))
            A("v_cndmask_b32 v%d, v%d, v%d, %s" % (vCm + r + 1, vU0, vU1, sr(sKu, 2)))
    def common_setup(loader, ta, tb, tc):
        t0, t1, t2, t3 = vE, vE + 1, vE + 2, vE + 3
        A("v_and_b32 v%d, 31, v%d" % (vN, vL))
        A("v_lshrrev_b32 v%d, 5, v%d" % (vG, vL))
        A("v_and_b32 v%d, 0x13, v%d" % (vKap, vN))
        A("v_and_b32 v%d, 4, v%d" % (t0, vN))
        A("v_lshl_or_b32 v%d, v%d, 1, v%d" % (vKap, t0, vKap))
        A("v_and_b32 v%d, 8, v%d" % (t0, vN))
        A("v_lshrrev_b32 v%d, 1, v%d" % (t0, t0))
        A("v_or_b32 v%d, v%d, v%d" % (vKap, vKap, t0))
        A("v_mov_b32 v%d, 0x3f803f80" % vOnes)
        M3 = opt.get("m3", 1)
        if M3 == 0:
            A("s_lshr_b32 s%d, s2, 6" % ta)
            A("s_and_b32 s%d, s2, 7" % sCG)
            A("s_cmp_lt_u32 s%d, 3" % ta)
            A("s_cselect_b32 s%d, 0, 6" % tb)
            A("s_min_u32 s%d, s%d, 2" % (ta, ta))
            A("s_lshr_b32 s%d, s%d, 1" % (tc, sCG))
            A("s_add_u32 s%d, s%d, s%d" % (ta, ta, tc))
            A("s_add_u32 s%d, s%d, 1" % (ta, ta))
            A("s_and_b32 s%d, s%d, 3" % (ta, ta))
            A("s_add_u32 s%d, s%d, s%d" % (sCG, sCG, tb))
            A("s_and_b32 s%d, s%d, 7" % (sCG, sCG))
            A("s_bfe_u32 s%d, s2, 0x20004" % tb)
            A("s_lshl_b32 s%d, s%d, 2" % (tb, tb))
            A("s_add_u32 s%d, s%d, s%d" % (ta, ta, tb))
            A("s_lshl_b32 s%d, s%d, 1" % (sG3, ta))
            A("s_bfe_u32 s%d, s2, 0x10003" % tb)
            A("s_add_u32 s%d, s%d, s%d" % (sG3, sG3, tb))
        elif M3 == 1:
            A("s_add_u32 s%d, s%d, 1" % (ta, sB))
            A("s_and_b32 s%d, s%d, 15" % (ta, ta))
            A("s_lshl_b32 s%d, s%d, 1" % (sG3, ta))
            A("s_lshr_b32 s%d, s%d, 3" % (tb, sHP))
            A("s_add_u32 s%d, s%d, s%d" % (sG3, sG3, tb))
            A("s_and_b32 s%d, s%d, 7" % (sCG, sHP))
        else:
            A("s_add_u32 s%d, s%d, 1" % (ta, sB))
            A("s_and_b32 s%d, s%d, 15" % (ta, ta))
            A("s_lshl_b32 s%d, s%d, 1" % (sG3, ta))
            A("s_bfe_u32 s%d, s%d, 0x10002" % (tb, sHP))
            A("s_add_u32 s%d, s%d, s%d" % (sG3, sG3, tb))
            A("s_lshr_b32 s%d, s%d, 3" % (tb, sHP))
            A("s_lshl_b32 s%d, s%d, 2" % (tb, tb))
            A("s_and_b32 s%d, s%d, 3" % (sCG, sHP))
            A("s_add_u32 s%d, s%d, s%d" % (sCG, sCG, tb))
        A("v_lshrrev_b32 v%d, 3, v%d" % (t0, vL))
        A("v_and_b32 v%d, 3, v%d" % (t1, t0))
        A("v_lshrrev_b32 v%d, 2, v%d" % (t0, t0))
        A("v_lshl_add_u32 v%d, v%d, 3, v%d" % (t1, t0, t1))
        A("s_lshr_b32 s%d, s%d, 1" % (ta, sT))
        A("s_lshl_b32 s%d, s%d, 4" % (ta, ta))
        A("s_and_b32 s%d, s%d, 1" % (tb, sT))
        A("s_lshl_b32 s%d, s%d, 2" % (tb, tb))
        A("s_add_u32 s%d, s%d, s%d" % (ta, ta, tb))
        A("s_lshl_b32 s%d, s%d, 6" % (tb, sG3))
        A("s_add_u32 s%d, s%d, s%d" % (ta, ta, tb))
        if loader:
            A("s_add_u32 s%d, s%d, 32" % (ta, ta))
        A("v_add_u32 v%d, s%d, v%d" % (vTok, ta, t1))
        A("s_and_b32 s%d, s2, 7" % ta)
        A("s_lshr_b32 s%d, s2, 3" % tb)
        A("s_mul_i32 s%d, s%d, 11" % (sJ, ta))
        A("s_add_u32 s%d, s%d, s%d" % (sJ, sJ, tb))
        A("s_cmp_lt_u32 s%d, 11" % tb)
        A("s_cselect_b32 s%d, 1, 0" % sRole)
        A("s_cmp_lt_u32 s%d, 86" % sJ)
        A("s_cselect_b32 s%d, s%d, 0" % (sRole, sRole))
        A("s_sub_u32 s%d, s%d, 11" % (tb, tb))
        A("s_lshl_b32 s%d, s%d, 2" % (ta, ta))
        A("s_add_u32 s%d, s%d, s%d" % (ta, ta, tb))
        A("s_cmp_lt_u32 s%d, 4" % tb)
        A("s_cselect_b32 s%d, 2, s%d" % (sRole, sRole))
        A("s_cmp_lt_u32 s%d, 4" % tb)
        A("s_cselect_b32 s%d, s%d, s%d" % (sJ, ta, sJ))
        if not loader:
            A("v_bfe_u32 v%d, v%d, 2, 2" % (t2, vL))
            A("v_lshl_add_u32 v%d, v%d, 3, v%d" % (t2, vG, t2))
            A("v_mul_u32_u24 v%d, 192, v%d" % (t3, t2))
            A("v_bfe_u32 v%d, v%d, 4, 1" % (t2, vL))
            A("v_lshl_add_u32 v%d, v%d, 5, v%d" % (t3, t2, t3))
            A("v_and_b32 v%d, 1, v%d" % (t2, vL))
            A("v_lshl_add_u32 v%d, v%d, 4, v%d" % (t3, t2, t3))
            A("v_bfe_u32 v%d, v%d, 1, 1" % (t2, vL))
            A("v_lshl_add_u32 v%d, v%d, 3, v%d" % (t3, t2, t3))
            A("v_bfe_u32 v%d, v%d, 1, 3" % (t0, vKap))
            A("v_xor_b32 v%d, v%d, v%d" % (t0, t0, vG))
            A("v_lshlrev_b32 v%d, 4, v%d" % (t0, t0))
            A("s_lshl_b32 s%d, s%d, 12" % (ta, sT))
            A("v_lshl_add_u32 v%d, v%d, 7, s%d" % (t1, vKap, ta))
            for i in range(4):
                A("s_add_u32 s%d, s%d, %d" % (ta, sT, i))
                A("s_and_b32 s%d, s%d, 3" % (ta, ta))
                A("s_lshl_b32 s%d, s%d, 5" % (tb, ta))
                A("s_mul_i32 s%d, s%d, 3072" % (ta, ta))
                A("s_add_u32 s%d, s%d, %d" % (ta, ta, XS))
                A("v_xor_b32 v%d, s%d, v%d" % (t2, tb, t0))
                A("v_add_u32 v%d, v%d, v%d" % (vXa + i, t1, t2))
                A("v_add_u32 v%d, s%d, v%d" % (vWa + i, ta, t3))
                A("v_mov_b32 v%d, v%d" % (vXc + i, vXa + i))
                A("v_mov_b32 v%d, v%d" % (vWc + i, vWa + i))
            A("v_mov_b32 v%d, 0x3f803f80" % vOne2)
            A("v_mov_b32 v%d, 0x3f803f80" % (vOne2 + 1))
            for i in range(12):
                A("v_mov_b32 v%d, 0" % (vCq + i))
            A("s_lshl_b32 s%d, s%d, 2" % (ta, sT))
            A("s_add_u32 s%d, s%d, %d" % (ta, ta, L_CSP))
            A("v_lshl_add_u32 v%d, v%d, 4, s%d" % (vLSa, vN, ta))
            for i in range(48):
                A("v_mov_b32 v%d, 0" % (vAcV + i))
            for i in range(32):
                A("v_mov_b32 v%d, 0" % (vB + 32 + i))
            A("s_mov_b32 s%d, 0" % sRd)
            A("s_mov_b32 s%d, s%d" % (sTq, sT))
        else:
            A("s_lshl_b32 s%d, s%d, 2" % (ta, sWGL))
            A("s_add_u32 s%d, s%d, s%d" % (ta, ta, sT))
            A("s_lshl_b32 s%d, s%d, 6" % (ta, ta))
            A("v_lshl_add_u32 v%d, v%d, 4, s%d" % (vLSa, vG, ta))
            A("s_lshl_b32 s%d, s%d, 2" % (ta, sB))
            A("s_add_u32 s%d, s%d, s%d" % (ta, ta, sT))
            A("s_lshl_b32 s%d, s%d, 10" % (ta, ta))
            A("v_lshrrev_b32 v%d, 1, v%d" % (t0, vKap))
            A("v_lshl_add_u32 v%d, v%d, 6, s%d" % (vLSb, t0, ta))
            A("v_and_b32 v%d, 1, v%d" % (t0, vKap))
            A("v_lshl_add_u32 v%d, v%d, 4, v%d" % (vLSb, t0, vLSb))
            A("s_lshr_b32 s%d, s%d, 1" % (ta, sG3))
            A("s_lshl_b32 s%d, s%d, 12" % (ta, ta))
            A("v_and_b32 v%d, 15, v%d" % (t0, vL))
            A("v_lshl_add_u32 v%d, v%d, 8, s%d" % (vLSc, t0, ta))
            A("s_mov_b32 s%d, 0" % sPub)
            A("s_sub_u32 s%d, 3, s%d" % (sTq, sT))
            srd(sWS, pWS, WS_SIZE)
            srd(sGA, pDBG, 256)
        A("v_lshlrev_b32 v%d, 3, v%d" % (vIG, vG))
        A("v_sub_u32 v%d, v%d, v%d" % (vIG, vKap, vIG))
        A("v_mov_b32 v%d, %s" % (vU0, f32(-BIG)))
        A("v_mov_b32 v%d, 0" % vU1)
        build_mask(False)
        A("v_add_u32 v%d, %d, v%d" % (vKb, L_K + (1024 if loader else 0), vL16))
        A("v_add_u32 v%d, %d, v%d" % (vVb, L_V + (256 if loader else 0), vL16))
        for i in range(16):
            A("v_mov_b32 v%d, v%d" % (vVa + i, vOnes))
        for i in range(16):
            A("v_mov_b32 v%d, 0" % (vO + i))
        A("s_lshl_b32 s%d, s%d, 4" % (ta, sT))
        A("s_add_u32 s%d, s%d, %d" % (ta, ta, L_PAY))
        A("v_lshl_add_u32 v%d, v%d, 3, s%d" % (vU1, vG, ta))
        A("s_mov_b32 s%d, 0" % sS)

    setupL = cap(lambda: common_setup(True, sd, sb, sc))
    dmaL = cap(lambda: (dma_stage(), dma_stage()))
    nld = sum(1 for l in dmaL if "buffer_load" in l)
    per = (len(setupL) + nld - 1) // nld
    pos = 0
    for l in dmaL:
        A.L.append(l)
        if "buffer_load" in l:
            end = min(len(setupL), pos + per)
            while end < len(setupL) and (any(k in setupL[end - 1] for k in ("s_cmp", "v_cmp", "s_nop", "vcc_")) or "v_cndmask" in setupL[end]):
                end += 1
            A.L.extend(setupL[pos:end])
            pos = end
    A.L.extend(setupL[pos:])
    A("s_branch K_LOOP1")
    A.label("K_PRO_DONE")
    common_setup(False, sa, sb, sc)

    stamp(1)
    A("s_waitcnt vmcnt(0)")
    a0, b0, a1, b1 = vE, vE + 1, vE + 2, vE + 3
    for i in range(4):
        z = "0" if i == 0 else None
        A("v_dot2_f32_bf16 v%d, v%d, v%d, %s" % (a0, vRow + i, vOnes, z or "v%d" % a0))
        A("v_dot2_f32_bf16 v%d, v%d, v%d, %s" % (b0, vRow + i, vRow + i, z or "v%d" % b0))
        A("v_dot2_f32_bf16 v%d, v%d, v%d, %s" % (a1, vRow + 4 + i, vOnes, z or "v%d" % a1))
        A("v_dot2_f32_bf16 v%d, v%d, v%d, %s" % (b1, vRow + 4 + i, vRow + 4 + i, z or "v%d" % b1))
    A.nop(3)
    A("v_permlane32_swap_b32 v%d, v%d" % (a0, a1))
    A("v_permlane32_swap_b32 v%d, v%d" % (b0, b1))
    A.nop(1)
    A("v_add_f32 v%d, v%d, v%d" % (a0, a0, a1))
    A("v_add_f32 v%d, v%d, v%d" % (b0, b0, b1))
    A.nop(2)
    A("v_permlane16_swap_b32 v%d, v%d" % (a0, b0))
    A.nop(1)
    A("v_add_f32 v%d, v%d, v%d" % (a0, a0, b0))
    for dpp in ("quad_perm:[1,0,3,2]", "quad_perm:[2,3,0,1]", "row_half_mirror", "row_mirror"):
        A.nop(2)
        A("v_add_f32_dpp v%d, v%d, v%d %s row_mask:0xf bank_mask:0xf" % (a0, a0, a0, dpp))
    A("v_mov_b32 v%d, v%d" % (b0, a0))
    A.nop(2)
    A("v_permlane16_swap_b32 v%d, v%d" % (a0, b0))
    A.nop(1)
    ln_stats(a0, b0)
    A.nop(1)
    A("v_mov_b32 v%d, v%d" % (vRow, b0))
    A("v_mul_f32_e64 v%d, -v%d, v%d" % (vRow + 1, a0, b0))
    A("ds_write_b64 v%d, %s" % (vU1, vr(vRow, 2)))
    stamp(2)
    def rd_advance():
        A("s_add_u32 s%d, s%d, %d" % (sRd, sRd, SLOT))
        A("s_cmp_eq_u32 s%d, %d" % (sRd, NSL * SLOT))
        A("s_cselect_b32 s%d, 0, s%d" % (sRd, sRd))
        A("s_add_u32 s%d, s%d, 1" % (sS, sS))
    def rd0(k):
        B = vB + 16 * k
        A("ds_read_b128 %s, v%d" % (vr(B, 4), vXc + k))
        for seg in (1, 2, 0):
            for half in range(2):
                A("ds_read_b64_tr_b16 %s, v%d offset:%d" % (vr(B + 4 + 4 * seg + 2 * half, 2), vWc + k, 4 * half * 192 + seg * 64))
    def mm(k, which):
        B = vB + 16 * k
        X = vr(B, 4)
        if which == "K":
            A("%s %s, %s, %s, %s" % (MFMA, vr(vAc1, 16), vr(B + 8, 4), X, vr(vAc1, 16)))
        elif which == "V":
            A("%s %s, %s, %s, %s" % (MFMA, vr(vAcV, 16), X, vr(B + 12, 4), vr(vAcV, 16)))
        else:
            A("%s %s, %s, %s, %s" % (MFMA, vr(vAc0, 16), vr(B + 4, 4), X, vr(vAc0, 16)))
    def weave(fill, k):
        n = (len(fill) + 2) // 3
        for gi, w in enumerate("KVQ"):
            mm(k, w)
            A.L.extend(fill[gi * n:(gi + 1) * n])
    def adv(k):
        A("v_add_u32 v%d, s%d, v%d" % (vXc + k, sRd, vXa + k))
        A("v_add_u32 v%d, s%d, v%d" % (vWc + k, sRd, vWa + k))
    def cs4(h):
        for acc, off in ((vCq, 4), (vCk, 8), (vCv, 12)):
            A("%s %s, %s, %s, %s" % (MFMA4, vr(acc, 4), vr(vOne2, 2), vr(vB + off + 2 * h, 2), vr(acc, 4)))
    A("s_waitcnt lgkmcnt(0)")
    A.label("K_LOOP0")
    A("s_barrier")
    A("s_waitcnt lgkmcnt(7)")
    weave(cap(lambda: (rd0(0), rd_advance())), 2)
    A("s_waitcnt lgkmcnt(7)")
    weave(cap(lambda: (rd0(1), adv(0), adv(1))), 3)
    A("s_waitcnt lgkmcnt(7)")
    weave(cap(lambda: (rd0(2), rd0(3))), 0)
    cs4(0)
    cs4(1)
    A("s_waitcnt lgkmcnt(14)")
    mm(1, "K")
    adv(2)
    adv(3)
    mm(1, "V")
    A("s_cmp_lt_u32 s%d, 8" % sS)
    mm(1, "Q")
    A("s_cbranch_scc1 K_LOOP0")
    for acc in (vCq, vCk, vCv):
        A("v_mov_b32 v%d, v%d" % (acc + 1, acc))
    A("s_waitcnt lgkmcnt(0)")
    mm(2, "V")
    for acc in (vCq, vCk, vCv):
        A("v_permlane32_swap_b32 v%d, v%d" % (acc, acc + 1))
    for acc in (vCq, vCk, vCv):
        A("v_add_f32 v%d, v%d, v%d" % (acc, acc, acc + 1))
    for seg, acc in enumerate((vCq, vCk, vCv)):
        A("ds_write_b32 v%d, v%d offset:%d" % (vLSa, acc, seg * 512))
    mm(3, "V")
    A("s_waitcnt lgkmcnt(0)")
    A("s_barrier")
    mm(2, "K")
    A("s_lshl_b32 s%d, s%d, 7" % (sa, sT))
    A("s_add_u32 s%d, s%d, %d" % (sa, sa, L_STR))
    A("v_lshl_add_u32 v%d, v%d, 2, s%d" % (vU0, vKap, sa))
    A("v_lshlrev_b32 v%d, 4, v%d" % (vT1, vG))
    mm(3, "K")
    A("v_add_u32 v%d, %d, v%d" % (vT1, L_CS, vT1))
    A("s_lshl_b32 s%d, s%d, 12" % (sa, sT))
    A("s_add_u32 s%d, s%d, %d" % (sa, sa, L_VX))
    A("v_add_u32 v%d, s%d, v%d" % (vT0, sa, vL16))
    mm(2, "Q")
    A("v_mov_b32 v%d, %d" % (vU1, L_NON))
    for q in range(4):
        A("ds_write_b128 v%d, %s offset:%d" % (vT0, vr(vAcV + 4 * q, 4), q * 1024))
    mm(3, "Q")
    stamp(3)
    A("s_lshl_b32 s%d, s%d, 11" % (sa, sT))
    A("s_add_u32 s%d, s%d, %d" % (sb, sa, L_K + 8 * 2048))
    A("v_add_u32 v%d, s%d, v%d" % (vT0, sb, vL16))
    A("s_lshl_b32 s%d, s%d, 14" % (sd, sWGL))
    A("s_add_u32 s%d, s%d, s%d" % (sd, sd, sa))
    A("s_waitcnt lgkmcnt(0)")
    A("s_barrier")
    A("ds_read_b32 v%d, v%d" % (vT2, vU0))
    A("ds_read_b32 v%d, v%d offset:%d" % (vT3, vU0, L_STM - L_STR))
    for tile in (1, 0):
        for a in range(4):
            A("ds_read_b128 %s, v%d offset:%d" % (vr(vE + 16 * tile + 4 * a, 4), vT1, tile * 128 + a * 32))
    A("ds_read_b64 %s, v%d" % (vr(vNon, 2), vU1))
    A("s_waitcnt lgkmcnt(9)")
    for r in range(16):
        A("v_mul_f32 v%d, v%d, v%d" % (vAc1 + r, vAc1 + r, vT2))
    A("s_waitcnt lgkmcnt(5)")
    for r in range(16):
        A("v_fmac_f32 v%d, v%d, v%d" % (vAc1 + r, vE + 16 + r, vT3))
    def pack_store(acc, soff):
        for i in range(8):
            A("v_cvt_pk_bf16_f32 v%d, v%d, v%d" % (vPk + i, acc + 2 * i, acc + 2 * i + 1))
        A("buffer_store_dwordx4 %s, v%d, %s, s%d offen sc1" % (vr(vPk, 4), vL16, sr(sWS, 4), soff))
        A("buffer_store_dwordx4 %s, v%d, %s, s%d offen offset:1024 sc1" % (vr(vPk + 4, 4), vL16, sr(sWS, 4), soff))
        sumu(vGc, vPk, 8)
        A("ds_write_b128 v%d, %s" % (vT0, vr(vPk, 4)))
        A("ds_write_b128 v%d, %s offset:1024" % (vT0, vr(vPk + 4, 4)))
        wave_sumu(vGc, vGc + 1)
        A("s_lshl_b32 s%d, s%d, 3" % (sb, sWGL))
        A("s_add_u32 s%d, s%d, s%d" % (sb, sb, sWv))
        A("s_lshl_b32 s%d, s%d, 6" % (sb, sb))
        A("s_add_u32 s%d, s%d, 0x%x" % (sb, sb, WS_FKV))
        A("s_waitcnt lgkmcnt(2)")
        A("v_mov_b32 v%d, v%d" % (vGc + 2, vNon))
        A("v_mov_b32 v%d, v%d" % (vGc + 3, vNon + 1))
        A("s_mov_b64 exec, 1")
        A("buffer_store_dwordx4 %s, v%d, %s, s%d offen sc1" % (vr(vGc, 4), vL16, sr(sWS, 4), sb))
        A("s_mov_b64 exec, -1")
    pack_store(vAc1, sd)
    A("v_mul_f32 v%d, %s, v%d" % (vT2, f32(0.25 * LOG2E), vT2))
    A("v_mul_f32 v%d, %s, v%d" % (vT3, f32(0.25 * LOG2E), vT3))
    A("s_waitcnt lgkmcnt(2)")
    for r in range(8, 16):
        A("v_mul_f32 v%d, v%d, v%d" % (vAc0 + r, vAc0 + r, vT2))
        A("v_fmac_f32 v%d, v%d, v%d" % (vAc0 + r, vE + r, vT3))
    for i in range(4):
        A("v_cvt_pk_bf16_f32 v%d, v%d, v%d" % (vPk + 8 + i, vAc0 + 8 + 2 * i, vAc0 + 8 + 2 * i + 1))
    A("s_lshl_b32 s%d, s%d, 10" % (sa, sT))
    A("s_add_u32 s%d, s%d, %d" % (sa, sa, L_Q))
    A("v_add_u32 v%d, s%d, v%d" % (vT0, sa, vL16))
    A("ds_write_b128 v%d, %s" % (vT0, vr(vPk + 8, 4)))
    for r in range(8):
        A("v_mul_f32 v%d, v%d, v%d" % (vAc0 + r, vAc0 + r, vT2))
        A("v_fmac_f32 v%d, v%d, v%d" % (vAc0 + r, vE + r, vT3))
    for i in range(4):
        A("v_cvt_pk_bf16_f32 v%d, v%d, v%d" % (vQ + i, vAc0 + 2 * i, vAc0 + 2 * i + 1))
    A("s_branch K_PUB")

    A.label("K_LOOP1")
    A("v_mov_b32 v%d, 0" % vT0)
    A("buffer_load_dwordx2 %s, v%d, %s, 0 offen sc1" % (vr(vNon, 2), vT0, sr(sGA, 4)))
    stamp(2)
    def try_publish(lab, blocking=False):
        A.label(lab + "_r")
        A("s_cmp_lg_u32 s%d, 0" % sPub)
        A("s_cbranch_scc1 %s" % lab)
        if blocking:
            A("s_waitcnt vmcnt(0)")
        A("v_readfirstlane_b32 s%d, v%d" % (sPub, vNon + 1))
        A("ds_read_b64 %s, v%d" % (vr(vRow, 2), vU1))
        A("s_cmp_lg_u32 s%d, 0" % sPub)
        A("s_cbranch_scc1 %s_ok" % lab)
        A("buffer_load_dwordx2 %s, v%d, %s, 0 offen sc1" % (vr(vNon, 2), vT0, sr(sGA, 4)))
        if blocking:
            spin_tail(lab + "_r", sS)
        A("s_branch %s" % lab)
        A.label(lab + "_ok")
        A("v_mov_b32 v%d, v%d" % (vRow + 2, vNon))
        A("v_mov_b32 v%d, v%d" % (vRow + 3, vNon + 1))
        A("s_mov_b32 s%d, 0x%x" % (sb, WS_LS))
        A("s_mov_b32 exec_lo, 1")
        A("s_mov_b32 exec_hi, 1")
        A("s_waitcnt lgkmcnt(0)")
        A("buffer_store_dwordx4 %s, v%d, %s, s%d offen sc1" % (vr(vRow, 4), vLSa, sr(sWS, 4), sb))
        A("s_mov_b64 exec, -1")
        A.label(lab)
    A.label("K_LOOP1T")
    A("s_sub_u32 s%d, s%d, 3" % (sb, sS))
    A("s_cmp_lt_u32 s%d, 2" % sb)
    A("s_cbranch_scc1 K_L1_W8")
    A("s_waitcnt vmcnt(7)")
    A.label("K_L1_W8")
    A("s_waitcnt vmcnt(8)")
    if opt.get("p1st"):
        for k in range(0, 6, 2 if opt["p1st"] == 2 else 1):
            A("s_cmp_eq_u32 s%d, %d" % (sS, k))
            A("s_cbranch_scc0 K_DST%d" % k)
            stamp(4 + k)
            A.label("K_DST%d" % k)
    A("s_barrier")
    if opt.get("p1st") == 2:
        for k in range(0, 6, 2):
            A("s_cmp_eq_u32 s%d, %d" % (sS, k))
            A("s_cbranch_scc0 K_DSU%d" % k)
            stamp(5 + k)
            A.label("K_DSU%d" % k)
    dma_stage()
    A("s_cmp_lg_u32 s%d, 2" % sS)
    A("s_cbranch_scc1 K_L1_PUB")
    try_publish("K_L1_PUB")
    A("s_add_u32 s%d, s%d, 1" % (sS, sS))
    A("s_cmp_lt_u32 s%d, 6" % sS)
    A("s_cbranch_scc1 K_LOOP1T")
    A("s_waitcnt vmcnt(7)")
    if opt.get("p1st"): stamp(10)
    A("s_barrier")
    try_publish("K_L1_PUB2", blocking=True)
    A("s_mov_b32 s%d, 0x%x" % (sb, WS_LS))
    A("buffer_load_dwordx4 %s, v%d, %s, s%d offen sc1" % (vr(vRow + 4, 4), vLSb, sr(sWS, 4), sb))
    A("buffer_load_dwordx4 %s, v%d, %s, s%d offen sc1" % (vr(vGc, 4), vLSc, sr(sWS, 4), sb))
    A("s_lshl_b32 s%d, s%d, 7" % (sc, sT))
    A("s_add_u32 s%d, s%d, %d" % (sc, sc, L_STR))
    A("v_lshl_add_u32 v%d, v%d, 5, s%d" % (vT1, vG, sc))
    A("v_lshl_add_u32 v%d, v%d, 2, s%d" % (vU0, vKap, sc))
    A("v_mov_b32 v%d, %d" % (vT3, L_NON))
    A("ds_write_b64 v%d, %s" % (vT3, vr(vNon, 2)))
    A("s_lshl_b32 s%d, s%d, 12" % (sc, sT))
    A("s_add_u32 s%d, s%d, %d" % (sc, sc, L_VX))
    A("v_add_u32 v%d, s%d, v%d" % (vT3, sc, vL16))
    A("v_lshlrev_b32 v%d, 4, v%d" % (vT2, vN))
    A("v_add_u32 v%d, %d, v%d" % (vT2, L_CSP, vT2))
    A("s_mov_b32 s%d, 0" % sCnt)
    A("s_waitcnt vmcnt(2)")
    if opt.get("p1st"): stamp(11)
    A("s_barrier")
    if opt.get("p1st"): stamp(12)
    A.label("K_LS_CHK")
    A("s_waitcnt vmcnt(0)")
    A("v_cmp_eq_u64 vcc, %s, %s" % (vr(vRow + 6, 2), vr(vNon, 2)))
    A("v_cmp_eq_u64 s[68:69], %s, %s" % (vr(vGc + 2, 2), vr(vNon, 2)))
    A("s_and_b64 vcc, vcc, s[68:69]")
    A("s_cmp_eq_u64 vcc, exec")
    A("s_cbranch_scc1 K_LS_OK")
    A("buffer_load_dwordx4 %s, v%d, %s, s%d offen sc1" % (vr(vRow + 4, 4), vLSb, sr(sWS, 4), sb))
    A("buffer_load_dwordx4 %s, v%d, %s, s%d offen sc1" % (vr(vGc, 4), vLSc, sr(sWS, 4), sb))
    spin_tail("K_LS_CHK", sCnt)
    A.label("K_LS_OK")
    A("ds_write_b32 v%d, v%d" % (vU0, vRow + 4))
    A("ds_write_b32 v%d, v%d offset:%d" % (vU0, vRow + 5, L_STM - L_STR))
    A("s_waitcnt lgkmcnt(0)")
    for q in range(4):
        off = (q & 1) * 16 + (q >> 1) * 64
        A("ds_read_b128 %s, v%d offset:%d" % (vr(vE + 4 * q, 4), vT1, off))
        A("ds_read_b128 %s, v%d offset:%d" % (vr(vE + 16 + 4 * q, 4), vT1, off + L_STM - L_STR))
    if opt.get("p1st"): stamp(13)
    A("s_barrier")
    if opt.get("p1st"): stamp(14)
    for seg, acc in enumerate((vCq, vCk, vCv)):
        A("ds_read_b128 %s, v%d offset:%d" % (vr(acc, 4), vT2, seg * 512))
    A("v_lshlrev_b32 v%d, 2, v%d" % (vT2, vN))
    A("v_add_u32 v%d, %d, v%d" % (vT2, L_CS, vT2))
    A("s_lshl_b32 s%d, s%d, 11" % (sb, sT))
    A("s_add_u32 s%d, s%d, %d" % (sc, sb, L_V + 8 * 2048))
    A("v_add_u32 v%d, s%d, v%d" % (vT0, sc, vL16))
    A("s_lshl_b32 s%d, s%d, 14" % (sc, sWGL))
    A("s_add_u32 s%d, s%d, s%d" % (sc, sc, sb))
    A("s_add_u32 s%d, s%d, 8192" % (sc, sc))
    A("s_waitcnt lgkmcnt(0)")
    for acc in (vCq, vCk, vCv):
        A("v_add_f32 v%d, v%d, v%d" % (acc, acc, acc + 1))
        A("v_add_f32 v%d, v%d, v%d" % (acc + 2, acc + 2, acc + 3))
    for acc in (vCq, vCk, vCv):
        A("v_add_f32 v%d, v%d, v%d" % (acc, acc, acc + 2))
    A("ds_write_b32 v%d, v%d" % (vT2, vCq))
    A("ds_write_b32 v%d, v%d offset:128" % (vT2, vCk))
    stamp(3)
    for r in range(16):
        A("v_mul_f32 v%d, v%d, v%d" % (vE + 16 + r, vE + 16 + r, vCv))
    A("s_waitcnt lgkmcnt(0)")
    A("s_barrier")
    for q in range(4):
        A("ds_read_b128 %s, v%d offset:%d" % (vr(vAc0 + 4 * q, 4), vT3, q * 1024))
    for q in range(4):
        A("s_waitcnt lgkmcnt(%d)" % (3 - q))
        for r in range(4 * q, 4 * q + 4):
            A("v_fma_f32 v%d, v%d, v%d, v%d" % (vAc0 + r, vAc0 + r, vE + r, vE + 16 + r))
    pack_store(vAc0, sc)

    A.label("K_PUB")
    A("s_mov_b32 s%d, 0" % sWoN)
    A("s_mov_b32 s%d, 0x0000ffff" % sMaskV)
    A("s_mov_b32 s%d, 0x0000ffff" % (sMaskV + 1))
    A("v_mov_b32 v%d, %s" % (vMold, f32(-BIG)))
    A("s_lshl_b32 s%d, s%d, 10" % (sa, sTq))
    A("s_add_u32 s%d, s%d, %d" % (sa, sa, L_Q))
    A("v_add_u32 v%d, s%d, v%d" % (vT0, sa, vL16))
    A("s_waitcnt lgkmcnt(0)")
    A("s_barrier")
    if opt.get("p1st"):
        A("s_branch K_FIN")
    stamp(4)
    A("s_cmp_eq_u32 s%d, 0" % sC)
    A("s_cbranch_scc1 K_HAVEQ")
    A("ds_read_b128 %s, v%d" % (vr(vQ, 4), vT0))
    A.label("K_HAVEQ")
    A("s_cmp_ge_u32 s%d, 2" % sTq)
    A("s_cbranch_scc1 K_NOP0")
    A("s_setprio 2")
    A.label("K_NOP0")
    A("s_mov_b32 s%d, 0" % sChunk)
    A("s_mov_b32 s%d, 0" % sN1)
    A.label("K_CHUNK0")
    A("s_add_u32 s%d, s%d, 8" % (sa, sTq))
    A("s_mov_b32 s%d, 8" % sb)
    A("s_mov_b32 s%d, s%d" % (sN, sTq))
    A.label("K_CHUNK")
    A("s_lshl_b32 s%d, s%d, 11" % (sKm, sa))
    A("s_lshl_b32 s%d, s%d, 11" % (sKu, sb))
    A("v_add_u32 v%d, s%d, v%d" % (vKad, sKm, vKb))
    A("ds_read_b128 %s, v%d" % (vr(vKbf, 4), vKad))
    A("v_add_u32 v%d, s%d, v%d" % (vKad, sKu, vKb))
    A("ds_read_b128 %s, v%d" % (vr(vKa, 4), vKad))
    A("v_add_u32 v%d, s%d, v%d" % (vVad, sKm, vVb))
    A("s_mov_b64 exec, %s" % sr(sMaskV, 2))
    A("ds_read_b128 %s, v%d" % (vr(vVbf, 4), vVad))
    A("ds_read_b128 %s, v%d offset:1024" % (vr(vVbf + 4, 4), vVad))
    A("s_mov_b64 exec, -1")
    A("v_add_u32 v%d, s%d, v%d" % (vVad, sKu, vVb))
    A("v_mov_b32 v%d, v%d" % (vM, vMold))
    A("s_mov_b32 s%d, 0" % sI)
    A("s_waitcnt lgkmcnt(3)")
    A("%s %s, %s, %s, %s" % (MFMA, vr(vSb, 16), vr(vKbf, 4), vr(vQ, 4), vr(vCm, 16)))
    def wo_piece(lab, gate=False):
        if gate:
            A("s_cmp_lt_u32 s%d, %d" % (sI, opt.get("wost", 0)))
            A("s_cbranch_scc1 %s" % lab)
        A("s_cmp_eq_u32 s%d, 0" % sWoN)
        A("s_cbranch_scc1 %s" % lab)
        A("s_add_u32 s%d, s%d, s%d" % (sa, sWoL, sWoR))
        A("s_mov_b32 m0, s%d" % sa)
        A("s_lshl_b32 s%d, s%d, 3" % (sa, sWoR))
        A("s_add_u32 s%d, s%d, s%d" % (sa, sa, sWoG))
        A("buffer_load_dwordx4 v%d, %s, s%d offen lds" % (vWoA, sr(sW, 4), sa))
        A("s_add_u32 s%d, s%d, 2048" % (sWoR, sWoR))
        A("buffer_load_dwordx4 v%d, %s, s%d offen offset:1024 lds" % (vWoB, sr(sW, 4), sa))
        A("s_sub_u32 s%d, s%d, 1" % (sWoN, sWoN))
        A.label(lab)
    def max16(S):
        for i in range(8):
            A("v_max3_f32 v%d, v%d, v%d, v%d" % (vM, S + 2 * i, S + 2 * i + 1, vM))
    A.nop(6)
    A.label("K_P1")
    A("s_waitcnt lgkmcnt(0)")
    A("%s %s, %s, %s, 0" % (MFMA, vr(vSa, 16), vr(vKa, 4), vr(vQ, 4)))
    A("ds_read_b128 %s, v%d offset:2048" % (vr(vKbf, 4), vKad))
    A.nop(3)
    max16(vSb)
    A("s_cmp_ge_u32 s%d, s%d" % (sI, sN1))
    A("s_cbranch_scc1 K_P1_DONE")
    A("s_add_u32 s%d, s%d, 1" % (sI, sI))
    A("s_waitcnt lgkmcnt(0)")
    A("%s %s, %s, %s, 0" % (MFMA, vr(vSb, 16), vr(vKbf, 4), vr(vQ, 4)))
    A("v_add_u32 v%d, 4096, v%d" % (vKad, vKad))
    A("ds_read_b128 %s, v%d" % (vr(vKa, 4), vKad))
    max16(vSa)
    A("s_cmp_ge_u32 s%d, s%d" % (sI, sN1))
    A("s_cbranch_scc1 K_P1_DONE")
    A("s_add_u32 s%d, s%d, 1" % (sI, sI))
    A("s_branch K_P1")
    A.label("K_P1_DONE")
    A("v_mov_b32 v%d, v%d" % (vT0, vM))
    A("s_waitcnt lgkmcnt(0)")
    A("v_add_u32 v%d, s%d, v%d" % (vKad, sKm, vKb))
    A("ds_read_b128 %s, v%d" % (vr(vKbf, 4), vKad))
    A("v_permlane32_swap_b32 v%d, v%d" % (vM, vT0))
    A("v_add_u32 v%d, s%d, v%d" % (vKad, sKu, vKb))
    A("ds_read_b128 %s, v%d" % (vr(vKa, 4), vKad))
    A("v_max_f32 v%d, v%d, v%d" % (vM, vM, vT0))
    A("v_sub_f32 v%d, v%d, v%d" % (vT0, vMold, vM))
    A("v_exp_f32 v%d, v%d" % (vT0, vT0))
    A("v_mov_b32 v%d, v%d" % (vMold, vM))
    for r in range(16):
        A("v_sub_f32 v%d, v%d, v%d" % (vCm + r, vCm + r, vM))
    A("s_waitcnt lgkmcnt(1)")
    A("v_sub_f32 v%d, 0, v%d" % (vCn, vM))
    A("%s %s, %s, %s, %s" % (MFMA, vr(vSb, 16), vr(vKbf, 4), vr(vQ, 4), vr(vCm, 16)))
    for r in range(1, 16):
        A("v_mov_b32 v%d, v%d" % (vCn + r, vCn))
    for r in range(9):
        A("v_mul_f32 v%d, v%d, v%d" % (vO + r, vO + r, vT0))
    A("s_mov_b32 s%d, 0" % sI)
    def softmax_pv(S, V):
        for r in range(16):
            A("v_exp_f32 v%d, v%d" % (S + r, S + r))
            if r == 3 and opt.get("wost", 0):
                wo_piece("K_WOP%d" % S, True)
            if r == 11 and opt.get("wost", 0):
                wo_piece("K_WOQ%d" % S, True)
        for i in range(8):
            A("v_cvt_pk_bf16_f32 v%d, v%d, v%d" % (vP + i, S + 2 * i, S + 2 * i + 1))
        A.nop(1)
        A("%s %s, %s, %s, %s" % (MFMA, vr(vO, 16), vr(V, 4), vr(vP, 4), vr(vO, 16)))
        A("%s %s, %s, %s, %s" % (MFMA, vr(vO, 16), vr(V + 4, 4), vr(vP + 4, 4), vr(vO, 16)))
    A.label("K_P2")
    A("s_waitcnt lgkmcnt(0)")
    A("%s %s, %s, %s, %s" % (MFMA, vr(vSa, 16), vr(vKa, 4), vr(vQ, 4), vr(vCn, 16)))
    A("ds_read_b128 %s, v%d offset:2048" % (vr(vKbf, 4), vKad))
    A("s_mov_b64 exec, %s" % sr(sMaskV, 2))
    A("ds_read_b128 %s, v%d" % (vr(vVa, 4), vVad))
    A("ds_read_b128 %s, v%d offset:1024" % (vr(vVa + 4, 4), vVad))
    A("s_mov_b64 exec, -1")
    softmax_pv(vSb, vVbf)
    A("s_cmp_ge_u32 s%d, s%d" % (sI, sN))
    A("s_cbranch_scc1 K_P2_DONE")
    A("s_add_u32 s%d, s%d, 1" % (sI, sI))
    A("s_waitcnt lgkmcnt(0)")
    A("%s %s, %s, %s, %s" % (MFMA, vr(vSb, 16), vr(vKbf, 4), vr(vQ, 4), vr(vCn, 16)))
    A("v_add_u32 v%d, 4096, v%d" % (vKad, vKad))
    A("ds_read_b128 %s, v%d" % (vr(vKa, 4), vKad))
    A("s_mov_b64 exec, %s" % sr(sMaskV, 2))
    A("ds_read_b128 %s, v%d offset:2048" % (vr(vVbf, 4), vVad))
    A("ds_read_b128 %s, v%d offset:3072" % (vr(vVbf + 4, 4), vVad))
    A("s_mov_b64 exec, -1")
    A("v_add_u32 v%d, 4096, v%d" % (vVad, vVad))
    softmax_pv(vSa, vVa)
    A("s_cmp_ge_u32 s%d, s%d" % (sI, sN))
    A("s_cbranch_scc1 K_P2_DONE")
    A("s_add_u32 s%d, s%d, 1" % (sI, sI))
    A("s_branch K_P2")
    A.label("K_P2_DONE")
    A("s_waitcnt lgkmcnt(0)")
    A("s_cmp_eq_u32 s%d, 1" % sChunk)
    A("s_cbranch_scc1 K_ATT_CHECK")
    A("s_cmp_eq_u32 s%d, 2" % sChunk)
    A("s_cbranch_scc1 K_SLOW1")
    A("s_cmp_eq_u32 s%d, 3" % sChunk)
    A("s_cbranch_scc1 K_ATT_DONE")
    stamp(5)
    A("s_mov_b32 s%d, 0" % sFon)
    A("v_lshlrev_b32 v%d, 6, v%d" % (vKV + 36, vL))
    A("v_mov_b32 v%d, 0" % (vKV + 32))
    A("s_cmp_ge_u32 s%d, 2" % sTq)
    A("s_cbranch_scc1 K_FETCH_ISSUED")
    A("s_cmp_le_u32 s%d, s%d" % (sB, sTq))
    A("s_cbranch_scc1 K_FETCH_ISSUED")
    A("s_mov_b32 s%d, 1" % sFon)
    A("s_add_u32 s%d, s%d, 1" % (sa, sTq))
    A("s_lshl_b32 s%d, s%d, 4" % (sa, sa))
    A("s_sub_u32 s%d, s%d, s%d" % (sa, sWGL, sa))
    A("s_lshl_b32 s%d, s%d, 1" % (sa, sa))
    A("s_add_u32 s%d, s%d, s%d" % (sa, sa, sC))
    A("s_lshl_b32 s%d, s%d, 13" % (sFa, sa))
    A("s_lshl_b32 s%d, s%d, 8" % (sFg, sa))
    A("s_add_u32 s%d, s%d, 0x%x" % (sFg, sFg, WS_FKV))
    def kv_loads():
        A("s_add_u32 s%d, s%d, 4096" % (sb, sFa))
        for q in range(8):
            A("buffer_load_dwordx4 %s, v%d, %s, s%d offen offset:%d sc1" % (vr(vKV + 4 * q, 4), vL16, sr(sWS, 4), sFa if q < 4 else sb, (q & 3) * 1024))
        A("s_mov_b64 exec, 0xf")
        A("buffer_load_dwordx4 %s, v%d, %s, s%d offen sc1" % (vr(vKV + 32, 4), vKV + 36, sr(sWS, 4), sFg))
        A("s_mov_b64 exec, -1")
    kv_loads()
    A.label("K_FETCH_ISSUED")
    A("v_mov_b32 v%d, %s" % (vU0, f32(-BIG)))
    A("s_cmp_eq_u32 s%d, 1" % sB)
    A("s_cselect_b32 s%d, %s, 0" % (sCnt, f32(-BIG)))
    A("v_add_f32 v%d, s%d, v%d" % (vU1, sCnt, vCn))
    build_mask(True)
    srd(sGB, pWR, 1024)
    srd(sW, pWO, 0x80000)
    A("v_lshrrev_b32 v%d, 3, v%d" % (vT0, vL))
    A("v_bfe_u32 v%d, v%d, 4, 1" % (vT1, vL))
    A("v_lshlrev_b32 v%d, 2, v%d" % (vT1, vT1))
    A("v_and_b32 v%d, 7, v%d" % (vT2, vL))
    A("v_xor_b32 v%d, v%d, v%d" % (vT2, vT2, vT1))
    A("v_lshlrev_b32 v%d, 4, v%d" % (vT2, vT2))
    A("v_lshl_add_u32 v%d, v%d, 10, v%d" % (vWoA, vT0, vT2))
    A("v_add_u32 v%d, %d, v%d" % (vWoB, 8192 - 1024, vWoA))
    A("s_lshl_b32 s%d, s%d, 7" % (sd, sCG))
    A("s_lshl_b32 s%d, s%d, 1" % (sWoL, sC))
    A("s_add_u32 s%d, s%d, s%d" % (sWoL, sWoL, sTq))
    A("s_lshl_b32 s%d, s%d, 17" % (sWoG, sWoL))
    A("s_add_u32 s%d, s%d, s%d" % (sWoG, sWoG, sd))
    A("s_lshl_b32 s%d, s%d, 14" % (sWoL, sWoL))
    A("s_add_u32 s%d, s%d, %d" % (sWoL, sWoL, L_WO))
    A("s_mov_b32 s%d, 0" % sWoR)
    A("s_cmp_lt_u32 s%d, 2" % sTq)
    A("s_cselect_b32 s%d, 8, 0" % sWoN)
    def chunk1_params():
        A("s_add_u32 s%d, s%d, 1" % (sb, sTq))
        A("s_mov_b32 s%d, s%d" % (sa, sTq))
        A("s_cmp_eq_u32 s%d, 1" % sB)
        A("s_cselect_b32 s%d, 4, s%d" % (sb, sb))
        A("s_cselect_b32 s%d, 4, s%d" % (sa, sa))
        A("s_sub_u32 s%d, 8, s%d" % (sN, sb))
    chunk1_params()
    A("s_lshl_b32 s%d, s%d, 11" % (sa, sa))
    A("s_lshl_b32 s%d, s%d, 11" % (sb, sb))
    A("v_add_u32 v%d, s%d, v%d" % (vKV + 40, sa, vKb))
    A("v_add_u32 v%d, s%d, v%d" % (vKad, sb, vKb))
    A("v_add_u32 v%d, s%d, v%d" % (vKV + 41, sa, vVb))
    A("v_add_u32 v%d, s%d, v%d" % (vVad, sb, vVb))
    A("s_mov_b32 s%d, 0" % sI)
    A("s_mov_b32 s%d, 1" % sChunk)
    A("v_and_b32 v%d, 7, v%d" % (vKV + 42, vL))
    A("v_lshlrev_b32 v%d, 4, v%d" % (vKV + 42, vKV + 42))
    A("v_lshl_add_u32 v%d, v%d, 10, v%d" % (vKV + 43, vTok, vKV + 42))
    A("s_cmp_eq_u32 s%d, 0" % sFon)
    A("s_cbranch_scc1 K_B3")
    A("s_mul_i32 s68, s%d, %d" % (sC, L_V - L_K))
    A("s_lshl_b32 s69, s%d, 13" % sTq)
    A("s_sub_u32 s68, s68, s69")
    A("s_add_u32 s68, s68, %d" % (L_K + 8192))
    A("v_add_u32 v%d, s68, v%d" % (vT1, vL16))
    A("s_mov_b32 s%d, 0" % sCnt)
    A.label("K_KVCHK")
    A("s_waitcnt vmcnt(0)")
    A("v_cmp_eq_u64 vcc, %s, %s" % (vr(vKV + 34, 2), vr(vNon, 2)))
    A("s_and_b32 s68, vcc_lo, 0xf")
    A("s_cmp_eq_u32 s68, 0xf")
    A("s_cbranch_scc0 K_KVRETRY")
    for i in range(8):
        A("ds_write_b128 v%d, %s offset:%d" % (vT1, vr(vKV + 4 * i, 4), i * 1024))
    A("v_sub_u32 v%d, 0, v%d" % (vT0, vKV + 32))
    sumu(vT0, vKV, 32, init=vT0)
    wave_sumu(vT0, vT3)
    A.nop(1)
    A("v_readfirstlane_b32 s68, v%d" % vT0)
    A("s_cmp_eq_u32 s68, 0")
    A("s_cbranch_scc1 K_B3W")
    A("s_waitcnt lgkmcnt(0)")
    A.label("K_KVRETRY")
    kv_loads()
    spin_tail("K_KVCHK", sCnt)
    A.label("K_B3W")
    A("s_waitcnt lgkmcnt(0)")
    A.label("K_B3")
    A("s_barrier")
    stamp(6)
    A("ds_read_b128 %s, v%d" % (vr(vKbf, 4), vKV + 40))
    A("ds_read_b128 %s, v%d" % (vr(vKa, 4), vKad))
    A("s_mov_b64 exec, %s" % sr(sMaskV, 2))
    A("ds_read_b128 %s, v%d" % (vr(vVbf, 4), vKV + 41))
    A("ds_read_b128 %s, v%d offset:1024" % (vr(vVbf + 4, 4), vKV + 41))
    A("s_mov_b64 exec, -1")
    A("buffer_load_dwordx4 %s, v%d, %s, s%d offen" % (vr(vXr, 4), vKV + 43, sr(sX, 4), sd))
    A("buffer_load_dwordx4 %s, v%d, %s, s%d offen" % (vr(vWr, 4), vKV + 42, sr(sGB, 4), sd))
    A("buffer_load_dwordx4 %s, v%d, %s, 0 offen" % (vr(vWR4, 4), vL16, sr(sGB, 4)))
    A("s_waitcnt lgkmcnt(3)")
    A("%s %s, %s, %s, %s" % (MFMA, vr(vSb, 16), vr(vKbf, 4), vr(vQ, 4), vr(vCm, 16)))
    A("s_cmp_lt_u32 s%d, %d" % (sTq, 9 if opt.get("notouch") else 2))
    A("s_cbranch_scc1 K_TOUCHED")
    A("s_lshl_b32 s%d, s%d, 1" % (sc, sC))
    A("s_add_u32 s%d, s%d, s%d" % (sc, sc, sTq))
    A("s_and_b32 s%d, s2, 7" % sa)
    A("s_lshr_b32 s%d, s2, 3" % sb)
    A("s_mul_i32 s%d, s%d, 44032" % (sb, sb))
    A("s_cmp_eq_u32 s%d, 5" % sc)
    A("s_cbranch_scc0 K_TOUCH_F")
    A("v_lshlrev_b32 v%d, 7, v%d" % (vT0, vL))
    A("s_lshr_b32 s%d, s2, 3" % sb)
    A("s_lshl_b32 s%d, s%d, 14" % (sb, sb))
    A("buffer_load_dword v%d, v%d, %s, s%d offen" % (vU0, vT0, sr(sW, 4), sb))
    A("s_add_u32 s%d, s%d, 8192" % (sb, sb))
    A("buffer_load_dword v%d, v%d, %s, s%d offen" % (vU1, vT0, sr(sW, 4), sb))
    A("s_branch K_TOUCHED")
    A.label("K_TOUCH_F")
    A("s_cmp_eq_u32 s%d, 4" % sc)
    A("s_cbranch_scc1 K_TOUCH_D")
    A("s_cmp_eq_u32 s%d, 2" % sc)
    A("s_cselect_b32 s%d, s%d, s%d" % (sGA, pWG, pWU))
    A("s_cselect_b32 s%d, s%d, s%d" % (sGA + 1, pWG + 1, pWU + 1))
    A("s_mov_b32 s%d, %d" % (sGA + 2, 512 * 2752))
    A("s_mov_b32 s%d, 0x20000" % (sGA + 3))
    A("v_lshrrev_b32 v%d, 2, v%d" % (vT0, vL))
    A("v_mul_u32_u24 v%d, 2752, v%d" % (vT0, vT0))
    A("v_and_b32 v%d, 3, v%d" % (vT1, vL))
    if opt.get("t128", 1):
        A("v_lshlrev_b32 v%d, 7, v%d" % (vT1, vT1))
        A("v_min_u32 v%d, 348, v%d" % (vT1, vT1))
        A("v_add_u32 v%d, v%d, v%d" % (vT2, vT1, vT0))
    else:
        A("v_lshl_add_u32 v%d, v%d, 6, v%d" % (vT2, vT1, vT0))
        A("v_lshlrev_b32 v%d, 6, v%d" % (vT1, vT1))
        A("v_min_u32 v%d, 92, v%d" % (vT1, vT1))
        A("v_add_u32 v%d, v%d, v%d" % (vT3, vT1, vT0))
    A("s_mul_i32 s%d, s%d, 352" % (sa, sa))
    A("s_add_u32 s%d, s%d, s%d" % (sa, sa, sb))
    A("buffer_load_dword v%d, v%d, %s, s%d offen" % (vU0, vT2, sr(sGA, 4), sa))
    if not opt.get("t128", 1):
        A("buffer_load_dword v%d, v%d, %s, s%d offen offset:256" % (vU1, vT3, sr(sGA, 4), sa))
    A("s_branch K_TOUCHED")
    A.label("K_TOUCH_D")
    srd(sGA, pWD, 1376 * 1024)
    A("v_min_u32 v%d, 42, v%d" % (vT0, vL))
    A("v_lshlrev_b32 v%d, 10, v%d" % (vT0, vT0))
    A("s_lshl_b32 s%d, s%d, 7" % (sa, sa))
    A("s_add_u32 s%d, s%d, s%d" % (sa, sa, sb))
    A("buffer_load_dword v%d, v%d, %s, s%d offen" % (vU0, vT0, sr(sGA, 4), sa))
    if not opt.get("t128", 1):
        A("buffer_load_dword v%d, v%d, %s, s%d offen offset:64" % (vU1, vT0, sr(sGA, 4), sa))
    A.label("K_TOUCHED")
    A("s_cmp_eq_u32 s%d, 0" % sB)
    A("s_cbranch_scc1 K_ATT_CHECK")
    A.nop(1)
    A("s_branch K_P2")
    A.label("K_SLOW1")
    A("s_cmp_eq_u32 s%d, 0" % sB)
    A("s_cbranch_scc1 K_ATT_DONE")
    A("v_mov_b32 v%d, %s" % (vU0, f32(-BIG)))
    A("s_cmp_eq_u32 s%d, 1" % sB)
    A("s_cselect_b32 s%d, %s, 0" % (sCnt, f32(-BIG)))
    A("v_mov_b32 v%d, s%d" % (vU1, sCnt))
    build_mask(True)
    A("s_mov_b32 s%d, 3" % sChunk)
    chunk1_params()
    A("s_mov_b32 s%d, s%d" % (sN1, sN))
    A("s_branch K_CHUNK")
    A.label("K_ATT_CHECK")
    A("s_waitcnt lgkmcnt(0)")
    A.nop(10)
    A("v_cmp_gt_f32 vcc, %s, v%d" % (f32(2.0 ** 60), vO + 8))
    A("s_cmp_eq_u64 vcc, exec")
    A("s_cbranch_scc%d K_ATT_DONE" % (0 if opt.get("forceslow") else 1))
    A("s_waitcnt vmcnt(0)")
    A("v_mov_b32 v%d, %s" % (vU0, f32(-BIG)))
    A("v_mov_b32 v%d, 0" % vU1)
    build_mask(False)
    for i in range(16):
        A("v_mov_b32 v%d, 0" % (vO + i))
    A("v_mov_b32 v%d, %s" % (vMold, f32(-BIG)))
    A("s_mov_b32 s%d, 2" % sChunk)
    A("s_mov_b32 s%d, s%d" % (sN1, sTq))
    A("s_branch K_CHUNK0")
    A.label("K_ATT_DONE")
    stamp(7)
    A("s_lshl_b32 s%d, s%d, 2" % (sa, sB))
    A("s_add_u32 s%d, s%d, s%d" % (sa, sa, sTq))
    A("s_lshl_b32 s%d, s%d, 5" % (sa, sa))
    A("s_lshl_b32 s%d, s%d, 1" % (sb, sHP))
    A("s_add_u32 s%d, s%d, s%d" % (sa, sa, sb))
    A("s_add_u32 s%d, s%d, s%d" % (sa, sa, sC))
    A("s_lshl_b32 s%d, s%d, 10" % (sb, sa))
    A("s_add_u32 s%d, s%d, 0x%x" % (sb, sb, WS_O))
    A("s_lshl_b32 s%d, s%d, 6" % (sa, sa))
    A("s_add_u32 s%d, s%d, 0x%x" % (sa, sa, WS_FO))
    A.nop(2)
    A("v_rcp_f32 v%d, v%d" % (vT0, vO + 8))
    A.nop(1)
    for r in range(8):
        A("v_mul_f32 v%d, v%d, v%d" % (vO + r, vO + r, vT0))
    for i in range(4):
        A("v_cvt_pk_bf16_f32 v%d, v%d, v%d" % (vP + i, vO + 2 * i, vO + 2 * i + 1))
    A("buffer_store_dwordx4 %s, v%d, %s, s%d offen sc1" % (vr(vP, 4), vL16, sr(sWS, 4), sb))
    sumu(vP + 4, vP, 4)
    wave_sumu(vP + 4, vP + 5)
    A("v_mov_b32 v%d, v%d" % (vP + 6, vNon))
    A("v_mov_b32 v%d, v%d" % (vP + 7, vNon + 1))
    A("s_mov_b64 exec, 1")
    A("buffer_store_dwordx4 %s, v%d, %s, s%d offen sc1" % (vr(vP + 4, 4), vL16, sr(sWS, 4), sa))
    A("s_mov_b64 exec, -1")
    A("s_setprio 0")
    stamp(8)
    A("s_cmp_eq_u32 s%d, 0" % sWoN)
    A("s_cbranch_scc1 K_WOW1")
    A.label("K_WOREST")
    wo_piece("K_WODONE")
    A("s_cmp_lg_u32 s%d, 0" % sWoN)
    A("s_cbranch_scc1 K_WOREST")
    A("s_waitcnt vmcnt(0)")
    A.label("K_WOW1")
    A("s_barrier")
    A("s_lshl_b32 s%d, s%d, 1" % (sa, sG3))
    A("s_add_u32 s%d, s%d, s%d" % (sa, sa, sC))
    A("s_lshl_b32 s%d, s%d, 2" % (sa, sa))
    A("s_add_u32 s%d, s%d, s%d" % (sa, sa, sT))
    A("s_lshl_b32 s%d, s%d, 9" % (sd, sa))
    A("s_add_u32 s%d, s%d, 0x%x" % (sd, sd, WS_FO))
    A("s_lshl_b32 s%d, s%d, 13" % (sa, sa))
    A("s_add_u32 s%d, s%d, 0x%x" % (sa, sa, WS_O))
    A("s_add_u32 s%d, s%d, 4096" % (sb, sa))
    A("v_lshlrev_b32 v%d, 6, v%d" % (vT0, vL))
    A("v_mov_b32 v%d, 0" % vOG)
    A("s_mov_b64 exec, 0xff")
    A("buffer_load_dwordx4 %s, v%d, %s, s%d offen sc1" % (vr(vOG, 4), vT0, sr(sWS, 4), sd))
    A("s_mov_b64 exec, -1")
    A("v_bfe_u32 v%d, v%d, 2, 2" % (vT1, vL))
    A("v_lshl_add_u32 v%d, v%d, 3, v%d" % (vT2, vG, vT1))
    A("s_lshl_b32 s%d, s%d, 14" % (sc, sT))
    A("s_add_u32 s%d, s%d, %d" % (sc, sc, L_WO))
    A("v_lshl_add_u32 v%d, v%d, 7, s%d" % (vWOa, vT2, sc))
    A("v_lshrrev_b32 v%d, 1, v%d" % (vT1, vT1))
    A("v_lshl_add_u32 v%d, v%d, 6, v%d" % (vWOa, vT1, vWOa))
    A("v_bfe_u32 v%d, v%d, 4, 1" % (vT1, vL))
    A("v_lshl_add_u32 v%d, v%d, 5, v%d" % (vWOa, vT1, vWOa))
    A("v_and_b32 v%d, 3, v%d" % (vT1, vL))
    A("v_lshl_add_u32 v%d, v%d, 3, v%d" % (vWOa, vT1, vWOa))
    A("v_xor_b32 v%d, 64, v%d" % (vWOa + 1, vWOa))
    for s in range(8):
        for C in range(2):
            for half in range(2):
                A("ds_read_b64_tr_b16 %s, v%d offset:%d" % (vr(vAW + (s * 2 + C) * 4 + 2 * half, 2), vWOa + C, (16 * s + 4 * half) * 128))
    A("v_and_b32 v%d, 15, v%d" % (vT2, vN))
    A("v_xor_b32 v%d, v%d, v%d" % (vT2, vT2, vG))
    A("v_lshlrev_b32 v%d, 4, v%d" % (vT2, vT2))
    A("s_lshl_b32 s%d, s%d, 13" % (sc, sWv))
    A("s_add_u32 s%d, s%d, %d" % (sc, sc, L_RED))
    A("v_lshl_add_u32 v%d, v%d, 8, s%d" % (vT1, vN, sc))
    for u in range(8):
        A("v_xor_b32 v%d, %d, v%d" % (vRa + u, (2 * u) << 4, vT2))
        A("v_add_u32 v%d, v%d, v%d" % (vRa + u, vRa + u, vT1))
    A("v_lshrrev_b32 v%d, 3, v%d" % (vT3, vL))
    A("s_lshl_b32 s%d, s%d, 3" % (sc, sT))
    A("v_add_u32 v%d, s%d, v%d" % (vT3, sc, vT3))
    A("v_and_b32 v%d, 7, v%d" % (vT1, vL))
    A("v_lshlrev_b32 v%d, 1, v%d" % (vT1, vT1))
    A("v_and_b32 v%d, 15, v%d" % (vT2, vT3))
    A("v_xor_b32 v%d, v%d, v%d" % (vT1, vT1, vT2))
    A("v_lshlrev_b32 v%d, 4, v%d" % (vT1, vT1))
    A("s_lshl_b32 s%d, s%d, 15" % (sc, sC))
    A("s_add_u32 s%d, s%d, %d" % (sc, sc, L_RED))
    A("v_lshl_add_u32 v%d, v%d, 8, s%d" % (vT3, vT3, sc))
    A("v_add_u32 v%d, v%d, v%d" % (vT2, vT3, vT1))
    A("v_xor_b32 v%d, 16, v%d" % (vT1, vT1))
    A("v_add_u32 v%d, v%d, v%d" % (vT3, vT3, vT1))
    A("s_mov_b32 s%d, 0" % sCnt)
    A("s_mov_b64 exec, 0xff")
    A.label("K_POLLO")
    A("s_waitcnt vmcnt(0)")
    A("v_cmp_eq_u64 vcc, %s, %s" % (vr(vOG + 2, 2), vr(vNon, 2)))
    A("s_cmp_eq_u64 vcc, exec")
    A("s_cbranch_scc1 K_POLLO_OK")
    A("buffer_load_dwordx4 %s, v%d, %s, s%d offen sc1" % (vr(vOG, 4), vT0, sr(sWS, 4), sd))
    spin_tail("K_POLLO", sCnt)
    A.label("K_POLLO_OK")
    A("s_mov_b64 exec, -1")
    stamp(9)
    A.label("K_OLOAD")
    for s in range(8):
        A("buffer_load_dwordx4 %s, v%d, %s, s%d offen offset:%d sc1" % (vr(vOF + 4 * s, 4), vL16, sr(sWS, 4), sa if s < 4 else sb, (s & 3) * 1024))
    A("v_sub_u32 v%d, 0, v%d" % (vChk, vOG))
    A("s_waitcnt lgkmcnt(0)")
    for s in range(8):
        A("s_waitcnt vmcnt(%d)" % (7 - s))
        A("%s %s, %s, %s, %s" % (MFMA, vr(vH0, 16), vr(vAW + (s * 2) * 4, 4), vr(vOF + 4 * s, 4), "0" if s == 0 else vr(vH0, 16)))
        A("v_add3_u32 v%d, v%d, v%d, v%d" % (vChk, vOF + 4 * s, vOF + 4 * s + 1, vChk))
        A("%s %s, %s, %s, %s" % (MFMA, vr(vH1, 16), vr(vAW + (s * 2 + 1) * 4, 4), vr(vOF + 4 * s, 4), "0" if s == 0 else vr(vH1, 16)))
        A("v_add3_u32 v%d, v%d, v%d, v%d" % (vChk, vOF + 4 * s + 2, vOF + 4 * s + 3, vChk))
    wave_sumu(vChk, vT1)
    A.nop(1)
    A("v_readfirstlane_b32 s68, v%d" % vChk)
    A("s_cmp_eq_u32 s68, 0")
    A("s_cbranch_scc1 K_OOK")
    spin_tail("K_OLOAD", sCnt)
    A.label("K_OOK")
    A("s_barrier")
    stamp(10)
    A("v_and_b32 v%d, 7, v%d" % (vT0, vL))
    A("v_lshlrev_b32 v%d, 4, v%d" % (vT1, vT0))
    A("v_lshl_add_u32 v%d, v%d, 10, v%d" % (vT1, vTok, vT1))
    A("s_lshl_b32 s%d, s%d, 7" % (sd, sCG))
    A("s_add_u32 s%d, s%d, 0x%x" % (sa, sd, WS_H))
    A.nop(2)
    for u in range(8):
        A("ds_write_b128 v%d, %s" % (vRa + u, vr(vH0 + 4 * u, 4)))
    A("v_lshrrev_b32 v%d, 3, v%d" % (vPa, vL))
    A("v_lshlrev_b32 v%d, 4, v%d" % (vChk, vPa))
    A("v_lshl_add_u32 v%d, v%d, 10, v%d" % (vPa, vT0, vChk))
    A("s_lshl_b32 s%d, s%d, 13" % (sb, sG3))
    A("s_lshl_b32 s%d, s%d, 7" % (sc, sWv))
    A("s_add_u32 s%d, s%d, s%d" % (sb, sb, sc))
    A("s_add_u32 s%d, s%d, 0x%x" % (sb, sb, WS_P))
    A("s_lshl_b32 s%d, s%d, 10" % (sc, sCG))
    A("s_add_u32 s%d, s%d, s%d" % (sc, sc, sb))
    A("s_waitcnt lgkmcnt(0)")
    A("s_barrier")
    for q in range(4):
        A("ds_read_b128 %s, v%d offset:%d" % (vr(vOF + 8 * q, 4), vT2, q * 8192))
        A("ds_read_b128 %s, v%d offset:%d" % (vr(vOF + 8 * q + 4, 4), vT3, q * 8192))
    for i in range(4):
        A("v_lshlrev_b32 v%d, 16, v%d" % (vH0 + 2 * i, vXr + i))
        A("v_and_b32 v%d, 0xffff0000, v%d" % (vH0 + 2 * i + 1, vXr + i))
    A("s_waitcnt lgkmcnt(0)")
    for i in range(8):
        A("v_add_f32 v%d, v%d, v%d" % (vOF + i, vOF + i, vOF + 8 + i))
        A("v_add_f32 v%d, v%d, v%d" % (vOF + 16 + i, vOF + 16 + i, vOF + 24 + i))
    for i in range(8):
        A("v_add_f32 v%d, v%d, v%d" % (vOF + i, vOF + i, vOF + 16 + i))
    for i in range(4):
        A("v_cvt_pk_bf16_f32 v%d, v%d, v%d" % (vOF + 8 + i, vOF + 2 * i, vOF + 2 * i + 1))
    for i in range(4):
        A("v_lshlrev_b32 v%d, 16, v%d" % (vOF + 2 * i, vOF + 8 + i))
        A("v_and_b32 v%d, 0xffff0000, v%d" % (vOF + 2 * i + 1, vOF + 8 + i))
    for i in range(8):
        A("v_add_f32 v%d, v%d, v%d" % (vOF + i, vOF + i, vH0 + i))
    for i in range(4):
        A("v_cvt_pk_bf16_f32 v%d, v%d, v%d" % (vHp + i, vOF + 2 * i, vOF + 2 * i + 1))
    s1, s2, s3 = vOF + 16, vOF + 17, vOF + 18
    for i in range(4):
        for (acc, other) in ((s1, None), (s2, "self"), (s3, "w")):
            o = vOnes if other is None else (vHp + i if other == "self" else vWr + i)
            A("v_dot2_f32_bf16 v%d, v%d, v%d, %s" % (acc, vHp + i, o, "0" if i == 0 else "v%d" % acc))
    sumu(s3 + 1, vHp, 4)
    A("buffer_store_dwordx4 %s, v%d, %s, s%d offen sc1" % (vr(vHp, 4), vT1, sr(sWS, 4), sa))
    def red8(regs):
        for dpp in ("quad_perm:[1,0,3,2]", "quad_perm:[2,3,0,1]", "row_half_mirror"):
            for acc in regs:
                A("v_add_f32_dpp v%d, v%d, v%d %s row_mask:0xf bank_mask:0xf" % (acc, acc, acc, dpp))
    for dpp in ("quad_perm:[1,0,3,2]", "quad_perm:[2,3,0,1]", "row_half_mirror"):
        for acc in (s1, s2, s3):
            A("v_add_f32_dpp v%d, v%d, v%d %s row_mask:0xf bank_mask:0xf" % (acc, acc, acc, dpp))
        A("v_add_u32_dpp v%d, v%d, v%d %s row_mask:0xf bank_mask:0xf" % (s3 + 1, s3 + 1, s3 + 1, dpp))
    for acc in (s1, s2, s3, s3 + 1):
        A("v_min_u32 v%d, -2, v%d" % (acc, acc))
    A("s_mov_b32 exec_lo, 0x01010101")
    A("s_mov_b32 exec_hi, 0x01010101")
    A("s_add_u32 s68, s%d, 0x%x" % (sc, WS_P2 - WS_P))
    A("buffer_store_dwordx4 %s, v%d, %s, s68 offen" % (vr(s1, 4), vChk, sr(sWS, 4)))
    A("buffer_store_dwordx4 %s, v%d, %s, s%d offen sc1" % (vr(s1, 4), vChk, sr(sWS, 4), sc))
    A("s_mov_b64 exec, -1")
    A("s_add_u32 s%d, s%d, 0x%x" % (sc, sb, WS_P2 - WS_P))
    for i in range(3):
        A("v_mov_b32 v%d, v%d" % (vS + i, s1 + i))
    A("s_lshl_b32 s%d, 0x01010101, s%d" % (sMaskV, sCG))
    A("s_not_b32 s%d, s%d" % (sMaskV, sMaskV))
    A("s_mov_b32 s%d, s%d" % (sMaskV + 1, sMaskV))
    stamp(11)
    srd(sW, pOUT, 0x200000)
    for i in range(4):
        A("v_dot2_f32_bf16 v%d, v%d, v%d, %s" % (vW1, vWR4 + i, vOnes, "0" if i == 0 else "v%d" % vW1))
    A.nop(3)
    for dpp in ("quad_perm:[1,0,3,2]", "quad_perm:[2,3,0,1]", "row_half_mirror", "row_mirror"):
        A("v_add_f32_dpp v%d, v%d, v%d %s row_mask:0xf bank_mask:0xf" % (vW1, vW1, vW1, dpp))
        A.nop(2)
    for sw in ("v_permlane16_swap_b32", "v_permlane32_swap_b32"):
        A("v_mov_b32 v%d, v%d" % (vT0, vW1))
        A.nop(2)
        A("%s v%d, v%d" % (sw, vW1, vT0))
        A.nop(1)
        A("v_add_f32 v%d, v%d, v%d" % (vW1, vW1, vT0))
    A("s_cmp_eq_u32 s%d, 0" % sRole)
    A("s_cbranch_scc1 K_NOFA")
    for i in range(24):
        A("v_mov_b32 v%d, v%d" % (vBF + i, vOnes))
    A.label("K_NOFA")
    for i in range(4):
        A("v_lshlrev_b32 v%d, 16, v%d" % (vX + 2 * i, vHp + i))
        A("v_and_b32 v%d, 0xffff0000, v%d" % (vX + 2 * i + 1, vHp + i))
    A("v_sub_u32 v%d, 2047, v%d" % (vT0, vTok))
    A("s_lshl_b32 s68, s%d, 3" % sWv)
    A("s_add_u32 s68, s68, %d" % L_TOP)
    A("v_mov_b32 v%d, s68" % vT3)
    A("s_mov_b32 s%d, 0xfffff800" % sI2)
    A("v_mov_b32 v%d, 0" % vK2)
    A("s_mov_b32 s%d, 0" % sCnt)
    A("s_mov_b64 exec, %s" % sr(sMaskV, 2))
    A.label("K_POLL1")
    A("s_and_b32 s68, s%d, 3" % sCnt)
    A("s_cmp_eq_u32 s68, 3")
    A("s_cselect_b32 s68, s%d, s%d" % (sb, sc))
    A("buffer_load_dwordx4 %s, v%d, %s, s68 offen sc1" % (vr(vS, 4), vPa, sr(sWS, 4)))
    A("s_waitcnt vmcnt(0)")
    maxu(vT2, vS, 4)
    A("v_cmp_eq_u32 vcc, -1, v%d" % vT2)
    A("s_cmp_eq_u64 vcc, 0")
    A("s_cbranch_scc1 K_POLL1_OK")
    A("s_mov_b64 exec, vcc")
    spin_tail("K_POLL1", sCnt)
    A.label("K_POLL1_OK")
    A("s_mov_b64 exec, -1")
    stamp(12)
    red8((vS, vS + 1, vS + 2))
    ln_stats(vS, vS + 1)
    A("v_fma_f32 v%d, -v%d, v%d, v%d" % (vS + 2, vS, vW1, vS + 2))
    A("v_mul_f32 v%d, v%d, v%d" % (vS + 2, vS + 2, vS + 1))
    A("v_ashrrev_i32 v%d, 31, v%d" % (vK1, vS + 2))
    A("v_or_b32 v%d, 0x80000000, v%d" % (vK1, vK1))
    A("v_xor_b32 v%d, v%d, v%d" % (vK1, vK1, vS + 2))
    A("v_and_or_b32 v%d, v%d, s%d, v%d" % (vK1, vK1, sI2, vT0))
    def merge(p1=vP1, p2=vP2):
        A("v_max_u32 v%d, v%d, v%d" % (vK2, vK2, p2))
        A("v_med3_u32 v%d, v%d, v%d, v%d" % (vK2, vK1, p1, vK2))
        A("v_max_u32 v%d, v%d, v%d" % (vK1, vK1, p1))
    def merge_dpp(dpp):
        A.nop(2)
        A("v_mov_b32_dpp v%d, v%d %s row_mask:0xf bank_mask:0xf" % (vP1, vK1, dpp))
        A("v_mov_b32_dpp v%d, v%d %s row_mask:0xf bank_mask:0xf" % (vP2, vK2, dpp))
        merge()
    def merge_swap(sw):
        A("v_mov_b32 v%d, v%d" % (vP1, vK1))
        A("v_mov_b32 v%d, v%d" % (vP2, vK2))
        A.nop(2)
        A("%s v%d, v%d" % (sw, vK1, vP1))
        A("%s v%d, v%d" % (sw, vK2, vP2))
        A.nop(1)
        merge()
    merge_dpp("row_ror:8")
    merge_swap("v_permlane16_swap_b32")
    merge_swap("v_permlane32_swap_b32")
    A("ds_write_b64 v%d, %s" % (vT3, vr(vK1, 2)))
    A("s_waitcnt lgkmcnt(0)")
    A("s_barrier")
    A("s_cmp_eq_u32 s%d, 0" % sWv)
    A("s_cbranch_scc1 K_W0")
    A("s_cmp_eq_u32 s%d, 0" % sC)
    A("s_cbranch_scc1 K_STG_DONE")
    A("s_cmp_eq_u32 s%d, 0" % sRole)
    A("s_cbranch_scc1 K_STG_DONE")
    A("s_mov_b32 s%d, s%d" % (sc, sT))
    A("v_lshrrev_b32 v%d, 1, v%d" % (vT0, vL))
    A("v_and_b32 v%d, 1, v%d" % (vT2, vL))
    A("v_lshlrev_b32 v%d, 4, v%d" % (vT2, vT2))
    A("s_lshl_b32 s%d, s%d, 5" % (sa, sJ))
    A("s_cmp_eq_u32 s%d, 1" % sRole)
    A("s_cbranch_scc0 K_FFN_D")
    srd(sGA, pWG, 512 * 2752)
    srd(sGB, pWU, 512 * 2752)
    A("v_mul_u32_u24 v%d, 2752, v%d" % (vT0, vT0))
    A("v_add_u32 v%d, v%d, v%d" % (vT0, vT0, vT2))
    A("s_mul_i32 s%d, s%d, %d" % (sb, sc, 128 * 2752))
    A("s_add_u32 s%d, s%d, s%d" % (sa, sa, sb))
    A("s_lshl_b32 s%d, s%d, 12" % (sb, sc))
    for q in range(4):
        A("s_add_u32 s%d, s%d, %d" % (sc, sb, L_F + q * 1024))
        A("s_mov_b32 m0, s%d" % sc)
        A("s_add_u32 s%d, s%d, %d" % (sc, sb, L_FU + q * 1024))
        A("buffer_load_dwordx4 v%d, %s, s%d offen lds" % (vT0, sr(sGA, 4), sa))
        A("s_mov_b32 m0, s%d" % sc)
        A("s_nop 0")
        A("buffer_load_dwordx4 v%d, %s, s%d offen lds" % (vT0, sr(sGB, 4), sa))
        A("s_add_u32 s%d, s%d, %d" % (sa, sa, 32 * 2752))
    A("s_branch K_STG_DONE")
    A.label("K_FFN_D")
    srd(sGA, pWD, 1376 * 1024)
    A("v_lshl_add_u32 v%d, v%d, 10, v%d" % (vT0, vT0, vT2))
    A("s_lshl_b32 s%d, s%d, 15" % (sb, sc))
    A("s_add_u32 s%d, s%d, s%d" % (sa, sa, sb))
    A("s_lshl_b32 s%d, s%d, 10" % (sb, sc))
    A("s_add_u32 s%d, s%d, %d" % (sb, sb, L_F))
    A.label("K_FFN_DL")
    A("s_mov_b32 m0, s%d" % sb)
    A("s_add_u32 s%d, s%d, 4096" % (sb, sb))
    A("buffer_load_dwordx4 v%d, %s, s%d offen lds" % (vT0, sr(sGA, 4), sa))
    A("s_add_u32 s%d, s%d, 0x20000" % (sa, sa))
    A("s_cmp_lt_u32 s%d, %d" % (sb, L_F + 43 * 1024))
    A("s_cbranch_scc1 K_FFN_DL")
    A.label("K_STG_DONE")
    A("s_waitcnt vmcnt(0)")
    A("s_branch K_L2WAIT")
    A.label("K_W0")
    A("v_and_b32 v%d, 7, v%d" % (vT2, vL))
    A("v_lshlrev_b32 v%d, 3, v%d" % (vT2, vT2))
    A("v_add_u32 v%d, %d, v%d" % (vT2, L_TOP, vT2))
    A("ds_read_b64 %s, v%d" % (vr(vK1, 2), vT2))
    A("v_lshlrev_b32 v%d, 6, v%d" % (vT2, vN))
    A("s_mov_b32 s%d, 0x%x" % (sa, WS_E))
    A("s_lshl_b32 s%d, s%d, 6" % (sc, sG3))
    A("s_add_u32 s%d, s%d, s%d" % (sc, sc, sa))
    A("s_and_b32 s68, s%d, 7" % sG3)
    A("s_cmp_eq_u32 s68, s%d" % sCG)
    A("s_cbranch_scc0 K_NOPUB2")
    A("s_waitcnt lgkmcnt(0)")
    for dpp in ("quad_perm:[1,0,3,2]", "quad_perm:[2,3,0,1]", "row_half_mirror"):
        merge_dpp(dpp)
    A("v_mov_b32 v%d, v%d" % (vAcc, vK1))
    A("v_mov_b32 v%d, v%d" % (vAcc + 1, vK2))
    A("v_mov_b32 v%d, v%d" % (vAcc + 2, vNon))
    A("v_mov_b32 v%d, v%d" % (vAcc + 3, vNon + 1))
    A("s_mov_b64 exec, 1")
    A("buffer_store_dwordx4 %s, v%d, %s, s%d offen sc1" % (vr(vAcc, 4), vT2, sr(sWS, 4), sc))
    A("s_mov_b64 exec, -1")
    A.label("K_NOPUB2")
    A("s_mov_b32 s%d, 0" % sCnt)
    A("s_mov_b32 exec_hi, 0")
    A.label("K_POLL2")
    A("buffer_load_dwordx4 %s, v%d, %s, s%d offen sc1" % (vr(vAcc + 4, 4), vT2, sr(sWS, 4), sa))
    A("s_waitcnt vmcnt(0)")
    A("v_cmp_eq_u64 vcc, %s, %s" % (vr(vAcc + 6, 2), vr(vNon, 2)))
    A("s_cmp_eq_u64 vcc, exec")
    A("s_cbranch_scc1 K_POLL2_OK")
    spin_tail("K_POLL2", sCnt)
    A.label("K_POLL2_OK")
    A("s_mov_b64 exec, -1")
    A("s_waitcnt lgkmcnt(0)")
    A("v_mov_b32 v%d, v%d" % (vK1, vAcc + 4))
    A("v_mov_b32 v%d, v%d" % (vK2, vAcc + 5))
    for dpp in ("quad_perm:[1,0,3,2]", "quad_perm:[2,3,0,1]", "row_half_mirror", "row_mirror"):
        merge_dpp(dpp)
    merge_swap("v_permlane16_swap_b32")
    A("s_mov_b64 exec, 1")
    A("ds_write_b64 v%d, %s offset:64" % (vT3, vr(vK1, 2)))
    A("s_mov_b64 exec, -1")
    A("s_waitcnt lgkmcnt(0)")
    A.label("K_L2WAIT")
    for i in range(8):
        A("v_sub_f32 v%d, v%d, v%d" % (vX + 8 + i, vX + i, vS))
        A("v_fmac_f32 v%d, v%d, v%d" % (vX + i, vX + 8 + i, vS + 1))
    for i in range(4):
        A("v_cvt_pk_bf16_f32 v%d, v%d, v%d" % (vHp + i, vX + 2 * i, vX + 2 * i + 1))
    A("v_mov_b32 v%d, %d" % (vT3, L_TOP + 64))
    A("v_mov_b32 v%d, 0" % (vSel + 1))
    A("s_barrier")
    A("ds_read_b64 %s, v%d" % (vr(vK1, 2), vT3))
    A("s_waitcnt lgkmcnt(0)")
    A("v_readfirstlane_b32 s%d, v%d" % (sI1, vK1))
    A("v_readfirstlane_b32 s%d, v%d" % (sI2, vK2))
    A("s_and_b32 s%d, s%d, 0x7ff" % (sI1, sI1))
    A("s_sub_u32 s%d, 2047, s%d" % (sI1, sI1))
    A("s_and_b32 s%d, s%d, 0x7ff" % (sI2, sI2))
    A("s_sub_u32 s%d, 2047, s%d" % (sI2, sI2))
    stamp(13)
    A("s_cmp_eq_u32 s%d, 0" % sRole)
    A("s_cbranch_scc1 K_OWN")
    A("s_lshr_b32 s%d, s%d, 2" % (sI, sJ))
    A("s_and_b32 s%d, s%d, 3" % (sN, sJ))
    A("s_cmp_eq_u32 s%d, 1" % sRole)
    A("s_cselect_b32 s%d, s%d, s%d" % (sI, sWv, sI))
    A("s_cselect_b32 s%d, 0, s%d" % (sN, sN))
    A("s_cbranch_scc1 K_SEL")
    A("s_cmp_eq_u32 s%d, 0" % sWv)
    A("s_cbranch_scc0 K_OWN")
    A.label("K_SEL")
    A("v_mov_b32 v%d, s%d" % (vT0, sI1))
    A("v_mov_b32 v%d, s%d" % (vT2, sI2))
    A("s_mov_b32 vcc_lo, 0xaaaaaaaa")
    A("s_mov_b32 vcc_hi, 0xaaaaaaaa")
    A("v_cndmask_b32 v%d, v%d, v%d, vcc" % (vPa, vT0, vT2))
    A("v_lshlrev_b32 v%d, 10, v%d" % (vPa, vPa))
    A("v_lshl_add_u32 v%d, v%d, 4, v%d" % (vPa, vG, vPa))
    A("s_lshl_b32 s%d, s%d, 7" % (sc, sI))
    A("s_add_u32 s%d, s%d, 0x%x" % (sc, sc, WS_H))
    def h_loads():
        A("s_mov_b32 exec_lo, 3")
        A("s_mov_b32 exec_hi, 3")
        for s in range(4):
            A("s_add_u32 s68, s%d, %d" % (sN, s))
            A("s_and_b32 s68, s68, 3")
            A("s_lshl_b32 s68, s68, 5")
            A("s_add_u32 s68, s68, s%d" % sc)
            A("buffer_load_dwordx4 %s, v%d, %s, s68 offen sc1" % (vr(vBF + 4 * s, 4), vPa, sr(sWS, 4)))
        A("s_mov_b64 exec, -1")
    h_loads()
    A("s_mov_b32 vcc_lo, 0xffff0000")
    A("s_mov_b32 vcc_hi, 0xffff0000")
    A("v_cndmask_b32 v%d, v%d, v%d, vcc" % (vT0, vT0, vT2))
    A("v_lshrrev_b32 v%d, 6, v%d" % (vT2, vT0))
    A("v_lshlrev_b32 v%d, 13, v%d" % (vT2, vT2))
    A("v_bfe_u32 v%d, v%d, 4, 2" % (vT3, vT0))
    A("v_lshl_add_u32 v%d, v%d, 8, v%d" % (vT2, vT3, vT2))
    A("v_bfe_u32 v%d, v%d, 2, 1" % (vT3, vT0))
    A("v_lshl_add_u32 v%d, v%d, 7, v%d" % (vT2, vT3, vT2))
    A("v_bfe_u32 v%d, v%d, 3, 1" % (vT3, vT0))
    A("v_lshl_add_u32 v%d, v%d, 6, v%d" % (vT2, vT3, vT2))
    A("v_and_b32 v%d, 3, v%d" % (vT3, vT0))
    A("v_lshl_add_u32 v%d, v%d, 4, v%d" % (vT2, vT3, vT2))
    A("v_and_b32 v%d, 7, v%d" % (vT3, vL))
    A("v_lshl_add_u32 v%d, v%d, 10, v%d" % (vU0, vT3, vT2))
    def ss_load():
        A("s_mov_b32 s68, 0x%x" % WS_P)
        A("buffer_load_dwordx4 %s, v%d, %s, s68 offen sc1" % (vr(vSs, 4), vU0, sr(sWS, 4)))
    ss_load()
    A("v_and_b32 v%d, 14, v%d" % (vT2, vL))
    A("v_lshlrev_b32 v%d, 1, v%d" % (vT2, vT2))
    A("v_lshl_add_u32 v%d, v%d, 10, v%d" % (vSel + 1, vT0, vT2))
    def h_check(retry, ok):
        sumu(vT2, vBF, 16)
        maxu(vT3, vSs, 4)
        A("s_add_u32 s%d, s%d, 16" % (sb, sI))
        A("v_cmp_eq_u32 vcc, -1, v%d" % vT3)
        A("v_readlane_b32 s68, v%d, s%d" % (vSs + 3, sI))
        A("v_readlane_b32 s69, v%d, s%d" % (vSs + 3, sb))
        A("v_readlane_b32 s%d, v%d, 0" % (sa, vT2))
        A("v_readlane_b32 s%d, v%d, 32" % (sb, vT2))
        A("s_add_u32 s%d, s%d, s%d" % (sa, sa, sb))
        A("s_min_u32 s%d, s%d, -2" % (sa, sa))
        A("s_xor_b32 s68, s68, s%d" % sa)
        A("v_readlane_b32 s%d, v%d, 1" % (sa, vT2))
        A("v_readlane_b32 s%d, v%d, 33" % (sb, vT2))
        A("s_add_u32 s%d, s%d, s%d" % (sa, sa, sb))
        A("s_min_u32 s%d, s%d, -2" % (sa, sa))
        A("s_xor_b32 s69, s69, s%d" % sa)
        A("s_or_b32 s68, s68, s69")
        A("s_or_b32 s68, s68, vcc_lo")
        A("s_or_b32 s68, s68, vcc_hi")
        A("s_cbranch_scc0 %s" % ok)
        h_loads()
        ss_load()
        A("s_waitcnt vmcnt(0)")
        spin_tail(retry, sCnt)
    A.label("K_OWN")
    A("v_cmp_ne_u32 vcc, s%d, v%d" % (sI1, vTok))
    A("v_cmp_ne_u32 s[68:69], s%d, v%d" % (sI2, vTok))
    A("s_and_b64 exec, vcc, s[68:69]")
    A("buffer_store_dwordx4 %s, v%d, %s, s%d offen %s" % (vr(vHp, 4), vT1, sr(sW, 4), sd, {0: "", 1: "sc1", 2: "nt", 3: "sc0 sc1"}[opt.get("outf", 0)]))
    A("s_mov_b64 exec, -1")
    A("s_cmp_eq_u32 s%d, 0" % sRole)
    A("s_cbranch_scc1 K_FIN")
    A("v_bfe_u32 v%d, v%d, 2, 2" % (vT0, vL))
    A("v_and_b32 v%d, 3, v%d" % (vT2, vL))
    A("s_cmp_eq_u32 s%d, 1" % sRole)
    A("s_cbranch_scc0 K_FA_D")
    A("v_lshl_add_u32 v%d, v%d, 3, v%d" % (vT0, vG, vT0))
    A("s_lshl_b32 s68, s%d, 11" % sWv)
    A("s_add_u32 s68, s68, %d" % L_F)
    A("v_lshl_add_u32 v%d, v%d, 5, s68" % (vT0, vT0))
    A("v_lshl_add_u32 v%d, v%d, 3, v%d" % (vT0, vT2, vT0))
    A("v_bfe_u32 v%d, v%d, 4, 1" % (vT2, vL))
    A("v_mul_u32_u24 v%d, %d, v%d" % (vT2, L_FU - L_F, vT2))
    A("v_add_u32 v%d, v%d, v%d" % (vT0, vT0, vT2))
    for s in range(4):
        for half in range(2):
            A("ds_read_b64_tr_b16 %s, v%d offset:%d" % (vr(vFA + 4 * s + 2 * half, 2), vT0, (16 * s + 4 * half) * 32))
    A("s_branch K_FA_DONE")
    A.label("K_FA_D")
    A("v_lshrrev_b32 v%d, 4, v%d" % (vT3, vL))
    A("v_lshl_add_u32 v%d, v%d, 3, v%d" % (vT0, vT3, vT0))
    A("s_lshl_b32 s68, s%d, 10" % sWv)
    A("s_add_u32 s68, s68, %d" % L_F)
    A("v_lshl_add_u32 v%d, v%d, 5, s68" % (vT0, vT0))
    A("v_lshl_add_u32 v%d, v%d, 3, v%d" % (vT0, vT2, vT0))
    for i in range(6):
        if i == 5:
            A("s_cmp_lt_u32 s%d, 3" % sWv)
            A("s_cbranch_scc0 K_FA_DONE")
        for half in range(2):
            A("ds_read_b64_tr_b16 %s, v%d offset:%d" % (vr(vFA + 4 * i + 2 * half, 2), vT0, i * 8192 + 4 * half * 32))
    A.label("K_FA_DONE")
    A("s_cmp_eq_u32 s%d, 1" % sRole)
    A("s_cbranch_scc0 K_DOWN")
    A("v_lshlrev_b32 v%d, 7, v%d" % (vT0, vN))
    A("v_lshl_add_u32 v%d, v%d, 4, v%d" % (vT0, vG, vT0))
    A("s_mul_i32 s%d, s%d, 384" % (sa, sWv))
    A("s_add_u32 s%d, s%d, %d" % (sa, sa, L_R2))
    A("v_add_u32 v%d, s%d, v%d" % (vT0, sa, vT0))
    A("s_mov_b32 s%d, 0" % sCnt)
    A("s_waitcnt vmcnt(1) lgkmcnt(0)")
    A.label("K_HCHK")
    for s in range(4):
        A("%s %s, %s, %s, %s" % (MFMA, vr(vAcc, 16), vr(vFA + 4 * s, 4), vr(vBF + 4 * s, 4), "0" if s == 0 else vr(vAcc, 16)))
    h_check("K_HCHK", "K_HOK")
    A.label("K_HOK")
    A("s_mov_b32 exec_lo, 7")
    A("s_mov_b32 exec_hi, 7")
    for a_ in range(4):
        A("ds_write_b128 v%d, %s offset:%d" % (vT0, vr(vAcc + 4 * a_, 4), a_ * 32))
    A("s_mov_b64 exec, -1")
    A("s_cmp_eq_u32 s%d, 0" % sWv)
    A("s_cbranch_scc1 K_GU_W0")
    A("s_waitcnt lgkmcnt(0)")
    A("s_barrier")
    A("s_branch K_FIN")
    A.label("K_GU_W0")
    red8((vSs, vSs + 1, vSs + 2))
    ln_stats(vSs, vSs + 1)
    A("v_bfe_u32 v%d, v%d, 4, 1" % (vT0, vL))
    A("v_and_b32 v%d, 15, v%d" % (vT2, vL))
    A("v_lshlrev_b32 v%d, 2, v%d" % (vT3, vT2))
    A("v_mul_u32_u24 v%d, 1536, v%d" % (vT2, vG))
    A("v_add_u32 v%d, v%d, v%d" % (vT3, vT3, vT2))
    A("v_add_u32 v%d, %d, v%d" % (vT3, L_R2, vT3))
    A("v_lshl_add_u32 v%d, v%d, 7, v%d" % (vT2, vT0, vT3))
    A("v_add_u32 v%d, 768, v%d" % (vP1, vT2))
    A("v_add_u32 v%d, 768, v%d" % (vP2, vT3))
    A("v_lshlrev_b32 v%d, 1, v%d" % (vT0, vL))
    A("s_lshl_b32 s%d, s%d, 6" % (sa, sJ))
    A("s_add_u32 s%d, s%d, 0x%x" % (sa, sa, WS_A))
    A("s_waitcnt lgkmcnt(0)")
    A("s_barrier")
    stamp(14)
    for hh, (ra, rb) in enumerate(((vT2, vT3), (vP1, vP2))):
        for w_ in range(2):
            A("ds_read2_b32 %s, v%d offset0:%d offset1:%d" % (vr(vX + 8 * hh + 4 * w_, 2), ra, w_ * 96, w_ * 96 + 16))
            A("ds_read2_b32 %s, v%d offset0:%d offset1:%d" % (vr(vX + 8 * hh + 4 * w_ + 2, 2), rb, w_ * 96 + 64, w_ * 96 + 80))
    A("s_waitcnt lgkmcnt(0)")
    for i in range(4):
        A("v_add_f32 v%d, v%d, v%d" % (vX + i, vX + i, vX + 4 + i))
        A("v_add_f32 v%d, v%d, v%d" % (vX + 8 + i, vX + 8 + i, vX + 12 + i))
    for i in range(4):
        A("v_add_f32 v%d, v%d, v%d" % (vX + i, vX + i, vX + 8 + i))
    for i in range(4):
        A("v_mov_b32 v%d, v%d" % (vX + 4 + i, vX + i))
    A.nop(1)
    for i in range(4):
        A("v_permlane32_swap_b32 v%d, v%d" % (vX + i, vX + 4 + i))
    for i in range(4):
        A("v_add_f32 v%d, v%d, v%d" % (vX + i, vX + i, vX + 4 + i))
    A("v_fma_f32 v%d, -v%d, v%d, v%d" % (vX, vSs, vX + 2, vX))
    A("v_fma_f32 v%d, -v%d, v%d, v%d" % (vX + 1, vSs, vX + 3, vX + 1))
    A("v_mul_f32 v%d, v%d, v%d" % (vX, vX, vSs + 1))
    A("v_mul_f32 v%d, v%d, v%d" % (vX + 1, vX + 1, vSs + 1))
    A("v_mul_f32 v%d, %s, v%d" % (vX + 2, f32(-LOG2E), vX))
    A("v_exp_f32 v%d, v%d" % (vX + 2, vX + 2))
    A("v_mul_f32 v%d, v%d, v%d" % (vX, vX, vX + 1))
    A("v_add_f32 v%d, 1.0, v%d" % (vX + 2, vX + 2))
    A("v_rcp_f32 v%d, v%d" % (vX + 2, vX + 2))
    A.nop(1)
    A("v_mul_f32 v%d, v%d, v%d" % (vX, vX, vX + 2))
    A.nop(2)
    A("v_mov_b32_dpp v%d, v%d quad_perm:[1,0,3,2] row_mask:0xf bank_mask:0xf" % (vX + 1, vX))
    A("v_cvt_pk_bf16_f32 v%d, v%d, v%d" % (vX + 2, vX, vX + 1))
    A("v_min_u32 v%d, -2, v%d" % (vX + 2, vX + 2))
    A("s_mov_b32 exec_lo, 0x55555555")
    A("s_mov_b32 exec_hi, 0")
    A("buffer_store_dword v%d, v%d, %s, s%d offen sc1" % (vX + 2, vT0, sr(sWS, 4), sa))
    A("s_mov_b64 exec, -1")
    A("s_branch K_FIN")
    A.label("K_DOWN")
    A("s_cmp_eq_u32 s%d, 0" % sWv)
    A("s_cbranch_scc0 K_D_POLL")
    A("s_mov_b32 s%d, 0" % sCnt)
    A("s_waitcnt vmcnt(0)")
    A.label("K_DH")
    h_check("K_DH", "K_DH_OK")
    A.label("K_DH_OK")
    A("v_lshlrev_b32 v%d, 5, v%d" % (vT0, vN))
    A("v_lshl_add_u32 v%d, v%d, 4, v%d" % (vT0, vG, vT0))
    A("v_add_u32 v%d, %d, v%d" % (vT0, L_TOP + 128, vT0))
    A("s_mov_b32 exec_lo, 3")
    A("s_mov_b32 exec_hi, 3")
    A("ds_write_b128 v%d, %s" % (vT0, vr(vBF, 4)))
    A("s_mov_b64 exec, -1")
    A("v_and_b32 v%d, 30, v%d" % (vT0, vL))
    A("v_lshlrev_b32 v%d, 1, v%d" % (vT0, vT0))
    A("v_add_u32 v%d, %d, v%d" % (vT0, L_TOP + 128, vT0))
    A("s_waitcnt lgkmcnt(0)")
    A("ds_read_b32 v%d, v%d" % (vSel, vT0))
    A("s_waitcnt lgkmcnt(0)")
    red8((vSs, vSs + 1, vSs + 2))
    ln_stats(vSs, vSs + 1)
    A("v_lshlrev_b32 v%d, 16, v%d" % (vX, vSel))
    A("v_and_b32 v%d, 0xffff0000, v%d" % (vSel, vSel))
    A("v_fma_f32 v%d, -v%d, v%d, v%d" % (vSs + 2, vSs, vW1, vSs + 2))
    A("v_mul_f32 v%d, v%d, v%d" % (vSs + 2, vSs + 2, vSs + 1))
    A("v_mul_f32 v%d, %s, v%d" % (vSs + 2, f32(-LOG2E), vSs + 2))
    A("v_exp_f32 v%d, v%d" % (vSs + 2, vSs + 2))
    A("s_mov_b32 vcc_lo, 0x55555555")
    A("s_mov_b32 vcc_hi, 0x55555555")
    A("v_cndmask_b32 v%d, v%d, v%d, vcc" % (vSel, vSel, vX))
    A("v_add_f32 v%d, 1.0, v%d" % (vSs + 2, vSs + 2))
    A("v_rcp_f32 v%d, v%d" % (vSs + 2, vSs + 2))
    A("v_sub_f32 v%d, v%d, v%d" % (vX + 1, vSel, vSs))
    A("v_fmac_f32 v%d, v%d, v%d" % (vSel, vX + 1, vSs + 1))
    A.label("K_D_POLL")
    A("v_and_b32 v%d, 1, v%d" % (vT0, vL))
    A("v_lshlrev_b32 v%d, 5, v%d" % (vT0, vT0))
    A("v_lshl_add_u32 v%d, v%d, 6, v%d" % (vT0, vG, vT0))
    A("v_bfe_u32 v%d, v%d, 4, 1" % (vT2, vL))
    A("v_lshl_add_u32 v%d, v%d, 4, v%d" % (vT0, vT2, vT0))
    A("v_lshrrev_b32 v%d, 4, v%d" % (vT2, vL))
    A("s_lshl_b32 s68, s%d, 7" % sWv)
    A("s_add_u32 s%d, s68, 0x%x" % (sa, WS_A))
    A("s_add_u32 s%d, s%d, 4096" % (sc, sa))
    A("v_and_b32 v%d, 15, v%d" % (vT3, vL))
    A("v_lshlrev_b32 v%d, 6, v%d" % (vT3, vT3))
    A("v_lshl_add_u32 v%d, v%d, 4, v%d" % (vT3, vT2, vT3))
    A("s_add_u32 s68, s68, %d" % L_R2)
    A("v_add_u32 v%d, s68, v%d" % (vT3, vT3))
    A("s_mov_b32 exec_lo, 0x00030003")
    A("s_mov_b32 exec_hi, 0x00030003")
    A("s_mov_b32 s%d, 0" % sCnt)
    A.label("K_POLLA")
    for i in range(5):
        if i < 4:
            A("buffer_load_dwordx4 %s, v%d, %s, s%d offen offset:%d sc1" % (vr(vBF + 4 * i, 4), vT0, sr(sWS, 4), sa, i * 1024))
        else:
            A("buffer_load_dwordx4 %s, v%d, %s, s%d offen sc1" % (vr(vBF + 4 * i, 4), vT0, sr(sWS, 4), sc))
    A("s_cmp_lt_u32 s%d, 3" % sWv)
    A("s_cbranch_scc0 K_POLLA5")
    A("buffer_load_dwordx4 %s, v%d, %s, s%d offen offset:1024 sc1" % (vr(vBF + 20, 4), vT0, sr(sWS, 4), sc))
    A.label("K_POLLA5")
    A("s_waitcnt vmcnt(0) lgkmcnt(0)")
    maxu(vT2, vBF, 24)
    A("v_cmp_eq_u32 vcc, -1, v%d" % vT2)
    A("s_cmp_eq_u64 vcc, 0")
    A("s_cbranch_scc1 K_POLLA_OK")
    spin_tail("K_POLLA", sCnt)
    A.label("K_POLLA_OK")
    A("s_mov_b64 exec, -1")
    stamp(14)
    for i in range(5):
        A("%s %s, %s, %s, %s" % (MFMA16, vr(vAcc, 4), vr(vFA + 4 * i, 4), vr(vBF + 4 * i, 4), "0" if i == 0 else vr(vAcc, 4)))
    A("s_cmp_lt_u32 s%d, 3" % sWv)
    A("s_cbranch_scc0 K_D5")
    A("%s %s, %s, %s, %s" % (MFMA16, vr(vAcc, 4), vr(vFA + 20, 4), vr(vBF + 20, 4), vr(vAcc, 4)))
    A.label("K_D5")
    A("v_lshlrev_b32 v%d, 2, v%d" % (vT0, vN))
    A("v_lshl_add_u32 v%d, v%d, 9, v%d" % (vT0, vG, vT0))
    A("v_add_u32 v%d, %d, v%d" % (vT0, L_R2, vT0))
    A("s_mov_b32 exec_lo, 0x00030003")
    A("s_mov_b32 exec_hi, 0x00030003")
    A.nop(3)
    A("ds_write_b128 v%d, %s" % (vT3, vr(vAcc, 4)))
    A("s_mov_b64 exec, -1")
    A("s_waitcnt lgkmcnt(0)")
    A("s_barrier")
    A("s_cmp_eq_u32 s%d, 0" % sWv)
    A("s_cbranch_scc0 K_FIN")
    A("ds_read2_b32 %s, v%d offset0:0 offset1:32" % (vr(vX + 2, 2), vT0))
    A("ds_read2_b32 %s, v%d offset0:64 offset1:96" % (vr(vX + 4, 2), vT0))
    A("s_lshl_b32 s%d, s%d, 5" % (sa, sJ))
    A("s_waitcnt lgkmcnt(0)")
    A("v_add_f32 v%d, v%d, v%d" % (vX + 2, vX + 2, vX + 3))
    A("v_add_f32 v%d, v%d, v%d" % (vX + 4, vX + 4, vX + 5))
    A("v_add_f32 v%d, v%d, v%d" % (vX, vX + 2, vX + 4))
    A("v_mov_b32 v%d, v%d" % (vX + 2, vX))
    A.nop(2)
    A("v_permlane32_swap_b32 v%d, v%d" % (vX, vX + 2))
    A.nop(1)
    A("v_add_f32 v%d, v%d, v%d" % (vX, vX, vX + 2))
    A("v_fmac_f32 v%d, v%d, v%d" % (vSel, vX, vSs + 2))
    if opt.get("tcheck"):
        A("s_memrealtime s[68:69]")
        A("s_waitcnt lgkmcnt(0)")
        A("v_sub_u32 v%d, s68, v%d" % (vX, vNon))
        A("v_cmp_lt_u32 vcc, %d, v%d" % (opt["tcheck"], vX))
        A("v_mov_b32 v%d, 0x42c80000" % vX)
        A.nop(1)
        A("v_cndmask_b32 v%d, v%d, v%d, vcc" % (vSel, vSel, vX))
    A.nop(2)
    A("v_mov_b32_dpp v%d, v%d quad_perm:[1,0,3,2] row_mask:0xf bank_mask:0xf" % (vX, vSel))
    A("v_cvt_pk_bf16_f32 v%d, v%d, v%d" % (vSel, vSel, vX))
    A("s_mov_b32 exec_lo, 0x55555555")
    A("s_mov_b32 exec_hi, 0")
    A("buffer_store_dword v%d, v%d, %s, s%d offen" % (vSel, vSel + 1, sr(sW, 4), sa))
    A("s_mov_b64 exec, -1")
    A.label("K_FIN")
    if STAMPS:
        A("s_waitcnt vmcnt(0)")
        stamp(15)
        A("s_waitcnt lgkmcnt(0)")
        if opt.get("dbgout"):
            A("s_cmp_eq_u32 s2, %d" % opt["dbgout"])
            A("s_cbranch_scc0 K_END")
            A("s_cmp_eq_u32 s%d, 0" % sWv)
            A("s_cbranch_scc0 K_END")
            srd(sGA, pDBG, 256)
            A("v_mov_b32 v%d, 0" % vT0)
            A("s_mov_b64 exec, 1")
            for i, st in enumerate((0, 2, 3, 4, 5, 6, 7, 9, 10, 11, 12, 13, 14, 15)):
                A("v_mov_b32 v%d, s%d" % (vT2, 70 + 2 * st))
                A("v_sub_u32 v%d, v%d, v%d" % (vT2, vT2, vNon))
                A("buffer_store_dword v%d, v%d, %s, 0 offen offset:%d" % (vT2, vT0, sr(sGA, 4), 8 + 4 * i))
                A.nop(2)
            A("s_branch K_END")
        A("s_lshl_b32 s%d, s2, 3" % sa)
        A("s_add_u32 s%d, s%d, s%d" % (sa, sa, sWv))
        A("s_mul_i32 s%d, s%d, %d" % (sa, sa, NSTAMP_SLOTS * 8))
        A("s_add_u32 s%d, s%d, 0x%x" % (sa, sa, WS_STAMP))
        A("v_mov_b32 v%d, 0" % vT0)
        A("s_mov_b64 exec, 1")
        for i in range(16):
            A("v_mov_b32 v%d, s%d" % (vT2, 70 + 2 * i))
            A("v_mov_b32 v%d, s%d" % (vT3, 71 + 2 * i))
            A("buffer_store_dwordx2 %s, v%d, %s, s%d offen offset:%d" % (vr(vT2, 2), vT0, sr(sWS, 4), sa, i * 8))
            A.nop(2)
    A.label("K_END")
    A("s_endpgm")
    return A.text(), 256, LDS

HEADER = open("sequential_preLN__sliding_block__moe_arch_mod__prompt.s.ref").read().split("; Override launch")[0]

def build(opt):
    k, nv, lds = gen(opt)
    s = HEADER
    s += "; @launch grid=(256,1,1) block=(512,1,1) lds=%d\n" % lds
    s += '.amdgcn_target "amdgcn-amd-amdhsa--gfx950"\n.text\n'
    s += ".globl %s\n.p2align 8\n.type %s,@function\n%s:\n%s" % (KNAME, KNAME, KNAME, k)
    s += '.section .rodata,"a"\n'
    s += """.p2align 6
.amdhsa_kernel %s
  .amdhsa_next_free_vgpr %d
  .amdhsa_next_free_sgpr 102
  .amdhsa_accum_offset %d
  .amdhsa_group_segment_fixed_size 0
  .amdhsa_kernarg_size 88
  .amdhsa_user_sgpr_count 2
  .amdhsa_user_sgpr_kernarg_segment_ptr 1
  .amdhsa_system_sgpr_workgroup_id_x 1
.end_amdhsa_kernel
""" % (KNAME, nv, (nv + 3) // 4 * 4)
    return s

if __name__ == "__main__":
    out = sys.argv[1] if len(sys.argv) > 1 else "k.s"
    opt = {}
    for a in sys.argv[2:]:
        k, v = a.split("=")
        opt[k] = int(v)
    open(out, "w").write(build(opt))
```

```python
import sys, struct

def f32(x):
    return "0x%08x" % struct.unpack("<I", struct.pack("<f", x))[0]

WS_KV = 0x000000
WS_O = 0x400000
WS_H = 0x600000
WS_P = 0x800000
WS_A = 0x840000
WS_LS = 0x850000
WS_E = 0x860000
WS_FKV = 0x880000
WS_FO = 0x8a0000
WS_P2 = 0x8c0000
WS_SIZE = 0x10000000
WS_STAMP = 0x8000000
NSTAMP_SLOTS = 24

LOG2E = 1.4426950408889634
BIG = 1.0e30
SPIN_LIMIT = 100000
MFMA = "v_mfma_f32_32x32x16_bf16"
MFMA16 = "v_mfma_f32_16x16x32_bf16"
MFMA4 = "v_mfma_f32_4x4x4_16b_bf16"
KNAME = "sequential_preLN__sliding_block__moe_arch_mod__prompt_kernel"

class Asm:
    def __init__(self):
        self.L = []
    def __call__(self, s):
        self.L.append("    " + s.strip())
    def label(self, s):
        self.L.append(s + ":")
    def nop(self, n):
        while n > 0:
            k = min(n, 16)
            self.L.append("    s_nop %d" % (k - 1))
            n -= k
    def text(self):
        return "\n".join(self.L) + "\n"

def vr(b, n):
    assert b % 2 == 0, "unaligned vgpr tuple %d" % b
    return "v[%d:%d]" % (b, b + n - 1)
def sr(b, n):
    return "s[%d:%d]" % (b, b + n - 1)

def gen(opt):
    A = Asm()
    STAMPS = opt.get("stamps", 0)
    def stamp(i):
        if STAMPS:
            A("s_memrealtime %s" % sr(70 + 2 * i, 2))
    def srd(d, base, size):
        A("s_mov_b32 s%d, s%d" % (d, base))
        A("s_mov_b32 s%d, s%d" % (d + 1, base + 1))
        A("s_mov_b32 s%d, 0x%x" % (d + 2, size))
        A("s_mov_b32 s%d, 0x20000" % (d + 3))
    def cap(fn):
        keep = A.L; A.L = []; fn(); out = A.L; A.L = keep; return out
    pX, pW, pWO, pBX, pWR, pWG, pWU, pWD, pOUT, pDBG, pWS = 8, 10, 12, 14, 16, 18, 20, 22, 24, 26, 28
    sCG, sG3 = 14, 15
    sX, sW, sWS, sGA, sGB = 32, 36, 40, 44, 48
    sWv, sT, sC, sB, sHP, sTq, sWGL, sRole, sJ = 52, 53, 54, 55, 56, 57, 58, 59, 60
    sa, sb, sc, sd = 61, 62, 63, 64
    sKC, sXo, sWo, sSlotX, sDW = 3, 4, 5, 6, 7
    sXbase, sWbase = 30, 31
    sRd, sPub, sS = 65, 66, 67
    sN, sI, sChunk, sCnt = 3, 4, 5, 6
    sMaskV = 30
    sFa, sFg, sFon = 1, 10, 11
    sN1 = 0
    sKu, sKm = 68, 69
    sI1, sI2 = 65, 66
    sWoG, sWoL, sWoR, sWoN = 65, 66, 67, 7
    vWoA, vWoB = 41, 40
    XS, WSL = 16384, 12288
    NSL = 5
    SLOT = XS + WSL
    L_WO = 86016
    L_K = 0
    L_V = 24576
    L_Q = 49152
    L_VX = 90112
    L_STR = 151552
    L_STM = 152064
    L_CS = 152576
    L_PAY = 153088
    L_NON = 153152
    L_CSP = 153600
    L_TOP = 155648
    L_R2 = 155904
    L_RED = L_WO
    L_F = 0
    L_FU = L_F + 16384 + 128
    LDS = 163840
    vL, vN, vG, vKap, vL16, vOnes, vTok = 1, 2, 3, 4, 5, 6, 7
    vT0, vT1, vT2, vT3 = 8, 9, 10, 11
    vNon = 12
    vXr = 14
    vWr = 18
    vFA = 200
    vWR4 = 248
    vW1 = 252
    vKb, vVb, vIG = 253, 254, 255
    vXg = 22
    vWg = 14
    vXa, vXc, vWa, vWc = 26, 30, 34, 38
    vU0, vU1 = 42, 43
    vOne2 = 44
    vB = 48
    vAcV, vAc0, vAc1 = 128, 144, 160
    vRow = 176
    vLSa, vLSb, vLSc = 184, 185, 186
    vCq, vCk, vCv = 188, 192, 196
    vGc = 112
    vE = 48
    vPk = 80
    vQ = 22
    vKad, vVad, vM, vMold = 26, 27, 30, 31
    vKa, vKbf = 32, 36
    vSa, vSb = 44, 60
    vCn = 76
    vP = 96
    vKV = 104
    vCm = 200
    vVa, vVbf = 216, 224
    vO = 232
    vWOa = 26
    vRa = 28
    vOF = 44
    vH0, vH1 = 76, 92
    vAW = 108
    vChk = 40
    vOG = 172
    vHp = 36
    vPa = 41
    vS = 44
    vK1, vK2, vP1, vP2 = 58, 59, 60, 61
    vX = 64
    vBF = 80
    vAcc = 104
    vSs = 120
    vSel = 124

    def spin_tail(lab, cnt):
        A("s_add_u32 s%d, s%d, 1" % (cnt, cnt))
        A("s_cmp_lt_u32 s%d, %d" % (cnt, SPIN_LIMIT))
        A("s_cbranch_scc1 %s" % lab)
    def maxu(dst, base, n):
        A("v_max_u32 v%d, v%d, v%d" % (dst, base, base + 1))
        for i in range(2, n, 2):
            A("v_max3_u32 v%d, v%d, v%d, v%d" % (dst, base + i, base + i + 1, dst))
    def sumu(dst, base, n, init=None):
        regs = [base + i for i in range(n)]
        if init is None:
            A("v_add_u32 v%d, v%d, v%d" % (dst, regs[0], regs[1])); regs = regs[2:]
        else:
            A("v_add3_u32 v%d, v%d, v%d, v%d" % (dst, regs[0], regs[1], init)); regs = regs[2:]
        for i in range(0, len(regs), 2):
            A("v_add3_u32 v%d, v%d, v%d, v%d" % (dst, regs[i], regs[i + 1], dst))
    def wave_sumu(v, tmp):
        for dpp in ("quad_perm:[1,0,3,2]", "quad_perm:[2,3,0,1]", "row_half_mirror", "row_mirror"):
            A.nop(2)
            A("v_add_u32_dpp v%d, v%d, v%d %s row_mask:0xf bank_mask:0xf" % (v, v, v, dpp))
        for sw in ("v_permlane16_swap_b32", "v_permlane32_swap_b32"):
            A("v_mov_b32 v%d, v%d" % (tmp, v))
            A.nop(2)
            A("%s v%d, v%d" % (sw, v, tmp))
            A.nop(1)
            A("v_add_u32 v%d, v%d, v%d" % (v, v, tmp))
    def ln_stats(s1, s2):
        A("v_mul_f32 v%d, %s, v%d" % (s1, f32(1.0 / 512), s1))
        A("v_mul_f32 v%d, %s, v%d" % (s2, f32(1.0 / 512), s2))
        A("v_fma_f32 v%d, -v%d, v%d, v%d" % (s2, s1, s1, s2))
        A("v_max_f32 v%d, 0, v%d" % (s2, s2))
        A("v_add_f32 v%d, %s, v%d" % (s2, f32(1e-5), s2))
        A("v_rsq_f32 v%d, v%d" % (s2, s2))

    A("s_cmp_ge_u32 s2, 256")
    A("s_cbranch_scc1 K_END")
    stamp(0)
    A("s_load_dwordx16 s[8:23], s[0:1], 0")
    A("s_load_dwordx4 s[24:27], s[0:1], 64")
    A("s_load_dwordx2 s[28:29], s[0:1], 80")
    A("v_and_b32 v%d, 63, v0" % vL)
    A("v_lshrrev_b32 v%d, 6, v0" % vT0)
    A("v_lshlrev_b32 v%d, 4, v%d" % (vL16, vL))
    A("v_readfirstlane_b32 s%d, v%d" % (sWv, vT0))
    A("s_and_b32 s%d, s2, 7" % sa)
    A("s_lshr_b32 s%d, s2, 3" % sb)
    if opt.get("map", 2) == 2:
        A("s_lshr_b32 s%d, s%d, 1" % (sB, sa))
        A("s_lshr_b32 s%d, s%d, 3" % (sc, sb))
        A("s_lshl_b32 s%d, s%d, 2" % (sd, sc))
        A("s_add_u32 s%d, s%d, s%d" % (sB, sB, sd))
        A("s_and_b32 s%d, s%d, 1" % (sHP, sa))
        A("s_lshl_b32 s%d, s%d, 3" % (sHP, sHP))
        A("s_and_b32 s%d, s%d, 7" % (sKC, sb))
        A("s_add_u32 s%d, s%d, s%d" % (sHP, sHP, sKC))
        A("s_lshl_b32 s%d, s%d, 1" % (sc, sc))
        A("s_add_u32 s%d, s%d, s%d" % (sKC, sKC, sc))
        if opt.get("rotx2"):
            A("s_add_u32 s%d, s%d, s%d" % (sKC, sKC, sa))
        A("s_and_b32 s%d, s%d, 7" % (sKC, sKC))
    else:
        A("s_lshr_b32 s%d, s%d, 4" % (sc, sb))
        A("s_lshl_b32 s%d, s%d, 3" % (sd, sc))
        A("s_add_u32 s%d, s%d, s%d" % (sB, sa, sd))
        A("s_and_b32 s%d, s%d, 15" % (sHP, sb))
        A("s_lshl_b32 s%d, s%d, 2" % (sc, sc))
        A("s_add_u32 s%d, s%d, s%d" % (sKC, sHP, sc))
        A("s_add_u32 s%d, s%d, s%d" % (sKC, sKC, sa))
        A("s_and_b32 s%d, s%d, 7" % (sKC, sKC))
    A("s_and_b32 s%d, s%d, 3" % (sT, sWv))
    A("s_lshr_b32 s%d, s%d, 2" % (sC, sWv))
    A("s_lshl_b32 s%d, s%d, 4" % (sWGL, sB))
    A("s_add_u32 s%d, s%d, s%d" % (sWGL, sWGL, sHP))
    A("s_cmp_eq_u32 s%d, 0" % sC)
    A("s_cbranch_scc0 K_PRO_LD")
    A("s_lshl_b32 s%d, s%d, 2" % (sa, sWGL))
    A("s_add_u32 s%d, s%d, s%d" % (sa, sa, sT))
    A("s_lshl_b32 s%d, s%d, 11" % (sb, sa))
    for i in range(4):
        A("v_mov_b32 v%d, -1" % (vT0 + i))
    A("s_waitcnt lgkmcnt(0)")
    srd(sX, pX, 0x200000)
    A("buffer_load_dwordx4 %s, v%d, %s, s%d offen" % (vr(vRow, 4), vL16, sr(sX, 4), sb))
    A("buffer_load_dwordx4 %s, v%d, %s, s%d offen offset:1024" % (vr(vRow + 4, 4), vL16, sr(sX, 4), sb))
    srd(sWS, pWS, WS_SIZE)
    A("s_or_b32 s%d, s2, s%d" % (sa, sWv))
    A("s_cmp_lg_u32 s%d, 0" % sa)
    A("s_cbranch_scc1 K_NONONCE")
    srd(sGA, pDBG, 256)
    A("s_memrealtime s[68:69]")
    A("s_waitcnt lgkmcnt(0)")
    A("s_or_b32 s69, s69, 0x80000000")
    A("v_mov_b32 v%d, s68" % vNon)
    A("v_mov_b32 v%d, s69" % (vNon + 1))
    A("s_mov_b64 exec, 1")
    A("buffer_store_dwordx2 %s, v%d, %s, 0 offen sc1" % (vr(vNon, 2), vL16, sr(sGA, 4)))
    A("s_mov_b64 exec, -1")
    A.label("K_NONONCE")
    def clr(soff, off=0):
        A("buffer_store_dwordx4 %s, v%d, %s, s%d offen offset:%d sc1" % (vr(vT0, 4), vL16, sr(sWS, 4), soff, off))
    A("s_cmp_lg_u32 s%d, 0" % sT)
    A("s_cbranch_scc1 K_NOCLRP")
    A("s_lshl_b32 s%d, s%d, 10" % (sa, sWGL))
    A("s_add_u32 s%d, s%d, 0x%x" % (sa, sa, WS_P))
    clr(sa)
    A("s_add_u32 s%d, s%d, 0x%x" % (sa, sa, WS_P2 - WS_P))
    clr(sa)
    A.label("K_NOCLRP")
    if opt.get("tlb"):
        A("s_cmp_lg_u32 s%d, 1" % sT)
        A("s_cbranch_scc1 K_NOTLB")
        A("v_lshlrev_b32 v%d, 18, v%d" % (vE, vL))
        A("s_mov_b32 exec_hi, 0xf")
        A("buffer_load_dword v%d, v%d, %s, 0 offen sc1" % (120, vE, sr(sWS, 4)))
        A("s_mov_b64 exec, 0xff")
        srd(sGA, pOUT, 0x200000)
        A("buffer_load_dword v%d, v%d, %s, 0 offen sc1" % (121, vE, sr(sGA, 4)))
        A("s_mov_b64 exec, -1")
        A.label("K_NOTLB")
    A("s_cmp_lg_u32 s2, 1")
    A("s_cbranch_scc1 K_PRO_DONE")
    A("s_lshl_b32 s%d, s%d, 11" % (sa, sT))
    A("s_add_u32 s%d, s%d, 0x%x" % (sa, sa, WS_A))
    clr(sa); clr(sa, 1024)
    A("s_branch K_PRO_DONE")
    A.label("K_PRO_LD")
    A("v_lshrrev_b32 v%d, 3, v%d" % (vT0, vL))
    A("v_lshrrev_b32 v%d, 1, v%d" % (vT1, vT0))
    A("v_and_b32 v%d, 7, v%d" % (vT2, vL))
    A("v_xor_b32 v%d, v%d, v%d" % (vT2, vT2, vT1))
    A("v_lshlrev_b32 v%d, 4, v%d" % (vT2, vT2))
    A("v_lshl_add_u32 v%d, v%d, 10, v%d" % (vXg, vT0, vT2))
    A("v_xor_b32 v%d, 64, v%d" % (vXg + 1, vXg))
    A("v_add_u32 v%d, %d, v%d" % (vXg + 1, 8192 - 1024, vXg + 1))
    A("v_add_u32 v%d, %d, v%d" % (vXg + 2, 2 * (8192 - 1024), vXg))
    A("v_add_u32 v%d, %d, v%d" % (vXg + 3, 2 * (8192 - 1024), vXg + 1))
    A("s_lshl_b32 s%d, s%d, 17" % (sXbase, sB))
    A("s_lshl_b32 s%d, s%d, 15" % (sa, sT))
    A("s_add_u32 s%d, s%d, s%d" % (sXbase, sXbase, sa))
    A("s_movk_i32 s%d, 0x1556" % sb)
    for q in range(3):
        src = vL
        if q:
            A("v_add_u32 v%d, %d, v%d" % (vT0, 64 * q, vL))
            src = vT0
        A("v_mul_u32_u24 v%d, s%d, v%d" % (vT1, sb, src))
        A("v_lshrrev_b32 v%d, 16, v%d" % (vT1, vT1))
        A("v_mul_u32_u24 v%d, 12, v%d" % (vT2, vT1))
        A("v_sub_u32 v%d, v%d, v%d" % (vT2, src, vT2))
        A("v_lshrrev_b32 v%d, 2, v%d" % (vT3, vT2))
        A("v_and_b32 v%d, 3, v%d" % (vT2, vT2))
        A("v_lshlrev_b32 v%d, 4, v%d" % (vT2, vT2))
        A("v_lshl_add_u32 v%d, v%d, 10, v%d" % (vT2, vT3, vT2))
        A("v_mul_u32_u24 v%d, 0xc00, v%d" % (vT1, vT1))
        A("v_add_u32 v%d, v%d, v%d" % (vWg + q, vT1, vT2))
        if q:
            A("v_subrev_u32 v%d, %d, v%d" % (vWg + q, 1024 * q, vWg + q))
    A("s_lshl_b32 s%d, s%d, 6" % (sWbase, sHP))
    A("s_mul_i32 s%d, s%d, 49152" % (sa, sT))
    A("s_add_u32 s%d, s%d, s%d" % (sWbase, sWbase, sa))
    A("s_lshl_b32 s%d, s%d, 12" % (sSlotX, sT))
    A("s_lshl_b32 s%d, s%d, 10" % (sDW, sT))
    A("s_sub_u32 s%d, %d, s%d" % (sDW, XS, sDW))
    A("s_waitcnt lgkmcnt(0)")
    srd(sX, pX, 0x200000)
    srd(sW, pW, 0x180000)
    stamp(1)

    def dma_stage():
        A("s_lshl_b32 s%d, s%d, 7" % (sXo, sKC))
        A("s_mov_b32 m0, s%d" % sSlotX)
        A("s_add_u32 s%d, s%d, s%d" % (sXo, sXo, sXbase))
        for i in range(4):
            A("buffer_load_dwordx4 v%d, %s, s%d offen offset:%d lds" % (vXg + i, sr(sX, 4), sXo, i * 1024))
            if i == 0:
                A("s_mul_i32 s%d, s%d, 196608" % (sWo, sKC))
                A("s_add_u32 s%d, s%d, s%d" % (sa, sSlotX, sDW))
            if i == 1:
                A("s_add_u32 s%d, s%d, s%d" % (sWo, sWo, sWbase))
                A("s_add_u32 s%d, s%d, 1" % (sKC, sKC))
            if i == 2:
                A("s_and_b32 s%d, s%d, 7" % (sKC, sKC))
                A("s_add_u32 s%d, s%d, %d" % (sSlotX, sSlotX, SLOT))
        A("s_mov_b32 m0, s%d" % sa)
        A("s_nop 0")
        for i in range(3):
            A("buffer_load_dwordx4 v%d, %s, s%d offen offset:%d lds" % (vWg + i, sr(sW, 4), sWo, i * 1024))
            if i == 0:
                A("s_cmp_ge_u32 s%d, %d" % (sSlotX, NSL * SLOT))
                A("s_cselect_b32 s%d, %d, 0" % (sa, NSL * SLOT))
                A("s_sub_u32 s%d, s%d, s%d" % (sSlotX, sSlotX, sa))
    def build_mask(first):
        for r in range(0, 16, 2):
            for k in range(2):
                jr = ((r + k) >> 3) * 16 + ((r + k) & 7)
                A("v_cmp_%s_i32 %s, %d, v%d" % ("gt" if first else "le", "vcc" if k == 0 else sr(sKu, 2), jr, vIG))
            A.nop(1)
            A("v_cndmask_b32 v%d, v%d, v%d, vcc" % (vCm + r, vU0, vU1))
            A("v_cndmask_b32 v%d, v%d, v%d, %s" % (vCm + r + 1, vU0, vU1, sr(sKu, 2)))
    def common_setup(loader, ta, tb, tc):
        t0, t1, t2, t3 = vE, vE + 1, vE + 2, vE + 3
        A("v_and_b32 v%d, 31, v%d" % (vN, vL))
        A("v_lshrrev_b32 v%d, 5, v%d" % (vG, vL))
        A("v_and_b32 v%d, 0x13, v%d" % (vKap, vN))
        A("v_and_b32 v%d, 4, v%d" % (t0, vN))
        A("v_lshl_or_b32 v%d, v%d, 1, v%d" % (vKap, t0, vKap))
        A("v_and_b32 v%d, 8, v%d" % (t0, vN))
        A("v_lshrrev_b32 v%d, 1, v%d" % (t0, t0))
        A("v_or_b32 v%d, v%d, v%d" % (vKap, vKap, t0))
        A("v_mov_b32 v%d, 0x3f803f80" % vOnes)
        M3 = opt.get("m3", 1)
        if M3 == 0:
            A("s_lshr_b32 s%d, s2, 6" % ta)
            A("s_and_b32 s%d, s2, 7" % sCG)
            A("s_cmp_lt_u32 s%d, 3" % ta)
            A("s_cselect_b32 s%d, 0, 6" % tb)
            A("s_min_u32 s%d, s%d, 2" % (ta, ta))
            A("s_lshr_b32 s%d, s%d, 1" % (tc, sCG))
            A("s_add_u32 s%d, s%d, s%d" % (ta, ta, tc))
            A("s_add_u32 s%d, s%d, 1" % (ta, ta))
            A("s_and_b32 s%d, s%d, 3" % (ta, ta))
            A("s_add_u32 s%d, s%d, s%d" % (sCG, sCG, tb))
            A("s_and_b32 s%d, s%d, 7" % (sCG, sCG))
            A("s_bfe_u32 s%d, s2, 0x20004" % tb)
            A("s_lshl_b32 s%d, s%d, 2" % (tb, tb))
            A("s_add_u32 s%d, s%d, s%d" % (ta, ta, tb))
            A("s_lshl_b32 s%d, s%d, 1" % (sG3, ta))
            A("s_bfe_u32 s%d, s2, 0x10003" % tb)
            A("s_add_u32 s%d, s%d, s%d" % (sG3, sG3, tb))
        elif M3 == 1:
            A("s_add_u32 s%d, s%d, 1" % (ta, sB))
            A("s_and_b32 s%d, s%d, 15" % (ta, ta))
            A("s_lshl_b32 s%d, s%d, 1" % (sG3, ta))
            A("s_lshr_b32 s%d, s%d, 3" % (tb, sHP))
            A("s_add_u32 s%d, s%d, s%d" % (sG3, sG3, tb))
            A("s_and_b32 s%d, s%d, 7" % (sCG, sHP))
        else:
            A("s_add_u32 s%d, s%d, 1" % (ta, sB))
            A("s_and_b32 s%d, s%d, 15" % (ta, ta))
            A("s_lshl_b32 s%d, s%d, 1" % (sG3, ta))
            A("s_bfe_u32 s%d, s%d, 0x10002" % (tb, sHP))
            A("s_add_u32 s%d, s%d, s%d" % (sG3, sG3, tb))
            A("s_lshr_b32 s%d, s%d, 3" % (tb, sHP))
            A("s_lshl_b32 s%d, s%d, 2" % (tb, tb))
            A("s_and_b32 s%d, s%d, 3" % (sCG, sHP))
            A("s_add_u32 s%d, s%d, s%d" % (sCG, sCG, tb))
        A("v_lshrrev_b32 v%d, 3, v%d" % (t0, vL))
        A("v_and_b32 v%d, 3, v%d" % (t1, t0))
        A("v_lshrrev_b32 v%d, 2, v%d" % (t0, t0))
        A("v_lshl_add_u32 v%d, v%d, 3, v%d" % (t1, t0, t1))
        A("s_lshr_b32 s%d, s%d, 1" % (ta, sT))
        A("s_lshl_b32 s%d, s%d, 4" % (ta, ta))
        A("s_and_b32 s%d, s%d, 1" % (tb, sT))
        A("s_lshl_b32 s%d, s%d, 2" % (tb, tb))
        A("s_add_u32 s%d, s%d, s%d" % (ta, ta, tb))
        A("s_lshl_b32 s%d, s%d, 6" % (tb, sG3))
        A("s_add_u32 s%d, s%d, s%d" % (ta, ta, tb))
        if loader:
            A("s_add_u32 s%d, s%d, 32" % (ta, ta))
        A("v_add_u32 v%d, s%d, v%d" % (vTok, ta, t1))
        A("s_and_b32 s%d, s2, 7" % ta)
        A("s_lshr_b32 s%d, s2, 3" % tb)
        A("s_mul_i32 s%d, s%d, 11" % (sJ, ta))
        A("s_add_u32 s%d, s%d, s%d" % (sJ, sJ, tb))
        A("s_cmp_lt_u32 s%d, 11" % tb)
        A("s_cselect_b32 s%d, 1, 0" % sRole)
        A("s_cmp_lt_u32 s%d, 86" % sJ)
        A("s_cselect_b32 s%d, s%d, 0" % (sRole, sRole))
        A("s_sub_u32 s%d, s%d, 11" % (tb, tb))
        A("s_lshl_b32 s%d, s%d, 2" % (ta, ta))
        A("s_add_u32 s%d, s%d, s%d" % (ta, ta, tb))
        A("s_cmp_lt_u32 s%d, 4" % tb)
        A("s_cselect_b32 s%d, 2, s%d" % (sRole, sRole))
        A("s_cmp_lt_u32 s%d, 4" % tb)
        A("s_cselect_b32 s%d, s%d, s%d" % (sJ, ta, sJ))
        if not loader:
            A("v_bfe_u32 v%d, v%d, 2, 2" % (t2, vL))
            A("v_lshl_add_u32 v%d, v%d, 3, v%d" % (t2, vG, t2))
            A("v_mul_u32_u24 v%d, 192, v%d" % (t3, t2))
            A("v_bfe_u32 v%d, v%d, 4, 1" % (t2, vL))
            A("v_lshl_add_u32 v%d, v%d, 5, v%d" % (t3, t2, t3))
            A("v_and_b32 v%d, 1, v%d" % (t2, vL))
            A("v_lshl_add_u32 v%d, v%d, 4, v%d" % (t3, t2, t3))
            A("v_bfe_u32 v%d, v%d, 1, 1" % (t2, vL))
            A("v_lshl_add_u32 v%d, v%d, 3, v%d" % (t3, t2, t3))
            A("v_bfe_u32 v%d, v%d, 1, 3" % (t0, vKap))
            A("v_xor_b32 v%d, v%d, v%d" % (t0, t0, vG))
            A("v_lshlrev_b32 v%d, 4, v%d" % (t0, t0))
            A("s_lshl_b32 s%d, s%d, 12" % (ta, sT))
            A("v_lshl_add_u32 v%d, v%d, 7, s%d" % (t1, vKap, ta))
            for i in range(4):
                A("s_add_u32 s%d, s%d, %d" % (ta, sT, i))
                A("s_and_b32 s%d, s%d, 3" % (ta, ta))
                A("s_lshl_b32 s%d, s%d, 5" % (tb, ta))
                A("s_mul_i32 s%d, s%d, 3072" % (ta, ta))
                A("s_add_u32 s%d, s%d, %d" % (ta, ta, XS))
                A("v_xor_b32 v%d, s%d, v%d" % (t2, tb, t0))
                A("v_add_u32 v%d, v%d, v%d" % (vXa + i, t1, t2))
                A("v_add_u32 v%d, s%d, v%d" % (vWa + i, ta, t3))
                A("v_mov_b32 v%d, v%d" % (vXc + i, vXa + i))
                A("v_mov_b32 v%d, v%d" % (vWc + i, vWa + i))
            A("v_mov_b32 v%d, 0x3f803f80" % vOne2)
            A("v_mov_b32 v%d, 0x3f803f80" % (vOne2 + 1))
            for i in range(12):
                A("v_mov_b32 v%d, 0" % (vCq + i))
            A("s_lshl_b32 s%d, s%d, 2" % (ta, sT))
            A("s_add_u32 s%d, s%d, %d" % (ta, ta, L_CSP))
            A("v_lshl_add_u32 v%d, v%d, 4, s%d" % (vLSa, vN, ta))
            for i in range(48):
                A("v_mov_b32 v%d, 0" % (vAcV + i))
            for i in range(32):
                A("v_mov_b32 v%d, 0" % (vB + 32 + i))
            A("s_mov_b32 s%d, 0" % sRd)
            A("s_mov_b32 s%d, s%d" % (sTq, sT))
        else:
            A("s_lshl_b32 s%d, s%d, 2" % (ta, sWGL))
            A("s_add_u32 s%d, s%d, s%d" % (ta, ta, sT))
            A("s_lshl_b32 s%d, s%d, 6" % (ta, ta))
            A("v_lshl_add_u32 v%d, v%d, 4, s%d" % (vLSa, vG, ta))
            A("s_lshl_b32 s%d, s%d, 2" % (ta, sB))
            A("s_add_u32 s%d, s%d, s%d" % (ta, ta, sT))
            A("s_lshl_b32 s%d, s%d, 10" % (ta, ta))
            A("v_lshrrev_b32 v%d, 1, v%d" % (t0, vKap))
            A("v_lshl_add_u32 v%d, v%d, 6, s%d" % (vLSb, t0, ta))
            A("v_and_b32 v%d, 1, v%d" % (t0, vKap))
            A("v_lshl_add_u32 v%d, v%d, 4, v%d" % (vLSb, t0, vLSb))
            A("s_lshr_b32 s%d, s%d, 1" % (ta, sG3))
            A("s_lshl_b32 s%d, s%d, 12" % (ta, ta))
            A("v_and_b32 v%d, 15, v%d" % (t0, vL))
            A("v_lshl_add_u32 v%d, v%d, 8, s%d" % (vLSc, t0, ta))
            A("s_mov_b32 s%d, 0" % sPub)
            A("s_sub_u32 s%d, 3, s%d" % (sTq, sT))
            srd(sWS, pWS, WS_SIZE)
            srd(sGA, pDBG, 256)
        A("v_lshlrev_b32 v%d, 3, v%d" % (vIG, vG))
        A("v_sub_u32 v%d, v%d, v%d" % (vIG, vKap, vIG))
        A("v_mov_b32 v%d, %s" % (vU0, f32(-BIG)))
        A("v_mov_b32 v%d, 0" % vU1)
        build_mask(False)
        A("v_add_u32 v%d, %d, v%d" % (vKb, L_K + (1024 if loader else 0), vL16))
        A("v_add_u32 v%d, %d, v%d" % (vVb, L_V + (256 if loader else 0), vL16))
        for i in range(16):
            A("v_mov_b32 v%d, v%d" % (vVa + i, vOnes))
        for i in range(16):
            A("v_mov_b32 v%d, 0" % (vO + i))
        A("s_lshl_b32 s%d, s%d, 4" % (ta, sT))
        A("s_add_u32 s%d, s%d, %d" % (ta, ta, L_PAY))
        A("v_lshl_add_u32 v%d, v%d, 3, s%d" % (vU1, vG, ta))
        A("s_mov_b32 s%d, 0" % sS)

    setupL = cap(lambda: common_setup(True, sd, sb, sc))
    dmaL = cap(lambda: (dma_stage(), dma_stage()))
    nld = sum(1 for l in dmaL if "buffer_load" in l)
    per = (len(setupL) + nld - 1) // nld
    pos = 0
    for l in dmaL:
        A.L.append(l)
        if "buffer_load" in l:
            end = min(len(setupL), pos + per)
            while end < len(setupL) and (any(k in setupL[end - 1] for k in ("s_cmp", "v_cmp", "s_nop", "vcc_")) or "v_cndmask" in setupL[end]):
                end += 1
            A.L.extend(setupL[pos:end])
            pos = end
    A.L.extend(setupL[pos:])
    A("s_branch K_LOOP1")
    A.label("K_PRO_DONE")
    common_setup(False, sa, sb, sc)

    stamp(1)
    A("s_waitcnt vmcnt(0)")
    a0, b0, a1, b1 = vE, vE + 1, vE + 2, vE + 3
    for i in range(4):
        z = "0" if i == 0 else None
        A("v_dot2_f32_bf16 v%d, v%d, v%d, %s" % (a0, vRow + i, vOnes, z or "v%d" % a0))
        A("v_dot2_f32_bf16 v%d, v%d, v%d, %s" % (b0, vRow + i, vRow + i, z or "v%d" % b0))
        A("v_dot2_f32_bf16 v%d, v%d, v%d, %s" % (a1, vRow + 4 + i, vOnes, z or "v%d" % a1))
        A("v_dot2_f32_bf16 v%d, v%d, v%d, %s" % (b1, vRow + 4 + i, vRow + 4 + i, z or "v%d" % b1))
    A.nop(3)
    A("v_permlane32_swap_b32 v%d, v%d" % (a0, a1))
    A("v_permlane32_swap_b32 v%d, v%d" % (b0, b1))
    A.nop(1)
    A("v_add_f32 v%d, v%d, v%d" % (a0, a0, a1))
    A("v_add_f32 v%d, v%d, v%d" % (b0, b0, b1))
    A.nop(2)
    A("v_permlane16_swap_b32 v%d, v%d" % (a0, b0))
    A.nop(1)
    A("v_add_f32 v%d, v%d, v%d" % (a0, a0, b0))
    for dpp in ("quad_perm:[1,0,3,2]", "quad_perm:[2,3,0,1]", "row_half_mirror", "row_mirror"):
        A.nop(2)
        A("v_add_f32_dpp v%d, v%d, v%d %s row_mask:0xf bank_mask:0xf" % (a0, a0, a0, dpp))
    A("v_mov_b32 v%d, v%d" % (b0, a0))
    A.nop(2)
    A("v_permlane16_swap_b32 v%d, v%d" % (a0, b0))
    A.nop(1)
    ln_stats(a0, b0)
    A.nop(1)
    A("v_mov_b32 v%d, v%d" % (vRow, b0))
    A("v_mul_f32_e64 v%d, -v%d, v%d" % (vRow + 1, a0, b0))
    A("ds_write_b64 v%d, %s" % (vU1, vr(vRow, 2)))
    stamp(2)
    def rd_advance():
        A("s_add_u32 s%d, s%d, %d" % (sRd, sRd, SLOT))
        A("s_cmp_eq_u32 s%d, %d" % (sRd, NSL * SLOT))
        A("s_cselect_b32 s%d, 0, s%d" % (sRd, sRd))
        A("s_add_u32 s%d, s%d, 1" % (sS, sS))
    def rd0(k):
        B = vB + 16 * k
        A("ds_read_b128 %s, v%d" % (vr(B, 4), vXc + k))
        for seg in (1, 2, 0):
            for half in range(2):
                A("ds_read_b64_tr_b16 %s, v%d offset:%d" % (vr(B + 4 + 4 * seg + 2 * half, 2), vWc + k, 4 * half * 192 + seg * 64))
    def mm(k, which):
        B = vB + 16 * k
        X = vr(B, 4)
        if which == "K":
            A("%s %s, %s, %s, %s" % (MFMA, vr(vAc1, 16), vr(B + 8, 4), X, vr(vAc1, 16)))
        elif which == "V":
            A("%s %s, %s, %s, %s" % (MFMA, vr(vAcV, 16), X, vr(B + 12, 4), vr(vAcV, 16)))
        else:
            A("%s %s, %s, %s, %s" % (MFMA, vr(vAc0, 16), vr(B + 4, 4), X, vr(vAc0, 16)))
    def weave(fill, k):
        n = (len(fill) + 2) // 3
        for gi, w in enumerate("KVQ"):
            mm(k, w)
            A.L.extend(fill[gi * n:(gi + 1) * n])
    def adv(k):
        A("v_add_u32 v%d, s%d, v%d" % (vXc + k, sRd, vXa + k))
        A("v_add_u32 v%d, s%d, v%d" % (vWc + k, sRd, vWa + k))
    def cs4(h):
        for acc, off in ((vCq, 4), (vCk, 8), (vCv, 12)):
            A("%s %s, %s, %s, %s" % (MFMA4, vr(acc, 4), vr(vOne2, 2), vr(vB + off + 2 * h, 2), vr(acc, 4)))
    A("s_waitcnt lgkmcnt(0)")
    A.label("K_LOOP0")
    A("s_barrier")
    A("s_waitcnt lgkmcnt(7)")
    weave(cap(lambda: (rd0(0), rd_advance())), 2)
    A("s_waitcnt lgkmcnt(7)")
    weave(cap(lambda: (rd0(1), adv(0), adv(1))), 3)
    A("s_waitcnt lgkmcnt(7)")
    weave(cap(lambda: (rd0(2), rd0(3))), 0)
    cs4(0)
    cs4(1)
    A("s_waitcnt lgkmcnt(14)")
    mm(1, "K")
    adv(2)
    adv(3)
    mm(1, "V")
    A("s_cmp_lt_u32 s%d, 8" % sS)
    mm(1, "Q")
    A("s_cbranch_scc1 K_LOOP0")
    for acc in (vCq, vCk, vCv):
        A("v_mov_b32 v%d, v%d" % (acc + 1, acc))
    A("s_waitcnt lgkmcnt(0)")
    mm(2, "V")
    for acc in (vCq, vCk, vCv):
        A("v_permlane32_swap_b32 v%d, v%d" % (acc, acc + 1))
    for acc in (vCq, vCk, vCv):
        A("v_add_f32 v%d, v%d, v%d" % (acc, acc, acc + 1))
    for seg, acc in enumerate((vCq, vCk, vCv)):
        A("ds_write_b32 v%d, v%d offset:%d" % (vLSa, acc, seg * 512))
    mm(3, "V")
    A("s_waitcnt lgkmcnt(0)")
    A("s_barrier")
    mm(2, "K")
    A("s_lshl_b32 s%d, s%d, 7" % (sa, sT))
    A("s_add_u32 s%d, s%d, %d" % (sa, sa, L_STR))
    A("v_lshl_add_u32 v%d, v%d, 2, s%d" % (vU0, vKap, sa))
    A("v_lshlrev_b32 v%d, 4, v%d" % (vT1, vG))
    mm(3, "K")
    A("v_add_u32 v%d, %d, v%d" % (vT1, L_CS, vT1))
    A("s_lshl_b32 s%d, s%d, 12" % (sa, sT))
    A("s_add_u32 s%d, s%d, %d" % (sa, sa, L_VX))
    A("v_add_u32 v%d, s%d, v%d" % (vT0, sa, vL16))
    mm(2, "Q")
    A("v_mov_b32 v%d, %d" % (vU1, L_NON))
    for q in range(4):
        A("ds_write_b128 v%d, %s offset:%d" % (vT0, vr(vAcV + 4 * q, 4), q * 1024))
    mm(3, "Q")
    stamp(3)
    A("s_lshl_b32 s%d, s%d, 11" % (sa, sT))
    A("s_add_u32 s%d, s%d, %d" % (sb, sa, L_K + 8 * 2048))
    A("v_add_u32 v%d, s%d, v%d" % (vT0, sb, vL16))
    A("s_lshl_b32 s%d, s%d, 14" % (sd, sWGL))
    A("s_add_u32 s%d, s%d, s%d" % (sd, sd, sa))
    A("s_waitcnt lgkmcnt(0)")
    A("s_barrier")
    A("ds_read_b32 v%d, v%d" % (vT2, vU0))
    A("ds_read_b32 v%d, v%d offset:%d" % (vT3, vU0, L_STM - L_STR))
    for tile in (1, 0):
        for a in range(4):
            A("ds_read_b128 %s, v%d offset:%d" % (vr(vE + 16 * tile + 4 * a, 4), vT1, tile * 128 + a * 32))
    A("ds_read_b64 %s, v%d" % (vr(vNon, 2), vU1))
    A("s_waitcnt lgkmcnt(9)")
    for r in range(16):
        A("v_mul_f32 v%d, v%d, v%d" % (vAc1 + r, vAc1 + r, vT2))
    A("s_waitcnt lgkmcnt(5)")
    for r in range(16):
        A("v_fmac_f32 v%d, v%d, v%d" % (vAc1 + r, vE + 16 + r, vT3))
    def pack_store(acc, soff):
        for i in range(8):
            A("v_cvt_pk_bf16_f32 v%d, v%d, v%d" % (vPk + i, acc + 2 * i, acc + 2 * i + 1))
        A("buffer_store_dwordx4 %s, v%d, %s, s%d offen sc1" % (vr(vPk, 4), vL16, sr(sWS, 4), soff))
        A("buffer_store_dwordx4 %s, v%d, %s, s%d offen offset:1024 sc1" % (vr(vPk + 4, 4), vL16, sr(sWS, 4), soff))
        sumu(vGc, vPk, 8)
        A("ds_write_b128 v%d, %s" % (vT0, vr(vPk, 4)))
        A("ds_write_b128 v%d, %s offset:1024" % (vT0, vr(vPk + 4, 4)))
        wave_sumu(vGc, vGc + 1)
        A("s_lshl_b32 s%d, s%d, 3" % (sb, sWGL))
        A("s_add_u32 s%d, s%d, s%d" % (sb, sb, sWv))
        A("s_lshl_b32 s%d, s%d, 6" % (sb, sb))
        A("s_add_u32 s%d, s%d, 0x%x" % (sb, sb, WS_FKV))
        A("s_waitcnt lgkmcnt(2)")
        A("v_mov_b32 v%d, v%d" % (vGc + 2, vNon))
        A("v_mov_b32 v%d, v%d" % (vGc + 3, vNon + 1))
        A("s_mov_b64 exec, 1")
        A("buffer_store_dwordx4 %s, v%d, %s, s%d offen sc1" % (vr(vGc, 4), vL16, sr(sWS, 4), sb))
        A("s_mov_b64 exec, -1")
    pack_store(vAc1, sd)
    A("v_mul_f32 v%d, %s, v%d" % (vT2, f32(0.25 * LOG2E), vT2))
    A("v_mul_f32 v%d, %s, v%d" % (vT3, f32(0.25 * LOG2E), vT3))
    A("s_waitcnt lgkmcnt(2)")
    for r in range(8, 16):
        A("v_mul_f32 v%d, v%d, v%d" % (vAc0 + r, vAc0 + r, vT2))
        A("v_fmac_f32 v%d, v%d, v%d" % (vAc0 + r, vE + r, vT3))
    for i in range(4):
        A("v_cvt_pk_bf16_f32 v%d, v%d, v%d" % (vPk + 8 + i, vAc0 + 8 + 2 * i, vAc0 + 8 + 2 * i + 1))
    A("s_lshl_b32 s%d, s%d, 10" % (sa, sT))
    A("s_add_u32 s%d, s%d, %d" % (sa, sa, L_Q))
    A("v_add_u32 v%d, s%d, v%d" % (vT0, sa, vL16))
    A("ds_write_b128 v%d, %s" % (vT0, vr(vPk + 8, 4)))
    for r in range(8):
        A("v_mul_f32 v%d, v%d, v%d" % (vAc0 + r, vAc0 + r, vT2))
        A("v_fmac_f32 v%d, v%d, v%d" % (vAc0 + r, vE + r, vT3))
    for i in range(4):
        A("v_cvt_pk_bf16_f32 v%d, v%d, v%d" % (vQ + i, vAc0 + 2 * i, vAc0 + 2 * i + 1))
    A("s_branch K_PUB")

    A.label("K_LOOP1")
    A("v_mov_b32 v%d, 0" % vT0)
    A("buffer_load_dwordx2 %s, v%d, %s, 0 offen sc1" % (vr(vNon, 2), vT0, sr(sGA, 4)))
    stamp(2)
    def try_publish(lab, blocking=False):
        A.label(lab + "_r")
        A("s_cmp_lg_u32 s%d, 0" % sPub)
        A("s_cbranch_scc1 %s" % lab)
        if blocking:
            A("s_waitcnt vmcnt(0)")
        A("v_readfirstlane_b32 s%d, v%d" % (sPub, vNon + 1))
        A("ds_read_b64 %s, v%d" % (vr(vRow, 2), vU1))
        A("s_cmp_lg_u32 s%d, 0" % sPub)
        A("s_cbranch_scc1 %s_ok" % lab)
        A("buffer_load_dwordx2 %s, v%d, %s, 0 offen sc1" % (vr(vNon, 2), vT0, sr(sGA, 4)))
        if blocking:
            spin_tail(lab + "_r", sS)
        A("s_branch %s" % lab)
        A.label(lab + "_ok")
        A("v_mov_b32 v%d, v%d" % (vRow + 2, vNon))
        A("v_mov_b32 v%d, v%d" % (vRow + 3, vNon + 1))
        A("s_mov_b32 s%d, 0x%x" % (sb, WS_LS))
        A("s_mov_b32 exec_lo, 1")
        A("s_mov_b32 exec_hi, 1")
        A("s_waitcnt lgkmcnt(0)")
        A("buffer_store_dwordx4 %s, v%d, %s, s%d offen sc1" % (vr(vRow, 4), vLSa, sr(sWS, 4), sb))
        A("s_mov_b64 exec, -1")
        A.label(lab)
    A.label("K_LOOP1T")
    A("s_sub_u32 s%d, s%d, 3" % (sb, sS))
    A("s_cmp_lt_u32 s%d, 2" % sb)
    A("s_cbranch_scc1 K_L1_W8")
    A("s_waitcnt vmcnt(7)")
    A.label("K_L1_W8")
    A("s_waitcnt vmcnt(8)")
    if opt.get("p1st"):
        for k in range(0, 6, 2 if opt["p1st"] == 2 else 1):
            A("s_cmp_eq_u32 s%d, %d" % (sS, k))
            A("s_cbranch_scc0 K_DST%d" % k)
            stamp(4 + k)
            A.label("K_DST%d" % k)
    A("s_barrier")
    if opt.get("p1st") == 2:
        for k in range(0, 6, 2):
            A("s_cmp_eq_u32 s%d, %d" % (sS, k))
            A("s_cbranch_scc0 K_DSU%d" % k)
            stamp(5 + k)
            A.label("K_DSU%d" % k)
    dma_stage()
    A("s_cmp_lg_u32 s%d, 2" % sS)
    A("s_cbranch_scc1 K_L1_PUB")
    try_publish("K_L1_PUB")
    A("s_add_u32 s%d, s%d, 1" % (sS, sS))
    A("s_cmp_lt_u32 s%d, 6" % sS)
    A("s_cbranch_scc1 K_LOOP1T")
    A("s_waitcnt vmcnt(7)")
    if opt.get("p1st"): stamp(10)
    A("s_barrier")
    try_publish("K_L1_PUB2", blocking=True)
    A("s_mov_b32 s%d, 0x%x" % (sb, WS_LS))
    A("buffer_load_dwordx4 %s, v%d, %s, s%d offen sc1" % (vr(vRow + 4, 4), vLSb, sr(sWS, 4), sb))
    A("buffer_load_dwordx4 %s, v%d, %s, s%d offen sc1" % (vr(vGc, 4), vLSc, sr(sWS, 4), sb))
    A("s_lshl_b32 s%d, s%d, 7" % (sc, sT))
    A("s_add_u32 s%d, s%d, %d" % (sc, sc, L_STR))
    A("v_lshl_add_u32 v%d, v%d, 5, s%d" % (vT1, vG, sc))
    A("v_lshl_add_u32 v%d, v%d, 2, s%d" % (vU0, vKap, sc))
    A("v_mov_b32 v%d, %d" % (vT3, L_NON))
    A("ds_write_b64 v%d, %s" % (vT3, vr(vNon, 2)))
    A("s_lshl_b32 s%d, s%d, 12" % (sc, sT))
    A("s_add_u32 s%d, s%d, %d" % (sc, sc, L_VX))
    A("v_add_u32 v%d, s%d, v%d" % (vT3, sc, vL16))
    A("v_lshlrev_b32 v%d, 4, v%d" % (vT2, vN))
    A("v_add_u32 v%d, %d, v%d" % (vT2, L_CSP, vT2))
    A("s_mov_b32 s%d, 0" % sCnt)
    A("s_waitcnt vmcnt(2)")
    if opt.get("p1st"): stamp(11)
    A("s_barrier")
    if opt.get("p1st"): stamp(12)
    A.label("K_LS_CHK")
    A("s_waitcnt vmcnt(0)")
    A("v_cmp_eq_u64 vcc, %s, %s" % (vr(vRow + 6, 2), vr(vNon, 2)))
    A("v_cmp_eq_u64 s[68:69], %s, %s" % (vr(vGc + 2, 2), vr(vNon, 2)))
    A("s_and_b64 vcc, vcc, s[68:69]")
    A("s_cmp_eq_u64 vcc, exec")
    A("s_cbranch_scc1 K_LS_OK")
    A("buffer_load_dwordx4 %s, v%d, %s, s%d offen sc1" % (vr(vRow + 4, 4), vLSb, sr(sWS, 4), sb))
    A("buffer_load_dwordx4 %s, v%d, %s, s%d offen sc1" % (vr(vGc, 4), vLSc, sr(sWS, 4), sb))
    spin_tail("K_LS_CHK", sCnt)
    A.label("K_LS_OK")
    A("ds_write_b32 v%d, v%d" % (vU0, vRow + 4))
    A("ds_write_b32 v%d, v%d offset:%d" % (vU0, vRow + 5, L_STM - L_STR))
    A("s_waitcnt lgkmcnt(0)")
    for q in range(4):
        off = (q & 1) * 16 + (q >> 1) * 64
        A("ds_read_b128 %s, v%d offset:%d" % (vr(vE + 4 * q, 4), vT1, off))
        A("ds_read_b128 %s, v%d offset:%d" % (vr(vE + 16 + 4 * q, 4), vT1, off + L_STM - L_STR))
    if opt.get("p1st"): stamp(13)
    A("s_barrier")
    if opt.get("p1st"): stamp(14)
    for seg, acc in enumerate((vCq, vCk, vCv)):
        A("ds_read_b128 %s, v%d offset:%d" % (vr(acc, 4), vT2, seg * 512))
    A("v_lshlrev_b32 v%d, 2, v%d" % (vT2, vN))
    A("v_add_u32 v%d, %d, v%d" % (vT2, L_CS, vT2))
    A("s_lshl_b32 s%d, s%d, 11" % (sb, sT))
    A("s_add_u32 s%d, s%d, %d" % (sc, sb, L_V + 8 * 2048))
    A("v_add_u32 v%d, s%d, v%d" % (vT0, sc, vL16))
    A("s_lshl_b32 s%d, s%d, 14" % (sc, sWGL))
    A("s_add_u32 s%d, s%d, s%d" % (sc, sc, sb))
    A("s_add_u32 s%d, s%d, 8192" % (sc, sc))
    A("s_waitcnt lgkmcnt(0)")
    for acc in (vCq, vCk, vCv):
        A("v_add_f32 v%d, v%d, v%d" % (acc, acc, acc + 1))
        A("v_add_f32 v%d, v%d, v%d" % (acc + 2, acc + 2, acc + 3))
    for acc in (vCq, vCk, vCv):
        A("v_add_f32 v%d, v%d, v%d" % (acc, acc, acc + 2))
    A("ds_write_b32 v%d, v%d" % (vT2, vCq))
    A("ds_write_b32 v%d, v%d offset:128" % (vT2, vCk))
    stamp(3)
    for r in range(16):
        A("v_mul_f32 v%d, v%d, v%d" % (vE + 16 + r, vE + 16 + r, vCv))
    A("s_waitcnt lgkmcnt(0)")
    A("s_barrier")
    for q in range(4):
        A("ds_read_b128 %s, v%d offset:%d" % (vr(vAc0 + 4 * q, 4), vT3, q * 1024))
    for q in range(4):
        A("s_waitcnt lgkmcnt(%d)" % (3 - q))
        for r in range(4 * q, 4 * q + 4):
            A("v_fma_f32 v%d, v%d, v%d, v%d" % (vAc0 + r, vAc0 + r, vE + r, vE + 16 + r))
    pack_store(vAc0, sc)

    A.label("K_PUB")
    A("s_mov_b32 s%d, 0" % sWoN)
    A("s_mov_b32 s%d, 0x0000ffff" % sMaskV)
    A("s_mov_b32 s%d, 0x0000ffff" % (sMaskV + 1))
    A("v_mov_b32 v%d, %s" % (vMold, f32(-BIG)))
    A("s_lshl_b32 s%d, s%d, 10" % (sa, sTq))
    A("s_add_u32 s%d, s%d, %d" % (sa, sa, L_Q))
    A("v_add_u32 v%d, s%d, v%d" % (vT0, sa, vL16))
    A("s_waitcnt lgkmcnt(0)")
    A("s_barrier")
    if opt.get("p1st"):
        A("s_branch K_FIN")
    stamp(4)
    A("s_cmp_eq_u32 s%d, 0" % sC)
    A("s_cbranch_scc1 K_HAVEQ")
    A("ds_read_b128 %s, v%d" % (vr(vQ, 4), vT0))
    A.label("K_HAVEQ")
    A("s_cmp_ge_u32 s%d, 2" % sTq)
    A("s_cbranch_scc1 K_NOP0")
    A("s_setprio 2")
    A.label("K_NOP0")
    A("s_mov_b32 s%d, 0" % sChunk)
    A("s_mov_b32 s%d, 0" % sN1)
    A.label("K_CHUNK0")
    A("s_add_u32 s%d, s%d, 8" % (sa, sTq))
    A("s_mov_b32 s%d, 8" % sb)
    A("s_mov_b32 s%d, s%d" % (sN, sTq))
    A.label("K_CHUNK")
    A("s_lshl_b32 s%d, s%d, 11" % (sKm, sa))
    A("s_lshl_b32 s%d, s%d, 11" % (sKu, sb))
    A("v_add_u32 v%d, s%d, v%d" % (vKad, sKm, vKb))
    A("ds_read_b128 %s, v%d" % (vr(vKbf, 4), vKad))
    A("v_add_u32 v%d, s%d, v%d" % (vKad, sKu, vKb))
    A("ds_read_b128 %s, v%d" % (vr(vKa, 4), vKad))
    A("v_add_u32 v%d, s%d, v%d" % (vVad, sKm, vVb))
    A("s_mov_b64 exec, %s" % sr(sMaskV, 2))
    A("ds_read_b128 %s, v%d" % (vr(vVbf, 4), vVad))
    A("ds_read_b128 %s, v%d offset:1024" % (vr(vVbf + 4, 4), vVad))
    A("s_mov_b64 exec, -1")
    A("v_add_u32 v%d, s%d, v%d" % (vVad, sKu, vVb))
    A("v_mov_b32 v%d, v%d" % (vM, vMold))
    A("s_mov_b32 s%d, 0" % sI)
    A("s_waitcnt lgkmcnt(3)")
    A("%s %s, %s, %s, %s" % (MFMA, vr(vSb, 16), vr(vKbf, 4), vr(vQ, 4), vr(vCm, 16)))
    def wo_piece(lab, gate=False):
        if gate:
            A("s_cmp_lt_u32 s%d, %d" % (sI, opt.get("wost", 0)))
            A("s_cbranch_scc1 %s" % lab)
        A("s_cmp_eq_u32 s%d, 0" % sWoN)
        A("s_cbranch_scc1 %s" % lab)
        A("s_add_u32 s%d, s%d, s%d" % (sa, sWoL, sWoR))
        A("s_mov_b32 m0, s%d" % sa)
        A("s_lshl_b32 s%d, s%d, 3" % (sa, sWoR))
        A("s_add_u32 s%d, s%d, s%d" % (sa, sa, sWoG))
        A("buffer_load_dwordx4 v%d, %s, s%d offen lds" % (vWoA, sr(sW, 4), sa))
        A("s_add_u32 s%d, s%d, 2048" % (sWoR, sWoR))
        A("buffer_load_dwordx4 v%d, %s, s%d offen offset:1024 lds" % (vWoB, sr(sW, 4), sa))
        A("s_sub_u32 s%d, s%d, 1" % (sWoN, sWoN))
        A.label(lab)
    def max16(S):
        for i in range(8):
            A("v_max3_f32 v%d, v%d, v%d, v%d" % (vM, S + 2 * i, S + 2 * i + 1, vM))
    A.nop(6)
    A.label("K_P1")
    A("s_waitcnt lgkmcnt(0)")
    A("%s %s, %s, %s, 0" % (MFMA, vr(vSa, 16), vr(vKa, 4), vr(vQ, 4)))
    A("ds_read_b128 %s, v%d offset:2048" % (vr(vKbf, 4), vKad))
    A.nop(3)
    max16(vSb)
    A("s_cmp_ge_u32 s%d, s%d" % (sI, sN1))
    A("s_cbranch_scc1 K_P1_DONE")
    A("s_add_u32 s%d, s%d, 1" % (sI, sI))
    A("s_waitcnt lgkmcnt(0)")
    A("%s %s, %s, %s, 0" % (MFMA, vr(vSb, 16), vr(vKbf, 4), vr(vQ, 4)))
    A("v_add_u32 v%d, 4096, v%d" % (vKad, vKad))
    A("ds_read_b128 %s, v%d" % (vr(vKa, 4), vKad))
    max16(vSa)
    A("s_cmp_ge_u32 s%d, s%d" % (sI, sN1))
    A("s_cbranch_scc1 K_P1_DONE")
    A("s_add_u32 s%d, s%d, 1" % (sI, sI))
    A("s_branch K_P1")
    A.label("K_P1_DONE")
    A("v_mov_b32 v%d, v%d" % (vT0, vM))
    A("s_waitcnt lgkmcnt(0)")
    A("v_add_u32 v%d, s%d, v%d" % (vKad, sKm, vKb))
    A("ds_read_b128 %s, v%d" % (vr(vKbf, 4), vKad))
    A("v_permlane32_swap_b32 v%d, v%d" % (vM, vT0))
    A("v_add_u32 v%d, s%d, v%d" % (vKad, sKu, vKb))
    A("ds_read_b128 %s, v%d" % (vr(vKa, 4), vKad))
    A("v_max_f32 v%d, v%d, v%d" % (vM, vM, vT0))
    A("v_sub_f32 v%d, v%d, v%d" % (vT0, vMold, vM))
    A("v_exp_f32 v%d, v%d" % (vT0, vT0))
    A("v_mov_b32 v%d, v%d" % (vMold, vM))
    for r in range(16):
        A("v_sub_f32 v%d, v%d, v%d" % (vCm + r, vCm + r, vM))
    A("s_waitcnt lgkmcnt(1)")
    A("v_sub_f32 v%d, 0, v%d" % (vCn, vM))
    A("%s %s, %s, %s, %s" % (MFMA, vr(vSb, 16), vr(vKbf, 4), vr(vQ, 4), vr(vCm, 16)))
    for r in range(1, 16):
        A("v_mov_b32 v%d, v%d" % (vCn + r, vCn))
    for r in range(9):
        A("v_mul_f32 v%d, v%d, v%d" % (vO + r, vO + r, vT0))
    A("s_mov_b32 s%d, 0" % sI)
    def softmax_pv(S, V):
        for r in range(16):
            A("v_exp_f32 v%d, v%d" % (S + r, S + r))
            if r == 3 and opt.get("wost", 0):
                wo_piece("K_WOP%d" % S, True)
            if r == 11 and opt.get("wost", 0):
                wo_piece("K_WOQ%d" % S, True)
        for i in range(8):
            A("v_cvt_pk_bf16_f32 v%d, v%d, v%d" % (vP + i, S + 2 * i, S + 2 * i + 1))
        A.nop(1)
        A("%s %s, %s, %s, %s" % (MFMA, vr(vO, 16), vr(V, 4), vr(vP, 4), vr(vO, 16)))
        A("%s %s, %s, %s, %s" % (MFMA, vr(vO, 16), vr(V + 4, 4), vr(vP + 4, 4), vr(vO, 16)))
    A.label("K_P2")
    A("s_waitcnt lgkmcnt(0)")
    A("%s %s, %s, %s, %s" % (MFMA, vr(vSa, 16), vr(vKa, 4), vr(vQ, 4), vr(vCn, 16)))
    A("ds_read_b128 %s, v%d offset:2048" % (vr(vKbf, 4), vKad))
    A("s_mov_b64 exec, %s" % sr(sMaskV, 2))
    A("ds_read_b128 %s, v%d" % (vr(vVa, 4), vVad))
    A("ds_read_b128 %s, v%d offset:1024" % (vr(vVa + 4, 4), vVad))
    A("s_mov_b64 exec, -1")
    softmax_pv(vSb, vVbf)
    A("s_cmp_ge_u32 s%d, s%d" % (sI, sN))
    A("s_cbranch_scc1 K_P2_DONE")
    A("s_add_u32 s%d, s%d, 1" % (sI, sI))
    A("s_waitcnt lgkmcnt(0)")
    A("%s %s, %s, %s, %s" % (MFMA, vr(vSb, 16), vr(vKbf, 4), vr(vQ, 4), vr(vCn, 16)))
    A("v_add_u32 v%d, 4096, v%d" % (vKad, vKad))
    A("ds_read_b128 %s, v%d" % (vr(vKa, 4), vKad))
    A("s_mov_b64 exec, %s" % sr(sMaskV, 2))
    A("ds_read_b128 %s, v%d offset:2048" % (vr(vVbf, 4), vVad))
    A("ds_read_b128 %s, v%d offset:3072" % (vr(vVbf + 4, 4), vVad))
    A("s_mov_b64 exec, -1")
    A("v_add_u32 v%d, 4096, v%d" % (vVad, vVad))
    softmax_pv(vSa, vVa)
    A("s_cmp_ge_u32 s%d, s%d" % (sI, sN))
    A("s_cbranch_scc1 K_P2_DONE")
    A("s_add_u32 s%d, s%d, 1" % (sI, sI))
    A("s_branch K_P2")
    A.label("K_P2_DONE")
    A("s_waitcnt lgkmcnt(0)")
    A("s_cmp_eq_u32 s%d, 1" % sChunk)
    A("s_cbranch_scc1 K_ATT_CHECK")
    A("s_cmp_eq_u32 s%d, 2" % sChunk)
    A("s_cbranch_scc1 K_SLOW1")
    A("s_cmp_eq_u32 s%d, 3" % sChunk)
    A("s_cbranch_scc1 K_ATT_DONE")
    stamp(5)
    A("s_mov_b32 s%d, 0" % sFon)
    A("v_lshlrev_b32 v%d, 6, v%d" % (vKV + 36, vL))
    A("v_mov_b32 v%d, 0" % (vKV + 32))
    A("s_cmp_ge_u32 s%d, 2" % sTq)
    A("s_cbranch_scc1 K_FETCH_ISSUED")
    A("s_cmp_le_u32 s%d, s%d" % (sB, sTq))
    A("s_cbranch_scc1 K_FETCH_ISSUED")
    A("s_mov_b32 s%d, 1" % sFon)
    A("s_add_u32 s%d, s%d, 1" % (sa, sTq))
    A("s_lshl_b32 s%d, s%d, 4" % (sa, sa))
    A("s_sub_u32 s%d, s%d, s%d" % (sa, sWGL, sa))
    A("s_lshl_b32 s%d, s%d, 1" % (sa, sa))
    A("s_add_u32 s%d, s%d, s%d" % (sa, sa, sC))
    A("s_lshl_b32 s%d, s%d, 13" % (sFa, sa))
    A("s_lshl_b32 s%d, s%d, 8" % (sFg, sa))
    A("s_add_u32 s%d, s%d, 0x%x" % (sFg, sFg, WS_FKV))
    def kv_loads():
        A("s_add_u32 s%d, s%d, 4096" % (sb, sFa))
        for q in range(8):
            A("buffer_load_dwordx4 %s, v%d, %s, s%d offen offset:%d sc1" % (vr(vKV + 4 * q, 4), vL16, sr(sWS, 4), sFa if q < 4 else sb, (q & 3) * 1024))
        A("s_mov_b64 exec, 0xf")
        A("buffer_load_dwordx4 %s, v%d, %s, s%d offen sc1" % (vr(vKV + 32, 4), vKV + 36, sr(sWS, 4), sFg))
        A("s_mov_b64 exec, -1")
    kv_loads()
    A.label("K_FETCH_ISSUED")
    A("v_mov_b32 v%d, %s" % (vU0, f32(-BIG)))
    A("s_cmp_eq_u32 s%d, 1" % sB)
    A("s_cselect_b32 s%d, %s, 0" % (sCnt, f32(-BIG)))
    A("v_add_f32 v%d, s%d, v%d" % (vU1, sCnt, vCn))
    build_mask(True)
    srd(sGB, pWR, 1024)
    srd(sW, pWO, 0x80000)
    A("v_lshrrev_b32 v%d, 3, v%d" % (vT0, vL))
    A("v_bfe_u32 v%d, v%d, 4, 1" % (vT1, vL))
    A("v_lshlrev_b32 v%d, 2, v%d" % (vT1, vT1))
    A("v_and_b32 v%d, 7, v%d" % (vT2, vL))
    A("v_xor_b32 v%d, v%d, v%d" % (vT2, vT2, vT1))
    A("v_lshlrev_b32 v%d, 4, v%d" % (vT2, vT2))
    A("v_lshl_add_u32 v%d, v%d, 10, v%d" % (vWoA, vT0, vT2))
    A("v_add_u32 v%d, %d, v%d" % (vWoB, 8192 - 1024, vWoA))
    A("s_lshl_b32 s%d, s%d, 7" % (sd, sCG))
    A("s_lshl_b32 s%d, s%d, 1" % (sWoL, sC))
    A("s_add_u32 s%d, s%d, s%d" % (sWoL, sWoL, sTq))
    A("s_lshl_b32 s%d, s%d, 17" % (sWoG, sWoL))
    A("s_add_u32 s%d, s%d, s%d" % (sWoG, sWoG, sd))
    A("s_lshl_b32 s%d, s%d, 14" % (sWoL, sWoL))
    A("s_add_u32 s%d, s%d, %d" % (sWoL, sWoL, L_WO))
    A("s_mov_b32 s%d, 0" % sWoR)
    A("s_cmp_lt_u32 s%d, 2" % sTq)
    A("s_cselect_b32 s%d, 8, 0" % sWoN)
    def chunk1_params():
        A("s_add_u32 s%d, s%d, 1" % (sb, sTq))
        A("s_mov_b32 s%d, s%d" % (sa, sTq))
        A("s_cmp_eq_u32 s%d, 1" % sB)
        A("s_cselect_b32 s%d, 4, s%d" % (sb, sb))
        A("s_cselect_b32 s%d, 4, s%d" % (sa, sa))
        A("s_sub_u32 s%d, 8, s%d" % (sN, sb))
    chunk1_params()
    A("s_lshl_b32 s%d, s%d, 11" % (sa, sa))
    A("s_lshl_b32 s%d, s%d, 11" % (sb, sb))
    A("v_add_u32 v%d, s%d, v%d" % (vKV + 40, sa, vKb))
    A("v_add_u32 v%d, s%d, v%d" % (vKad, sb, vKb))
    A("v_add_u32 v%d, s%d, v%d" % (vKV + 41, sa, vVb))
    A("v_add_u32 v%d, s%d, v%d" % (vVad, sb, vVb))
    A("s_mov_b32 s%d, 0" % sI)
    A("s_mov_b32 s%d, 1" % sChunk)
    A("v_and_b32 v%d, 7, v%d" % (vKV + 42, vL))
    A("v_lshlrev_b32 v%d, 4, v%d" % (vKV + 42, vKV + 42))
    A("v_lshl_add_u32 v%d, v%d, 10, v%d" % (vKV + 43, vTok, vKV + 42))
    A("s_cmp_eq_u32 s%d, 0" % sFon)
    A("s_cbranch_scc1 K_B3")
    A("s_mul_i32 s68, s%d, %d" % (sC, L_V - L_K))
    A("s_lshl_b32 s69, s%d, 13" % sTq)
    A("s_sub_u32 s68, s68, s69")
    A("s_add_u32 s68, s68, %d" % (L_K + 8192))
    A("v_add_u32 v%d, s68, v%d" % (vT1, vL16))
    A("s_mov_b32 s%d, 0" % sCnt)
    A.label("K_KVCHK")
    A("s_waitcnt vmcnt(0)")
    A("v_cmp_eq_u64 vcc, %s, %s" % (vr(vKV + 34, 2), vr(vNon, 2)))
    A("s_and_b32 s68, vcc_lo, 0xf")
    A("s_cmp_eq_u32 s68, 0xf")
    A("s_cbranch_scc0 K_KVRETRY")
    for i in range(8):
        A("ds_write_b128 v%d, %s offset:%d" % (vT1, vr(vKV + 4 * i, 4), i * 1024))
    A("v_sub_u32 v%d, 0, v%d" % (vT0, vKV + 32))
    sumu(vT0, vKV, 32, init=vT0)
    wave_sumu(vT0, vT3)
    A.nop(1)
    A("v_readfirstlane_b32 s68, v%d" % vT0)
    A("s_cmp_eq_u32 s68, 0")
    A("s_cbranch_scc1 K_B3W")
    A("s_waitcnt lgkmcnt(0)")
    A.label("K_KVRETRY")
    kv_loads()
    spin_tail("K_KVCHK", sCnt)
    A.label("K_B3W")
    A("s_waitcnt lgkmcnt(0)")
    A.label("K_B3")
    A("s_barrier")
    stamp(6)
    A("ds_read_b128 %s, v%d" % (vr(vKbf, 4), vKV + 40))
    A("ds_read_b128 %s, v%d" % (vr(vKa, 4), vKad))
    A("s_mov_b64 exec, %s" % sr(sMaskV, 2))
    A("ds_read_b128 %s, v%d" % (vr(vVbf, 4), vKV + 41))
    A("ds_read_b128 %s, v%d offset:1024" % (vr(vVbf + 4, 4), vKV + 41))
    A("s_mov_b64 exec, -1")
    A("buffer_load_dwordx4 %s, v%d, %s, s%d offen" % (vr(vXr, 4), vKV + 43, sr(sX, 4), sd))
    A("buffer_load_dwordx4 %s, v%d, %s, s%d offen" % (vr(vWr, 4), vKV + 42, sr(sGB, 4), sd))
    A("buffer_load_dwordx4 %s, v%d, %s, 0 offen" % (vr(vWR4, 4), vL16, sr(sGB, 4)))
    A("s_waitcnt lgkmcnt(3)")
    A("%s %s, %s, %s, %s" % (MFMA, vr(vSb, 16), vr(vKbf, 4), vr(vQ, 4), vr(vCm, 16)))
    A("s_cmp_lt_u32 s%d, %d" % (sTq, 9 if opt.get("notouch") else 2))
    A("s_cbranch_scc1 K_TOUCHED")
    A("s_lshl_b32 s%d, s%d, 1" % (sc, sC))
    A("s_add_u32 s%d, s%d, s%d" % (sc, sc, sTq))
    A("s_and_b32 s%d, s2, 7" % sa)
    A("s_lshr_b32 s%d, s2, 3" % sb)
    A("s_mul_i32 s%d, s%d, 44032" % (sb, sb))
    A("s_cmp_eq_u32 s%d, 5" % sc)
    A("s_cbranch_scc0 K_TOUCH_F")
    A("v_lshlrev_b32 v%d, 7, v%d" % (vT0, vL))
    A("s_lshr_b32 s%d, s2, 3" % sb)
    A("s_lshl_b32 s%d, s%d, 14" % (sb, sb))
    A("buffer_load_dword v%d, v%d, %s, s%d offen" % (vU0, vT0, sr(sW, 4), sb))
    A("s_add_u32 s%d, s%d, 8192" % (sb, sb))
    A("buffer_load_dword v%d, v%d, %s, s%d offen" % (vU1, vT0, sr(sW, 4), sb))
    A("s_branch K_TOUCHED")
    A.label("K_TOUCH_F")
    A("s_cmp_eq_u32 s%d, 4" % sc)
    A("s_cbranch_scc1 K_TOUCH_D")
    A("s_cmp_eq_u32 s%d, 2" % sc)
    A("s_cselect_b32 s%d, s%d, s%d" % (sGA, pWG, pWU))
    A("s_cselect_b32 s%d, s%d, s%d" % (sGA + 1, pWG + 1, pWU + 1))
    A("s_mov_b32 s%d, %d" % (sGA + 2, 512 * 2752))
    A("s_mov_b32 s%d, 0x20000" % (sGA + 3))
    A("v_lshrrev_b32 v%d, 2, v%d" % (vT0, vL))
    A("v_mul_u32_u24 v%d, 2752, v%d" % (vT0, vT0))
    A("v_and_b32 v%d, 3, v%d" % (vT1, vL))
    if opt.get("t128", 1):
        A("v_lshlrev_b32 v%d, 7, v%d" % (vT1, vT1))
        A("v_min_u32 v%d, 348, v%d" % (vT1, vT1))
        A("v_add_u32 v%d, v%d, v%d" % (vT2, vT1, vT0))
    else:
        A("v_lshl_add_u32 v%d, v%d, 6, v%d" % (vT2, vT1, vT0))
        A("v_lshlrev_b32 v%d, 6, v%d" % (vT1, vT1))
        A("v_min_u32 v%d, 92, v%d" % (vT1, vT1))
        A("v_add_u32 v%d, v%d, v%d" % (vT3, vT1, vT0))
    A("s_mul_i32 s%d, s%d, 352" % (sa, sa))
    A("s_add_u32 s%d, s%d, s%d" % (sa, sa, sb))
    A("buffer_load_dword v%d, v%d, %s, s%d offen" % (vU0, vT2, sr(sGA, 4), sa))
    if not opt.get("t128", 1):
        A("buffer_load_dword v%d, v%d, %s, s%d offen offset:256" % (vU1, vT3, sr(sGA, 4), sa))
    A("s_branch K_TOUCHED")
    A.label("K_TOUCH_D")
    srd(sGA, pWD, 1376 * 1024)
    A("v_min_u32 v%d, 42, v%d" % (vT0, vL))
    A("v_lshlrev_b32 v%d, 10, v%d" % (vT0, vT0))
    A("s_lshl_b32 s%d, s%d, 7" % (sa, sa))
    A("s_add_u32 s%d, s%d, s%d" % (sa, sa, sb))
    A("buffer_load_dword v%d, v%d, %s, s%d offen" % (vU0, vT0, sr(sGA, 4), sa))
    if not opt.get("t128", 1):
        A("buffer_load_dword v%d, v%d, %s, s%d offen offset:64" % (vU1, vT0, sr(sGA, 4), sa))
    A.label("K_TOUCHED")
    A("s_cmp_eq_u32 s%d, 0" % sB)
    A("s_cbranch_scc1 K_ATT_CHECK")
    A.nop(1)
    A("s_branch K_P2")
    A.label("K_SLOW1")
    A("s_cmp_eq_u32 s%d, 0" % sB)
    A("s_cbranch_scc1 K_ATT_DONE")
    A("v_mov_b32 v%d, %s" % (vU0, f32(-BIG)))
    A("s_cmp_eq_u32 s%d, 1" % sB)
    A("s_cselect_b32 s%d, %s, 0" % (sCnt, f32(-BIG)))
    A("v_mov_b32 v%d, s%d" % (vU1, sCnt))
    build_mask(True)
    A("s_mov_b32 s%d, 3" % sChunk)
    chunk1_params()
    A("s_mov_b32 s%d, s%d" % (sN1, sN))
    A("s_branch K_CHUNK")
    A.label("K_ATT_CHECK")
    A("s_waitcnt lgkmcnt(0)")
    A("s_lshl_b32 s%d, s%d, 2" % (sa, sB))
    A("s_add_u32 s%d, s%d, s%d" % (sa, sa, sTq))
    A("s_lshl_b32 s%d, s%d, 5" % (sa, sa))
    A("s_lshl_b32 s%d, s%d, 1" % (sb, sHP))
    A("s_add_u32 s%d, s%d, s%d" % (sa, sa, sb))
    A("s_add_u32 s%d, s%d, s%d" % (sa, sa, sC))
    A("s_lshl_b32 s%d, s%d, 10" % (sb, sa))
    A("s_add_u32 s%d, s%d, 0x%x" % (sb, sb, WS_O))
    A("s_lshl_b32 s%d, s%d, 6" % (sa, sa))
    A("s_add_u32 s%d, s%d, 0x%x" % (sa, sa, WS_FO))
    A("v_cmp_gt_f32 vcc, %s, v%d" % (f32(2.0 ** 60), vO + 8))
    A("s_cmp_eq_u64 vcc, exec")
    A("s_cbranch_scc%d K_ATT_DONE2" % (0 if opt.get("forceslow") else 1))
    A("s_waitcnt vmcnt(0)")
    A("v_mov_b32 v%d, %s" % (vU0, f32(-BIG)))
    A("v_mov_b32 v%d, 0" % vU1)
    build_mask(False)
    for i in range(16):
        A("v_mov_b32 v%d, 0" % (vO + i))
    A("v_mov_b32 v%d, %s" % (vMold, f32(-BIG)))
    A("s_mov_b32 s%d, 2" % sChunk)
    A("s_mov_b32 s%d, s%d" % (sN1, sTq))
    A("s_branch K_CHUNK0")
    A.label("K_ATT_DONE")
    A("s_lshl_b32 s%d, s%d, 2" % (sa, sB))
    A("s_add_u32 s%d, s%d, s%d" % (sa, sa, sTq))
    A("s_lshl_b32 s%d, s%d, 5" % (sa, sa))
    A("s_lshl_b32 s%d, s%d, 1" % (sb, sHP))
    A("s_add_u32 s%d, s%d, s%d" % (sa, sa, sb))
    A("s_add_u32 s%d, s%d, s%d" % (sa, sa, sC))
    A("s_lshl_b32 s%d, s%d, 10" % (sb, sa))
    A("s_add_u32 s%d, s%d, 0x%x" % (sb, sb, WS_O))
    A("s_lshl_b32 s%d, s%d, 6" % (sa, sa))
    A("s_add_u32 s%d, s%d, 0x%x" % (sa, sa, WS_FO))
    A.nop(2)
    A.label("K_ATT_DONE2")
    stamp(7)
    A("v_rcp_f32 v%d, v%d" % (vT0, vO + 8))
    A.nop(1)
    for r in range(8):
        A("v_mul_f32 v%d, v%d, v%d" % (vO + r, vO + r, vT0))
    for i in range(4):
        A("v_cvt_pk_bf16_f32 v%d, v%d, v%d" % (vP + i, vO + 2 * i, vO + 2 * i + 1))
    A("buffer_store_dwordx4 %s, v%d, %s, s%d offen sc1" % (vr(vP, 4), vL16, sr(sWS, 4), sb))
    sumu(vP + 4, vP, 4)
    wave_sumu(vP + 4, vP + 5)
    A("v_mov_b32 v%d, v%d" % (vP + 6, vNon))
    A("v_mov_b32 v%d, v%d" % (vP + 7, vNon + 1))
    A("s_mov_b64 exec, 1")
    A("buffer_store_dwordx4 %s, v%d, %s, s%d offen sc1" % (vr(vP + 4, 4), vL16, sr(sWS, 4), sa))
    A("s_mov_b64 exec, -1")
    A("s_setprio 0")
    stamp(8)
    A("s_cmp_eq_u32 s%d, 0" % sWoN)
    A("s_cbranch_scc1 K_WOW1")
    A.label("K_WOREST")
    wo_piece("K_WODONE")
    A("s_cmp_lg_u32 s%d, 0" % sWoN)
    A("s_cbranch_scc1 K_WOREST")
    A("s_waitcnt vmcnt(0)")
    A.label("K_WOW1")
    A("s_barrier")
    A("s_lshl_b32 s%d, s%d, 1" % (sa, sG3))
    A("s_add_u32 s%d, s%d, s%d" % (sa, sa, sC))
    A("s_lshl_b32 s%d, s%d, 2" % (sa, sa))
    A("s_add_u32 s%d, s%d, s%d" % (sa, sa, sT))
    A("s_lshl_b32 s%d, s%d, 9" % (sd, sa))
    A("s_add_u32 s%d, s%d, 0x%x" % (sd, sd, WS_FO))
    A("s_lshl_b32 s%d, s%d, 13" % (sa, sa))
    A("s_add_u32 s%d, s%d, 0x%x" % (sa, sa, WS_O))
    A("s_add_u32 s%d, s%d, 4096" % (sb, sa))
    A("v_lshlrev_b32 v%d, 6, v%d" % (vT0, vL))
    A("v_mov_b32 v%d, 0" % vOG)
    A("s_mov_b64 exec, 0xff")
    A("buffer_load_dwordx4 %s, v%d, %s, s%d offen sc1" % (vr(vOG, 4), vT0, sr(sWS, 4), sd))
    A("s_mov_b64 exec, -1")
    A("v_bfe_u32 v%d, v%d, 2, 2" % (vT1, vL))
    A("v_lshl_add_u32 v%d, v%d, 3, v%d" % (vT2, vG, vT1))
    A("s_lshl_b32 s%d, s%d, 14" % (sc, sT))
    A("s_add_u32 s%d, s%d, %d" % (sc, sc, L_WO))
    A("v_lshl_add_u32 v%d, v%d, 7, s%d" % (vWOa, vT2, sc))
    A("v_lshrrev_b32 v%d, 1, v%d" % (vT1, vT1))
    A("v_lshl_add_u32 v%d, v%d, 6, v%d" % (vWOa, vT1, vWOa))
    A("v_bfe_u32 v%d, v%d, 4, 1" % (vT1, vL))
    A("v_lshl_add_u32 v%d, v%d, 5, v%d" % (vWOa, vT1, vWOa))
    A("v_and_b32 v%d, 3, v%d" % (vT1, vL))
    A("v_lshl_add_u32 v%d, v%d, 3, v%d" % (vWOa, vT1, vWOa))
    A("v_xor_b32 v%d, 64, v%d" % (vWOa + 1, vWOa))
    for s in range(8):
        for C in range(2):
            for half in range(2):
                A("ds_read_b64_tr_b16 %s, v%d offset:%d" % (vr(vAW + (s * 2 + C) * 4 + 2 * half, 2), vWOa + C, (16 * s + 4 * half) * 128))
    A("v_and_b32 v%d, 15, v%d" % (vT2, vN))
    A("v_xor_b32 v%d, v%d, v%d" % (vT2, vT2, vG))
    A("v_lshlrev_b32 v%d, 4, v%d" % (vT2, vT2))
    A("s_lshl_b32 s%d, s%d, 13" % (sc, sWv))
    A("s_add_u32 s%d, s%d, %d" % (sc, sc, L_RED))
    A("v_lshl_add_u32 v%d, v%d, 8, s%d" % (vT1, vN, sc))
    for u in range(8):
        A("v_xor_b32 v%d, %d, v%d" % (vRa + u, (2 * u) << 4, vT2))
        A("v_add_u32 v%d, v%d, v%d" % (vRa + u, vRa + u, vT1))
    A("v_lshrrev_b32 v%d, 3, v%d" % (vT3, vL))
    A("s_lshl_b32 s%d, s%d, 3" % (sc, sT))
    A("v_add_u32 v%d, s%d, v%d" % (vT3, sc, vT3))
    A("v_and_b32 v%d, 7, v%d" % (vT1, vL))
    A("v_lshlrev_b32 v%d, 1, v%d" % (vT1, vT1))
    A("v_and_b32 v%d, 15, v%d" % (vT2, vT3))
    A("v_xor_b32 v%d, v%d, v%d" % (vT1, vT1, vT2))
    A("v_lshlrev_b32 v%d, 4, v%d" % (vT1, vT1))
    A("s_lshl_b32 s%d, s%d, 15" % (sc, sC))
    A("s_add_u32 s%d, s%d, %d" % (sc, sc, L_RED))
    A("v_lshl_add_u32 v%d, v%d, 8, s%d" % (vT3, vT3, sc))
    A("v_add_u32 v%d, v%d, v%d" % (vT2, vT3, vT1))
    A("v_xor_b32 v%d, 16, v%d" % (vT1, vT1))
    A("v_add_u32 v%d, v%d, v%d" % (vT3, vT3, vT1))
    A("s_mov_b32 s%d, 0" % sCnt)
    A("s_mov_b64 exec, 0xff")
    A.label("K_POLLO")
    A("s_waitcnt vmcnt(0)")
    A("v_cmp_eq_u64 vcc, %s, %s" % (vr(vOG + 2, 2), vr(vNon, 2)))
    A("s_cmp_eq_u64 vcc, exec")
    A("s_cbranch_scc1 K_POLLO_OK")
    A("buffer_load_dwordx4 %s, v%d, %s, s%d offen sc1" % (vr(vOG, 4), vT0, sr(sWS, 4), sd))
    spin_tail("K_POLLO", sCnt)
    A.label("K_POLLO_OK")
    A("s_mov_b64 exec, -1")
    stamp(9)
    A.label("K_OLOAD")
    for s in range(8):
        A("buffer_load_dwordx4 %s, v%d, %s, s%d offen offset:%d sc1" % (vr(vOF + 4 * s, 4), vL16, sr(sWS, 4), sa if s < 4 else sb, (s & 3) * 1024))
    A("v_sub_u32 v%d, 0, v%d" % (vChk, vOG))
    A("s_waitcnt lgkmcnt(0)")
    for s in range(8):
        A("s_waitcnt vmcnt(%d)" % (7 - s))
        A("%s %s, %s, %s, %s" % (MFMA, vr(vH0, 16), vr(vAW + (s * 2) * 4, 4), vr(vOF + 4 * s, 4), "0" if s == 0 else vr(vH0, 16)))
        A("v_add3_u32 v%d, v%d, v%d, v%d" % (vChk, vOF + 4 * s, vOF + 4 * s + 1, vChk))
        A("%s %s, %s, %s, %s" % (MFMA, vr(vH1, 16), vr(vAW + (s * 2 + 1) * 4, 4), vr(vOF + 4 * s, 4), "0" if s == 0 else vr(vH1, 16)))
        A("v_add3_u32 v%d, v%d, v%d, v%d" % (vChk, vOF + 4 * s + 2, vOF + 4 * s + 3, vChk))
    wave_sumu(vChk, vT1)
    A.nop(1)
    A("v_readfirstlane_b32 s68, v%d" % vChk)
    A("s_cmp_eq_u32 s68, 0")
    A("s_cbranch_scc1 K_OOK")
    spin_tail("K_OLOAD", sCnt)
    A.label("K_OOK")
    A("s_barrier")
    stamp(10)
    A("v_and_b32 v%d, 7, v%d" % (vT0, vL))
    A("v_lshlrev_b32 v%d, 4, v%d" % (vT1, vT0))
    A("v_lshl_add_u32 v%d, v%d, 10, v%d" % (vT1, vTok, vT1))
    A("s_lshl_b32 s%d, s%d, 7" % (sd, sCG))
    A("s_add_u32 s%d, s%d, 0x%x" % (sa, sd, WS_H))
    A.nop(2)
    for u in range(8):
        A("ds_write_b128 v%d, %s" % (vRa + u, vr(vH0 + 4 * u, 4)))
    A("v_lshrrev_b32 v%d, 3, v%d" % (vPa, vL))
    A("v_lshlrev_b32 v%d, 4, v%d" % (vChk, vPa))
    A("v_lshl_add_u32 v%d, v%d, 10, v%d" % (vPa, vT0, vChk))
    A("s_lshl_b32 s%d, s%d, 13" % (sb, sG3))
    A("s_lshl_b32 s%d, s%d, 7" % (sc, sWv))
    A("s_add_u32 s%d, s%d, s%d" % (sb, sb, sc))
    A("s_add_u32 s%d, s%d, 0x%x" % (sb, sb, WS_P))
    A("s_lshl_b32 s%d, s%d, 10" % (sc, sCG))
    A("s_add_u32 s%d, s%d, s%d" % (sc, sc, sb))
    A("s_waitcnt lgkmcnt(0)")
    A("s_barrier")
    for q in range(4):
        A("ds_read_b128 %s, v%d offset:%d" % (vr(vOF + 8 * q, 4), vT2, q * 8192))
        A("ds_read_b128 %s, v%d offset:%d" % (vr(vOF + 8 * q + 4, 4), vT3, q * 8192))
    for i in range(4):
        A("v_lshlrev_b32 v%d, 16, v%d" % (vH0 + 2 * i, vXr + i))
        A("v_and_b32 v%d, 0xffff0000, v%d" % (vH0 + 2 * i + 1, vXr + i))
    A("s_waitcnt lgkmcnt(6)")
    for i in range(8):
        A("v_add_f32 v%d, v%d, v%d" % (vOF + i, vOF + i, vH0 + i))
    A("s_waitcnt lgkmcnt(0)")
    for i in range(8):
        A("v_add_f32 v%d, v%d, v%d" % (vOF + i, vOF + i, vOF + 8 + i))
        A("v_add_f32 v%d, v%d, v%d" % (vOF + 16 + i, vOF + 16 + i, vOF + 24 + i))
    for i in range(8):
        A("v_add_f32 v%d, v%d, v%d" % (vOF + i, vOF + i, vOF + 16 + i))
    for i in range(4):
        A("v_cvt_pk_bf16_f32 v%d, v%d, v%d" % (vHp + i, vOF + 2 * i, vOF + 2 * i + 1))
    s1, s2, s3 = vOF + 16, vOF + 17, vOF + 18
    for i in range(4):
        for (acc, other) in ((s1, None), (s2, "self"), (s3, "w")):
            o = vOnes if other is None else (vHp + i if other == "self" else vWr + i)
            A("v_dot2_f32_bf16 v%d, v%d, v%d, %s" % (acc, vHp + i, o, "0" if i == 0 else "v%d" % acc))
    sumu(s3 + 1, vHp, 4)
    A("buffer_store_dwordx4 %s, v%d, %s, s%d offen sc1" % (vr(vHp, 4), vT1, sr(sWS, 4), sa))
    def red8(regs):
        for dpp in ("quad_perm:[1,0,3,2]", "quad_perm:[2,3,0,1]", "row_half_mirror"):
            for acc in regs:
                A("v_add_f32_dpp v%d, v%d, v%d %s row_mask:0xf bank_mask:0xf" % (acc, acc, acc, dpp))
    for dpp in ("quad_perm:[1,0,3,2]", "quad_perm:[2,3,0,1]", "row_half_mirror"):
        for acc in (s1, s2, s3):
            A("v_add_f32_dpp v%d, v%d, v%d %s row_mask:0xf bank_mask:0xf" % (acc, acc, acc, dpp))
        A("v_add_u32_dpp v%d, v%d, v%d %s row_mask:0xf bank_mask:0xf" % (s3 + 1, s3 + 1, s3 + 1, dpp))
    for acc in (s1, s2, s3, s3 + 1):
        A("v_min_u32 v%d, -2, v%d" % (acc, acc))
    A("s_mov_b32 exec_lo, 0x01010101")
    A("s_mov_b32 exec_hi, 0x01010101")
    A("s_add_u32 s68, s%d, 0x%x" % (sc, WS_P2 - WS_P))
    A("buffer_store_dwordx4 %s, v%d, %s, s68 offen" % (vr(s1, 4), vChk, sr(sWS, 4)))
    A("buffer_store_dwordx4 %s, v%d, %s, s%d offen sc1" % (vr(s1, 4), vChk, sr(sWS, 4), sc))
    A("s_mov_b64 exec, -1")
    A("s_add_u32 s%d, s%d, 0x%x" % (sc, sb, WS_P2 - WS_P))
    for i in range(3):
        A("v_mov_b32 v%d, v%d" % (vS + i, s1 + i))
    A("s_lshl_b32 s%d, 0x01010101, s%d" % (sMaskV, sCG))
    A("s_not_b32 s%d, s%d" % (sMaskV, sMaskV))
    A("s_mov_b32 s%d, s%d" % (sMaskV + 1, sMaskV))
    stamp(11)
    srd(sW, pOUT, 0x200000)
    for i in range(4):
        A("v_dot2_f32_bf16 v%d, v%d, v%d, %s" % (vW1, vWR4 + i, vOnes, "0" if i == 0 else "v%d" % vW1))
    A.nop(3)
    for dpp in ("quad_perm:[1,0,3,2]", "quad_perm:[2,3,0,1]", "row_half_mirror", "row_mirror"):
        A("v_add_f32_dpp v%d, v%d, v%d %s row_mask:0xf bank_mask:0xf" % (vW1, vW1, vW1, dpp))
        A.nop(2)
    for sw in ("v_permlane16_swap_b32", "v_permlane32_swap_b32"):
        A("v_mov_b32 v%d, v%d" % (vT0, vW1))
        A.nop(2)
        A("%s v%d, v%d" % (sw, vW1, vT0))
        A.nop(1)
        A("v_add_f32 v%d, v%d, v%d" % (vW1, vW1, vT0))
    A("s_cmp_eq_u32 s%d, 0" % sRole)
    A("s_cbranch_scc1 K_NOFA")
    for i in range(24):
        A("v_mov_b32 v%d, v%d" % (vBF + i, vOnes))
    A.label("K_NOFA")
    for i in range(4):
        A("v_lshlrev_b32 v%d, 16, v%d" % (vX + 2 * i, vHp + i))
        A("v_and_b32 v%d, 0xffff0000, v%d" % (vX + 2 * i + 1, vHp + i))
    A("v_sub_u32 v%d, 2047, v%d" % (vT0, vTok))
    A("s_lshl_b32 s68, s%d, 3" % sWv)
    A("s_add_u32 s68, s68, %d" % L_TOP)
    A("v_mov_b32 v%d, s68" % vT3)
    A("s_mov_b32 s%d, 0xfffff800" % sI2)
    A("v_mov_b32 v%d, 0" % vK2)
    A("s_mov_b32 s%d, 0" % sCnt)
    A("s_mov_b64 exec, %s" % sr(sMaskV, 2))
    A.label("K_POLL1")
    A("s_and_b32 s68, s%d, 3" % sCnt)
    A("s_cmp_eq_u32 s68, 3")
    A("s_cselect_b32 s68, s%d, s%d" % (sb, sc))
    A("buffer_load_dwordx4 %s, v%d, %s, s68 offen sc1" % (vr(vS, 4), vPa, sr(sWS, 4)))
    A("s_waitcnt vmcnt(0)")
    maxu(vT2, vS, 4)
    A("v_cmp_eq_u32 vcc, -1, v%d" % vT2)
    A("s_cmp_eq_u64 vcc, 0")
    A("s_cbranch_scc1 K_POLL1_OK")
    A("s_mov_b64 exec, vcc")
    spin_tail("K_POLL1", sCnt)
    A.label("K_POLL1_OK")
    A("s_mov_b64 exec, -1")
    stamp(12)
    red8((vS, vS + 1, vS + 2))
    ln_stats(vS, vS + 1)
    A("v_fma_f32 v%d, -v%d, v%d, v%d" % (vS + 2, vS, vW1, vS + 2))
    A("v_mul_f32 v%d, v%d, v%d" % (vS + 2, vS + 2, vS + 1))
    A("v_ashrrev_i32 v%d, 31, v%d" % (vK1, vS + 2))
    A("v_or_b32 v%d, 0x80000000, v%d" % (vK1, vK1))
    A("v_xor_b32 v%d, v%d, v%d" % (vK1, vK1, vS + 2))
    A("v_and_or_b32 v%d, v%d, s%d, v%d" % (vK1, vK1, sI2, vT0))
    def merge(p1=vP1, p2=vP2):
        A("v_max_u32 v%d, v%d, v%d" % (vK2, vK2, p2))
        A("v_med3_u32 v%d, v%d, v%d, v%d" % (vK2, vK1, p1, vK2))
        A("v_max_u32 v%d, v%d, v%d" % (vK1, vK1, p1))
    def merge_dpp(dpp):
        A.nop(2)
        A("v_mov_b32_dpp v%d, v%d %s row_mask:0xf bank_mask:0xf" % (vP1, vK1, dpp))
        A("v_mov_b32_dpp v%d, v%d %s row_mask:0xf bank_mask:0xf" % (vP2, vK2, dpp))
        merge()
    def merge_swap(sw):
        A("v_mov_b32 v%d, v%d" % (vP1, vK1))
        A("v_mov_b32 v%d, v%d" % (vP2, vK2))
        A.nop(2)
        A("%s v%d, v%d" % (sw, vK1, vP1))
        A("%s v%d, v%d" % (sw, vK2, vP2))
        A.nop(1)
        merge()
    merge_dpp("row_ror:8")
    merge_swap("v_permlane16_swap_b32")
    merge_swap("v_permlane32_swap_b32")
    A("ds_write_b64 v%d, %s" % (vT3, vr(vK1, 2)))
    A("s_waitcnt lgkmcnt(0)")
    A("s_barrier")
    A("s_cmp_eq_u32 s%d, 0" % sWv)
    A("s_cbranch_scc1 K_W0")
    A("s_cmp_eq_u32 s%d, 0" % sC)
    A("s_cbranch_scc1 K_STG_DONE")
    A("s_cmp_eq_u32 s%d, 0" % sRole)
    A("s_cbranch_scc1 K_STG_DONE")
    A("s_mov_b32 s%d, s%d" % (sc, sT))
    A("v_lshrrev_b32 v%d, 1, v%d" % (vT0, vL))
    A("v_and_b32 v%d, 1, v%d" % (vT2, vL))
    A("v_lshlrev_b32 v%d, 4, v%d" % (vT2, vT2))
    A("s_lshl_b32 s%d, s%d, 5" % (sa, sJ))
    A("s_cmp_eq_u32 s%d, 1" % sRole)
    A("s_cbranch_scc0 K_FFN_D")
    srd(sGA, pWG, 512 * 2752)
    srd(sGB, pWU, 512 * 2752)
    A("v_mul_u32_u24 v%d, 2752, v%d" % (vT0, vT0))
    A("v_add_u32 v%d, v%d, v%d" % (vT0, vT0, vT2))
    A("s_mul_i32 s%d, s%d, %d" % (sb, sc, 128 * 2752))
    A("s_add_u32 s%d, s%d, s%d" % (sa, sa, sb))
    A("s_lshl_b32 s%d, s%d, 12" % (sb, sc))
    for q in range(4):
        A("s_add_u32 s%d, s%d, %d" % (sc, sb, L_F + q * 1024))
        A("s_mov_b32 m0, s%d" % sc)
        A("s_add_u32 s%d, s%d, %d" % (sc, sb, L_FU + q * 1024))
        A("buffer_load_dwordx4 v%d, %s, s%d offen lds" % (vT0, sr(sGA, 4), sa))
        A("s_mov_b32 m0, s%d" % sc)
        A("s_nop 0")
        A("buffer_load_dwordx4 v%d, %s, s%d offen lds" % (vT0, sr(sGB, 4), sa))
        A("s_add_u32 s%d, s%d, %d" % (sa, sa, 32 * 2752))
    A("s_branch K_STG_DONE")
    A.label("K_FFN_D")
    srd(sGA, pWD, 1376 * 1024)
    A("v_lshl_add_u32 v%d, v%d, 10, v%d" % (vT0, vT0, vT2))
    A("s_lshl_b32 s%d, s%d, 15" % (sb, sc))
    A("s_add_u32 s%d, s%d, s%d" % (sa, sa, sb))
    A("s_lshl_b32 s%d, s%d, 10" % (sb, sc))
    A("s_add_u32 s%d, s%d, %d" % (sb, sb, L_F))
    A.label("K_FFN_DL")
    A("s_mov_b32 m0, s%d" % sb)
    A("s_add_u32 s%d, s%d, 4096" % (sb, sb))
    A("buffer_load_dwordx4 v%d, %s, s%d offen lds" % (vT0, sr(sGA, 4), sa))
    A("s_add_u32 s%d, s%d, 0x20000" % (sa, sa))
    A("s_cmp_lt_u32 s%d, %d" % (sb, L_F + 43 * 1024))
    A("s_cbranch_scc1 K_FFN_DL")
    A.label("K_STG_DONE")
    for i in range(8):
        A("v_sub_f32 v%d, v%d, v%d" % (vX + 8 + i, vX + i, vS))
        A("v_fmac_f32 v%d, v%d, v%d" % (vX + i, vX + 8 + i, vS + 1))
    for i in range(4):
        A("v_cvt_pk_bf16_f32 v%d, v%d, v%d" % (vHp + i, vX + 2 * i, vX + 2 * i + 1))
    A("s_waitcnt vmcnt(0)")
    A("s_branch K_L2WAIT")
    A.label("K_W0")
    A("v_and_b32 v%d, 7, v%d" % (vT2, vL))
    A("v_lshlrev_b32 v%d, 3, v%d" % (vT2, vT2))
    A("v_add_u32 v%d, %d, v%d" % (vT2, L_TOP, vT2))
    A("ds_read_b64 %s, v%d" % (vr(vK1, 2), vT2))
    A("v_lshlrev_b32 v%d, 6, v%d" % (vT2, vN))
    A("s_mov_b32 s%d, 0x%x" % (sa, WS_E))
    A("s_lshl_b32 s%d, s%d, 6" % (sc, sG3))
    A("s_add_u32 s%d, s%d, s%d" % (sc, sc, sa))
    A("s_and_b32 s68, s%d, 7" % sG3)
    A("s_cmp_eq_u32 s68, s%d" % sCG)
    A("s_cbranch_scc0 K_NOPUB2")
    A("s_waitcnt lgkmcnt(0)")
    for dpp in ("quad_perm:[1,0,3,2]", "quad_perm:[2,3,0,1]", "row_half_mirror"):
        merge_dpp(dpp)
    A("v_mov_b32 v%d, v%d" % (vAcc, vK1))
    A("v_mov_b32 v%d, v%d" % (vAcc + 1, vK2))
    A("v_mov_b32 v%d, v%d" % (vAcc + 2, vNon))
    A("v_mov_b32 v%d, v%d" % (vAcc + 3, vNon + 1))
    A("s_mov_b64 exec, 1")
    A("buffer_store_dwordx4 %s, v%d, %s, s%d offen sc1" % (vr(vAcc, 4), vT2, sr(sWS, 4), sc))
    A("s_mov_b64 exec, -1")
    A.label("K_NOPUB2")
    for i in range(8):
        A("v_sub_f32 v%d, v%d, v%d" % (vX + 8 + i, vX + i, vS))
        A("v_fmac_f32 v%d, v%d, v%d" % (vX + i, vX + 8 + i, vS + 1))
    for i in range(4):
        A("v_cvt_pk_bf16_f32 v%d, v%d, v%d" % (vHp + i, vX + 2 * i, vX + 2 * i + 1))
    A("s_mov_b32 s%d, 0" % sCnt)
    A("s_mov_b32 exec_hi, 0")
    A.label("K_POLL2")
    A("buffer_load_dwordx4 %s, v%d, %s, s%d offen sc1" % (vr(vAcc + 4, 4), vT2, sr(sWS, 4), sa))
    A("s_waitcnt vmcnt(0)")
    A("v_cmp_eq_u64 vcc, %s, %s" % (vr(vAcc + 6, 2), vr(vNon, 2)))
    A("s_cmp_eq_u64 vcc, exec")
    A("s_cbranch_scc1 K_POLL2_OK")
    spin_tail("K_POLL2", sCnt)
    A.label("K_POLL2_OK")
    A("s_mov_b64 exec, -1")
    A("s_waitcnt lgkmcnt(0)")
    A("v_mov_b32 v%d, v%d" % (vK1, vAcc + 4))
    A("v_mov_b32 v%d, v%d" % (vK2, vAcc + 5))
    for dpp in ("quad_perm:[1,0,3,2]", "quad_perm:[2,3,0,1]", "row_half_mirror", "row_mirror"):
        merge_dpp(dpp)
    merge_swap("v_permlane16_swap_b32")
    A("s_mov_b64 exec, 1")
    A("ds_write_b64 v%d, %s offset:64" % (vT3, vr(vK1, 2)))
    A("s_mov_b64 exec, -1")
    A("s_waitcnt lgkmcnt(0)")
    A.label("K_L2WAIT")
    A("v_mov_b32 v%d, %d" % (vT3, L_TOP + 64))
    A("v_mov_b32 v%d, 0" % (vSel + 1))
    A("s_barrier")
    A("ds_read_b64 %s, v%d" % (vr(vK1, 2), vT3))
    A("s_waitcnt lgkmcnt(0)")
    A("v_readfirstlane_b32 s%d, v%d" % (sI1, vK1))
    A("v_readfirstlane_b32 s%d, v%d" % (sI2, vK2))
    A("s_and_b32 s%d, s%d, 0x7ff" % (sI1, sI1))
    A("s_sub_u32 s%d, 2047, s%d" % (sI1, sI1))
    A("s_and_b32 s%d, s%d, 0x7ff" % (sI2, sI2))
    A("s_sub_u32 s%d, 2047, s%d" % (sI2, sI2))
    stamp(13)
    A("s_cmp_eq_u32 s%d, 0" % sRole)
    A("s_cbranch_scc1 K_OWN")
    A("s_lshr_b32 s%d, s%d, 2" % (sI, sJ))
    A("s_and_b32 s%d, s%d, 3" % (sN, sJ))
    A("s_cmp_eq_u32 s%d, 1" % sRole)
    A("s_cselect_b32 s%d, s%d, s%d" % (sI, sWv, sI))
    A("s_cselect_b32 s%d, 0, s%d" % (sN, sN))
    A("s_cbranch_scc1 K_SEL")
    A("s_cmp_eq_u32 s%d, 0" % sWv)
    A("s_cbranch_scc0 K_OWN")
    A.label("K_SEL")
    A("v_mov_b32 v%d, s%d" % (vT0, sI1))
    A("v_mov_b32 v%d, s%d" % (vT2, sI2))
    A("s_mov_b32 vcc_lo, 0xaaaaaaaa")
    A("s_mov_b32 vcc_hi, 0xaaaaaaaa")
    A("v_cndmask_b32 v%d, v%d, v%d, vcc" % (vPa, vT0, vT2))
    A("v_lshlrev_b32 v%d, 10, v%d" % (vPa, vPa))
    A("v_lshl_add_u32 v%d, v%d, 4, v%d" % (vPa, vG, vPa))
    A("s_lshl_b32 s%d, s%d, 7" % (sc, sI))
    A("s_add_u32 s%d, s%d, 0x%x" % (sc, sc, WS_H))
    def h_loads():
        A("s_mov_b32 exec_lo, 3")
        A("s_mov_b32 exec_hi, 3")
        for s in range(4):
            A("s_add_u32 s68, s%d, %d" % (sN, s))
            A("s_and_b32 s68, s68, 3")
            A("s_lshl_b32 s68, s68, 5")
            A("s_add_u32 s68, s68, s%d" % sc)
            A("buffer_load_dwordx4 %s, v%d, %s, s68 offen sc1" % (vr(vBF + 4 * s, 4), vPa, sr(sWS, 4)))
        A("s_mov_b64 exec, -1")
    h_loads()
    A("s_mov_b32 vcc_lo, 0xffff0000")
    A("s_mov_b32 vcc_hi, 0xffff0000")
    A("v_cndmask_b32 v%d, v%d, v%d, vcc" % (vT0, vT0, vT2))
    A("v_lshrrev_b32 v%d, 6, v%d" % (vT2, vT0))
    A("v_lshlrev_b32 v%d, 13, v%d" % (vT2, vT2))
    A("v_bfe_u32 v%d, v%d, 4, 2" % (vT3, vT0))
    A("v_lshl_add_u32 v%d, v%d, 8, v%d" % (vT2, vT3, vT2))
    A("v_bfe_u32 v%d, v%d, 2, 1" % (vT3, vT0))
    A("v_lshl_add_u32 v%d, v%d, 7, v%d" % (vT2, vT3, vT2))
    A("v_bfe_u32 v%d, v%d, 3, 1" % (vT3, vT0))
    A("v_lshl_add_u32 v%d, v%d, 6, v%d" % (vT2, vT3, vT2))
    A("v_and_b32 v%d, 3, v%d" % (vT3, vT0))
    A("v_lshl_add_u32 v%d, v%d, 4, v%d" % (vT2, vT3, vT2))
    A("v_and_b32 v%d, 7, v%d" % (vT3, vL))
    A("v_lshl_add_u32 v%d, v%d, 10, v%d" % (vU0, vT3, vT2))
    def ss_load():
        A("s_mov_b32 s68, 0x%x" % WS_P)
        A("buffer_load_dwordx4 %s, v%d, %s, s68 offen sc1" % (vr(vSs, 4), vU0, sr(sWS, 4)))
    ss_load()
    A("v_and_b32 v%d, 14, v%d" % (vT2, vL))
    A("v_lshlrev_b32 v%d, 1, v%d" % (vT2, vT2))
    A("v_lshl_add_u32 v%d, v%d, 10, v%d" % (vSel + 1, vT0, vT2))
    def h_check(retry, ok):
        sumu(vT2, vBF, 16)
        maxu(vT3, vSs, 4)
        A("s_add_u32 s%d, s%d, 16" % (sb, sI))
        A("v_cmp_eq_u32 vcc, -1, v%d" % vT3)
        A("v_readlane_b32 s68, v%d, s%d" % (vSs + 3, sI))
        A("v_readlane_b32 s69, v%d, s%d" % (vSs + 3, sb))
        A("v_readlane_b32 s%d, v%d, 0" % (sa, vT2))
        A("v_readlane_b32 s%d, v%d, 32" % (sb, vT2))
        A("s_add_u32 s%d, s%d, s%d" % (sa, sa, sb))
        A("s_min_u32 s%d, s%d, -2" % (sa, sa))
        A("s_xor_b32 s68, s68, s%d" % sa)
        A("v_readlane_b32 s%d, v%d, 1" % (sa, vT2))
        A("v_readlane_b32 s%d, v%d, 33" % (sb, vT2))
        A("s_add_u32 s%d, s%d, s%d" % (sa, sa, sb))
        A("s_min_u32 s%d, s%d, -2" % (sa, sa))
        A("s_xor_b32 s69, s69, s%d" % sa)
        A("s_or_b32 s68, s68, s69")
        A("s_or_b32 s68, s68, vcc_lo")
        A("s_or_b32 s68, s68, vcc_hi")
        A("s_cbranch_scc0 %s" % ok)
        h_loads()
        ss_load()
        A("s_waitcnt vmcnt(0)")
        spin_tail(retry, sCnt)
    A.label("K_OWN")
    A("v_cmp_ne_u32 vcc, s%d, v%d" % (sI1, vTok))
    A("v_cmp_ne_u32 s[68:69], s%d, v%d" % (sI2, vTok))
    A("s_and_b64 exec, vcc, s[68:69]")
    A("buffer_store_dwordx4 %s, v%d, %s, s%d offen %s" % (vr(vHp, 4), vT1, sr(sW, 4), sd, {0: "", 1: "sc1", 2: "nt", 3: "sc0 sc1"}[opt.get("outf", 0)]))
    A("s_mov_b64 exec, -1")
    A("s_cmp_eq_u32 s%d, 0" % sRole)
    A("s_cbranch_scc1 K_FIN")
    A("v_bfe_u32 v%d, v%d, 2, 2" % (vT0, vL))
    A("v_and_b32 v%d, 3, v%d" % (vT2, vL))
    A("s_cmp_eq_u32 s%d, 1" % sRole)
    A("s_cbranch_scc0 K_FA_D")
    A("v_lshl_add_u32 v%d, v%d, 3, v%d" % (vT0, vG, vT0))
    A("s_lshl_b32 s68, s%d, 11" % sWv)
    A("s_add_u32 s68, s68, %d" % L_F)
    A("v_lshl_add_u32 v%d, v%d, 5, s68" % (vT0, vT0))
    A("v_lshl_add_u32 v%d, v%d, 3, v%d" % (vT0, vT2, vT0))
    A("v_bfe_u32 v%d, v%d, 4, 1" % (vT2, vL))
    A("v_mul_u32_u24 v%d, %d, v%d" % (vT2, L_FU - L_F, vT2))
    A("v_add_u32 v%d, v%d, v%d" % (vT0, vT0, vT2))
    for s in range(4):
        for half in range(2):
            A("ds_read_b64_tr_b16 %s, v%d offset:%d" % (vr(vFA + 4 * s + 2 * half, 2), vT0, (16 * s + 4 * half) * 32))
    A("s_branch K_FA_DONE")
    A.label("K_FA_D")
    A("v_lshrrev_b32 v%d, 4, v%d" % (vT3, vL))
    A("v_lshl_add_u32 v%d, v%d, 3, v%d" % (vT0, vT3, vT0))
    A("s_lshl_b32 s68, s%d, 10" % sWv)
    A("s_add_u32 s68, s68, %d" % L_F)
    A("v_lshl_add_u32 v%d, v%d, 5, s68" % (vT0, vT0))
    A("v_lshl_add_u32 v%d, v%d, 3, v%d" % (vT0, vT2, vT0))
    for i in range(6):
        if i == 5:
            A("s_cmp_lt_u32 s%d, 3" % sWv)
            A("s_cbranch_scc0 K_FA_DONE")
        for half in range(2):
            A("ds_read_b64_tr_b16 %s, v%d offset:%d" % (vr(vFA + 4 * i + 2 * half, 2), vT0, i * 8192 + 4 * half * 32))
    A.label("K_FA_DONE")
    A("s_cmp_eq_u32 s%d, 1" % sRole)
    A("s_cbranch_scc0 K_DOWN")
    A("v_lshlrev_b32 v%d, 7, v%d" % (vT0, vN))
    A("v_lshl_add_u32 v%d, v%d, 4, v%d" % (vT0, vG, vT0))
    A("s_mul_i32 s%d, s%d, 384" % (sa, sWv))
    A("s_add_u32 s%d, s%d, %d" % (sa, sa, L_R2))
    A("v_add_u32 v%d, s%d, v%d" % (vT0, sa, vT0))
    A("s_mov_b32 s%d, 0" % sCnt)
    A("s_waitcnt vmcnt(1) lgkmcnt(0)")
    A.label("K_HCHK")
    for s in range(4):
        A("%s %s, %s, %s, %s" % (MFMA, vr(vAcc, 16), vr(vFA + 4 * s, 4), vr(vBF + 4 * s, 4), "0" if s == 0 else vr(vAcc, 16)))
    h_check("K_HCHK", "K_HOK")
    A.label("K_HOK")
    A("s_mov_b32 exec_lo, 7")
    A("s_mov_b32 exec_hi, 7")
    for a_ in range(4):
        A("ds_write_b128 v%d, %s offset:%d" % (vT0, vr(vAcc + 4 * a_, 4), a_ * 32))
    A("s_mov_b64 exec, -1")
    A("s_cmp_eq_u32 s%d, 0" % sWv)
    A("s_cbranch_scc1 K_GU_W0")
    A("s_waitcnt lgkmcnt(0)")
    A("s_barrier")
    A("s_branch K_FIN")
    A.label("K_GU_W0")
    red8((vSs, vSs + 1, vSs + 2))
    ln_stats(vSs, vSs + 1)
    A("v_bfe_u32 v%d, v%d, 4, 1" % (vT0, vL))
    A("v_and_b32 v%d, 15, v%d" % (vT2, vL))
    A("v_lshlrev_b32 v%d, 2, v%d" % (vT3, vT2))
    A("v_mul_u32_u24 v%d, 1536, v%d" % (vT2, vG))
    A("v_add_u32 v%d, v%d, v%d" % (vT3, vT3, vT2))
    A("v_add_u32 v%d, %d, v%d" % (vT3, L_R2, vT3))
    A("v_lshl_add_u32 v%d, v%d, 7, v%d" % (vT2, vT0, vT3))
    A("v_add_u32 v%d, 768, v%d" % (vP1, vT2))
    A("v_add_u32 v%d, 768, v%d" % (vP2, vT3))
    A("v_lshlrev_b32 v%d, 1, v%d" % (vT0, vL))
    A("s_lshl_b32 s%d, s%d, 6" % (sa, sJ))
    A("s_add_u32 s%d, s%d, 0x%x" % (sa, sa, WS_A))
    A("s_waitcnt lgkmcnt(0)")
    A("s_barrier")
    stamp(14)
    for hh, (ra, rb) in enumerate(((vT2, vT3), (vP1, vP2))):
        for w_ in range(2):
            A("ds_read2_b32 %s, v%d offset0:%d offset1:%d" % (vr(vX + 8 * hh + 4 * w_, 2), ra, w_ * 96, w_ * 96 + 16))
            A("ds_read2_b32 %s, v%d offset0:%d offset1:%d" % (vr(vX + 8 * hh + 4 * w_ + 2, 2), rb, w_ * 96 + 64, w_ * 96 + 80))
    A("s_waitcnt lgkmcnt(0)")
    for i in range(4):
        A("v_add_f32 v%d, v%d, v%d" % (vX + i, vX + i, vX + 4 + i))
        A("v_add_f32 v%d, v%d, v%d" % (vX + 8 + i, vX + 8 + i, vX + 12 + i))
    for i in range(4):
        A("v_add_f32 v%d, v%d, v%d" % (vX + i, vX + i, vX + 8 + i))
    for i in range(4):
        A("v_mov_b32 v%d, v%d" % (vX + 4 + i, vX + i))
    A.nop(1)
    for i in range(4):
        A("v_permlane32_swap_b32 v%d, v%d" % (vX + i, vX + 4 + i))
    for i in range(4):
        A("v_add_f32 v%d, v%d, v%d" % (vX + i, vX + i, vX + 4 + i))
    A("v_fma_f32 v%d, -v%d, v%d, v%d" % (vX, vSs, vX + 2, vX))
    A("v_fma_f32 v%d, -v%d, v%d, v%d" % (vX + 1, vSs, vX + 3, vX + 1))
    A("v_mul_f32 v%d, v%d, v%d" % (vX, vX, vSs + 1))
    A("v_mul_f32 v%d, v%d, v%d" % (vX + 1, vX + 1, vSs + 1))
    A("v_mul_f32 v%d, %s, v%d" % (vX + 2, f32(-LOG2E), vX))
    A("v_exp_f32 v%d, v%d" % (vX + 2, vX + 2))
    A("v_mul_f32 v%d, v%d, v%d" % (vX, vX, vX + 1))
    A("v_add_f32 v%d, 1.0, v%d" % (vX + 2, vX + 2))
    A("v_rcp_f32 v%d, v%d" % (vX + 2, vX + 2))
    A.nop(1)
    A("v_mul_f32 v%d, v%d, v%d" % (vX, vX, vX + 2))
    A.nop(2)
    A("v_mov_b32_dpp v%d, v%d quad_perm:[1,0,3,2] row_mask:0xf bank_mask:0xf" % (vX + 1, vX))
    A("v_cvt_pk_bf16_f32 v%d, v%d, v%d" % (vX + 2, vX, vX + 1))
    A("v_min_u32 v%d, -2, v%d" % (vX + 2, vX + 2))
    A("s_mov_b32 exec_lo, 0x55555555")
    A("s_mov_b32 exec_hi, 0")
    A("buffer_store_dword v%d, v%d, %s, s%d offen sc1" % (vX + 2, vT0, sr(sWS, 4), sa))
    A("s_mov_b64 exec, -1")
    A("s_branch K_FIN")
    A.label("K_DOWN")
    A("s_cmp_eq_u32 s%d, 0" % sWv)
    A("s_cbranch_scc0 K_D_POLL")
    A("s_mov_b32 s%d, 0" % sCnt)
    A("s_waitcnt vmcnt(0)")
    A.label("K_DH")
    h_check("K_DH", "K_DH_OK")
    A.label("K_DH_OK")
    A("v_lshlrev_b32 v%d, 5, v%d" % (vT0, vN))
    A("v_lshl_add_u32 v%d, v%d, 4, v%d" % (vT0, vG, vT0))
    A("v_add_u32 v%d, %d, v%d" % (vT0, L_TOP + 128, vT0))
    A("s_mov_b32 exec_lo, 3")
    A("s_mov_b32 exec_hi, 3")
    A("ds_write_b128 v%d, %s" % (vT0, vr(vBF, 4)))
    A("s_mov_b64 exec, -1")
    A("v_and_b32 v%d, 30, v%d" % (vT0, vL))
    A("v_lshlrev_b32 v%d, 1, v%d" % (vT0, vT0))
    A("v_add_u32 v%d, %d, v%d" % (vT0, L_TOP + 128, vT0))
    A("s_waitcnt lgkmcnt(0)")
    A("ds_read_b32 v%d, v%d" % (vSel, vT0))
    A("s_waitcnt lgkmcnt(0)")
    red8((vSs, vSs + 1, vSs + 2))
    ln_stats(vSs, vSs + 1)
    A("v_lshlrev_b32 v%d, 16, v%d" % (vX, vSel))
    A("v_and_b32 v%d, 0xffff0000, v%d" % (vSel, vSel))
    A("v_fma_f32 v%d, -v%d, v%d, v%d" % (vSs + 2, vSs, vW1, vSs + 2))
    A("v_mul_f32 v%d, v%d, v%d" % (vSs + 2, vSs + 2, vSs + 1))
    A("v_mul_f32 v%d, %s, v%d" % (vSs + 2, f32(-LOG2E), vSs + 2))
    A("v_exp_f32 v%d, v%d" % (vSs + 2, vSs + 2))
    A("s_mov_b32 vcc_lo, 0x55555555")
    A("s_mov_b32 vcc_hi, 0x55555555")
    A("v_cndmask_b32 v%d, v%d, v%d, vcc" % (vSel, vSel, vX))
    A("v_add_f32 v%d, 1.0, v%d" % (vSs + 2, vSs + 2))
    A("v_rcp_f32 v%d, v%d" % (vSs + 2, vSs + 2))
    A("v_sub_f32 v%d, v%d, v%d" % (vX + 1, vSel, vSs))
    A("v_fmac_f32 v%d, v%d, v%d" % (vSel, vX + 1, vSs + 1))
    A.label("K_D_POLL")
    A("v_and_b32 v%d, 1, v%d" % (vT0, vL))
    A("v_lshlrev_b32 v%d, 5, v%d" % (vT0, vT0))
    A("v_lshl_add_u32 v%d, v%d, 6, v%d" % (vT0, vG, vT0))
    A("v_bfe_u32 v%d, v%d, 4, 1" % (vT2, vL))
    A("v_lshl_add_u32 v%d, v%d, 4, v%d" % (vT0, vT2, vT0))
    A("v_lshrrev_b32 v%d, 4, v%d" % (vT2, vL))
    A("s_lshl_b32 s68, s%d, 7" % sWv)
    A("s_add_u32 s%d, s68, 0x%x" % (sa, WS_A))
    A("s_add_u32 s%d, s%d, 4096" % (sc, sa))
    A("v_and_b32 v%d, 15, v%d" % (vT3, vL))
    A("v_lshlrev_b32 v%d, 6, v%d" % (vT3, vT3))
    A("v_lshl_add_u32 v%d, v%d, 4, v%d" % (vT3, vT2, vT3))
    A("s_add_u32 s68, s68, %d" % L_R2)
    A("v_add_u32 v%d, s68, v%d" % (vT3, vT3))
    A("s_mov_b32 exec_lo, 0x00030003")
    A("s_mov_b32 exec_hi, 0x00030003")
    A("s_mov_b32 s%d, 0" % sCnt)
    A.label("K_POLLA")
    for i in range(5):
        if i < 4:
            A("buffer_load_dwordx4 %s, v%d, %s, s%d offen offset:%d sc1" % (vr(vBF + 4 * i, 4), vT0, sr(sWS, 4), sa, i * 1024))
        else:
            A("buffer_load_dwordx4 %s, v%d, %s, s%d offen sc1" % (vr(vBF + 4 * i, 4), vT0, sr(sWS, 4), sc))
    A("s_cmp_lt_u32 s%d, 3" % sWv)
    A("s_cbranch_scc0 K_POLLA5")
    A("buffer_load_dwordx4 %s, v%d, %s, s%d offen offset:1024 sc1" % (vr(vBF + 20, 4), vT0, sr(sWS, 4), sc))
    A.label("K_POLLA5")
    A("s_waitcnt vmcnt(0) lgkmcnt(0)")
    maxu(vT2, vBF, 24)
    A("v_cmp_eq_u32 vcc, -1, v%d" % vT2)
    A("s_cmp_eq_u64 vcc, 0")
    A("s_cbranch_scc1 K_POLLA_OK")
    spin_tail("K_POLLA", sCnt)
    A.label("K_POLLA_OK")
    A("s_mov_b64 exec, -1")
    stamp(14)
    for i in range(5):
        A("%s %s, %s, %s, %s" % (MFMA16, vr(vAcc, 4), vr(vFA + 4 * i, 4), vr(vBF + 4 * i, 4), "0" if i == 0 else vr(vAcc, 4)))
    A("s_cmp_lt_u32 s%d, 3" % sWv)
    A("s_cbranch_scc0 K_D5")
    A("%s %s, %s, %s, %s" % (MFMA16, vr(vAcc, 4), vr(vFA + 20, 4), vr(vBF + 20, 4), vr(vAcc, 4)))
    A.label("K_D5")
    A("v_lshlrev_b32 v%d, 2, v%d" % (vT0, vN))
    A("v_lshl_add_u32 v%d, v%d, 9, v%d" % (vT0, vG, vT0))
    A("v_add_u32 v%d, %d, v%d" % (vT0, L_R2, vT0))
    A("s_mov_b32 exec_lo, 0x00030003")
    A("s_mov_b32 exec_hi, 0x00030003")
    A.nop(3)
    A("ds_write_b128 v%d, %s" % (vT3, vr(vAcc, 4)))
    A("s_mov_b64 exec, -1")
    A("s_waitcnt lgkmcnt(0)")
    A("s_barrier")
    A("s_cmp_eq_u32 s%d, 0" % sWv)
    A("s_cbranch_scc0 K_FIN")
    A("ds_read2_b32 %s, v%d offset0:0 offset1:32" % (vr(vX + 2, 2), vT0))
    A("ds_read2_b32 %s, v%d offset0:64 offset1:96" % (vr(vX + 4, 2), vT0))
    A("s_lshl_b32 s%d, s%d, 5" % (sa, sJ))
    A("s_waitcnt lgkmcnt(0)")
    A("v_add_f32 v%d, v%d, v%d" % (vX + 2, vX + 2, vX + 3))
    A("v_add_f32 v%d, v%d, v%d" % (vX + 4, vX + 4, vX + 5))
    A("v_add_f32 v%d, v%d, v%d" % (vX, vX + 2, vX + 4))
    A("v_mov_b32 v%d, v%d" % (vX + 2, vX))
    A.nop(2)
    A("v_permlane32_swap_b32 v%d, v%d" % (vX, vX + 2))
    A.nop(1)
    A("v_add_f32 v%d, v%d, v%d" % (vX, vX, vX + 2))
    A("v_fmac_f32 v%d, v%d, v%d" % (vSel, vX, vSs + 2))
    if opt.get("tcheck"):
        A("s_memrealtime s[68:69]")
        A("s_waitcnt lgkmcnt(0)")
        A("v_sub_u32 v%d, s68, v%d" % (vX, vNon))
        A("v_cmp_lt_u32 vcc, %d, v%d" % (opt["tcheck"], vX))
        A("v_mov_b32 v%d, 0x42c80000" % vX)
        A.nop(1)
        A("v_cndmask_b32 v%d, v%d, v%d, vcc" % (vSel, vSel, vX))
    A.nop(2)
    A("v_mov_b32_dpp v%d, v%d quad_perm:[1,0,3,2] row_mask:0xf bank_mask:0xf" % (vX, vSel))
    A("v_cvt_pk_bf16_f32 v%d, v%d, v%d" % (vSel, vSel, vX))
    A("s_mov_b32 exec_lo, 0x55555555")
    A("s_mov_b32 exec_hi, 0")
    A("buffer_store_dword v%d, v%d, %s, s%d offen" % (vSel, vSel + 1, sr(sW, 4), sa))
    A("s_mov_b64 exec, -1")
    A.label("K_FIN")
    if STAMPS:
        A("s_waitcnt vmcnt(0)")
        stamp(15)
        A("s_waitcnt lgkmcnt(0)")
        if opt.get("dbgout"):
            A("s_cmp_eq_u32 s2, %d" % opt["dbgout"])
            A("s_cbranch_scc0 K_END")
            A("s_cmp_eq_u32 s%d, 0" % sWv)
            A("s_cbranch_scc0 K_END")
            srd(sGA, pDBG, 256)
            A("v_mov_b32 v%d, 0" % vT0)
            A("s_mov_b64 exec, 1")
            for i, st in enumerate((0, 2, 3, 4, 5, 6, 7, 9, 10, 11, 12, 13, 14, 15)):
                A("v_mov_b32 v%d, s%d" % (vT2, 70 + 2 * st))
                A("v_sub_u32 v%d, v%d, v%d" % (vT2, vT2, vNon))
                A("buffer_store_dword v%d, v%d, %s, 0 offen offset:%d" % (vT2, vT0, sr(sGA, 4), 8 + 4 * i))
                A.nop(2)
            A("s_branch K_END")
        A("s_lshl_b32 s%d, s2, 3" % sa)
        A("s_add_u32 s%d, s%d, s%d" % (sa, sa, sWv))
        A("s_mul_i32 s%d, s%d, %d" % (sa, sa, NSTAMP_SLOTS * 8))
        A("s_add_u32 s%d, s%d, 0x%x" % (sa, sa, WS_STAMP))
        A("v_mov_b32 v%d, 0" % vT0)
        A("s_mov_b64 exec, 1")
        for i in range(16):
            A("v_mov_b32 v%d, s%d" % (vT2, 70 + 2 * i))
            A("v_mov_b32 v%d, s%d" % (vT3, 71 + 2 * i))
            A("buffer_store_dwordx2 %s, v%d, %s, s%d offen offset:%d" % (vr(vT2, 2), vT0, sr(sWS, 4), sa, i * 8))
            A.nop(2)
    A.label("K_END")
    A("s_endpgm")
    return A.text(), 256, LDS

HEADER = open("sequential_preLN__sliding_block__moe_arch_mod__prompt.s.ref").read().split("; Override launch")[0]

def build(opt):
    k, nv, lds = gen(opt)
    s = HEADER
    s += "; @launch grid=(256,1,1) block=(512,1,1) lds=%d\n" % lds
    s += '.amdgcn_target "amdgcn-amd-amdhsa--gfx950"\n.text\n'
    s += ".globl %s\n.p2align 8\n.type %s,@function\n%s:\n%s" % (KNAME, KNAME, KNAME, k)
    s += '.section .rodata,"a"\n'
    s += """.p2align 6
.amdhsa_kernel %s
  .amdhsa_next_free_vgpr %d
  .amdhsa_next_free_sgpr 102
  .amdhsa_accum_offset %d
  .amdhsa_group_segment_fixed_size 0
  .amdhsa_kernarg_size 88
  .amdhsa_user_sgpr_count 2
  .amdhsa_user_sgpr_kernarg_segment_ptr 1
  .amdhsa_system_sgpr_workgroup_id_x 1
.end_amdhsa_kernel
""" % (KNAME, nv, (nv + 3) // 4 * 4)
    return s

if __name__ == "__main__":
    out = sys.argv[1] if len(sys.argv) > 1 else "k.s"
    opt = {}
    for a in sys.argv[2:]:
        k, v = a.split("=")
        opt[k] = int(v)
    open(out, "w").write(build(opt))
```

```python
import sys, struct

def f32(x):
    return "0x%08x" % struct.unpack("<I", struct.pack("<f", x))[0]

WS_KV = 0x000000
WS_O = 0x400000
WS_H = 0x600000
WS_P = 0x800000
WS_A = 0x840000
WS_LS = 0x850000
WS_E = 0x860000
WS_FKV = 0x880000
WS_FO = 0x8a0000
WS_P2 = 0x8c0000
WS_SIZE = 0x10000000
WS_STAMP = 0x8000000
NSTAMP_SLOTS = 24

LOG2E = 1.4426950408889634
BIG = 1.0e30
SPIN_LIMIT = 100000
MFMA = "v_mfma_f32_32x32x16_bf16"
MFMA16 = "v_mfma_f32_16x16x32_bf16"
MFMA4 = "v_mfma_f32_4x4x4_16b_bf16"
KNAME = "sequential_preLN__sliding_block__moe_arch_mod__prompt_kernel"

class Asm:
    def __init__(self):
        self.L = []
    def __call__(self, s):
        self.L.append("    " + s.strip())
    def label(self, s):
        self.L.append(s + ":")
    def nop(self, n):
        while n > 0:
            k = min(n, 16)
            self.L.append("    s_nop %d" % (k - 1))
            n -= k
    def text(self):
        return "\n".join(self.L) + "\n"

def vr(b, n):
    assert b % 2 == 0, "unaligned vgpr tuple %d" % b
    return "v[%d:%d]" % (b, b + n - 1)
def sr(b, n):
    return "s[%d:%d]" % (b, b + n - 1)

def gen(opt):
    A = Asm()
    STAMPS = opt.get("stamps", 0)
    def stamp(i):
        if STAMPS:
            A("s_memrealtime %s" % sr(70 + 2 * i, 2))
    def srd(d, base, size):
        A("s_mov_b32 s%d, s%d" % (d, base))
        A("s_mov_b32 s%d, s%d" % (d + 1, base + 1))
        A("s_mov_b32 s%d, 0x%x" % (d + 2, size))
        A("s_mov_b32 s%d, 0x20000" % (d + 3))
    def cap(fn):
        keep = A.L; A.L = []; fn(); out = A.L; A.L = keep; return out
    pX, pW, pWO, pBX, pWR, pWG, pWU, pWD, pOUT, pDBG, pWS = 8, 10, 12, 14, 16, 18, 20, 22, 24, 26, 28
    sCG, sG3 = 14, 15
    sX, sW, sWS, sGA, sGB = 32, 36, 40, 44, 48
    sWv, sT, sC, sB, sHP, sTq, sWGL, sRole, sJ = 52, 53, 54, 55, 56, 57, 58, 59, 60
    sa, sb, sc, sd = 61, 62, 63, 64
    sKC, sXo, sWo, sSlotX, sDW = 3, 4, 5, 6, 7
    sXbase, sWbase = 30, 31
    sRd, sPub, sS = 65, 66, 67
    sN, sI, sChunk, sCnt = 3, 4, 5, 6
    sMaskV = 30
    sFa, sFg, sFon = 1, 10, 11
    sN1 = 0
    sKu, sKm = 68, 69
    sI1, sI2 = 65, 66
    sWoG, sWoL, sWoR, sWoN = 65, 66, 67, 7
    vWoA, vWoB = 41, 40
    XS, WSL = 16384, 12288
    NSL = 5
    SLOT = XS + WSL
    L_WO = 86016
    L_K = 0
    L_V = 24576
    L_Q = 49152
    L_VX = 90112
    L_STR = 151552
    L_STM = 152064
    L_CS = 152576
    L_PAY = 153088
    L_NON = 153152
    L_CSP = 153600
    L_TOP = 155648
    L_R2 = 155904
    L_RED = L_WO
    L_F = 0
    L_FU = L_F + 16384 + 128
    LDS = 163840
    vL, vN, vG, vKap, vL16, vOnes, vTok = 1, 2, 3, 4, 5, 6, 7
    vT0, vT1, vT2, vT3 = 8, 9, 10, 11
    vNon = 12
    vXr = 14
    vWr = 18
    vFA = 200
    vWR4 = 248
    vW1 = 252
    vKb, vVb, vIG = 253, 254, 255
    vXg = 22
    vWg = 14
    vXa, vXc, vWa, vWc = 26, 30, 34, 38
    vU0, vU1 = 42, 43
    vOne2 = 44
    vB = 48
    vAcV, vAc0, vAc1 = 128, 144, 160
    vRow = 176
    vLSa, vLSb, vLSc = 184, 185, 186
    vCq, vCk, vCv = 188, 192, 196
    vGc = 112
    vE = 48
    vPk = 80
    vQ = 22
    vKad, vVad, vM, vMold = 26, 27, 30, 31
    vKa, vKbf = 32, 36
    vSa, vSb = 44, 60
    vCn = 76
    vP = 96
    vKV = 104
    vCm = 200
    vVa, vVbf = 216, 224
    vO = 232
    vWOa = 26
    vRa = 28
    vOF = 44
    vH0, vH1 = 76, 92
    vAW = 108
    vChk = 40
    vOG = 172
    vHp = 36
    vPa = 41
    vS = 44
    vK1, vK2, vP1, vP2 = 58, 59, 60, 61
    vX = 64
    vBF = 80
    vAcc = 104
    vSs = 120
    vSel = 124

    def spin_tail(lab, cnt):
        A("s_add_u32 s%d, s%d, 1" % (cnt, cnt))
        A("s_cmp_lt_u32 s%d, %d" % (cnt, SPIN_LIMIT))
        A("s_cbranch_scc1 %s" % lab)
    def maxu(dst, base, n):
        A("v_max_u32 v%d, v%d, v%d" % (dst, base, base + 1))
        for i in range(2, n, 2):
            A("v_max3_u32 v%d, v%d, v%d, v%d" % (dst, base + i, base + i + 1, dst))
    def sumu(dst, base, n, init=None):
        regs = [base + i for i in range(n)]
        if init is None:
            A("v_add_u32 v%d, v%d, v%d" % (dst, regs[0], regs[1])); regs = regs[2:]
        else:
            A("v_add3_u32 v%d, v%d, v%d, v%d" % (dst, regs[0], regs[1], init)); regs = regs[2:]
        for i in range(0, len(regs), 2):
            A("v_add3_u32 v%d, v%d, v%d, v%d" % (dst, regs[i], regs[i + 1], dst))
    def wave_sumu(v, tmp):
        for dpp in ("quad_perm:[1,0,3,2]", "quad_perm:[2,3,0,1]", "row_half_mirror", "row_mirror"):
            A.nop(2)
            A("v_add_u32_dpp v%d, v%d, v%d %s row_mask:0xf bank_mask:0xf" % (v, v, v, dpp))
        for sw in ("v_permlane16_swap_b32", "v_permlane32_swap_b32"):
            A("v_mov_b32 v%d, v%d" % (tmp, v))
            A.nop(2)
            A("%s v%d, v%d" % (sw, v, tmp))
            A.nop(1)
            A("v_add_u32 v%d, v%d, v%d" % (v, v, tmp))
    def ln_stats(s1, s2):
        A("v_mul_f32 v%d, %s, v%d" % (s1, f32(1.0 / 512), s1))
        A("v_mul_f32 v%d, %s, v%d" % (s2, f32(1.0 / 512), s2))
        A("v_fma_f32 v%d, -v%d, v%d, v%d" % (s2, s1, s1, s2))
        A("v_max_f32 v%d, 0, v%d" % (s2, s2))
        A("v_add_f32 v%d, %s, v%d" % (s2, f32(1e-5), s2))
        A("v_rsq_f32 v%d, v%d" % (s2, s2))

    A("s_cmp_ge_u32 s2, 256")
    A("s_cbranch_scc1 K_END")
    stamp(0)
    A("s_load_dwordx16 s[8:23], s[0:1], 0")
    A("s_load_dwordx4 s[24:27], s[0:1], 64")
    A("s_load_dwordx2 s[28:29], s[0:1], 80")
    A("v_and_b32 v%d, 63, v0" % vL)
    A("v_lshrrev_b32 v%d, 6, v0" % vT0)
    A("v_lshlrev_b32 v%d, 4, v%d" % (vL16, vL))
    A("v_readfirstlane_b32 s%d, v%d" % (sWv, vT0))
    A("s_and_b32 s%d, s2, 7" % sa)
    A("s_lshr_b32 s%d, s2, 3" % sb)
    if opt.get("map", 2) == 2:
        A("s_lshr_b32 s%d, s%d, 1" % (sB, sa))
        A("s_lshr_b32 s%d, s%d, 3" % (sc, sb))
        A("s_lshl_b32 s%d, s%d, 2" % (sd, sc))
        A("s_add_u32 s%d, s%d, s%d" % (sB, sB, sd))
        A("s_and_b32 s%d, s%d, 1" % (sHP, sa))
        A("s_lshl_b32 s%d, s%d, 3" % (sHP, sHP))
        A("s_and_b32 s%d, s%d, 7" % (sKC, sb))
        A("s_add_u32 s%d, s%d, s%d" % (sHP, sHP, sKC))
        A("s_lshl_b32 s%d, s%d, 1" % (sc, sc))
        A("s_add_u32 s%d, s%d, s%d" % (sKC, sKC, sc))
        if opt.get("rotx2"):
            A("s_add_u32 s%d, s%d, s%d" % (sKC, sKC, sa))
        A("s_and_b32 s%d, s%d, 7" % (sKC, sKC))
    else:
        A("s_lshr_b32 s%d, s%d, 4" % (sc, sb))
        A("s_lshl_b32 s%d, s%d, 3" % (sd, sc))
        A("s_add_u32 s%d, s%d, s%d" % (sB, sa, sd))
        A("s_and_b32 s%d, s%d, 15" % (sHP, sb))
        A("s_lshl_b32 s%d, s%d, 2" % (sc, sc))
        A("s_add_u32 s%d, s%d, s%d" % (sKC, sHP, sc))
        A("s_add_u32 s%d, s%d, s%d" % (sKC, sKC, sa))
        A("s_and_b32 s%d, s%d, 7" % (sKC, sKC))
    A("s_and_b32 s%d, s%d, 3" % (sT, sWv))
    A("s_lshr_b32 s%d, s%d, 2" % (sC, sWv))
    A("s_lshl_b32 s%d, s%d, 4" % (sWGL, sB))
    A("s_add_u32 s%d, s%d, s%d" % (sWGL, sWGL, sHP))
    A("s_cmp_eq_u32 s%d, 0" % sC)
    A("s_cbranch_scc0 K_PRO_LD")
    A("s_lshl_b32 s%d, s%d, 2" % (sa, sWGL))
    A("s_add_u32 s%d, s%d, s%d" % (sa, sa, sT))
    A("s_lshl_b32 s%d, s%d, 11" % (sb, sa))
    for i in range(4):
        A("v_mov_b32 v%d, -1" % (vT0 + i))
    A("s_waitcnt lgkmcnt(0)")
    srd(sX, pX, 0x200000)
    A("buffer_load_dwordx4 %s, v%d, %s, s%d offen" % (vr(vRow, 4), vL16, sr(sX, 4), sb))
    A("buffer_load_dwordx4 %s, v%d, %s, s%d offen offset:1024" % (vr(vRow + 4, 4), vL16, sr(sX, 4), sb))
    srd(sWS, pWS, WS_SIZE)
    A("s_or_b32 s%d, s2, s%d" % (sa, sWv))
    A("s_cmp_lg_u32 s%d, 0" % sa)
    A("s_cbranch_scc1 K_NONONCE")
    srd(sGA, pDBG, 256)
    A("s_memrealtime s[68:69]")
    A("s_waitcnt lgkmcnt(0)")
    A("s_or_b32 s69, s69, 0x80000000")
    A("v_mov_b32 v%d, s68" % vNon)
    A("v_mov_b32 v%d, s69" % (vNon + 1))
    A("s_mov_b64 exec, 1")
    A("buffer_store_dwordx2 %s, v%d, %s, 0 offen sc1" % (vr(vNon, 2), vL16, sr(sGA, 4)))
    A("s_mov_b64 exec, -1")
    A.label("K_NONONCE")
    def clr(soff, off=0):
        A("buffer_store_dwordx4 %s, v%d, %s, s%d offen offset:%d sc1" % (vr(vT0, 4), vL16, sr(sWS, 4), soff, off))
    A("s_cmp_lg_u32 s%d, 0" % sT)
    A("s_cbranch_scc1 K_NOCLRP")
    A("s_lshl_b32 s%d, s%d, 10" % (sa, sWGL))
    A("s_add_u32 s%d, s%d, 0x%x" % (sa, sa, WS_P))
    clr(sa)
    A("s_add_u32 s%d, s%d, 0x%x" % (sa, sa, WS_P2 - WS_P))
    clr(sa)
    A.label("K_NOCLRP")
    if opt.get("tlb"):
        A("s_cmp_lg_u32 s%d, 1" % sT)
        A("s_cbranch_scc1 K_NOTLB")
        A("v_lshlrev_b32 v%d, 18, v%d" % (vE, vL))
        A("s_mov_b32 exec_hi, 0xf")
        A("buffer_load_dword v%d, v%d, %s, 0 offen sc1" % (120, vE, sr(sWS, 4)))
        A("s_mov_b64 exec, 0xff")
        srd(sGA, pOUT, 0x200000)
        A("buffer_load_dword v%d, v%d, %s, 0 offen sc1" % (121, vE, sr(sGA, 4)))
        A("s_mov_b64 exec, -1")
        A.label("K_NOTLB")
    A("s_cmp_lg_u32 s2, 1")
    A("s_cbranch_scc1 K_PRO_DONE")
    A("s_lshl_b32 s%d, s%d, 11" % (sa, sT))
    A("s_add_u32 s%d, s%d, 0x%x" % (sa, sa, WS_A))
    clr(sa); clr(sa, 1024)
    A("s_branch K_PRO_DONE")
    A.label("K_PRO_LD")
    A("v_lshrrev_b32 v%d, 3, v%d" % (vT0, vL))
    A("v_lshrrev_b32 v%d, 1, v%d" % (vT1, vT0))
    A("v_and_b32 v%d, 7, v%d" % (vT2, vL))
    A("v_xor_b32 v%d, v%d, v%d" % (vT2, vT2, vT1))
    A("v_lshlrev_b32 v%d, 4, v%d" % (vT2, vT2))
    A("v_lshl_add_u32 v%d, v%d, 10, v%d" % (vXg, vT0, vT2))
    A("v_xor_b32 v%d, 64, v%d" % (vXg + 1, vXg))
    A("v_add_u32 v%d, %d, v%d" % (vXg + 1, 8192 - 1024, vXg + 1))
    A("v_add_u32 v%d, %d, v%d" % (vXg + 2, 2 * (8192 - 1024), vXg))
    A("v_add_u32 v%d, %d, v%d" % (vXg + 3, 2 * (8192 - 1024), vXg + 1))
    A("s_lshl_b32 s%d, s%d, 17" % (sXbase, sB))
    A("s_lshl_b32 s%d, s%d, 15" % (sa, sT))
    A("s_add_u32 s%d, s%d, s%d" % (sXbase, sXbase, sa))
    A("s_movk_i32 s%d, 0x1556" % sb)
    for q in range(3):
        src = vL
        if q:
            A("v_add_u32 v%d, %d, v%d" % (vT0, 64 * q, vL))
            src = vT0
        A("v_mul_u32_u24 v%d, s%d, v%d" % (vT1, sb, src))
        A("v_lshrrev_b32 v%d, 16, v%d" % (vT1, vT1))
        A("v_mul_u32_u24 v%d, 12, v%d" % (vT2, vT1))
        A("v_sub_u32 v%d, v%d, v%d" % (vT2, src, vT2))
        A("v_lshrrev_b32 v%d, 2, v%d" % (vT3, vT2))
        A("v_and_b32 v%d, 3, v%d" % (vT2, vT2))
        A("v_lshlrev_b32 v%d, 4, v%d" % (vT2, vT2))
        A("v_lshl_add_u32 v%d, v%d, 10, v%d" % (vT2, vT3, vT2))
        A("v_mul_u32_u24 v%d, 0xc00, v%d" % (vT1, vT1))
        A("v_add_u32 v%d, v%d, v%d" % (vWg + q, vT1, vT2))
        if q:
            A("v_subrev_u32 v%d, %d, v%d" % (vWg + q, 1024 * q, vWg + q))
    A("s_lshl_b32 s%d, s%d, 6" % (sWbase, sHP))
    A("s_mul_i32 s%d, s%d, 49152" % (sa, sT))
    A("s_add_u32 s%d, s%d, s%d" % (sWbase, sWbase, sa))
    A("s_lshl_b32 s%d, s%d, 12" % (sSlotX, sT))
    A("s_lshl_b32 s%d, s%d, 10" % (sDW, sT))
    A("s_sub_u32 s%d, %d, s%d" % (sDW, XS, sDW))
    A("s_waitcnt lgkmcnt(0)")
    srd(sX, pX, 0x200000)
    srd(sW, pW, 0x180000)
    stamp(1)

    def dma_stage():
        A("s_lshl_b32 s%d, s%d, 7" % (sXo, sKC))
        A("s_mov_b32 m0, s%d" % sSlotX)
        A("s_add_u32 s%d, s%d, s%d" % (sXo, sXo, sXbase))
        for i in range(4):
            A("buffer_load_dwordx4 v%d, %s, s%d offen offset:%d lds" % (vXg + i, sr(sX, 4), sXo, i * 1024))
            if i == 0:
                A("s_mul_i32 s%d, s%d, 196608" % (sWo, sKC))
                A("s_add_u32 s%d, s%d, s%d" % (sa, sSlotX, sDW))
            if i == 1:
                A("s_add_u32 s%d, s%d, s%d" % (sWo, sWo, sWbase))
                A("s_add_u32 s%d, s%d, 1" % (sKC, sKC))
            if i == 2:
                A("s_and_b32 s%d, s%d, 7" % (sKC, sKC))
                A("s_add_u32 s%d, s%d, %d" % (sSlotX, sSlotX, SLOT))
        A("s_mov_b32 m0, s%d" % sa)
        A("s_nop 0")
        for i in range(3):
            A("buffer_load_dwordx4 v%d, %s, s%d offen offset:%d lds" % (vWg + i, sr(sW, 4), sWo, i * 1024))
            if i == 0:
                A("s_cmp_ge_u32 s%d, %d" % (sSlotX, NSL * SLOT))
                A("s_cselect_b32 s%d, %d, 0" % (sa, NSL * SLOT))
                A("s_sub_u32 s%d, s%d, s%d" % (sSlotX, sSlotX, sa))
    def build_mask(first):
        for r in range(0, 16, 2):
            for k in range(2):
                jr = ((r + k) >> 3) * 16 + ((r + k) & 7)
                A("v_cmp_%s_i32 %s, %d, v%d" % ("gt" if first else "le", "vcc" if k == 0 else sr(sKu, 2), jr, vIG))
            A.nop(1)
            A("v_cndmask_b32 v%d, v%d, v%d, vcc" % (vCm + r, vU0, vU1))
            A("v_cndmask_b32 v%d, v%d, v%d, %s" % (vCm + r + 1, vU0, vU1, sr(sKu, 2)))
    def common_setup(loader, ta, tb, tc):
        t0, t1, t2, t3 = vE, vE + 1, vE + 2, vE + 3
        A("v_and_b32 v%d, 31, v%d" % (vN, vL))
        A("v_lshrrev_b32 v%d, 5, v%d" % (vG, vL))
        A("v_and_b32 v%d, 0x13, v%d" % (vKap, vN))
        A("v_and_b32 v%d, 4, v%d" % (t0, vN))
        A("v_lshl_or_b32 v%d, v%d, 1, v%d" % (vKap, t0, vKap))
        A("v_and_b32 v%d, 8, v%d" % (t0, vN))
        A("v_lshrrev_b32 v%d, 1, v%d" % (t0, t0))
        A("v_or_b32 v%d, v%d, v%d" % (vKap, vKap, t0))
        A("v_mov_b32 v%d, 0x3f803f80" % vOnes)
        M3 = opt.get("m3", 1)
        if M3 == 0:
            A("s_lshr_b32 s%d, s2, 6" % ta)
            A("s_and_b32 s%d, s2, 7" % sCG)
            A("s_cmp_lt_u32 s%d, 3" % ta)
            A("s_cselect_b32 s%d, 0, 6" % tb)
            A("s_min_u32 s%d, s%d, 2" % (ta, ta))
            A("s_lshr_b32 s%d, s%d, 1" % (tc, sCG))
            A("s_add_u32 s%d, s%d, s%d" % (ta, ta, tc))
            A("s_add_u32 s%d, s%d, 1" % (ta, ta))
            A("s_and_b32 s%d, s%d, 3" % (ta, ta))
            A("s_add_u32 s%d, s%d, s%d" % (sCG, sCG, tb))
            A("s_and_b32 s%d, s%d, 7" % (sCG, sCG))
            A("s_bfe_u32 s%d, s2, 0x20004" % tb)
            A("s_lshl_b32 s%d, s%d, 2" % (tb, tb))
            A("s_add_u32 s%d, s%d, s%d" % (ta, ta, tb))
            A("s_lshl_b32 s%d, s%d, 1" % (sG3, ta))
            A("s_bfe_u32 s%d, s2, 0x10003" % tb)
            A("s_add_u32 s%d, s%d, s%d" % (sG3, sG3, tb))
        elif M3 == 1:
            A("s_add_u32 s%d, s%d, 1" % (ta, sB))
            A("s_and_b32 s%d, s%d, 15" % (ta, ta))
            A("s_lshl_b32 s%d, s%d, 1" % (sG3, ta))
            A("s_lshr_b32 s%d, s%d, 3" % (tb, sHP))
            A("s_add_u32 s%d, s%d, s%d" % (sG3, sG3, tb))
            A("s_and_b32 s%d, s%d, 7" % (sCG, sHP))
        else:
            A("s_add_u32 s%d, s%d, 1" % (ta, sB))
            A("s_and_b32 s%d, s%d, 15" % (ta, ta))
            A("s_lshl_b32 s%d, s%d, 1" % (sG3, ta))
            A("s_bfe_u32 s%d, s%d, 0x10002" % (tb, sHP))
            A("s_add_u32 s%d, s%d, s%d" % (sG3, sG3, tb))
            A("s_lshr_b32 s%d, s%d, 3" % (tb, sHP))
            A("s_lshl_b32 s%d, s%d, 2" % (tb, tb))
            A("s_and_b32 s%d, s%d, 3" % (sCG, sHP))
            A("s_add_u32 s%d, s%d, s%d" % (sCG, sCG, tb))
        A("v_lshrrev_b32 v%d, 3, v%d" % (t0, vL))
        A("v_and_b32 v%d, 3, v%d" % (t1, t0))
        A("v_lshrrev_b32 v%d, 2, v%d" % (t0, t0))
        A("v_lshl_add_u32 v%d, v%d, 3, v%d" % (t1, t0, t1))
        A("s_lshr_b32 s%d, s%d, 1" % (ta, sT))
        A("s_lshl_b32 s%d, s%d, 4" % (ta, ta))
        A("s_and_b32 s%d, s%d, 1" % (tb, sT))
        A("s_lshl_b32 s%d, s%d, 2" % (tb, tb))
        A("s_add_u32 s%d, s%d, s%d" % (ta, ta, tb))
        A("s_lshl_b32 s%d, s%d, 6" % (tb, sG3))
        A("s_add_u32 s%d, s%d, s%d" % (ta, ta, tb))
        if loader:
            A("s_add_u32 s%d, s%d, 32" % (ta, ta))
        A("v_add_u32 v%d, s%d, v%d" % (vTok, ta, t1))
        A("s_and_b32 s%d, s2, 7" % ta)
        A("s_lshr_b32 s%d, s2, 3" % tb)
        A("s_mul_i32 s%d, s%d, 11" % (sJ, ta))
        A("s_add_u32 s%d, s%d, s%d" % (sJ, sJ, tb))
        A("s_cmp_lt_u32 s%d, 11" % tb)
        A("s_cselect_b32 s%d, 1, 0" % sRole)
        A("s_cmp_lt_u32 s%d, 86" % sJ)
        A("s_cselect_b32 s%d, s%d, 0" % (sRole, sRole))
        A("s_sub_u32 s%d, s%d, 11" % (tb, tb))
        A("s_lshl_b32 s%d, s%d, 2" % (ta, ta))
        A("s_add_u32 s%d, s%d, s%d" % (ta, ta, tb))
        A("s_cmp_lt_u32 s%d, 4" % tb)
        A("s_cselect_b32 s%d, 2, s%d" % (sRole, sRole))
        A("s_cmp_lt_u32 s%d, 4" % tb)
        A("s_cselect_b32 s%d, s%d, s%d" % (sJ, ta, sJ))
        if not loader:
            A("v_bfe_u32 v%d, v%d, 2, 2" % (t2, vL))
            A("v_lshl_add_u32 v%d, v%d, 3, v%d" % (t2, vG, t2))
            A("v_mul_u32_u24 v%d, 192, v%d" % (t3, t2))
            A("v_bfe_u32 v%d, v%d, 4, 1" % (t2, vL))
            A("v_lshl_add_u32 v%d, v%d, 5, v%d" % (t3, t2, t3))
            A("v_and_b32 v%d, 1, v%d" % (t2, vL))
            A("v_lshl_add_u32 v%d, v%d, 4, v%d" % (t3, t2, t3))
            A("v_bfe_u32 v%d, v%d, 1, 1" % (t2, vL))
            A("v_lshl_add_u32 v%d, v%d, 3, v%d" % (t3, t2, t3))
            A("v_bfe_u32 v%d, v%d, 1, 3" % (t0, vKap))
            A("v_xor_b32 v%d, v%d, v%d" % (t0, t0, vG))
            A("v_lshlrev_b32 v%d, 4, v%d" % (t0, t0))
            A("s_lshl_b32 s%d, s%d, 12" % (ta, sT))
            A("v_lshl_add_u32 v%d, v%d, 7, s%d" % (t1, vKap, ta))
            for i in range(4):
                A("s_add_u32 s%d, s%d, %d" % (ta, sT, i))
                A("s_and_b32 s%d, s%d, 3" % (ta, ta))
                A("s_lshl_b32 s%d, s%d, 5" % (tb, ta))
                A("s_mul_i32 s%d, s%d, 3072" % (ta, ta))
                A("s_add_u32 s%d, s%d, %d" % (ta, ta, XS))
                A("v_xor_b32 v%d, s%d, v%d" % (t2, tb, t0))
                A("v_add_u32 v%d, v%d, v%d" % (vXa + i, t1, t2))
                A("v_add_u32 v%d, s%d, v%d" % (vWa + i, ta, t3))
                A("v_mov_b32 v%d, v%d" % (vXc + i, vXa + i))
                A("v_mov_b32 v%d, v%d" % (vWc + i, vWa + i))
            A("v_mov_b32 v%d, 0x3f803f80" % vOne2)
            A("v_mov_b32 v%d, 0x3f803f80" % (vOne2 + 1))
            for i in range(12):
                A("v_mov_b32 v%d, 0" % (vCq + i))
            A("s_lshl_b32 s%d, s%d, 2" % (ta, sT))
            A("s_add_u32 s%d, s%d, %d" % (ta, ta, L_CSP))
            A("v_lshl_add_u32 v%d, v%d, 4, s%d" % (vLSa, vN, ta))
            for i in range(48):
                A("v_mov_b32 v%d, 0" % (vAcV + i))
            for i in range(32):
                A("v_mov_b32 v%d, 0" % (vB + 32 + i))
            A("s_mov_b32 s%d, 0" % sRd)
            A("s_mov_b32 s%d, s%d" % (sTq, sT))
        else:
            A("s_lshl_b32 s%d, s%d, 2" % (ta, sWGL))
            A("s_add_u32 s%d, s%d, s%d" % (ta, ta, sT))
            A("s_lshl_b32 s%d, s%d, 6" % (ta, ta))
            A("v_lshl_add_u32 v%d, v%d, 4, s%d" % (vLSa, vG, ta))
            A("s_lshl_b32 s%d, s%d, 2" % (ta, sB))
            A("s_add_u32 s%d, s%d, s%d" % (ta, ta, sT))
            A("s_lshl_b32 s%d, s%d, 10" % (ta, ta))
            A("v_lshrrev_b32 v%d, 1, v%d" % (t0, vKap))
            A("v_lshl_add_u32 v%d, v%d, 6, s%d" % (vLSb, t0, ta))
            A("v_and_b32 v%d, 1, v%d" % (t0, vKap))
            A("v_lshl_add_u32 v%d, v%d, 4, v%d" % (vLSb, t0, vLSb))
            A("s_lshr_b32 s%d, s%d, 1" % (ta, sG3))
            A("s_lshl_b32 s%d, s%d, 12" % (ta, ta))
            A("v_and_b32 v%d, 15, v%d" % (t0, vL))
            A("v_lshl_add_u32 v%d, v%d, 8, s%d" % (vLSc, t0, ta))
            A("s_mov_b32 s%d, 0" % sPub)
            A("s_sub_u32 s%d, 3, s%d" % (sTq, sT))
            srd(sWS, pWS, WS_SIZE)
            srd(sGA, pDBG, 256)
        A("v_lshlrev_b32 v%d, 3, v%d" % (vIG, vG))
        A("v_sub_u32 v%d, v%d, v%d" % (vIG, vKap, vIG))
        A("v_mov_b32 v%d, %s" % (vU0, f32(-BIG)))
        A("v_mov_b32 v%d, 0" % vU1)
        build_mask(False)
        A("v_add_u32 v%d, %d, v%d" % (vKb, L_K + (1024 if loader else 0), vL16))
        A("v_add_u32 v%d, %d, v%d" % (vVb, L_V + (256 if loader else 0), vL16))
        for i in range(16):
            A("v_mov_b32 v%d, v%d" % (vVa + i, vOnes))
        for i in range(16):
            A("v_mov_b32 v%d, 0" % (vO + i))
        A("s_lshl_b32 s%d, s%d, 4" % (ta, sT))
        A("s_add_u32 s%d, s%d, %d" % (ta, ta, L_PAY))
        A("v_lshl_add_u32 v%d, v%d, 3, s%d" % (vU1, vG, ta))
        A("s_mov_b32 s%d, 0" % sS)

    setupL = cap(lambda: common_setup(True, sd, sb, sc))
    dmaL = cap(lambda: (dma_stage(), dma_stage()))
    nld = sum(1 for l in dmaL if "buffer_load" in l)
    per = (len(setupL) + nld - 1) // nld
    pos = 0
    for l in dmaL:
        A.L.append(l)
        if "buffer_load" in l:
            end = min(len(setupL), pos + per)
            while end < len(setupL) and (any(k in setupL[end - 1] for k in ("s_cmp", "v_cmp", "s_nop", "vcc_")) or "v_cndmask" in setupL[end]):
                end += 1
            A.L.extend(setupL[pos:end])
            pos = end
    A.L.extend(setupL[pos:])
    A("s_branch K_LOOP1")
    A.label("K_PRO_DONE")
    common_setup(False, sa, sb, sc)

    stamp(1)
    A("s_waitcnt vmcnt(0)")
    a0, b0, a1, b1 = vE, vE + 1, vE + 2, vE + 3
    for i in range(4):
        z = "0" if i == 0 else None
        A("v_dot2_f32_bf16 v%d, v%d, v%d, %s" % (a0, vRow + i, vOnes, z or "v%d" % a0))
        A("v_dot2_f32_bf16 v%d, v%d, v%d, %s" % (b0, vRow + i, vRow + i, z or "v%d" % b0))
        A("v_dot2_f32_bf16 v%d, v%d, v%d, %s" % (a1, vRow + 4 + i, vOnes, z or "v%d" % a1))
        A("v_dot2_f32_bf16 v%d, v%d, v%d, %s" % (b1, vRow + 4 + i, vRow + 4 + i, z or "v%d" % b1))
    A.nop(3)
    A("v_permlane32_swap_b32 v%d, v%d" % (a0, a1))
    A("v_permlane32_swap_b32 v%d, v%d" % (b0, b1))
    A.nop(1)
    A("v_add_f32 v%d, v%d, v%d" % (a0, a0, a1))
    A("v_add_f32 v%d, v%d, v%d" % (b0, b0, b1))
    A.nop(2)
    A("v_permlane16_swap_b32 v%d, v%d" % (a0, b0))
    A.nop(1)
    A("v_add_f32 v%d, v%d, v%d" % (a0, a0, b0))
    for dpp in ("quad_perm:[1,0,3,2]", "quad_perm:[2,3,0,1]", "row_half_mirror", "row_mirror"):
        A.nop(2)
        A("v_add_f32_dpp v%d, v%d, v%d %s row_mask:0xf bank_mask:0xf" % (a0, a0, a0, dpp))
    A("v_mov_b32 v%d, v%d" % (b0, a0))
    A.nop(2)
    A("v_permlane16_swap_b32 v%d, v%d" % (a0, b0))
    A.nop(1)
    ln_stats(a0, b0)
    A.nop(1)
    A("v_mov_b32 v%d, v%d" % (vRow, b0))
    A("v_mul_f32_e64 v%d, -v%d, v%d" % (vRow + 1, a0, b0))
    A("ds_write_b64 v%d, %s" % (vU1, vr(vRow, 2)))
    stamp(2)
    def rd_advance():
        A("s_add_u32 s%d, s%d, %d" % (sRd, sRd, SLOT))
        A("s_cmp_eq_u32 s%d, %d" % (sRd, NSL * SLOT))
        A("s_cselect_b32 s%d, 0, s%d" % (sRd, sRd))
        A("s_add_u32 s%d, s%d, 1" % (sS, sS))
    def rd0(k):
        B = vB + 16 * k
        A("ds_read_b128 %s, v%d" % (vr(B, 4), vXc + k))
        for seg in (1, 2, 0):
            for half in range(2):
                A("ds_read_b64_tr_b16 %s, v%d offset:%d" % (vr(B + 4 + 4 * seg + 2 * half, 2), vWc + k, 4 * half * 192 + seg * 64))
    def mm(k, which):
        B = vB + 16 * k
        X = vr(B, 4)
        if which == "K":
            A("%s %s, %s, %s, %s" % (MFMA, vr(vAc1, 16), vr(B + 8, 4), X, vr(vAc1, 16)))
        elif which == "V":
            A("%s %s, %s, %s, %s" % (MFMA, vr(vAcV, 16), X, vr(B + 12, 4), vr(vAcV, 16)))
        else:
            A("%s %s, %s, %s, %s" % (MFMA, vr(vAc0, 16), vr(B + 4, 4), X, vr(vAc0, 16)))
    def weave(fill, k):
        n = (len(fill) + 2) // 3
        for gi, w in enumerate("KVQ"):
            mm(k, w)
            A.L.extend(fill[gi * n:(gi + 1) * n])
    def adv(k):
        A("v_add_u32 v%d, s%d, v%d" % (vXc + k, sRd, vXa + k))
        A("v_add_u32 v%d, s%d, v%d" % (vWc + k, sRd, vWa + k))
    def cs4(h):
        for acc, off in ((vCq, 4), (vCk, 8), (vCv, 12)):
            A("%s %s, %s, %s, %s" % (MFMA4, vr(acc, 4), vr(vOne2, 2), vr(vB + off + 2 * h, 2), vr(acc, 4)))
    A("s_waitcnt lgkmcnt(0)")
    A.label("K_LOOP0")
    A("s_barrier")
    A("s_waitcnt lgkmcnt(7)")
    weave(cap(lambda: (rd0(0), rd_advance())), 2)
    A("s_waitcnt lgkmcnt(7)")
    weave(cap(lambda: (rd0(1), adv(0), adv(1))), 3)
    A("s_waitcnt lgkmcnt(7)")
    weave(cap(lambda: (rd0(2), rd0(3))), 0)
    cs4(0)
    cs4(1)
    A("s_waitcnt lgkmcnt(14)")
    mm(1, "K")
    adv(2)
    adv(3)
    mm(1, "V")
    A("s_cmp_lt_u32 s%d, 8" % sS)
    mm(1, "Q")
    A("s_cbranch_scc1 K_LOOP0")
    for acc in (vCq, vCk, vCv):
        A("v_mov_b32 v%d, v%d" % (acc + 1, acc))
    A("s_waitcnt lgkmcnt(0)")
    mm(2, "V")
    for acc in (vCq, vCk, vCv):
        A("v_permlane32_swap_b32 v%d, v%d" % (acc, acc + 1))
    for acc in (vCq, vCk, vCv):
        A("v_add_f32 v%d, v%d, v%d" % (acc, acc, acc + 1))
    for seg, acc in enumerate((vCq, vCk, vCv)):
        A("ds_write_b32 v%d, v%d offset:%d" % (vLSa, acc, seg * 512))
    mm(3, "V")
    A("s_waitcnt lgkmcnt(0)")
    A("s_barrier")
    mm(2, "K")
    A("s_lshl_b32 s%d, s%d, 7" % (sa, sT))
    A("s_add_u32 s%d, s%d, %d" % (sa, sa, L_STR))
    A("v_lshl_add_u32 v%d, v%d, 2, s%d" % (vU0, vKap, sa))
    A("v_lshlrev_b32 v%d, 4, v%d" % (vT1, vG))
    mm(3, "K")
    A("v_add_u32 v%d, %d, v%d" % (vT1, L_CS, vT1))
    A("s_lshl_b32 s%d, s%d, 12" % (sa, sT))
    A("s_add_u32 s%d, s%d, %d" % (sa, sa, L_VX))
    A("v_add_u32 v%d, s%d, v%d" % (vT0, sa, vL16))
    mm(2, "Q")
    A("v_mov_b32 v%d, %d" % (vU1, L_NON))
    for q in range(4):
        A("ds_write_b128 v%d, %s offset:%d" % (vT0, vr(vAcV + 4 * q, 4), q * 1024))
    mm(3, "Q")
    stamp(3)
    A("s_lshl_b32 s%d, s%d, 11" % (sa, sT))
    A("s_add_u32 s%d, s%d, %d" % (sb, sa, L_K + 8 * 2048))
    A("v_add_u32 v%d, s%d, v%d" % (vT0, sb, vL16))
    A("s_lshl_b32 s%d, s%d, 14" % (sd, sWGL))
    A("s_add_u32 s%d, s%d, s%d" % (sd, sd, sa))
    A("s_waitcnt lgkmcnt(0)")
    A("s_barrier")
    A("ds_read_b32 v%d, v%d" % (vT2, vU0))
    A("ds_read_b32 v%d, v%d offset:%d" % (vT3, vU0, L_STM - L_STR))
    for tile in (1, 0):
        for a in range(4):
            A("ds_read_b128 %s, v%d offset:%d" % (vr(vE + 16 * tile + 4 * a, 4), vT1, tile * 128 + a * 32))
    A("ds_read_b64 %s, v%d" % (vr(vNon, 2), vU1))
    A("s_waitcnt lgkmcnt(9)")
    for r in range(16):
        A("v_mul_f32 v%d, v%d, v%d" % (vAc1 + r, vAc1 + r, vT2))
    A("s_waitcnt lgkmcnt(5)")
    for r in range(16):
        A("v_fmac_f32 v%d, v%d, v%d" % (vAc1 + r, vE + 16 + r, vT3))
    def pack_store(acc, soff):
        for i in range(8):
            A("v_cvt_pk_bf16_f32 v%d, v%d, v%d" % (vPk + i, acc + 2 * i, acc + 2 * i + 1))
        A("buffer_store_dwordx4 %s, v%d, %s, s%d offen sc1" % (vr(vPk, 4), vL16, sr(sWS, 4), soff))
        A("buffer_store_dwordx4 %s, v%d, %s, s%d offen offset:1024 sc1" % (vr(vPk + 4, 4), vL16, sr(sWS, 4), soff))
        sumu(vGc, vPk, 8)
        A("ds_write_b128 v%d, %s" % (vT0, vr(vPk, 4)))
        A("ds_write_b128 v%d, %s offset:1024" % (vT0, vr(vPk + 4, 4)))
        wave_sumu(vGc, vGc + 1)
        A("s_lshl_b32 s%d, s%d, 3" % (sb, sWGL))
        A("s_add_u32 s%d, s%d, s%d" % (sb, sb, sWv))
        A("s_lshl_b32 s%d, s%d, 6" % (sb, sb))
        A("s_add_u32 s%d, s%d, 0x%x" % (sb, sb, WS_FKV))
        A("s_waitcnt lgkmcnt(2)")
        A("v_mov_b32 v%d, v%d" % (vGc + 2, vNon))
        A("v_mov_b32 v%d, v%d" % (vGc + 3, vNon + 1))
        A("s_mov_b64 exec, 1")
        A("buffer_store_dwordx4 %s, v%d, %s, s%d offen sc1" % (vr(vGc, 4), vL16, sr(sWS, 4), sb))
        A("s_mov_b64 exec, -1")
    pack_store(vAc1, sd)
    A("v_mul_f32 v%d, %s, v%d" % (vT2, f32(0.25 * LOG2E), vT2))
    A("v_mul_f32 v%d, %s, v%d" % (vT3, f32(0.25 * LOG2E), vT3))
    A("s_waitcnt lgkmcnt(2)")
    for r in range(8, 16):
        A("v_mul_f32 v%d, v%d, v%d" % (vAc0 + r, vAc0 + r, vT2))
        A("v_fmac_f32 v%d, v%d, v%d" % (vAc0 + r, vE + r, vT3))
    for i in range(4):
        A("v_cvt_pk_bf16_f32 v%d, v%d, v%d" % (vPk + 8 + i, vAc0 + 8 + 2 * i, vAc0 + 8 + 2 * i + 1))
    A("s_lshl_b32 s%d, s%d, 10" % (sa, sT))
    A("s_add_u32 s%d, s%d, %d" % (sa, sa, L_Q))
    A("v_add_u32 v%d, s%d, v%d" % (vT0, sa, vL16))
    A("ds_write_b128 v%d, %s" % (vT0, vr(vPk + 8, 4)))
    for r in range(8):
        A("v_mul_f32 v%d, v%d, v%d" % (vAc0 + r, vAc0 + r, vT2))
        A("v_fmac_f32 v%d, v%d, v%d" % (vAc0 + r, vE + r, vT3))
    for i in range(4):
        A("v_cvt_pk_bf16_f32 v%d, v%d, v%d" % (vQ + i, vAc0 + 2 * i, vAc0 + 2 * i + 1))
    A("s_branch K_PUB")

    A.label("K_LOOP1")
    A("v_mov_b32 v%d, 0" % vT0)
    A("buffer_load_dwordx2 %s, v%d, %s, 0 offen sc1" % (vr(vNon, 2), vT0, sr(sGA, 4)))
    stamp(2)
    def try_publish(lab, blocking=False):
        A.label(lab + "_r")
        A("s_cmp_lg_u32 s%d, 0" % sPub)
        A("s_cbranch_scc1 %s" % lab)
        if blocking:
            A("s_waitcnt vmcnt(0)")
        A("v_readfirstlane_b32 s%d, v%d" % (sPub, vNon + 1))
        A("ds_read_b64 %s, v%d" % (vr(vRow, 2), vU1))
        A("s_cmp_lg_u32 s%d, 0" % sPub)
        A("s_cbranch_scc1 %s_ok" % lab)
        A("buffer_load_dwordx2 %s, v%d, %s, 0 offen sc1" % (vr(vNon, 2), vT0, sr(sGA, 4)))
        if blocking:
            spin_tail(lab + "_r", sS)
        A("s_branch %s" % lab)
        A.label(lab + "_ok")
        A("v_mov_b32 v%d, v%d" % (vRow + 2, vNon))
        A("v_mov_b32 v%d, v%d" % (vRow + 3, vNon + 1))
        A("s_mov_b32 s%d, 0x%x" % (sb, WS_LS))
        A("s_mov_b32 exec_lo, 1")
        A("s_mov_b32 exec_hi, 1")
        A("s_waitcnt lgkmcnt(0)")
        A("buffer_store_dwordx4 %s, v%d, %s, s%d offen sc1" % (vr(vRow, 4), vLSa, sr(sWS, 4), sb))
        A("s_mov_b64 exec, -1")
        A.label(lab)
    A.label("K_LOOP1T")
    A("s_sub_u32 s%d, s%d, 3" % (sb, sS))
    A("s_cmp_lt_u32 s%d, 2" % sb)
    A("s_cbranch_scc1 K_L1_W8")
    A("s_waitcnt vmcnt(7)")
    A.label("K_L1_W8")
    A("s_waitcnt vmcnt(8)")
    if opt.get("p1st"):
        for k in range(0, 6, 2 if opt["p1st"] == 2 else 1):
            A("s_cmp_eq_u32 s%d, %d" % (sS, k))
            A("s_cbranch_scc0 K_DST%d" % k)
            stamp(4 + k)
            A.label("K_DST%d" % k)
    A("s_barrier")
    if opt.get("p1st") == 2:
        for k in range(0, 6, 2):
            A("s_cmp_eq_u32 s%d, %d" % (sS, k))
            A("s_cbranch_scc0 K_DSU%d" % k)
            stamp(5 + k)
            A.label("K_DSU%d" % k)
    dma_stage()
    A("s_cmp_lg_u32 s%d, 2" % sS)
    A("s_cbranch_scc1 K_L1_PUB")
    try_publish("K_L1_PUB")
    A("s_add_u32 s%d, s%d, 1" % (sS, sS))
    A("s_cmp_lt_u32 s%d, 6" % sS)
    A("s_cbranch_scc1 K_LOOP1T")
    A("s_waitcnt vmcnt(7)")
    if opt.get("p1st"): stamp(10)
    A("s_barrier")
    try_publish("K_L1_PUB2", blocking=True)
    A("s_mov_b32 s%d, 0x%x" % (sb, WS_LS))
    A("buffer_load_dwordx4 %s, v%d, %s, s%d offen sc1" % (vr(vRow + 4, 4), vLSb, sr(sWS, 4), sb))
    A("buffer_load_dwordx4 %s, v%d, %s, s%d offen sc1" % (vr(vGc, 4), vLSc, sr(sWS, 4), sb))
    A("s_lshl_b32 s%d, s%d, 7" % (sc, sT))
    A("s_add_u32 s%d, s%d, %d" % (sc, sc, L_STR))
    A("v_lshl_add_u32 v%d, v%d, 5, s%d" % (vT1, vG, sc))
    A("v_lshl_add_u32 v%d, v%d, 2, s%d" % (vU0, vKap, sc))
    A("v_mov_b32 v%d, %d" % (vT3, L_NON))
    A("ds_write_b64 v%d, %s" % (vT3, vr(vNon, 2)))
    A("s_lshl_b32 s%d, s%d, 12" % (sc, sT))
    A("s_add_u32 s%d, s%d, %d" % (sc, sc, L_VX))
    A("v_add_u32 v%d, s%d, v%d" % (vT3, sc, vL16))
    A("v_lshlrev_b32 v%d, 4, v%d" % (vT2, vN))
    A("v_add_u32 v%d, %d, v%d" % (vT2, L_CSP, vT2))
    A("s_mov_b32 s%d, 0" % sCnt)
    A("s_waitcnt vmcnt(2)")
    if opt.get("p1st"): stamp(11)
    A("s_barrier")
    if opt.get("p1st"): stamp(12)
    A.label("K_LS_CHK")
    A("s_waitcnt vmcnt(0)")
    A("v_cmp_eq_u64 vcc, %s, %s" % (vr(vRow + 6, 2), vr(vNon, 2)))
    A("v_cmp_eq_u64 s[68:69], %s, %s" % (vr(vGc + 2, 2), vr(vNon, 2)))
    A("s_and_b64 vcc, vcc, s[68:69]")
    A("s_cmp_eq_u64 vcc, exec")
    A("s_cbranch_scc1 K_LS_OK")
    A("buffer_load_dwordx4 %s, v%d, %s, s%d offen sc1" % (vr(vRow + 4, 4), vLSb, sr(sWS, 4), sb))
    A("buffer_load_dwordx4 %s, v%d, %s, s%d offen sc1" % (vr(vGc, 4), vLSc, sr(sWS, 4), sb))
    spin_tail("K_LS_CHK", sCnt)
    A.label("K_LS_OK")
    A("ds_write_b32 v%d, v%d" % (vU0, vRow + 4))
    A("ds_write_b32 v%d, v%d offset:%d" % (vU0, vRow + 5, L_STM - L_STR))
    A("s_waitcnt lgkmcnt(0)")
    for q in range(4):
        off = (q & 1) * 16 + (q >> 1) * 64
        A("ds_read_b128 %s, v%d offset:%d" % (vr(vE + 4 * q, 4), vT1, off))
        A("ds_read_b128 %s, v%d offset:%d" % (vr(vE + 16 + 4 * q, 4), vT1, off + L_STM - L_STR))
    if opt.get("p1st"): stamp(13)
    A("s_barrier")
    if opt.get("p1st"): stamp(14)
    for seg, acc in enumerate((vCq, vCk, vCv)):
        A("ds_read_b128 %s, v%d offset:%d" % (vr(acc, 4), vT2, seg * 512))
    A("v_lshlrev_b32 v%d, 2, v%d" % (vT2, vN))
    A("v_add_u32 v%d, %d, v%d" % (vT2, L_CS, vT2))
    A("s_lshl_b32 s%d, s%d, 11" % (sb, sT))
    A("s_add_u32 s%d, s%d, %d" % (sc, sb, L_V + 8 * 2048))
    A("v_add_u32 v%d, s%d, v%d" % (vT0, sc, vL16))
    A("s_lshl_b32 s%d, s%d, 14" % (sc, sWGL))
    A("s_add_u32 s%d, s%d, s%d" % (sc, sc, sb))
    A("s_add_u32 s%d, s%d, 8192" % (sc, sc))
    A("s_waitcnt lgkmcnt(0)")
    for acc in (vCq, vCk, vCv):
        A("v_add_f32 v%d, v%d, v%d" % (acc, acc, acc + 1))
        A("v_add_f32 v%d, v%d, v%d" % (acc + 2, acc + 2, acc + 3))
    for acc in (vCq, vCk, vCv):
        A("v_add_f32 v%d, v%d, v%d" % (acc, acc, acc + 2))
    A("ds_write_b32 v%d, v%d" % (vT2, vCq))
    A("ds_write_b32 v%d, v%d offset:128" % (vT2, vCk))
    stamp(3)
    for r in range(16):
        A("v_mul_f32 v%d, v%d, v%d" % (vE + 16 + r, vE + 16 + r, vCv))
    A("s_waitcnt lgkmcnt(0)")
    A("s_barrier")
    for q in range(4):
        A("ds_read_b128 %s, v%d offset:%d" % (vr(vAc0 + 4 * q, 4), vT3, q * 1024))
    for q in range(4):
        A("s_waitcnt lgkmcnt(%d)" % (3 - q))
        for r in range(4 * q, 4 * q + 4):
            A("v_fma_f32 v%d, v%d, v%d, v%d" % (vAc0 + r, vAc0 + r, vE + r, vE + 16 + r))
    pack_store(vAc0, sc)

    A.label("K_PUB")
    A("s_mov_b32 s%d, 0" % sWoN)
    A("s_mov_b32 s%d, 0x0000ffff" % sMaskV)
    A("s_mov_b32 s%d, 0x0000ffff" % (sMaskV + 1))
    A("v_mov_b32 v%d, %s" % (vMold, f32(-BIG)))
    A("s_lshl_b32 s%d, s%d, 10" % (sa, sTq))
    A("s_add_u32 s%d, s%d, %d" % (sa, sa, L_Q))
    A("v_add_u32 v%d, s%d, v%d" % (vT0, sa, vL16))
    A("s_waitcnt lgkmcnt(0)")
    A("s_barrier")
    if opt.get("p1st"):
        A("s_branch K_FIN")
    stamp(4)
    A("s_cmp_eq_u32 s%d, 0" % sC)
    A("s_cbranch_scc1 K_HAVEQ")
    A("ds_read_b128 %s, v%d" % (vr(vQ, 4), vT0))
    A.label("K_HAVEQ")
    A("s_cmp_ge_u32 s%d, 2" % sTq)
    A("s_cbranch_scc1 K_NOP0")
    A("s_setprio 2")
    A.label("K_NOP0")
    A("s_mov_b32 s%d, 0" % sChunk)
    A("s_mov_b32 s%d, 0" % sN1)
    A.label("K_CHUNK0")
    A("s_add_u32 s%d, s%d, 8" % (sa, sTq))
    A("s_mov_b32 s%d, 8" % sb)
    A("s_mov_b32 s%d, s%d" % (sN, sTq))
    A.label("K_CHUNK")
    A("s_lshl_b32 s%d, s%d, 11" % (sKm, sa))
    A("s_lshl_b32 s%d, s%d, 11" % (sKu, sb))
    A("v_add_u32 v%d, s%d, v%d" % (vKad, sKm, vKb))
    A("ds_read_b128 %s, v%d" % (vr(vKbf, 4), vKad))
    A("v_add_u32 v%d, s%d, v%d" % (vKad, sKu, vKb))
    A("ds_read_b128 %s, v%d" % (vr(vKa, 4), vKad))
    A("v_add_u32 v%d, s%d, v%d" % (vVad, sKm, vVb))
    A("s_mov_b64 exec, %s" % sr(sMaskV, 2))
    A("ds_read_b128 %s, v%d" % (vr(vVbf, 4), vVad))
    A("ds_read_b128 %s, v%d offset:1024" % (vr(vVbf + 4, 4), vVad))
    A("s_mov_b64 exec, -1")
    A("v_add_u32 v%d, s%d, v%d" % (vVad, sKu, vVb))
    A("v_mov_b32 v%d, v%d" % (vM, vMold))
    A("s_mov_b32 s%d, 0" % sI)
    A("s_waitcnt lgkmcnt(3)")
    A("%s %s, %s, %s, %s" % (MFMA, vr(vSb, 16), vr(vKbf, 4), vr(vQ, 4), vr(vCm, 16)))
    def wo_piece(lab, gate=False):
        if gate:
            A("s_cmp_lt_u32 s%d, %d" % (sI, opt.get("wost", 0)))
            A("s_cbranch_scc1 %s" % lab)
        A("s_cmp_eq_u32 s%d, 0" % sWoN)
        A("s_cbranch_scc1 %s" % lab)
        A("s_add_u32 s%d, s%d, s%d" % (sa, sWoL, sWoR))
        A("s_mov_b32 m0, s%d" % sa)
        A("s_lshl_b32 s%d, s%d, 3" % (sa, sWoR))
        A("s_add_u32 s%d, s%d, s%d" % (sa, sa, sWoG))
        A("buffer_load_dwordx4 v%d, %s, s%d offen lds" % (vWoA, sr(sW, 4), sa))
        A("s_add_u32 s%d, s%d, 2048" % (sWoR, sWoR))
        A("buffer_load_dwordx4 v%d, %s, s%d offen offset:1024 lds" % (vWoB, sr(sW, 4), sa))
        A("s_sub_u32 s%d, s%d, 1" % (sWoN, sWoN))
        A.label(lab)
    def max16(S):
        for i in range(8):
            A("v_max3_f32 v%d, v%d, v%d, v%d" % (vM, S + 2 * i, S + 2 * i + 1, vM))
    A.nop(6)
    A.label("K_P1")
    A("s_waitcnt lgkmcnt(0)")
    A("%s %s, %s, %s, 0" % (MFMA, vr(vSa, 16), vr(vKa, 4), vr(vQ, 4)))
    A("ds_read_b128 %s, v%d offset:2048" % (vr(vKbf, 4), vKad))
    A.nop(3)
    max16(vSb)
    A("s_cmp_ge_u32 s%d, s%d" % (sI, sN1))
    A("s_cbranch_scc1 K_P1_DONE")
    A("s_add_u32 s%d, s%d, 1" % (sI, sI))
    A("s_waitcnt lgkmcnt(0)")
    A("%s %s, %s, %s, 0" % (MFMA, vr(vSb, 16), vr(vKbf, 4), vr(vQ, 4)))
    A("v_add_u32 v%d, 4096, v%d" % (vKad, vKad))
    A("ds_read_b128 %s, v%d" % (vr(vKa, 4), vKad))
    max16(vSa)
    A("s_cmp_ge_u32 s%d, s%d" % (sI, sN1))
    A("s_cbranch_scc1 K_P1_DONE")
    A("s_add_u32 s%d, s%d, 1" % (sI, sI))
    A("s_branch K_P1")
    A.label("K_P1_DONE")
    A("v_mov_b32 v%d, v%d" % (vT0, vM))
    A("s_waitcnt lgkmcnt(0)")
    A("v_add_u32 v%d, s%d, v%d" % (vKad, sKm, vKb))
    A("ds_read_b128 %s, v%d" % (vr(vKbf, 4), vKad))
    A("v_permlane32_swap_b32 v%d, v%d" % (vM, vT0))
    A("v_add_u32 v%d, s%d, v%d" % (vKad, sKu, vKb))
    A("ds_read_b128 %s, v%d" % (vr(vKa, 4), vKad))
    A("v_max_f32 v%d, v%d, v%d" % (vM, vM, vT0))
    A("v_sub_f32 v%d, v%d, v%d" % (vT0, vMold, vM))
    A("v_exp_f32 v%d, v%d" % (vT0, vT0))
    A("v_mov_b32 v%d, v%d" % (vMold, vM))
    for r in range(16):
        A("v_sub_f32 v%d, v%d, v%d" % (vCm + r, vCm + r, vM))
    A("s_waitcnt lgkmcnt(1)")
    A("v_sub_f32 v%d, 0, v%d" % (vCn, vM))
    A("%s %s, %s, %s, %s" % (MFMA, vr(vSb, 16), vr(vKbf, 4), vr(vQ, 4), vr(vCm, 16)))
    for r in range(1, 16):
        A("v_mov_b32 v%d, v%d" % (vCn + r, vCn))
    for r in range(9):
        A("v_mul_f32 v%d, v%d, v%d" % (vO + r, vO + r, vT0))
    A("s_mov_b32 s%d, 0" % sI)
    def softmax_pv(S, V):
        for r in range(16):
            A("v_exp_f32 v%d, v%d" % (S + r, S + r))
            if r == 3 and opt.get("wost", 0):
                wo_piece("K_WOP%d" % S, True)
            if r == 11 and opt.get("wost", 0):
                wo_piece("K_WOQ%d" % S, True)
        for i in range(8):
            A("v_cvt_pk_bf16_f32 v%d, v%d, v%d" % (vP + i, S + 2 * i, S + 2 * i + 1))
        A.nop(1)
        A("%s %s, %s, %s, %s" % (MFMA, vr(vO, 16), vr(V, 4), vr(vP, 4), vr(vO, 16)))
        A("%s %s, %s, %s, %s" % (MFMA, vr(vO, 16), vr(V + 4, 4), vr(vP + 4, 4), vr(vO, 16)))
    A.label("K_P2")
    A("s_waitcnt lgkmcnt(0)")
    A("%s %s, %s, %s, %s" % (MFMA, vr(vSa, 16), vr(vKa, 4), vr(vQ, 4), vr(vCn, 16)))
    A("ds_read_b128 %s, v%d offset:2048" % (vr(vKbf, 4), vKad))
    A("s_mov_b64 exec, %s" % sr(sMaskV, 2))
    A("ds_read_b128 %s, v%d" % (vr(vVa, 4), vVad))
    A("ds_read_b128 %s, v%d offset:1024" % (vr(vVa + 4, 4), vVad))
    A("s_mov_b64 exec, -1")
    softmax_pv(vSb, vVbf)
    A("s_cmp_ge_u32 s%d, s%d" % (sI, sN))
    A("s_cbranch_scc1 K_P2_DONE")
    A("s_add_u32 s%d, s%d, 1" % (sI, sI))
    A("s_waitcnt lgkmcnt(0)")
    A("%s %s, %s, %s, %s" % (MFMA, vr(vSb, 16), vr(vKbf, 4), vr(vQ, 4), vr(vCn, 16)))
    A("v_add_u32 v%d, 4096, v%d" % (vKad, vKad))
    A("ds_read_b128 %s, v%d" % (vr(vKa, 4), vKad))
    A("s_mov_b64 exec, %s" % sr(sMaskV, 2))
    A("ds_read_b128 %s, v%d offset:2048" % (vr(vVbf, 4), vVad))
    A("ds_read_b128 %s, v%d offset:3072" % (vr(vVbf + 4, 4), vVad))
    A("s_mov_b64 exec, -1")
    A("v_add_u32 v%d, 4096, v%d" % (vVad, vVad))
    softmax_pv(vSa, vVa)
    A("s_cmp_ge_u32 s%d, s%d" % (sI, sN))
    A("s_cbranch_scc1 K_P2_DONE")
    A("s_add_u32 s%d, s%d, 1" % (sI, sI))
    A("s_branch K_P2")
    A.label("K_P2_DONE")
    A("s_waitcnt lgkmcnt(0)")
    A("s_cmp_eq_u32 s%d, 1" % sChunk)
    A("s_cbranch_scc1 K_ATT_CHECK")
    A("s_cmp_eq_u32 s%d, 2" % sChunk)
    A("s_cbranch_scc1 K_SLOW1")
    A("s_cmp_eq_u32 s%d, 3" % sChunk)
    A("s_cbranch_scc1 K_ATT_DONE")
    stamp(5)
    A("s_mov_b32 s%d, 0" % sFon)
    A("v_lshlrev_b32 v%d, 6, v%d" % (vKV + 36, vL))
    A("v_mov_b32 v%d, 0" % (vKV + 32))
    A("s_cmp_ge_u32 s%d, 2" % sTq)
    A("s_cbranch_scc1 K_FETCH_ISSUED")
    A("s_cmp_le_u32 s%d, s%d" % (sB, sTq))
    A("s_cbranch_scc1 K_FETCH_ISSUED")
    A("s_mov_b32 s%d, 1" % sFon)
    A("s_add_u32 s%d, s%d, 1" % (sa, sTq))
    A("s_lshl_b32 s%d, s%d, 4" % (sa, sa))
    A("s_sub_u32 s%d, s%d, s%d" % (sa, sWGL, sa))
    A("s_lshl_b32 s%d, s%d, 1" % (sa, sa))
    A("s_add_u32 s%d, s%d, s%d" % (sa, sa, sC))
    A("s_lshl_b32 s%d, s%d, 13" % (sFa, sa))
    A("s_lshl_b32 s%d, s%d, 8" % (sFg, sa))
    A("s_add_u32 s%d, s%d, 0x%x" % (sFg, sFg, WS_FKV))
    def kv_loads():
        A("s_add_u32 s%d, s%d, 4096" % (sb, sFa))
        for q in range(8):
            A("buffer_load_dwordx4 %s, v%d, %s, s%d offen offset:%d sc1" % (vr(vKV + 4 * q, 4), vL16, sr(sWS, 4), sFa if q < 4 else sb, (q & 3) * 1024))
        A("s_mov_b64 exec, 0xf")
        A("buffer_load_dwordx4 %s, v%d, %s, s%d offen sc1" % (vr(vKV + 32, 4), vKV + 36, sr(sWS, 4), sFg))
        A("s_mov_b64 exec, -1")
    kv_loads()
    A.label("K_FETCH_ISSUED")
    A("v_mov_b32 v%d, %s" % (vU0, f32(-BIG)))
    A("s_cmp_eq_u32 s%d, 1" % sB)
    A("s_cselect_b32 s%d, %s, 0" % (sCnt, f32(-BIG)))
    A("v_add_f32 v%d, s%d, v%d" % (vU1, sCnt, vCn))
    build_mask(True)
    srd(sGB, pWR, 1024)
    srd(sW, pWO, 0x80000)
    A("v_lshrrev_b32 v%d, 3, v%d" % (vT0, vL))
    A("v_bfe_u32 v%d, v%d, 4, 1" % (vT1, vL))
    A("v_lshlrev_b32 v%d, 2, v%d" % (vT1, vT1))
    A("v_and_b32 v%d, 7, v%d" % (vT2, vL))
    A("v_xor_b32 v%d, v%d, v%d" % (vT2, vT2, vT1))
    A("v_lshlrev_b32 v%d, 4, v%d" % (vT2, vT2))
    A("v_lshl_add_u32 v%d, v%d, 10, v%d" % (vWoA, vT0, vT2))
    A("v_add_u32 v%d, %d, v%d" % (vWoB, 8192 - 1024, vWoA))
    A("s_lshl_b32 s%d, s%d, 7" % (sd, sCG))
    A("s_lshl_b32 s%d, s%d, 16" % (sWoG, sWv))
    A("s_add_u32 s%d, s%d, s%d" % (sWoG, sWoG, sd))
    A("s_lshl_b32 s%d, s%d, 13" % (sWoL, sWv))
    A("s_add_u32 s%d, s%d, %d" % (sWoL, sWoL, L_WO))
    def chunk1_params():
        A("s_add_u32 s%d, s%d, 1" % (sb, sTq))
        A("s_mov_b32 s%d, s%d" % (sa, sTq))
        A("s_cmp_eq_u32 s%d, 1" % sB)
        A("s_cselect_b32 s%d, 4, s%d" % (sb, sb))
        A("s_cselect_b32 s%d, 4, s%d" % (sa, sa))
        A("s_sub_u32 s%d, 8, s%d" % (sN, sb))
    chunk1_params()
    A("s_lshl_b32 s%d, s%d, 11" % (sa, sa))
    A("s_lshl_b32 s%d, s%d, 11" % (sb, sb))
    A("v_add_u32 v%d, s%d, v%d" % (vKV + 40, sa, vKb))
    A("v_add_u32 v%d, s%d, v%d" % (vKad, sb, vKb))
    A("v_add_u32 v%d, s%d, v%d" % (vKV + 41, sa, vVb))
    A("v_add_u32 v%d, s%d, v%d" % (vVad, sb, vVb))
    A("s_mov_b32 s%d, 0" % sI)
    A("s_mov_b32 s%d, 1" % sChunk)
    A("v_and_b32 v%d, 7, v%d" % (vKV + 42, vL))
    A("v_lshlrev_b32 v%d, 4, v%d" % (vKV + 42, vKV + 42))
    A("v_lshl_add_u32 v%d, v%d, 10, v%d" % (vKV + 43, vTok, vKV + 42))
    A("s_cmp_eq_u32 s%d, 0" % sFon)
    A("s_cbranch_scc1 K_B3")
    A("s_mul_i32 s68, s%d, %d" % (sC, L_V - L_K))
    A("s_lshl_b32 s69, s%d, 13" % sTq)
    A("s_sub_u32 s68, s68, s69")
    A("s_add_u32 s68, s68, %d" % (L_K + 8192))
    A("v_add_u32 v%d, s68, v%d" % (vT1, vL16))
    A("s_mov_b32 s%d, 0" % sCnt)
    A.label("K_KVCHK")
    A("s_waitcnt vmcnt(0)")
    A("v_cmp_eq_u64 vcc, %s, %s" % (vr(vKV + 34, 2), vr(vNon, 2)))
    A("s_and_b32 s68, vcc_lo, 0xf")
    A("s_cmp_eq_u32 s68, 0xf")
    A("s_cbranch_scc0 K_KVRETRY")
    for i in range(8):
        A("ds_write_b128 v%d, %s offset:%d" % (vT1, vr(vKV + 4 * i, 4), i * 1024))
    A("v_sub_u32 v%d, 0, v%d" % (vT0, vKV + 32))
    sumu(vT0, vKV, 32, init=vT0)
    wave_sumu(vT0, vT3)
    A.nop(1)
    A("v_readfirstlane_b32 s68, v%d" % vT0)
    A("s_cmp_eq_u32 s68, 0")
    A("s_cbranch_scc1 K_B3W")
    A("s_waitcnt lgkmcnt(0)")
    A.label("K_KVRETRY")
    kv_loads()
    spin_tail("K_KVCHK", sCnt)
    A.label("K_B3W")
    A("s_waitcnt lgkmcnt(0)")
    A.label("K_B3")
    A("s_barrier")
    stamp(6)
    A("ds_read_b128 %s, v%d" % (vr(vKbf, 4), vKV + 40))
    A("ds_read_b128 %s, v%d" % (vr(vKa, 4), vKad))
    A("s_mov_b64 exec, %s" % sr(sMaskV, 2))
    A("ds_read_b128 %s, v%d" % (vr(vVbf, 4), vKV + 41))
    A("ds_read_b128 %s, v%d offset:1024" % (vr(vVbf + 4, 4), vKV + 41))
    A("s_mov_b64 exec, -1")
    A("buffer_load_dwordx4 %s, v%d, %s, s%d offen" % (vr(vXr, 4), vKV + 43, sr(sX, 4), sd))
    A("buffer_load_dwordx4 %s, v%d, %s, s%d offen" % (vr(vWr, 4), vKV + 42, sr(sGB, 4), sd))
    A("buffer_load_dwordx4 %s, v%d, %s, 0 offen" % (vr(vWR4, 4), vL16, sr(sGB, 4)))
    A("s_waitcnt lgkmcnt(3)")
    A("%s %s, %s, %s, %s" % (MFMA, vr(vSb, 16), vr(vKbf, 4), vr(vQ, 4), vr(vCm, 16)))
    A("s_cmp_lt_u32 s%d, %d" % (sTq, 9 if opt.get("notouch") else 2))
    A("s_cbranch_scc1 K_TOUCHED")
    A("s_lshl_b32 s%d, s%d, 1" % (sc, sC))
    A("s_add_u32 s%d, s%d, s%d" % (sc, sc, sTq))
    A("s_and_b32 s%d, s2, 7" % sa)
    A("s_lshr_b32 s%d, s2, 3" % sb)
    A("s_mul_i32 s%d, s%d, 44032" % (sb, sb))
    A("s_cmp_eq_u32 s%d, 5" % sc)
    A("s_cbranch_scc0 K_TOUCH_F")
    A("v_lshlrev_b32 v%d, 7, v%d" % (vT0, vL))
    A("s_lshr_b32 s%d, s2, 3" % sb)
    A("s_lshl_b32 s%d, s%d, 14" % (sb, sb))
    A("buffer_load_dword v%d, v%d, %s, s%d offen" % (vU0, vT0, sr(sW, 4), sb))
    A("s_add_u32 s%d, s%d, 8192" % (sb, sb))
    A("buffer_load_dword v%d, v%d, %s, s%d offen" % (vU1, vT0, sr(sW, 4), sb))
    A("s_branch K_TOUCHED")
    A.label("K_TOUCH_F")
    A("s_cmp_eq_u32 s%d, 4" % sc)
    A("s_cbranch_scc1 K_TOUCH_D")
    A("s_cmp_eq_u32 s%d, 2" % sc)
    A("s_cselect_b32 s%d, s%d, s%d" % (sGA, pWG, pWU))
    A("s_cselect_b32 s%d, s%d, s%d" % (sGA + 1, pWG + 1, pWU + 1))
    A("s_mov_b32 s%d, %d" % (sGA + 2, 512 * 2752))
    A("s_mov_b32 s%d, 0x20000" % (sGA + 3))
    A("v_lshrrev_b32 v%d, 2, v%d" % (vT0, vL))
    A("v_mul_u32_u24 v%d, 2752, v%d" % (vT0, vT0))
    A("v_and_b32 v%d, 3, v%d" % (vT1, vL))
    if opt.get("t128", 1):
        A("v_lshlrev_b32 v%d, 7, v%d" % (vT1, vT1))
        A("v_min_u32 v%d, 348, v%d" % (vT1, vT1))
        A("v_add_u32 v%d, v%d, v%d" % (vT2, vT1, vT0))
    else:
        A("v_lshl_add_u32 v%d, v%d, 6, v%d" % (vT2, vT1, vT0))
        A("v_lshlrev_b32 v%d, 6, v%d" % (vT1, vT1))
        A("v_min_u32 v%d, 92, v%d" % (vT1, vT1))
        A("v_add_u32 v%d, v%d, v%d" % (vT3, vT1, vT0))
    A("s_mul_i32 s%d, s%d, 352" % (sa, sa))
    A("s_add_u32 s%d, s%d, s%d" % (sa, sa, sb))
    A("buffer_load_dword v%d, v%d, %s, s%d offen" % (vU0, vT2, sr(sGA, 4), sa))
    if not opt.get("t128", 1):
        A("buffer_load_dword v%d, v%d, %s, s%d offen offset:256" % (vU1, vT3, sr(sGA, 4), sa))
    A("s_branch K_TOUCHED")
    A.label("K_TOUCH_D")
    srd(sGA, pWD, 1376 * 1024)
    A("v_min_u32 v%d, 42, v%d" % (vT0, vL))
    A("v_lshlrev_b32 v%d, 10, v%d" % (vT0, vT0))
    A("s_lshl_b32 s%d, s%d, 7" % (sa, sa))
    A("s_add_u32 s%d, s%d, s%d" % (sa, sa, sb))
    A("buffer_load_dword v%d, v%d, %s, s%d offen" % (vU0, vT0, sr(sGA, 4), sa))
    if not opt.get("t128", 1):
        A("buffer_load_dword v%d, v%d, %s, s%d offen offset:64" % (vU1, vT0, sr(sGA, 4), sa))
    A.label("K_TOUCHED")
    A("s_cmp_eq_u32 s%d, 0" % sB)
    A("s_cbranch_scc1 K_ATT_CHECK")
    A.nop(1)
    A("s_branch K_P2")
    A.label("K_SLOW1")
    A("s_cmp_eq_u32 s%d, 0" % sB)
    A("s_cbranch_scc1 K_ATT_DONE")
    A("v_mov_b32 v%d, %s" % (vU0, f32(-BIG)))
    A("s_cmp_eq_u32 s%d, 1" % sB)
    A("s_cselect_b32 s%d, %s, 0" % (sCnt, f32(-BIG)))
    A("v_mov_b32 v%d, s%d" % (vU1, sCnt))
    build_mask(True)
    A("s_mov_b32 s%d, 3" % sChunk)
    chunk1_params()
    A("s_mov_b32 s%d, s%d" % (sN1, sN))
    A("s_branch K_CHUNK")
    A.label("K_ATT_CHECK")
    A("s_waitcnt lgkmcnt(0)")
    A("s_lshl_b32 s%d, s%d, 2" % (sa, sB))
    A("s_add_u32 s%d, s%d, s%d" % (sa, sa, sTq))
    A("s_lshl_b32 s%d, s%d, 5" % (sa, sa))
    A("s_lshl_b32 s%d, s%d, 1" % (sb, sHP))
    A("s_add_u32 s%d, s%d, s%d" % (sa, sa, sb))
    A("s_add_u32 s%d, s%d, s%d" % (sa, sa, sC))
    A("s_lshl_b32 s%d, s%d, 10" % (sb, sa))
    A("s_add_u32 s%d, s%d, 0x%x" % (sb, sb, WS_O))
    A("s_lshl_b32 s%d, s%d, 6" % (sa, sa))
    A("s_add_u32 s%d, s%d, 0x%x" % (sa, sa, WS_FO))
    A("v_cmp_gt_f32 vcc, %s, v%d" % (f32(2.0 ** 60), vO + 8))
    A("s_cmp_eq_u64 vcc, exec")
    A("s_cbranch_scc%d K_ATT_DONE2" % (0 if opt.get("forceslow") else 1))
    A("s_waitcnt vmcnt(0)")
    A("v_mov_b32 v%d, %s" % (vU0, f32(-BIG)))
    A("v_mov_b32 v%d, 0" % vU1)
    build_mask(False)
    for i in range(16):
        A("v_mov_b32 v%d, 0" % (vO + i))
    A("v_mov_b32 v%d, %s" % (vMold, f32(-BIG)))
    A("s_mov_b32 s%d, 2" % sChunk)
    A("s_mov_b32 s%d, s%d" % (sN1, sTq))
    A("s_branch K_CHUNK0")
    A.label("K_ATT_DONE")
    A("s_lshl_b32 s%d, s%d, 2" % (sa, sB))
    A("s_add_u32 s%d, s%d, s%d" % (sa, sa, sTq))
    A("s_lshl_b32 s%d, s%d, 5" % (sa, sa))
    A("s_lshl_b32 s%d, s%d, 1" % (sb, sHP))
    A("s_add_u32 s%d, s%d, s%d" % (sa, sa, sb))
    A("s_add_u32 s%d, s%d, s%d" % (sa, sa, sC))
    A("s_lshl_b32 s%d, s%d, 10" % (sb, sa))
    A("s_add_u32 s%d, s%d, 0x%x" % (sb, sb, WS_O))
    A("s_lshl_b32 s%d, s%d, 6" % (sa, sa))
    A("s_add_u32 s%d, s%d, 0x%x" % (sa, sa, WS_FO))
    A.nop(2)
    A.label("K_ATT_DONE2")
    stamp(7)
    A("v_rcp_f32 v%d, v%d" % (vT0, vO + 8))
    A.nop(1)
    for r in range(8):
        A("v_mul_f32 v%d, v%d, v%d" % (vO + r, vO + r, vT0))
    for i in range(4):
        A("v_cvt_pk_bf16_f32 v%d, v%d, v%d" % (vP + i, vO + 2 * i, vO + 2 * i + 1))
    A("buffer_store_dwordx4 %s, v%d, %s, s%d offen sc1" % (vr(vP, 4), vL16, sr(sWS, 4), sb))
    sumu(vP + 4, vP, 4)
    wave_sumu(vP + 4, vP + 5)
    A("v_mov_b32 v%d, v%d" % (vP + 6, vNon))
    A("v_mov_b32 v%d, v%d" % (vP + 7, vNon + 1))
    A("s_mov_b64 exec, 1")
    A("buffer_store_dwordx4 %s, v%d, %s, s%d offen sc1" % (vr(vP + 4, 4), vL16, sr(sWS, 4), sa))
    A("s_mov_b64 exec, -1")
    A("s_setprio 0")
    stamp(8)
    A("s_lshl_b32 s%d, s%d, 1" % (sa, sG3))
    A("s_add_u32 s%d, s%d, s%d" % (sa, sa, sC))
    A("s_lshl_b32 s%d, s%d, 2" % (sa, sa))
    A("s_add_u32 s%d, s%d, s%d" % (sa, sa, sT))
    A("s_lshl_b32 s%d, s%d, 9" % (sd, sa))
    A("s_add_u32 s%d, s%d, 0x%x" % (sd, sd, WS_FO))
    A("s_lshl_b32 s%d, s%d, 13" % (sa, sa))
    A("s_add_u32 s%d, s%d, 0x%x" % (sa, sa, WS_O))
    A("s_add_u32 s%d, s%d, 4096" % (sb, sa))
    A("v_lshlrev_b32 v%d, 6, v%d" % (vT0, vL))
    A("v_mov_b32 v%d, 0" % vOG)
    A("s_barrier")
    A("s_mov_b64 exec, 0xff")
    A("buffer_load_dwordx4 %s, v%d, %s, s%d offen sc1" % (vr(vOG, 4), vT0, sr(sWS, 4), sd))
    A("s_mov_b64 exec, -1")
    for q in range(4):
        A("s_mov_b32 m0, s%d" % sWoL)
        A("s_add_u32 s%d, s%d, 2048" % (sWoL, sWoL))
        A("buffer_load_dwordx4 v%d, %s, s%d offen lds" % (vWoA, sr(sW, 4), sWoG))
        A("buffer_load_dwordx4 v%d, %s, s%d offen offset:1024 lds" % (vWoB, sr(sW, 4), sWoG))
        A("s_add_u32 s%d, s%d, 16384" % (sWoG, sWoG))
    A("v_bfe_u32 v%d, v%d, 2, 2" % (vT1, vL))
    A("v_lshl_add_u32 v%d, v%d, 3, v%d" % (vT2, vG, vT1))
    A("s_lshl_b32 s%d, s%d, 14" % (sc, sT))
    A("s_add_u32 s%d, s%d, %d" % (sc, sc, L_WO))
    A("v_lshl_add_u32 v%d, v%d, 7, s%d" % (vWOa, vT2, sc))
    A("v_lshrrev_b32 v%d, 1, v%d" % (vT1, vT1))
    A("v_lshl_add_u32 v%d, v%d, 6, v%d" % (vWOa, vT1, vWOa))
    A("v_bfe_u32 v%d, v%d, 4, 1" % (vT1, vL))
    A("v_lshl_add_u32 v%d, v%d, 5, v%d" % (vWOa, vT1, vWOa))
    A("v_and_b32 v%d, 3, v%d" % (vT1, vL))
    A("v_lshl_add_u32 v%d, v%d, 3, v%d" % (vWOa, vT1, vWOa))
    A("v_xor_b32 v%d, 64, v%d" % (vWOa + 1, vWOa))
    A("v_and_b32 v%d, 15, v%d" % (vT2, vN))
    A("v_xor_b32 v%d, v%d, v%d" % (vT2, vT2, vG))
    A("v_lshlrev_b32 v%d, 4, v%d" % (vT2, vT2))
    A("s_lshl_b32 s%d, s%d, 13" % (sc, sWv))
    A("s_add_u32 s%d, s%d, %d" % (sc, sc, L_RED))
    A("v_lshl_add_u32 v%d, v%d, 8, s%d" % (vT1, vN, sc))
    for u in range(8):
        A("v_xor_b32 v%d, %d, v%d" % (vRa + u, (2 * u) << 4, vT2))
        A("v_add_u32 v%d, v%d, v%d" % (vRa + u, vRa + u, vT1))
    A("v_lshrrev_b32 v%d, 3, v%d" % (vT3, vL))
    A("s_lshl_b32 s%d, s%d, 3" % (sc, sT))
    A("v_add_u32 v%d, s%d, v%d" % (vT3, sc, vT3))
    A("v_and_b32 v%d, 7, v%d" % (vT1, vL))
    A("v_lshlrev_b32 v%d, 1, v%d" % (vT1, vT1))
    A("v_and_b32 v%d, 15, v%d" % (vT2, vT3))
    A("v_xor_b32 v%d, v%d, v%d" % (vT1, vT1, vT2))
    A("v_lshlrev_b32 v%d, 4, v%d" % (vT1, vT1))
    A("s_lshl_b32 s%d, s%d, 15" % (sc, sC))
    A("s_add_u32 s%d, s%d, %d" % (sc, sc, L_RED))
    A("v_lshl_add_u32 v%d, v%d, 8, s%d" % (vT3, vT3, sc))
    A("v_add_u32 v%d, v%d, v%d" % (vT2, vT3, vT1))
    A("v_xor_b32 v%d, 16, v%d" % (vT1, vT1))
    A("v_add_u32 v%d, v%d, v%d" % (vT3, vT3, vT1))
    A("s_mov_b32 s%d, 0" % sCnt)
    A("s_mov_b64 exec, 0xff")
    A("s_waitcnt vmcnt(8)")
    A("s_branch K_POLLO1")
    A.label("K_POLLO")
    A("s_waitcnt vmcnt(0)")
    A.label("K_POLLO1")
    A("v_cmp_eq_u64 vcc, %s, %s" % (vr(vOG + 2, 2), vr(vNon, 2)))
    A("s_cmp_eq_u64 vcc, exec")
    A("s_cbranch_scc1 K_POLLO_OK")
    A("buffer_load_dwordx4 %s, v%d, %s, s%d offen sc1" % (vr(vOG, 4), vT0, sr(sWS, 4), sd))
    spin_tail("K_POLLO", sCnt)
    A.label("K_POLLO_OK")
    A("s_mov_b64 exec, -1")
    stamp(9)
    def o_loads():
        for s in range(8):
            A("buffer_load_dwordx4 %s, v%d, %s, s%d offen offset:%d sc1" % (vr(vOF + 4 * s, 4), vL16, sr(sWS, 4), sa if s < 4 else sb, (s & 3) * 1024))
    o_loads()
    A("s_waitcnt vmcnt(8)")
    A("s_barrier")
    for s in range(8):
        for C in range(2):
            for half in range(2):
                A("ds_read_b64_tr_b16 %s, v%d offset:%d" % (vr(vAW + (s * 2 + C) * 4 + 2 * half, 2), vWOa + C, (16 * s + 4 * half) * 128))
    A("s_branch K_OMM")
    A.label("K_OLOAD")
    o_loads()
    A.label("K_OMM")
    A("v_sub_u32 v%d, 0, v%d" % (vChk, vOG))
    A("s_waitcnt lgkmcnt(0)")
    for s in range(8):
        A("s_waitcnt vmcnt(%d)" % (7 - s))
        A("%s %s, %s, %s, %s" % (MFMA, vr(vH0, 16), vr(vAW + (s * 2) * 4, 4), vr(vOF + 4 * s, 4), "0" if s == 0 else vr(vH0, 16)))
        A("v_add3_u32 v%d, v%d, v%d, v%d" % (vChk, vOF + 4 * s, vOF + 4 * s + 1, vChk))
        A("%s %s, %s, %s, %s" % (MFMA, vr(vH1, 16), vr(vAW + (s * 2 + 1) * 4, 4), vr(vOF + 4 * s, 4), "0" if s == 0 else vr(vH1, 16)))
        A("v_add3_u32 v%d, v%d, v%d, v%d" % (vChk, vOF + 4 * s + 2, vOF + 4 * s + 3, vChk))
    wave_sumu(vChk, vT1)
    A.nop(1)
    A("v_readfirstlane_b32 s68, v%d" % vChk)
    A("s_cmp_eq_u32 s68, 0")
    A("s_cbranch_scc1 K_OOK")
    spin_tail("K_OLOAD", sCnt)
    A.label("K_OOK")
    A("s_barrier")
    stamp(10)
    A("v_and_b32 v%d, 7, v%d" % (vT0, vL))
    A("v_lshlrev_b32 v%d, 4, v%d" % (vT1, vT0))
    A("v_lshl_add_u32 v%d, v%d, 10, v%d" % (vT1, vTok, vT1))
    A("s_lshl_b32 s%d, s%d, 7" % (sd, sCG))
    A("s_add_u32 s%d, s%d, 0x%x" % (sa, sd, WS_H))
    A.nop(2)
    for u in range(8):
        A("ds_write_b128 v%d, %s" % (vRa + u, vr(vH0 + 4 * u, 4)))
    A("v_lshrrev_b32 v%d, 3, v%d" % (vPa, vL))
    A("v_lshlrev_b32 v%d, 4, v%d" % (vChk, vPa))
    A("v_lshl_add_u32 v%d, v%d, 10, v%d" % (vPa, vT0, vChk))
    A("s_lshl_b32 s%d, s%d, 13" % (sb, sG3))
    A("s_lshl_b32 s%d, s%d, 7" % (sc, sWv))
    A("s_add_u32 s%d, s%d, s%d" % (sb, sb, sc))
    A("s_add_u32 s%d, s%d, 0x%x" % (sb, sb, WS_P))
    A("s_lshl_b32 s%d, s%d, 10" % (sc, sCG))
    A("s_add_u32 s%d, s%d, s%d" % (sc, sc, sb))
    A("s_waitcnt lgkmcnt(0)")
    A("s_barrier")
    for q in range(4):
        A("ds_read_b128 %s, v%d offset:%d" % (vr(vOF + 8 * q, 4), vT2, q * 8192))
        A("ds_read_b128 %s, v%d offset:%d" % (vr(vOF + 8 * q + 4, 4), vT3, q * 8192))
    for i in range(4):
        A("v_lshlrev_b32 v%d, 16, v%d" % (vH0 + 2 * i, vXr + i))
        A("v_and_b32 v%d, 0xffff0000, v%d" % (vH0 + 2 * i + 1, vXr + i))
    A("s_waitcnt lgkmcnt(6)")
    for i in range(8):
        A("v_add_f32 v%d, v%d, v%d" % (vOF + i, vOF + i, vH0 + i))
    A("s_waitcnt lgkmcnt(0)")
    for i in range(8):
        A("v_add_f32 v%d, v%d, v%d" % (vOF + i, vOF + i, vOF + 8 + i))
        A("v_add_f32 v%d, v%d, v%d" % (vOF + 16 + i, vOF + 16 + i, vOF + 24 + i))
    for i in range(8):
        A("v_add_f32 v%d, v%d, v%d" % (vOF + i, vOF + i, vOF + 16 + i))
    for i in range(4):
        A("v_cvt_pk_bf16_f32 v%d, v%d, v%d" % (vHp + i, vOF + 2 * i, vOF + 2 * i + 1))
    s1, s2, s3 = vOF + 16, vOF + 17, vOF + 18
    for i in range(4):
        for (acc, other) in ((s1, None), (s2, "self"), (s3, "w")):
            o = vOnes if other is None else (vHp + i if other == "self" else vWr + i)
            A("v_dot2_f32_bf16 v%d, v%d, v%d, %s" % (acc, vHp + i, o, "0" if i == 0 else "v%d" % acc))
    sumu(s3 + 1, vHp, 4)
    A("buffer_store_dwordx4 %s, v%d, %s, s%d offen sc1" % (vr(vHp, 4), vT1, sr(sWS, 4), sa))
    def red8(regs):
        for dpp in ("quad_perm:[1,0,3,2]", "quad_perm:[2,3,0,1]", "row_half_mirror"):
            for acc in regs:
                A("v_add_f32_dpp v%d, v%d, v%d %s row_mask:0xf bank_mask:0xf" % (acc, acc, acc, dpp))
    for dpp in ("quad_perm:[1,0,3,2]", "quad_perm:[2,3,0,1]", "row_half_mirror"):
        for acc in (s1, s2, s3):
            A("v_add_f32_dpp v%d, v%d, v%d %s row_mask:0xf bank_mask:0xf" % (acc, acc, acc, dpp))
        A("v_add_u32_dpp v%d, v%d, v%d %s row_mask:0xf bank_mask:0xf" % (s3 + 1, s3 + 1, s3 + 1, dpp))
    for acc in (s1, s2, s3, s3 + 1):
        A("v_min_u32 v%d, -2, v%d" % (acc, acc))
    A("s_mov_b32 exec_lo, 0x01010101")
    A("s_mov_b32 exec_hi, 0x01010101")
    A("s_add_u32 s68, s%d, 0x%x" % (sc, WS_P2 - WS_P))
    A("buffer_store_dwordx4 %s, v%d, %s, s68 offen" % (vr(s1, 4), vChk, sr(sWS, 4)))
    A("buffer_store_dwordx4 %s, v%d, %s, s%d offen sc1" % (vr(s1, 4), vChk, sr(sWS, 4), sc))
    A("s_mov_b64 exec, -1")
    A("s_add_u32 s%d, s%d, 0x%x" % (sc, sb, WS_P2 - WS_P))
    for i in range(3):
        A("v_mov_b32 v%d, v%d" % (vS + i, s1 + i))
    A("s_lshl_b32 s%d, 0x01010101, s%d" % (sMaskV, sCG))
    A("s_not_b32 s%d, s%d" % (sMaskV, sMaskV))
    A("s_mov_b32 s%d, s%d" % (sMaskV + 1, sMaskV))
    stamp(11)
    srd(sW, pOUT, 0x200000)
    for i in range(4):
        A("v_dot2_f32_bf16 v%d, v%d, v%d, %s" % (vW1, vWR4 + i, vOnes, "0" if i == 0 else "v%d" % vW1))
    A.nop(3)
    for dpp in ("quad_perm:[1,0,3,2]", "quad_perm:[2,3,0,1]", "row_half_mirror", "row_mirror"):
        A("v_add_f32_dpp v%d, v%d, v%d %s row_mask:0xf bank_mask:0xf" % (vW1, vW1, vW1, dpp))
        A.nop(2)
    for sw in ("v_permlane16_swap_b32", "v_permlane32_swap_b32"):
        A("v_mov_b32 v%d, v%d" % (vT0, vW1))
        A.nop(2)
        A("%s v%d, v%d" % (sw, vW1, vT0))
        A.nop(1)
        A("v_add_f32 v%d, v%d, v%d" % (vW1, vW1, vT0))
    A("s_cmp_eq_u32 s%d, 0" % sRole)
    A("s_cbranch_scc1 K_NOFA")
    for i in range(24):
        A("v_mov_b32 v%d, v%d" % (vBF + i, vOnes))
    A.label("K_NOFA")
    for i in range(4):
        A("v_lshlrev_b32 v%d, 16, v%d" % (vX + 2 * i, vHp + i))
        A("v_and_b32 v%d, 0xffff0000, v%d" % (vX + 2 * i + 1, vHp + i))
    A("v_sub_u32 v%d, 2047, v%d" % (vT0, vTok))
    A("s_lshl_b32 s68, s%d, 3" % sWv)
    A("s_add_u32 s68, s68, %d" % L_TOP)
    A("v_mov_b32 v%d, s68" % vT3)
    A("s_mov_b32 s%d, 0xfffff800" % sI2)
    A("v_mov_b32 v%d, 0" % vK2)
    A("s_mov_b32 s%d, 0" % sCnt)
    A("s_mov_b64 exec, %s" % sr(sMaskV, 2))
    A.label("K_POLL1")
    A("s_and_b32 s68, s%d, 3" % sCnt)
    A("s_cmp_eq_u32 s68, 3")
    A("s_cselect_b32 s68, s%d, s%d" % (sb, sc))
    A("buffer_load_dwordx4 %s, v%d, %s, s68 offen sc1" % (vr(vS, 4), vPa, sr(sWS, 4)))
    A("s_waitcnt vmcnt(0)")
    maxu(vT2, vS, 4)
    A("v_cmp_eq_u32 vcc, -1, v%d" % vT2)
    A("s_cmp_eq_u64 vcc, 0")
    A("s_cbranch_scc1 K_POLL1_OK")
    A("s_mov_b64 exec, vcc")
    spin_tail("K_POLL1", sCnt)
    A.label("K_POLL1_OK")
    A("s_mov_b64 exec, -1")
    stamp(12)
    red8((vS, vS + 1, vS + 2))
    ln_stats(vS, vS + 1)
    A("v_fma_f32 v%d, -v%d, v%d, v%d" % (vS + 2, vS, vW1, vS + 2))
    A("v_mul_f32 v%d, v%d, v%d" % (vS + 2, vS + 2, vS + 1))
    A("v_ashrrev_i32 v%d, 31, v%d" % (vK1, vS + 2))
    A("v_or_b32 v%d, 0x80000000, v%d" % (vK1, vK1))
    A("v_xor_b32 v%d, v%d, v%d" % (vK1, vK1, vS + 2))
    A("v_and_or_b32 v%d, v%d, s%d, v%d" % (vK1, vK1, sI2, vT0))
    def merge(p1=vP1, p2=vP2):
        A("v_max_u32 v%d, v%d, v%d" % (vK2, vK2, p2))
        A("v_med3_u32 v%d, v%d, v%d, v%d" % (vK2, vK1, p1, vK2))
        A("v_max_u32 v%d, v%d, v%d" % (vK1, vK1, p1))
    def merge_dpp(dpp):
        A.nop(2)
        A("v_mov_b32_dpp v%d, v%d %s row_mask:0xf bank_mask:0xf" % (vP1, vK1, dpp))
        A("v_mov_b32_dpp v%d, v%d %s row_mask:0xf bank_mask:0xf" % (vP2, vK2, dpp))
        merge()
    def merge_swap(sw):
        A("v_mov_b32 v%d, v%d" % (vP1, vK1))
        A("v_mov_b32 v%d, v%d" % (vP2, vK2))
        A.nop(2)
        A("%s v%d, v%d" % (sw, vK1, vP1))
        A("%s v%d, v%d" % (sw, vK2, vP2))
        A.nop(1)
        merge()
    merge_dpp("row_ror:8")
    merge_swap("v_permlane16_swap_b32")
    merge_swap("v_permlane32_swap_b32")
    A("ds_write_b64 v%d, %s" % (vT3, vr(vK1, 2)))
    A("s_waitcnt lgkmcnt(0)")
    A("s_barrier")
    A("s_cmp_eq_u32 s%d, 0" % sWv)
    A("s_cbranch_scc1 K_W0")
    A("s_cmp_eq_u32 s%d, 0" % sC)
    A("s_cbranch_scc1 K_STG_DONE")
    A("s_cmp_eq_u32 s%d, 0" % sRole)
    A("s_cbranch_scc1 K_STG_DONE")
    A("s_mov_b32 s%d, s%d" % (sc, sT))
    A("v_lshrrev_b32 v%d, 1, v%d" % (vT0, vL))
    A("v_and_b32 v%d, 1, v%d" % (vT2, vL))
    A("v_lshlrev_b32 v%d, 4, v%d" % (vT2, vT2))
    A("s_lshl_b32 s%d, s%d, 5" % (sa, sJ))
    A("s_cmp_eq_u32 s%d, 1" % sRole)
    A("s_cbranch_scc0 K_FFN_D")
    srd(sGA, pWG, 512 * 2752)
    srd(sGB, pWU, 512 * 2752)
    A("v_mul_u32_u24 v%d, 2752, v%d" % (vT0, vT0))
    A("v_add_u32 v%d, v%d, v%d" % (vT0, vT0, vT2))
    A("s_mul_i32 s%d, s%d, %d" % (sb, sc, 128 * 2752))
    A("s_add_u32 s%d, s%d, s%d" % (sa, sa, sb))
    A("s_lshl_b32 s%d, s%d, 12" % (sb, sc))
    for q in range(4):
        A("s_add_u32 s%d, s%d, %d" % (sc, sb, L_F + q * 1024))
        A("s_mov_b32 m0, s%d" % sc)
        A("s_add_u32 s%d, s%d, %d" % (sc, sb, L_FU + q * 1024))
        A("buffer_load_dwordx4 v%d, %s, s%d offen lds" % (vT0, sr(sGA, 4), sa))
        A("s_mov_b32 m0, s%d" % sc)
        A("s_nop 0")
        A("buffer_load_dwordx4 v%d, %s, s%d offen lds" % (vT0, sr(sGB, 4), sa))
        A("s_add_u32 s%d, s%d, %d" % (sa, sa, 32 * 2752))
    A("s_branch K_STG_DONE")
    A.label("K_FFN_D")
    srd(sGA, pWD, 1376 * 1024)
    A("v_lshl_add_u32 v%d, v%d, 10, v%d" % (vT0, vT0, vT2))
    A("s_lshl_b32 s%d, s%d, 15" % (sb, sc))
    A("s_add_u32 s%d, s%d, s%d" % (sa, sa, sb))
    A("s_lshl_b32 s%d, s%d, 10" % (sb, sc))
    A("s_add_u32 s%d, s%d, %d" % (sb, sb, L_F))
    A.label("K_FFN_DL")
    A("s_mov_b32 m0, s%d" % sb)
    A("s_add_u32 s%d, s%d, 4096" % (sb, sb))
    A("buffer_load_dwordx4 v%d, %s, s%d offen lds" % (vT0, sr(sGA, 4), sa))
    A("s_add_u32 s%d, s%d, 0x20000" % (sa, sa))
    A("s_cmp_lt_u32 s%d, %d" % (sb, L_F + 43 * 1024))
    A("s_cbranch_scc1 K_FFN_DL")
    A.label("K_STG_DONE")
    for i in range(8):
        A("v_sub_f32 v%d, v%d, v%d" % (vX + 8 + i, vX + i, vS))
        A("v_fmac_f32 v%d, v%d, v%d" % (vX + i, vX + 8 + i, vS + 1))
    for i in range(4):
        A("v_cvt_pk_bf16_f32 v%d, v%d, v%d" % (vHp + i, vX + 2 * i, vX + 2 * i + 1))
    A("s_waitcnt vmcnt(0)")
    A("s_branch K_L2WAIT")
    A.label("K_W0")
    A("v_and_b32 v%d, 7, v%d" % (vT2, vL))
    A("v_lshlrev_b32 v%d, 3, v%d" % (vT2, vT2))
    A("v_add_u32 v%d, %d, v%d" % (vT2, L_TOP, vT2))
    A("ds_read_b64 %s, v%d" % (vr(vK1, 2), vT2))
    A("v_lshlrev_b32 v%d, 6, v%d" % (vT2, vN))
    A("s_mov_b32 s%d, 0x%x" % (sa, WS_E))
    A("s_lshl_b32 s%d, s%d, 6" % (sc, sG3))
    A("s_add_u32 s%d, s%d, s%d" % (sc, sc, sa))
    A("s_and_b32 s68, s%d, 7" % sG3)
    A("s_cmp_eq_u32 s68, s%d" % sCG)
    A("s_cbranch_scc0 K_NOPUB2")
    A("s_waitcnt lgkmcnt(0)")
    for dpp in ("quad_perm:[1,0,3,2]", "quad_perm:[2,3,0,1]", "row_half_mirror"):
        merge_dpp(dpp)
    A("v_mov_b32 v%d, v%d" % (vAcc, vK1))
    A("v_mov_b32 v%d, v%d" % (vAcc + 1, vK2))
    A("v_mov_b32 v%d, v%d" % (vAcc + 2, vNon))
    A("v_mov_b32 v%d, v%d" % (vAcc + 3, vNon + 1))
    A("s_mov_b64 exec, 1")
    A("buffer_store_dwordx4 %s, v%d, %s, s%d offen sc1" % (vr(vAcc, 4), vT2, sr(sWS, 4), sc))
    A("s_mov_b64 exec, -1")
    A.label("K_NOPUB2")
    for i in range(8):
        A("v_sub_f32 v%d, v%d, v%d" % (vX + 8 + i, vX + i, vS))
        A("v_fmac_f32 v%d, v%d, v%d" % (vX + i, vX + 8 + i, vS + 1))
    for i in range(4):
        A("v_cvt_pk_bf16_f32 v%d, v%d, v%d" % (vHp + i, vX + 2 * i, vX + 2 * i + 1))
    A("s_mov_b32 s%d, 0" % sCnt)
    A("s_mov_b32 exec_hi, 0")
    A.label("K_POLL2")
    A("buffer_load_dwordx4 %s, v%d, %s, s%d offen sc1" % (vr(vAcc + 4, 4), vT2, sr(sWS, 4), sa))
    A("s_waitcnt vmcnt(0)")
    A("v_cmp_eq_u64 vcc, %s, %s" % (vr(vAcc + 6, 2), vr(vNon, 2)))
    A("s_cmp_eq_u64 vcc, exec")
    A("s_cbranch_scc1 K_POLL2_OK")
    spin_tail("K_POLL2", sCnt)
    A.label("K_POLL2_OK")
    A("s_mov_b64 exec, -1")
    A("s_waitcnt lgkmcnt(0)")
    A("v_mov_b32 v%d, v%d" % (vK1, vAcc + 4))
    A("v_mov_b32 v%d, v%d" % (vK2, vAcc + 5))
    for dpp in ("quad_perm:[1,0,3,2]", "quad_perm:[2,3,0,1]", "row_half_mirror", "row_mirror"):
        merge_dpp(dpp)
    merge_swap("v_permlane16_swap_b32")
    A("s_mov_b64 exec, 1")
    A("ds_write_b64 v%d, %s offset:64" % (vT3, vr(vK1, 2)))
    A("s_mov_b64 exec, -1")
    A("s_waitcnt lgkmcnt(0)")
    A.label("K_L2WAIT")
    A("v_mov_b32 v%d, %d" % (vT3, L_TOP + 64))
    A("v_mov_b32 v%d, 0" % (vSel + 1))
    A("s_barrier")
    A("ds_read_b64 %s, v%d" % (vr(vK1, 2), vT3))
    A("s_waitcnt lgkmcnt(0)")
    A("v_readfirstlane_b32 s%d, v%d" % (sI1, vK1))
    A("v_readfirstlane_b32 s%d, v%d" % (sI2, vK2))
    A("s_and_b32 s%d, s%d, 0x7ff" % (sI1, sI1))
    A("s_sub_u32 s%d, 2047, s%d" % (sI1, sI1))
    A("s_and_b32 s%d, s%d, 0x7ff" % (sI2, sI2))
    A("s_sub_u32 s%d, 2047, s%d" % (sI2, sI2))
    stamp(13)
    A("s_cmp_eq_u32 s%d, 0" % sRole)
    A("s_cbranch_scc1 K_OWN")
    A("s_lshr_b32 s%d, s%d, 2" % (sI, sJ))
    A("s_and_b32 s%d, s%d, 3" % (sN, sJ))
    A("s_cmp_eq_u32 s%d, 1" % sRole)
    A("s_cselect_b32 s%d, s%d, s%d" % (sI, sWv, sI))
    A("s_cselect_b32 s%d, 0, s%d" % (sN, sN))
    A("s_cbranch_scc1 K_SEL")
    A("s_cmp_eq_u32 s%d, 0" % sWv)
    A("s_cbranch_scc0 K_OWN")
    A.label("K_SEL")
    A("v_mov_b32 v%d, s%d" % (vT0, sI1))
    A("v_mov_b32 v%d, s%d" % (vT2, sI2))
    A("s_mov_b32 vcc_lo, 0xaaaaaaaa")
    A("s_mov_b32 vcc_hi, 0xaaaaaaaa")
    A("v_cndmask_b32 v%d, v%d, v%d, vcc" % (vPa, vT0, vT2))
    A("v_lshlrev_b32 v%d, 10, v%d" % (vPa, vPa))
    A("v_lshl_add_u32 v%d, v%d, 4, v%d" % (vPa, vG, vPa))
    A("s_lshl_b32 s%d, s%d, 7" % (sc, sI))
    A("s_add_u32 s%d, s%d, 0x%x" % (sc, sc, WS_H))
    def h_loads():
        A("s_mov_b32 exec_lo, 3")
        A("s_mov_b32 exec_hi, 3")
        for s in range(4):
            A("s_add_u32 s68, s%d, %d" % (sN, s))
            A("s_and_b32 s68, s68, 3")
            A("s_lshl_b32 s68, s68, 5")
            A("s_add_u32 s68, s68, s%d" % sc)
            A("buffer_load_dwordx4 %s, v%d, %s, s68 offen sc1" % (vr(vBF + 4 * s, 4), vPa, sr(sWS, 4)))
        A("s_mov_b64 exec, -1")
    h_loads()
    A("s_mov_b32 vcc_lo, 0xffff0000")
    A("s_mov_b32 vcc_hi, 0xffff0000")
    A("v_cndmask_b32 v%d, v%d, v%d, vcc" % (vT0, vT0, vT2))
    A("v_lshrrev_b32 v%d, 6, v%d" % (vT2, vT0))
    A("v_lshlrev_b32 v%d, 13, v%d" % (vT2, vT2))
    A("v_bfe_u32 v%d, v%d, 4, 2" % (vT3, vT0))
    A("v_lshl_add_u32 v%d, v%d, 8, v%d" % (vT2, vT3, vT2))
    A("v_bfe_u32 v%d, v%d, 2, 1" % (vT3, vT0))
    A("v_lshl_add_u32 v%d, v%d, 7, v%d" % (vT2, vT3, vT2))
    A("v_bfe_u32 v%d, v%d, 3, 1" % (vT3, vT0))
    A("v_lshl_add_u32 v%d, v%d, 6, v%d" % (vT2, vT3, vT2))
    A("v_and_b32 v%d, 3, v%d" % (vT3, vT0))
    A("v_lshl_add_u32 v%d, v%d, 4, v%d" % (vT2, vT3, vT2))
    A("v_and_b32 v%d, 7, v%d" % (vT3, vL))
    A("v_lshl_add_u32 v%d, v%d, 10, v%d" % (vU0, vT3, vT2))
    def ss_load():
        A("s_mov_b32 s68, 0x%x" % WS_P)
        A("buffer_load_dwordx4 %s, v%d, %s, s68 offen sc1" % (vr(vSs, 4), vU0, sr(sWS, 4)))
    ss_load()
    A("v_and_b32 v%d, 14, v%d" % (vT2, vL))
    A("v_lshlrev_b32 v%d, 1, v%d" % (vT2, vT2))
    A("v_lshl_add_u32 v%d, v%d, 10, v%d" % (vSel + 1, vT0, vT2))
    def h_check(retry, ok):
        sumu(vT2, vBF, 16)
        maxu(vT3, vSs, 4)
        A("s_add_u32 s%d, s%d, 16" % (sb, sI))
        A("v_cmp_eq_u32 vcc, -1, v%d" % vT3)
        A("v_readlane_b32 s68, v%d, s%d" % (vSs + 3, sI))
        A("v_readlane_b32 s69, v%d, s%d" % (vSs + 3, sb))
        A("v_readlane_b32 s%d, v%d, 0" % (sa, vT2))
        A("v_readlane_b32 s%d, v%d, 32" % (sb, vT2))
        A("s_add_u32 s%d, s%d, s%d" % (sa, sa, sb))
        A("s_min_u32 s%d, s%d, -2" % (sa, sa))
        A("s_xor_b32 s68, s68, s%d" % sa)
        A("v_readlane_b32 s%d, v%d, 1" % (sa, vT2))
        A("v_readlane_b32 s%d, v%d, 33" % (sb, vT2))
        A("s_add_u32 s%d, s%d, s%d" % (sa, sa, sb))
        A("s_min_u32 s%d, s%d, -2" % (sa, sa))
        A("s_xor_b32 s69, s69, s%d" % sa)
        A("s_or_b32 s68, s68, s69")
        A("s_or_b32 s68, s68, vcc_lo")
        A("s_or_b32 s68, s68, vcc_hi")
        A("s_cbranch_scc0 %s" % ok)
        h_loads()
        ss_load()
        A("s_waitcnt vmcnt(0)")
        spin_tail(retry, sCnt)
    A.label("K_OWN")
    A("v_cmp_ne_u32 vcc, s%d, v%d" % (sI1, vTok))
    A("v_cmp_ne_u32 s[68:69], s%d, v%d" % (sI2, vTok))
    A("s_and_b64 exec, vcc, s[68:69]")
    A("buffer_store_dwordx4 %s, v%d, %s, s%d offen %s" % (vr(vHp, 4), vT1, sr(sW, 4), sd, {0: "", 1: "sc1", 2: "nt", 3: "sc0 sc1"}[opt.get("outf", 0)]))
    A("s_mov_b64 exec, -1")
    A("s_cmp_eq_u32 s%d, 0" % sRole)
    A("s_cbranch_scc1 K_FIN")
    A("v_bfe_u32 v%d, v%d, 2, 2" % (vT0, vL))
    A("v_and_b32 v%d, 3, v%d" % (vT2, vL))
    A("s_cmp_eq_u32 s%d, 1" % sRole)
    A("s_cbranch_scc0 K_FA_D")
    A("v_lshl_add_u32 v%d, v%d, 3, v%d" % (vT0, vG, vT0))
    A("s_lshl_b32 s68, s%d, 11" % sWv)
    A("s_add_u32 s68, s68, %d" % L_F)
    A("v_lshl_add_u32 v%d, v%d, 5, s68" % (vT0, vT0))
    A("v_lshl_add_u32 v%d, v%d, 3, v%d" % (vT0, vT2, vT0))
    A("v_bfe_u32 v%d, v%d, 4, 1" % (vT2, vL))
    A("v_mul_u32_u24 v%d, %d, v%d" % (vT2, L_FU - L_F, vT2))
    A("v_add_u32 v%d, v%d, v%d" % (vT0, vT0, vT2))
    for s in range(4):
        for half in range(2):
            A("ds_read_b64_tr_b16 %s, v%d offset:%d" % (vr(vFA + 4 * s + 2 * half, 2), vT0, (16 * s + 4 * half) * 32))
    A("s_branch K_FA_DONE")
    A.label("K_FA_D")
    A("v_lshrrev_b32 v%d, 4, v%d" % (vT3, vL))
    A("v_lshl_add_u32 v%d, v%d, 3, v%d" % (vT0, vT3, vT0))
    A("s_lshl_b32 s68, s%d, 10" % sWv)
    A("s_add_u32 s68, s68, %d" % L_F)
    A("v_lshl_add_u32 v%d, v%d, 5, s68" % (vT0, vT0))
    A("v_lshl_add_u32 v%d, v%d, 3, v%d" % (vT0, vT2, vT0))
    for i in range(6):
        if i == 5:
            A("s_cmp_lt_u32 s%d, 3" % sWv)
            A("s_cbranch_scc0 K_FA_DONE")
        for half in range(2):
            A("ds_read_b64_tr_b16 %s, v%d offset:%d" % (vr(vFA + 4 * i + 2 * half, 2), vT0, i * 8192 + 4 * half * 32))
    A.label("K_FA_DONE")
    A("s_cmp_eq_u32 s%d, 1" % sRole)
    A("s_cbranch_scc0 K_DOWN")
    A("v_lshlrev_b32 v%d, 7, v%d" % (vT0, vN))
    A("v_lshl_add_u32 v%d, v%d, 4, v%d" % (vT0, vG, vT0))
    A("s_mul_i32 s%d, s%d, 384" % (sa, sWv))
    A("s_add_u32 s%d, s%d, %d" % (sa, sa, L_R2))
    A("v_add_u32 v%d, s%d, v%d" % (vT0, sa, vT0))
    A("s_mov_b32 s%d, 0" % sCnt)
    A("s_waitcnt vmcnt(1) lgkmcnt(0)")
    A.label("K_HCHK")
    for s in range(4):
        A("%s %s, %s, %s, %s" % (MFMA, vr(vAcc, 16), vr(vFA + 4 * s, 4), vr(vBF + 4 * s, 4), "0" if s == 0 else vr(vAcc, 16)))
    h_check("K_HCHK", "K_HOK")
    A.label("K_HOK")
    A("s_mov_b32 exec_lo, 7")
    A("s_mov_b32 exec_hi, 7")
    for a_ in range(4):
        A("ds_write_b128 v%d, %s offset:%d" % (vT0, vr(vAcc + 4 * a_, 4), a_ * 32))
    A("s_mov_b64 exec, -1")
    A("s_cmp_eq_u32 s%d, 0" % sWv)
    A("s_cbranch_scc1 K_GU_W0")
    A("s_waitcnt lgkmcnt(0)")
    A("s_barrier")
    A("s_branch K_FIN")
    A.label("K_GU_W0")
    red8((vSs, vSs + 1, vSs + 2))
    ln_stats(vSs, vSs + 1)
    A("v_bfe_u32 v%d, v%d, 4, 1" % (vT0, vL))
    A("v_and_b32 v%d, 15, v%d" % (vT2, vL))
    A("v_lshlrev_b32 v%d, 2, v%d" % (vT3, vT2))
    A("v_mul_u32_u24 v%d, 1536, v%d" % (vT2, vG))
    A("v_add_u32 v%d, v%d, v%d" % (vT3, vT3, vT2))
    A("v_add_u32 v%d, %d, v%d" % (vT3, L_R2, vT3))
    A("v_lshl_add_u32 v%d, v%d, 7, v%d" % (vT2, vT0, vT3))
    A("v_add_u32 v%d, 768, v%d" % (vP1, vT2))
    A("v_add_u32 v%d, 768, v%d" % (vP2, vT3))
    A("v_lshlrev_b32 v%d, 1, v%d" % (vT0, vL))
    A("s_lshl_b32 s%d, s%d, 6" % (sa, sJ))
    A("s_add_u32 s%d, s%d, 0x%x" % (sa, sa, WS_A))
    A("s_waitcnt lgkmcnt(0)")
    A("s_barrier")
    stamp(14)
    for hh, (ra, rb) in enumerate(((vT2, vT3), (vP1, vP2))):
        for w_ in range(2):
            A("ds_read2_b32 %s, v%d offset0:%d offset1:%d" % (vr(vX + 8 * hh + 4 * w_, 2), ra, w_ * 96, w_ * 96 + 16))
            A("ds_read2_b32 %s, v%d offset0:%d offset1:%d" % (vr(vX + 8 * hh + 4 * w_ + 2, 2), rb, w_ * 96 + 64, w_ * 96 + 80))
    A("s_waitcnt lgkmcnt(0)")
    for i in range(4):
        A("v_add_f32 v%d, v%d, v%d" % (vX + i, vX + i, vX + 4 + i))
        A("v_add_f32 v%d, v%d, v%d" % (vX + 8 + i, vX + 8 + i, vX + 12 + i))
    for i in range(4):
        A("v_add_f32 v%d, v%d, v%d" % (vX + i, vX + i, vX + 8 + i))
    for i in range(4):
        A("v_mov_b32 v%d, v%d" % (vX + 4 + i, vX + i))
    A.nop(1)
    for i in range(4):
        A("v_permlane32_swap_b32 v%d, v%d" % (vX + i, vX + 4 + i))
    for i in range(4):
        A("v_add_f32 v%d, v%d, v%d" % (vX + i, vX + i, vX + 4 + i))
    A("v_fma_f32 v%d, -v%d, v%d, v%d" % (vX, vSs, vX + 2, vX))
    A("v_fma_f32 v%d, -v%d, v%d, v%d" % (vX + 1, vSs, vX + 3, vX + 1))
    A("v_mul_f32 v%d, v%d, v%d" % (vX, vX, vSs + 1))
    A("v_mul_f32 v%d, v%d, v%d" % (vX + 1, vX + 1, vSs + 1))
    A("v_mul_f32 v%d, %s, v%d" % (vX + 2, f32(-LOG2E), vX))
    A("v_exp_f32 v%d, v%d" % (vX + 2, vX + 2))
    A("v_mul_f32 v%d, v%d, v%d" % (vX, vX, vX + 1))
    A("v_add_f32 v%d, 1.0, v%d" % (vX + 2, vX + 2))
    A("v_rcp_f32 v%d, v%d" % (vX + 2, vX + 2))
    A.nop(1)
    A("v_mul_f32 v%d, v%d, v%d" % (vX, vX, vX + 2))
    A.nop(2)
    A("v_mov_b32_dpp v%d, v%d quad_perm:[1,0,3,2] row_mask:0xf bank_mask:0xf" % (vX + 1, vX))
    A("v_cvt_pk_bf16_f32 v%d, v%d, v%d" % (vX + 2, vX, vX + 1))
    A("v_min_u32 v%d, -2, v%d" % (vX + 2, vX + 2))
    A("s_mov_b32 exec_lo, 0x55555555")
    A("s_mov_b32 exec_hi, 0")
    A("buffer_store_dword v%d, v%d, %s, s%d offen sc1" % (vX + 2, vT0, sr(sWS, 4), sa))
    A("s_mov_b64 exec, -1")
    A("s_branch K_FIN")
    A.label("K_DOWN")
    A("s_cmp_eq_u32 s%d, 0" % sWv)
    A("s_cbranch_scc0 K_D_POLL")
    A("s_mov_b32 s%d, 0" % sCnt)
    A("s_waitcnt vmcnt(0)")
    A.label("K_DH")
    h_check("K_DH", "K_DH_OK")
    A.label("K_DH_OK")
    A("v_lshlrev_b32 v%d, 5, v%d" % (vT0, vN))
    A("v_lshl_add_u32 v%d, v%d, 4, v%d" % (vT0, vG, vT0))
    A("v_add_u32 v%d, %d, v%d" % (vT0, L_TOP + 128, vT0))
    A("s_mov_b32 exec_lo, 3")
    A("s_mov_b32 exec_hi, 3")
    A("ds_write_b128 v%d, %s" % (vT0, vr(vBF, 4)))
    A("s_mov_b64 exec, -1")
    A("v_and_b32 v%d, 30, v%d" % (vT0, vL))
    A("v_lshlrev_b32 v%d, 1, v%d" % (vT0, vT0))
    A("v_add_u32 v%d, %d, v%d" % (vT0, L_TOP + 128, vT0))
    A("s_waitcnt lgkmcnt(0)")
    A("ds_read_b32 v%d, v%d" % (vSel, vT0))
    A("s_waitcnt lgkmcnt(0)")
    red8((vSs, vSs + 1, vSs + 2))
    ln_stats(vSs, vSs + 1)
    A("v_lshlrev_b32 v%d, 16, v%d" % (vX, vSel))
    A("v_and_b32 v%d, 0xffff0000, v%d" % (vSel, vSel))
    A("v_fma_f32 v%d, -v%d, v%d, v%d" % (vSs + 2, vSs, vW1, vSs + 2))
    A("v_mul_f32 v%d, v%d, v%d" % (vSs + 2, vSs + 2, vSs + 1))
    A("v_mul_f32 v%d, %s, v%d" % (vSs + 2, f32(-LOG2E), vSs + 2))
    A("v_exp_f32 v%d, v%d" % (vSs + 2, vSs + 2))
    A("s_mov_b32 vcc_lo, 0x55555555")
    A("s_mov_b32 vcc_hi, 0x55555555")
    A("v_cndmask_b32 v%d, v%d, v%d, vcc" % (vSel, vSel, vX))
    A("v_add_f32 v%d, 1.0, v%d" % (vSs + 2, vSs + 2))
    A("v_rcp_f32 v%d, v%d" % (vSs + 2, vSs + 2))
    A("v_sub_f32 v%d, v%d, v%d" % (vX + 1, vSel, vSs))
    A("v_fmac_f32 v%d, v%d, v%d" % (vSel, vX + 1, vSs + 1))
    A.label("K_D_POLL")
    A("v_and_b32 v%d, 1, v%d" % (vT0, vL))
    A("v_lshlrev_b32 v%d, 5, v%d" % (vT0, vT0))
    A("v_lshl_add_u32 v%d, v%d, 6, v%d" % (vT0, vG, vT0))
    A("v_bfe_u32 v%d, v%d, 4, 1" % (vT2, vL))
    A("v_lshl_add_u32 v%d, v%d, 4, v%d" % (vT0, vT2, vT0))
    A("v_lshrrev_b32 v%d, 4, v%d" % (vT2, vL))
    A("s_lshl_b32 s68, s%d, 7" % sWv)
    A("s_add_u32 s%d, s68, 0x%x" % (sa, WS_A))
    A("s_add_u32 s%d, s%d, 4096" % (sc, sa))
    A("v_and_b32 v%d, 15, v%d" % (vT3, vL))
    A("v_lshlrev_b32 v%d, 6, v%d" % (vT3, vT3))
    A("v_lshl_add_u32 v%d, v%d, 4, v%d" % (vT3, vT2, vT3))
    A("s_add_u32 s68, s68, %d" % L_R2)
    A("v_add_u32 v%d, s68, v%d" % (vT3, vT3))
    A("s_mov_b32 exec_lo, 0x00030003")
    A("s_mov_b32 exec_hi, 0x00030003")
    A("s_mov_b32 s%d, 0" % sCnt)
    A.label("K_POLLA")
    for i in range(5):
        if i < 4:
            A("buffer_load_dwordx4 %s, v%d, %s, s%d offen offset:%d sc1" % (vr(vBF + 4 * i, 4), vT0, sr(sWS, 4), sa, i * 1024))
        else:
            A("buffer_load_dwordx4 %s, v%d, %s, s%d offen sc1" % (vr(vBF + 4 * i, 4), vT0, sr(sWS, 4), sc))
    A("s_cmp_lt_u32 s%d, 3" % sWv)
    A("s_cbranch_scc0 K_POLLA5")
    A("buffer_load_dwordx4 %s, v%d, %s, s%d offen offset:1024 sc1" % (vr(vBF + 20, 4), vT0, sr(sWS, 4), sc))
    A.label("K_POLLA5")
    A("s_waitcnt vmcnt(0) lgkmcnt(0)")
    maxu(vT2, vBF, 24)
    A("v_cmp_eq_u32 vcc, -1, v%d" % vT2)
    A("s_cmp_eq_u64 vcc, 0")
    A("s_cbranch_scc1 K_POLLA_OK")
    spin_tail("K_POLLA", sCnt)
    A.label("K_POLLA_OK")
    A("s_mov_b64 exec, -1")
    stamp(14)
    for i in range(5):
        A("%s %s, %s, %s, %s" % (MFMA16, vr(vAcc, 4), vr(vFA + 4 * i, 4), vr(vBF + 4 * i, 4), "0" if i == 0 else vr(vAcc, 4)))
    A("s_cmp_lt_u32 s%d, 3" % sWv)
    A("s_cbranch_scc0 K_D5")
    A("%s %s, %s, %s, %s" % (MFMA16, vr(vAcc, 4), vr(vFA + 20, 4), vr(vBF + 20, 4), vr(vAcc, 4)))
    A.label("K_D5")
    A("v_lshlrev_b32 v%d, 2, v%d" % (vT0, vN))
    A("v_lshl_add_u32 v%d, v%d, 9, v%d" % (vT0, vG, vT0))
    A("v_add_u32 v%d, %d, v%d" % (vT0, L_R2, vT0))
    A("s_mov_b32 exec_lo, 0x00030003")
    A("s_mov_b32 exec_hi, 0x00030003")
    A.nop(3)
    A("ds_write_b128 v%d, %s" % (vT3, vr(vAcc, 4)))
    A("s_mov_b64 exec, -1")
    A("s_waitcnt lgkmcnt(0)")
    A("s_barrier")
    A("s_cmp_eq_u32 s%d, 0" % sWv)
    A("s_cbranch_scc0 K_FIN")
    A("ds_read2_b32 %s, v%d offset0:0 offset1:32" % (vr(vX + 2, 2), vT0))
    A("ds_read2_b32 %s, v%d offset0:64 offset1:96" % (vr(vX + 4, 2), vT0))
    A("s_lshl_b32 s%d, s%d, 5" % (sa, sJ))
    A("s_waitcnt lgkmcnt(0)")
    A("v_add_f32 v%d, v%d, v%d" % (vX + 2, vX + 2, vX + 3))
    A("v_add_f32 v%d, v%d, v%d" % (vX + 4, vX + 4, vX + 5))
    A("v_add_f32 v%d, v%d, v%d" % (vX, vX + 2, vX + 4))
    A("v_mov_b32 v%d, v%d" % (vX + 2, vX))
    A.nop(2)
    A("v_permlane32_swap_b32 v%d, v%d" % (vX, vX + 2))
    A.nop(1)
    A("v_add_f32 v%d, v%d, v%d" % (vX, vX, vX + 2))
    A("v_fmac_f32 v%d, v%d, v%d" % (vSel, vX, vSs + 2))
    if opt.get("tcheck"):
        A("s_memrealtime s[68:69]")
        A("s_waitcnt lgkmcnt(0)")
        A("v_sub_u32 v%d, s68, v%d" % (vX, vNon))
        A("v_cmp_lt_u32 vcc, %d, v%d" % (opt["tcheck"], vX))
        A("v_mov_b32 v%d, 0x42c80000" % vX)
        A.nop(1)
        A("v_cndmask_b32 v%d, v%d, v%d, vcc" % (vSel, vSel, vX))
    A.nop(2)
    A("v_mov_b32_dpp v%d, v%d quad_perm:[1,0,3,2] row_mask:0xf bank_mask:0xf" % (vX, vSel))
    A("v_cvt_pk_bf16_f32 v%d, v%d, v%d" % (vSel, vSel, vX))
    A("s_mov_b32 exec_lo, 0x55555555")
    A("s_mov_b32 exec_hi, 0")
    A("buffer_store_dword v%d, v%d, %s, s%d offen" % (vSel, vSel + 1, sr(sW, 4), sa))
    A("s_mov_b64 exec, -1")
    A.label("K_FIN")
    if STAMPS:
        A("s_waitcnt vmcnt(0)")
        stamp(15)
        A("s_waitcnt lgkmcnt(0)")
        if opt.get("dbgout"):
            A("s_cmp_eq_u32 s2, %d" % opt["dbgout"])
            A("s_cbranch_scc0 K_END")
            A("s_cmp_eq_u32 s%d, 0" % sWv)
            A("s_cbranch_scc0 K_END")
            srd(sGA, pDBG, 256)
            A("v_mov_b32 v%d, 0" % vT0)
            A("s_mov_b64 exec, 1")
            for i, st in enumerate((0, 2, 3, 4, 5, 6, 7, 9, 10, 11, 12, 13, 14, 15)):
                A("v_mov_b32 v%d, s%d" % (vT2, 70 + 2 * st))
                A("v_sub_u32 v%d, v%d, v%d" % (vT2, vT2, vNon))
                A("buffer_store_dword v%d, v%d, %s, 0 offen offset:%d" % (vT2, vT0, sr(sGA, 4), 8 + 4 * i))
                A.nop(2)
            A("s_branch K_END")
        A("s_lshl_b32 s%d, s2, 3" % sa)
        A("s_add_u32 s%d, s%d, s%d" % (sa, sa, sWv))
        A("s_mul_i32 s%d, s%d, %d" % (sa, sa, NSTAMP_SLOTS * 8))
        A("s_add_u32 s%d, s%d, 0x%x" % (sa, sa, WS_STAMP))
        A("v_mov_b32 v%d, 0" % vT0)
        A("s_mov_b64 exec, 1")
        for i in range(16):
            A("v_mov_b32 v%d, s%d" % (vT2, 70 + 2 * i))
            A("v_mov_b32 v%d, s%d" % (vT3, 71 + 2 * i))
            A("buffer_store_dwordx2 %s, v%d, %s, s%d offen offset:%d" % (vr(vT2, 2), vT0, sr(sWS, 4), sa, i * 8))
            A.nop(2)
    A.label("K_END")
    A("s_endpgm")
    return A.text(), 256, LDS

HEADER = open("sequential_preLN__sliding_block__moe_arch_mod__prompt.s.ref").read().split("; Override launch")[0]

def build(opt):
    k, nv, lds = gen(opt)
    s = HEADER
    s += "; @launch grid=(256,1,1) block=(512,1,1) lds=%d\n" % lds
    s += '.amdgcn_target "amdgcn-amd-amdhsa--gfx950"\n.text\n'
    s += ".globl %s\n.p2align 8\n.type %s,@function\n%s:\n%s" % (KNAME, KNAME, KNAME, k)
    s += '.section .rodata,"a"\n'
    s += """.p2align 6
.amdhsa_kernel %s
  .amdhsa_next_free_vgpr %d
  .amdhsa_next_free_sgpr 102
  .amdhsa_accum_offset %d
  .amdhsa_group_segment_fixed_size 0
  .amdhsa_kernarg_size 88
  .amdhsa_user_sgpr_count 2
  .amdhsa_user_sgpr_kernarg_segment_ptr 1
  .amdhsa_system_sgpr_workgroup_id_x 1
.end_amdhsa_kernel
""" % (KNAME, nv, (nv + 3) // 4 * 4)
    return s

if __name__ == "__main__":
    out = sys.argv[1] if len(sys.argv) > 1 else "k.s"
    opt = {}
    for a in sys.argv[2:]:
        k, v = a.split("=")
        opt[k] = int(v)
    open(out, "w").write(build(opt))
```
